```python
import torch

def _softmax(x, axis=-1):
    return torch.softmax(x, dim=axis)
def _gelu(x):
    return torch.nn.functional.gelu(x, approximate="tanh")
def _silu(x):
    return torch.nn.functional.silu(x)
def _sigmoid(x):
    return torch.sigmoid(x)
def _layernorm(x, axis=-1, eps=1e-5):
    m = x.mean(dim=axis, keepdim=True)
    v = x.var(dim=axis, keepdim=True, unbiased=False)
    return (x - m) / torch.sqrt(v + eps)
def _scatter_add(tgt, idx, src, axis=0):
    return tgt.clone().index_add_(axis, idx, src)
def _segment_sum(src, seg, n):
    out = torch.zeros((n,) + src.shape[1:], dtype=src.dtype)
    return out.index_add_(0, seg, src)
def _pad(x, pw):
    flat = tuple(v for pair in reversed(pw) for v in pair)
    return torch.nn.functional.pad(x, flat)

kernel_name = 'gated_mix__ssm_conv_s4d__ssm_conv_h3__prompt'

def setup_inputs():

    _w = (lambda a: (lambda t: t.to(torch.bfloat16) if t.is_floating_point() else t)(torch.as_tensor(a)))
    def _A_setup():
        Bsz, L, D, N = 1, 2048, 512, 128
        return {
            "u": _w((lambda *s: torch.randn(*s, dtype=torch.bfloat16) * 0.05)(Bsz, L, D)),
            "log_A_real": _w((lambda *s: torch.randn(*s, dtype=torch.bfloat16) * 3.2)(D, N) * 0.5),
            "A_imag": _w((lambda *s: torch.randn(*s, dtype=torch.bfloat16) * 0.2)(D, N) * 3.14),
            "C_real": _w((lambda *s: torch.randn(*s, dtype=torch.bfloat16) * 3.2)(D, N) / N ** 0.5),
            "C_imag": _w((lambda *s: torch.randn(*s, dtype=torch.bfloat16) * 3.2)(D, N) / N ** 0.5),
            "log_dt": _w((lambda *s: torch.randn(*s, dtype=torch.bfloat16) * 0.2)(D) * 0.5 - 4.0),
            "D_skip": _w((lambda *s: torch.randn(*s, dtype=torch.bfloat16) * 0.4)(D)),
        }
    _A_in = _A_setup()

    def _B_setup():
        B, S, D = 1, 2048, 512
        ks = 4
        return {
            "q": _w((lambda *s: torch.randn(*s, dtype=torch.bfloat16) * 0.05)(B, S, D)),
            "k": _w((lambda *s: torch.randn(*s, dtype=torch.bfloat16) * 0.8)(B, S, D)),
            "v": _w((lambda *s: torch.randn(*s, dtype=torch.bfloat16) * 0.8)(B, S, D)),
            "shift_k": _w((lambda *s: torch.randn(*s, dtype=torch.bfloat16) * 0.8)(D, ks) * 0.5),
            "ssm_k": _w((lambda *s: torch.randn(*s, dtype=torch.bfloat16) * 0.8)(D, S) * (1.0 / S ** 0.5)),
            "ssm_D": _w((lambda *s: torch.randn(*s, dtype=torch.bfloat16) * 0.8)(D)),
        }
    _B_in = _B_setup()

    return {
        "A_u": _A_in["u"],
        "A_log_A_real": _A_in["log_A_real"],
        "A_A_imag": _A_in["A_imag"],
        "A_C_real": _A_in["C_real"],
        "A_C_imag": _A_in["C_imag"],
        "A_log_dt": _A_in["log_dt"],
        "A_D_skip": _A_in["D_skip"],
        "B_q": _B_in["q"],
        "B_k": _B_in["k"],
        "B_v": _B_in["v"],
        "B_shift_k": _B_in["shift_k"],
        "B_ssm_k": _B_in["ssm_k"],
        "B_ssm_D": _B_in["ssm_D"],
        "gate_w": _w((lambda *s: torch.randn(*s, dtype=torch.bfloat16) * 0.05)(512) * 16.0),
    }

def reference(A_u, A_log_A_real, A_A_imag, A_C_real, A_C_imag, A_log_dt, A_D_skip, B_q, B_k, B_v, B_shift_k, B_ssm_k, B_ssm_D, gate_w):
    def _A_ref(u, log_A_real, A_imag, C_real, C_imag, log_dt, D_skip):
        L = u.shape[1]
        dt = torch.exp(log_dt)
        A = -torch.exp(log_A_real) + 1j * A_imag
        C = (C_real + 1j * C_imag) * dt[:, None]
        pos = (lambda x, dt: x.to(dt))(torch.arange(L), log_dt.dtype)
        P = torch.exp((A * dt[:, None])[:, :, None] * pos[None, None, :])
        K = 2.0 * torch.einsum("dn,dnl->dl", C, P).real
        L2 = 2 * L
        u_t = (lambda x, *d: x.permute(*d))(u, 0, 2, 1)
        Kf = (lambda x, *a, **k: torch.fft.rfft(x.float(), *a, **k))(K, L2)
        Uf = (lambda x, *a, **k: torch.fft.rfft(x.float(), *a, **k))(u_t, L2)
        y = (lambda x, *a, **k: torch.fft.irfft(x, *a, **k).to(torch.bfloat16))(Uf * Kf[None, :, :], L2)[:, :, :L]
        y = (lambda x, *d: x.permute(*d))(y, 0, 2, 1)
        return y + u * D_skip[None, None, :]

    def _B_ref(q, k, v, shift_k, ssm_k, ssm_D):
        B, S, D = q.shape
        ks = shift_k.shape[-1]
        k_pad = _pad(k, ((0, 0), (ks - 1, 0), (0, 0)))
        k_shift = torch.zeros_like(k)
        for t in range(ks):
            k_shift = k_shift + k_pad[:, t:t + S, :] * shift_k[:, ks - 1 - t][None, None, :]
        kv = k_shift * v
        L = 2 * S
        kv_pad = _pad(kv, ((0, 0), (0, S), (0, 0)))
        kf_pad = _pad(ssm_k, ((0, 0), (0, S)))
        kv_f = (lambda x, axes=(-2,-1): torch.fft.rfft2(x.float(), dim=axes))(kv_pad[:, None, :, :], axes=(1, 2))
        kf_f = (lambda x, axes=(-2,-1): torch.fft.rfft2(x.float(), dim=axes))(kf_pad[:, None, :], axes=(1, 2))
        kf_f = (lambda x, *d: x.permute(*d))(kf_f, 1, 2, 0)
        y_f = kv_f * kf_f[None, :, :, :]
        y = (lambda x, s, axes=(-2,-1): torch.fft.irfft2(x, s=s, dim=axes).to(torch.bfloat16))(y_f, (1, L), axes=(1, 2))[:, 0, :S, :]
        y = y + kv * ssm_D[None, None, :]
        return q * y

    x = A_u
    g = _sigmoid((x * gate_w).sum(-1, keepdims=True))
    a = _A_ref(x, A_log_A_real, A_A_imag, A_C_real, A_C_imag, A_log_dt, A_D_skip)
    b = _B_ref(x, B_k, B_v, B_shift_k, B_ssm_k, B_ssm_D)
    return g * a + (1 - g) * b
```

```python
import sys, struct

NAME = "gated_mix__ssm_conv_s4d__ssm_conv_h3__prompt"


def f2u(x):
    return struct.unpack("<I", struct.pack("<f", x))[0]


class A:
    def __init__(self):
        self.l = []

    def __call__(self, s):
        self.l.append("    " + s)

    def lab(self, s):
        self.l.append(s + ":")

    def c(self, s):
        self.l.append("    ; " + s)

    def text(self):
        return "\n".join(self.l) + "\n"


def vr(a, n=1):
    return f"v{a}" if n == 1 else f"v[{a}:{a+n-1}]"


def sr(a, n=1):
    return f"s{a}" if n == 1 else f"s[{a}:{a+n-1}]"


FSTR = 4224
GSTR = 4640
CONV = 2 * FSTR + 2 * GSTR
def F0(q): return q * CONV
def F1(q): return q * CONV + FSTR
def G0(q): return q * CONV + 2 * FSTR
def G1(q): return q * CONV + 2 * FSTR + GSTR
KC = 4 * CONV
KCSZ = 768 * 4
TBL = KC + 2 * KCSZ
TBLSZ = 16 * 288
GS = TBL + 4 * TBLSZ
CNT = GS + 8192
YS = CNT + 64
LDS_TOTAL = YS + 4 * 4096
IDXBIAS = 4 * 0x4280

WS_U = 0
WS_KV = 0x200000
WS_G = 0x400000
WS_SIZE = 0x800000

P_U, P_LAR, P_AIM, P_CR, P_CI, P_LDT, P_DSK, P_Q = 16, 18, 20, 22, 24, 26, 28, 30
P_K, P_V, P_SHK, P_SSMK, P_SSMD, P_GW, P_OUT, P_DBG = 32, 34, 36, 38, 40, 42, 44, 46
P_WS = 48
S_WV, S_CG, S_TB, S_D0 = 3, 4, 5, 6
S_HI = 50
S_T0, S_T1, S_T2, S_T3 = 8, 9, 10, 11
R_U, R_K, R_V, R_WS, R_OUT, R_DBG = 52, 56, 60, 64, 68, 72
S_SELLO, S_SELHI, S_4096, S_KV0, S_KV1 = 76, 77, 78, 79, 80
S_DS, S_DM = 82, 84
S_RAWDS, S_RAWDM, S_RAWDT = 86, 87, 88
S_SC, S_ISC = 89, 90
S_SPIN = 91
S_KC, S_HM = 92, 93

L2E = 0x3FB8AA3B
L2E_LO = 0x32A57060
LN2 = 0x3F317218

SPIN_MAX = 0x100000


def srd(a, r, p, size):
    a(f"s_mov_b32 s{r}, s{p}")
    a(f"s_and_b32 s{r+1}, s{p+1}, 0xffff")
    a(f"s_mov_b32 s{r+2}, {hex(size)}")
    a(f"s_mov_b32 s{r+3}, 0x20000")


def rnd(a, d, s):
    a(f"v_cvt_pk_bf16_f32 v{d}, 0, v{s}")


def unpack2(a, d, s):
    a(f"v_lshlrev_b32 v{d}, 16, v{s}")
    a(f"v_and_b32 v{d+1}, s{S_HI}, v{s}")


def cmul(a, d, x, y):
    assert d not in (x, y) and d % 2 == 0 and x % 2 == 0 and y % 2 == 0
    a(f"v_pk_mul_f32 {vr(d,2)}, {vr(x,2)}, {vr(y,2)} op_sel:[0,0] op_sel_hi:[1,0]")
    a(f"v_pk_fma_f32 {vr(d,2)}, {vr(x,2)}, {vr(y,2)}, {vr(d,2)} op_sel:[1,1,0] op_sel_hi:[0,1,1] neg_lo:[1,0,0]")


def prologue(a, endlab):
    a("s_cmp_ge_u32 s2, 256")
    a(f"s_cbranch_scc1 {endlab}")
    a("s_load_dwordx16 s[16:31], s[0:1], 0")
    a("s_load_dwordx16 s[32:47], s[0:1], 64")
    a("s_load_dwordx2 s[48:49], s[0:1], 128")
    a("v_lshrrev_b32 v1, 6, v0")
    a(f"s_and_b32 s{S_CG}, s2, 7")
    a(f"v_readfirstlane_b32 s{S_WV}, v1")
    a("v_and_b32 v1, 63, v0")
    a(f"s_lshr_b32 s{S_TB}, s2, 3")
    a(f"s_lshl_b32 s{S_D0}, s{S_CG}, 6")
    a(f"s_lshl_b32 s{S_T0}, s{S_TB}, 1")
    a(f"s_add_u32 s{S_D0}, s{S_D0}, s{S_T0}")
    a(f"s_mov_b32 s{S_HI}, 0xffff0000")


def phase1_loads(a, with_ssmk):
    a.c("---- phase 1 loads")
    srd(a, R_U, P_U, 0x200000)
    srd(a, R_K, P_K, 0x200000)
    srd(a, R_V, P_V, 0x200000)
    srd(a, R_WS, P_WS, WS_SIZE)
    a(f"s_movk_i32 s{S_4096}, 0x1000")
    a("v_and_b32 v2, 7, v1")
    a(f"s_lshl_b32 s{S_T0}, s{S_WV}, 3")
    a(f"v_add_u32 v2, s{S_T0}, v2")
    a("v_lshrrev_b32 v3, 3, v1")
    a(f"s_lshl_b32 s{S_T1}, s{S_CG}, 9")
    a(f"v_lshl_add_u32 v5, v2, 4, s{S_T1}")
    a(f"global_load_dwordx4 v[48:51], v5, s[{P_SHK}:{P_SHK+1}]")
    a(f"s_lshl_b32 s{S_T0}, s{S_TB}, 16")
    a(f"s_lshl_b32 s{S_T1}, s{S_CG}, 7")
    a(f"s_add_u32 s{S_T0}, s{S_T0}, s{S_T1}")
    a(f"v_lshl_add_u32 v4, v3, 13, s{S_T0}")
    a("v_lshl_add_u32 v4, v2, 2, v4")
    a("v_subrev_u32 v5, 0xc00, v4")
    for j in range(3):
        a(f"buffer_load_dword v{20+j}, v5, s[{R_K}:{R_K+3}], 0 offen offset:{j*1024}")
    for base, R in ((23, R_K), (31, R_V), (39, R_U)):
        for j in range(8):
            so = "0" if j < 4 else f"s{S_4096}"
            a(f"buffer_load_dword v{base+j}, v4, s[{R}:{R+3}], {so} offen offset:{(j%4)*1024}")
    a(f"s_lshl_b32 s{S_T0}, s2, 13")
    a(f"v_lshl_add_u32 v6, v0, 5, s{S_T0}")
    a(f"buffer_load_dwordx4 v[52:55], v6, s[{R_U}:{R_U+3}], 0 offen")
    a(f"buffer_load_dwordx4 v[56:59], v6, s[{R_U}:{R_U+3}], 0 offen offset:16")
    a("v_and_b32 v7, 31, v0")
    a("v_lshlrev_b32 v7, 5, v7")
    a(f"global_load_dwordx4 v[60:63], v7, s[{P_GW}:{P_GW+1}]")
    a(f"global_load_dwordx4 v[64:67], v7, s[{P_GW}:{P_GW+1}] offset:16")
    n_after_u = 4
    if with_ssmk:
        ssmk_loads(a)
        n_after_u += 2
    return n_after_u


def ssmk_loads(a):
    a(f"s_lshl_b32 s{S_T0}, s{S_D0}, 12")
    a(f"v_lshl_add_u32 v8, v0, 4, s{S_T0}")
    a("v_add_u32 v9, 0x1000, v8")
    a(f"global_load_dwordx4 v[68:71], v8, s[{P_SSMK}:{P_SSMK+1}]")
    a(f"global_load_dwordx4 v[72:75], v9, s[{P_SSMK}:{P_SSMK+1}]")


def phase1_compute(a, n_after_u, sc):
    a.c("---- phase 1 compute")
    a(f"s_mov_b32 s{S_SELLO}, 0x05040100")
    a(f"s_mov_b32 s{S_SELHI}, 0x07060302")
    a(f"s_mov_b32 s{S_KV0}, {hex(WS_KV)}")
    a(f"s_mov_b32 s{S_KV1}, {hex(WS_KV+4096)}")
    a(f"s_lshl_b32 s{S_T0}, s{S_CG}, 18")
    a(f"s_lshl_b32 s{S_T1}, s{S_TB}, 7")
    a(f"s_sub_u32 s{S_T0}, s{S_T0}, s{S_T1}")
    a(f"s_add_u32 s{S_T0}, s{S_T0}, 4080")
    a(f"v_lshl_add_u32 v10, v2, 13, s{S_T0}")
    a("v_lshlrev_b32 v11, 4, v3")
    a("v_sub_u32 v10, v10, v11")
    a(f"s_waitcnt vmcnt({16+n_after_u})")
    SP = 80
    a(f"v_lshlrev_b32 v{SP+0}, 16, v48")
    a(f"v_lshlrev_b32 v{SP+1}, 16, v50")
    a(f"v_and_b32 v{SP+2}, s{S_HI}, v48")
    a(f"v_and_b32 v{SP+3}, s{S_HI}, v50")
    a(f"v_lshlrev_b32 v{SP+4}, 16, v49")
    a(f"v_lshlrev_b32 v{SP+5}, 16, v51")
    a(f"v_and_b32 v{SP+6}, s{S_HI}, v49")
    a(f"v_and_b32 v{SP+7}, s{S_HI}, v51")
    KP = 90
    for i in range(11):
        unpack2(a, KP + 2 * i, 20 + i)
    ACC = 112
    T = 128
    for r in range(8):
        acc = ACC + 2 * r
        a(f"v_pk_mul_f32 {vr(acc,2)}, {vr(KP+2*r,2)}, {vr(SP+6,2)}")
        a(f"v_pk_mul_f32 {vr(T,2)}, {vr(KP+2*(r+1),2)}, {vr(SP+4,2)}")
        a(f"v_pk_mul_f32 {vr(T+2,2)}, {vr(KP+2*(r+2),2)}, {vr(SP+2,2)}")
        a(f"v_pk_mul_f32 {vr(T+4,2)}, {vr(KP+2*(r+3),2)}, {vr(SP+0,2)}")
        rnd(a, acc, acc); rnd(a, acc + 1, acc + 1)
        for q in range(6):
            rnd(a, T + q, T + q)
        for q in range(3):
            a(f"v_pk_add_f32 {vr(acc,2)}, {vr(acc,2)}, {vr(T+2*q,2)}")
            rnd(a, acc, acc); rnd(a, acc + 1, acc + 1)
    a(f"s_waitcnt vmcnt({8+n_after_u})")
    for r in range(8):
        unpack2(a, T, 31 + r)
        a(f"v_pk_mul_f32 {vr(ACC+2*r,2)}, {vr(ACC+2*r,2)}, {vr(T,2)}")
    O = 136
    for ch in range(2):
        for j in range(4):
            a(f"v_cvt_pk_bf16_f32 v{O+4*ch+j}, v{ACC+2*(7-2*j)+ch}, v{ACC+2*(6-2*j)+ch}")
    a(f"buffer_store_dwordx4 {vr(O,4)}, v10, s[{R_WS}:{R_WS+3}], s{S_KV0} offen{sc}")
    a(f"buffer_store_dwordx4 {vr(O+4,4)}, v10, s[{R_WS}:{R_WS+3}], s{S_KV1} offen{sc}")
    a(f"s_waitcnt vmcnt({2+n_after_u})")
    O2 = 144
    for ch, sel in ((0, S_SELLO), (1, S_SELHI)):
        for j in range(4):
            a(f"v_perm_b32 v{O2+4*ch+j}, v{39+6-2*j}, v{39+7-2*j}, s{sel}")
    a(f"buffer_store_dwordx4 {vr(O2,4)}, v10, s[{R_WS}:{R_WS+3}], 0 offen{sc}")
    a(f"buffer_store_dwordx4 {vr(O2+4,4)}, v10, s[{R_WS}:{R_WS+3}], s{S_4096} offen{sc}")
    a.c("---- gate")
    a(f"s_waitcnt vmcnt({4+n_after_u-4})")
    a("v_mov_b32 v12, 0")
    a(f"s_mov_b32 s{S_T2}, 0x3f803f80")
    for j in range(8):
        unpack2(a, T, 52 + j)
        unpack2(a, T + 2, 60 + j)
        a(f"v_pk_mul_f32 {vr(T,2)}, {vr(T,2)}, {vr(T+2,2)}")
        rnd(a, T, T); rnd(a, T + 1, T + 1)
        a(f"v_add_f32 v12, v12, v{T}")
        a(f"v_add_f32 v12, v12, v{T+1}")
    for d in ("quad_perm:[1,0,3,2]", "quad_perm:[2,3,0,1]", "row_half_mirror", "row_mirror"):
        a("s_nop 1")
        a(f"v_add_f32_dpp v12, v12, v12 {d} row_mask:0xf bank_mask:0xf")
    a("s_nop 1")
    a("v_add_f32_dpp v12, v12, v12 row_bcast:15 row_mask:0xa bank_mask:0xf")
    rnd(a, 12, 12)
    a(f"v_mul_f32 v12, {hex(L2E | 0x80000000)}, v12")
    a("v_exp_f32 v12, v12")
    a("s_nop 0")
    a("v_add_f32 v12, 1.0, v12")
    a("v_rcp_f32 v12, v12")
    a("s_nop 0")
    rnd(a, 12, 12)
    a("v_sub_f32 v13, 1.0, v12")
    a("v_cvt_pk_bf16_f32 v12, v12, v13")
    a("v_lshrrev_b32 v13, 5, v0")
    a(f"s_lshl_b32 s{S_T0}, s2, 5")
    a(f"s_add_u32 s{S_T0}, s{S_T0}, {hex(WS_G)}")
    a(f"v_lshl_add_u32 v13, v13, 2, s{S_T0}")
    a("s_mov_b32 exec_lo, 0x80000000")
    a("s_mov_b32 exec_hi, 0x80000000")
    a(f"buffer_store_dword v12, v13, s[{R_WS}:{R_WS+3}], 0 offen{sc}")
    a("s_mov_b64 exec, -1")


def ssmk_to_lds(a):
    a.c("---- ssm_k -> LDS")
    a("v_lshlrev_b32 v14, 4, v0")
    for ch in range(2):
        q = 2 + ch
        b = 68 + 4 * ch
        a(f"v_add_u32 v15, {G0(q)+452}, v14")
        a(f"ds_write_b128 v15, {vr(b,4)} offset:{GSTR-4}")
        a(f"ds_write2_b32 v15, v{b}, v{b+1} offset0:0 offset1:1")
        a(f"ds_write2_b32 v15, v{b+2}, v{b+3} offset0:2 offset1:3")


def lds_spin(a, lab, addr, val, tmpv=16, tmpa=17):
    a(f"v_mov_b32 v{tmpa}, {addr}")
    a(f"s_mov_b32 s{S_SPIN}, 0")
    a.lab(lab)
    a(f"ds_read_b32 v{tmpv}, v{tmpa}")
    a(f"s_add_u32 s{S_SPIN}, s{S_SPIN}, 1")
    a("s_waitcnt lgkmcnt(0)")
    a(f"v_readfirstlane_b32 s{S_T0}, v{tmpv}")
    a(f"s_cmp_ge_u32 s{S_SPIN}, {hex(SPIN_MAX)}")
    a(f"s_cbranch_scc1 {lab}_done")
    a(f"s_cmp_lt_u32 s{S_T0}, {val}")
    a(f"s_cbranch_scc1 {lab}")
    a.lab(lab + "_done")


def phase2_loads(a, sc):
    a.c("---- phase 2 loads")
    a(f"s_lshl_b32 s{S_T0}, s{S_D0}, 12")
    a(f"v_lshl_add_u32 v8, v0, 4, s{S_T0}")
    a(f"s_mov_b32 s{S_KV0}, {hex(WS_KV)}")
    a(f"s_mov_b32 s{S_KV1}, {hex(WS_KV+4096)}")
    a(f"s_movk_i32 s{S_4096}, 0x1000")
    sofs = ["0", f"s{S_4096}", f"s{S_KV0}", f"s{S_KV1}"]
    for q in range(4):
        a(f"buffer_load_dwordx4 {vr(20+8*q,4)}, v8, s[{R_WS}:{R_WS+3}], {sofs[q]} offen{sc}")
        a(f"buffer_load_dword v{24+8*q}, v8, s[{R_WS}:{R_WS+3}], {sofs[q]} offen offset:16{sc}")
    a("v_lshlrev_b32 v14, 4, v0")
    a("v_cmp_eq_u32 vcc, 0xff, v0")
    for q in range(4):
        b = 20 + 8 * q
        a(f"s_waitcnt vmcnt({6-2*q})")
        a(f"ds_write_b128 v14, {vr(b,4)} offset:{F1(q)}")
        a(f"v_cndmask_b32 v{b+4}, v{b+4}, 0, vcc")
        for j in range(4):
            a(f"v_alignbit_b32 v{60+4*q+j}, v{b+j+1}, v{b+j}, 16")
        a(f"ds_write_b128 v14, {vr(60+4*q,4)} offset:{F0(q)}")


def kgen(a):
    a.c("==== K generation waves")
    a(f"s_sub_u32 s{S_T0}, s{S_WV}, 4")
    a(f"s_lshr_b32 s{S_KC}, s{S_T0}, 1")
    a(f"s_and_b32 s{S_HM}, s{S_T0}, 1")
    a(f"s_add_u32 s{S_T1}, s{S_D0}, s{S_KC}")
    a(f"s_lshl_b32 s{S_T1}, s{S_T1}, 8")
    a(f"s_lshl_b32 s{S_T2}, s{S_HM}, 7")
    a(f"s_add_u32 s{S_T1}, s{S_T1}, s{S_T2}")
    a(f"v_lshl_add_u32 v2, v1, 1, s{S_T1}")
    a(f"s_lshl_b32 s{S_T3}, s{S_D0}, 1")
    a("s_waitcnt lgkmcnt(0)")
    a(f"s_load_dword s{S_RAWDT}, s[{P_LDT}:{P_LDT+1}], s{S_T3}")
    a(f"global_load_ushort v3, v2, s[{P_LAR}:{P_LAR+1}]")
    a(f"global_load_ushort v4, v2, s[{P_AIM}:{P_AIM+1}]")
    a(f"global_load_ushort v5, v2, s[{P_CR}:{P_CR+1}]")
    a(f"global_load_ushort v6, v2, s[{P_CI}:{P_CI+1}]")
    a.c("zero init")
    a("v_and_b32 v7, 0xff, v0")
    for i in range(4):
        a(f"v_mov_b32 v{8+i}, 0")
    a("v_lshrrev_b32 v12, 6, v7")
    a(f"v_mul_u32_u24 v12, {CONV}, v12")
    a("v_bfe_u32 v13, v7, 5, 1")
    a(f"v_mul_u32_u24 v14, {GSTR}, v13")
    a("v_and_b32 v15, 31, v7")
    a("v_min_u32 v16, 28, v15")
    a("v_lshl_add_u32 v16, v16, 4, v14")
    a("v_add_u32 v16, v16, v12")
    a(f"ds_write_b128 v16, v[8:11] offset:{2*FSTR}")
    a(f"v_mul_u32_u24 v14, {FSTR}, v13")
    a("v_and_b32 v16, 3, v15")
    a("v_lshl_add_u32 v16, v16, 4, v14")
    a("v_add_u32 v16, v16, v12")
    a("ds_write_b128 v16, v[8:11] offset:4096")
    a("v_lshlrev_b32 v16, 4, v7")
    a(f"v_add_u32 v16, {KC}, v16")
    a("ds_write_b128 v16, v[8:11]")
    a("ds_write_b128 v16, v[8:11] offset:2048")
    a("v_and_b32 v16, 3, v7")
    a("v_lshlrev_b32 v16, 4, v16")
    a(f"v_add_u32 v16, {CNT}, v16")
    a("ds_write_b128 v16, v[8:11]")
    a("s_waitcnt lgkmcnt(0)")
    a("s_barrier")
    a.c("expansion addresses")
    XA = 200
    a(f"s_lshl_b32 s{S_T0}, s{S_HM}, 10")
    a(f"v_lshl_add_u32 v7, v1, 3, s{S_T0}")
    a(f"s_mul_i32 s{S_T1}, s{S_KC}, {KCSZ}")
    a(f"s_mul_i32 s{S_T2}, s{S_KC}, {CONV}")
    a("v_cmp_gt_u32 vcc, 0x100, v7")
    for g in range(2):
        if g == 1:
            a("v_add_u32 v7, 0x200, v7")
        a("v_cvt_f32_u32 v8, v7")
        for i in range(8):
            d = XA + 8 * g + i
            if i == 0:
                a(f"v_cvt_pk_bf16_f32 v{d}, 0, v8")
            else:
                lit = {1: "1.0", 2: "2.0", 4: "4.0"}.get(i, hex(f2u(float(i))))
                a(f"v_add_f32 v9, {lit}, v8")
                a(f"v_cvt_pk_bf16_f32 v{d}, 0, v9")
            a(f"v_lshrrev_b32 v{d}, 14, v{d}")
            if g == 0:
                a(f"v_lshl_add_u32 v9, v7, 2, {4*i}")
                a(f"v_add_u32 v9, {IDXBIAS}, v9")
                a(f"v_cndmask_b32 v{d}, v{d}, v9, vcc")
            a(f"v_add_u32 v{d}, s{S_T1}, v{d}")
        a(f"v_lshl_add_u32 v{216+g}, v7, 1, s{S_T2}")
        a(f"v_add_u32 v{218+g}, {G0(0)+452}, v{216+g}")
    a(f"s_sub_u32 s{S_T0}, s{S_WV}, 4")
    a(f"s_mul_i32 s{S_T0}, s{S_T0}, {TBLSZ}")
    a(f"s_add_u32 s{S_T0}, s{S_T0}, {TBL}")
    a(f"v_lshl_add_u32 v220, v1, 2, s{S_T0}")
    a("v_and_b32 v7, 15, v1")
    a("v_lshrrev_b32 v8, 4, v1")
    a("v_mul_u32_u24 v221, 288, v7")
    a("v_lshl_add_u32 v221, v8, 4, v221")
    a(f"v_add_u32 v221, s{S_T0}, v221")
    a(f"s_add_u32 s{S_T1}, s{S_T1}, {KC}")
    a("v_lshrrev_b32 v9, 1, v8")
    a("v_and_b32 v10, 1, v8")
    a("v_lshlrev_b32 v222, 7, v9")
    a("v_lshl_add_u32 v222, v10, 2, v222")
    a("v_lshl_add_u32 v222, v7, 3, v222")
    a(f"v_lshl_add_u32 v222, v222, 2, s{S_T1}")
    a("v_lshlrev_b32 v11, 1, v10")
    a("v_lshl_add_u32 v11, v7, 2, v11")
    a("v_add_u32 v11, 0x100, v11")
    a("v_lshlrev_b32 v12, 5, v10")
    a("v_lshl_add_u32 v12, v7, 1, v12")
    a("v_add_u32 v12, 0x180, v12")
    a("v_cmp_eq_u32 vcc, 0, v9")
    a("s_nop 1")
    a("v_cndmask_b32 v223, v12, v11, vcc")
    a(f"v_lshl_add_u32 v223, v223, 2, s{S_T1}")
    a("v_lshl_add_u32 v224, v8, 6, v7")
    a("v_add_u32 v224, 0x200, v224")
    a(f"v_lshl_add_u32 v224, v224, 2, s{S_T1}")
    a.c("parameters")
    a("s_waitcnt vmcnt(0) lgkmcnt(0)")
    a(f"s_lshl_b32 s{S_T0}, s{S_RAWDT}, 16")
    a(f"s_and_b32 s{S_T1}, s{S_RAWDT}, s{S_HI}")
    a(f"s_cmp_eq_u32 s{S_KC}, 0")
    a(f"s_cselect_b32 s{S_T0}, s{S_T0}, s{S_T1}")
    a(f"v_mov_b32 v8, s{S_T0}")
    a("v_lshlrev_b32 v9, 16, v3")
    a(f"s_mov_b32 s{S_T1}, {hex(L2E)}")
    a(f"s_mov_b32 s{S_T2}, {hex(L2E_LO)}")
    for x, p, e in ((8, 10, 12), (9, 11, 13)):
        a(f"v_mul_f32 v{p}, s{S_T1}, v{x}")
        a(f"v_fma_f32 v{e}, v{x}, s{S_T1}, -v{p}")
        a(f"v_fma_f32 v{e}, v{x}, s{S_T2}, v{e}")
        a(f"v_exp_f32 v{p}, v{p}")
        a(f"v_mul_f32 v{e}, {hex(LN2)}, v{e}")
    a("s_nop 0")
    for x, p, e in ((8, 10, 12), (9, 11, 13)):
        a(f"v_fma_f32 v{p}, v{p}, v{e}, v{p}")
        rnd(a, p, p)
    a("v_mul_f32 v11, v11, v10")
    a(f"v_mul_f32 v11, {hex(L2E | 0x80000000)}, v11")
    a("v_lshlrev_b32 v4, 16, v4")
    a("v_mul_f32 v4, v4, v10")
    a("v_mul_f32 v12, 0.15915494, v4")
    a("v_add_f32 v10, v10, v10")
    a("v_lshlrev_b32 v5, 16, v5")
    a("v_lshlrev_b32 v6, 16, v6")
    a("v_mul_f32 v14, v5, v10")
    a("v_mul_f32 v15, v6, v10")
    a("v_max_f32 v13, |v14|, |v15|")
    for d in ("quad_perm:[1,0,3,2]", "quad_perm:[2,3,0,1]", "row_half_mirror", "row_mirror"):
        a("s_nop 1")
        a(f"v_max_u32_dpp v13, v13, v13 {d} row_mask:0xf bank_mask:0xf")
    a("s_nop 1")
    a("v_max_u32_dpp v13, v13, v13 row_bcast:15 row_mask:0xa bank_mask:0xf")
    a("s_nop 1")
    a("v_max_u32_dpp v13, v13, v13 row_bcast:31 row_mask:0xc bank_mask:0xf")
    E = lambda j: 20 + 2 * j
    a.c("anchors")
    tmp = {0: (50, 51), 3: (52, 53), 7: (54, 55)}
    for j, (m, f) in tmp.items():
        if j == 0:
            a(f"v_exp_f32 v{m}, v11")
            a(f"v_fract_f32 v{f}, v12")
        else:
            a(f"v_mul_f32 v{m}, {hex(f2u(2.0**j))}, v11")
            a(f"v_mul_f32 v{f}, {hex(f2u(2.0**j))}, v12")
            a(f"v_exp_f32 v{m}, v{m}")
            a(f"v_fract_f32 v{f}, v{f}")
    a(f"v_readlane_b32 s{S_T0}, v13, 63")
    for j, (m, f) in tmp.items():
        a(f"v_cos_f32 v{E(j)}, v{f}")
        a(f"v_sin_f32 v{E(j)+1}, v{f}")
    a(f"s_lshr_b32 s{S_T0}, s{S_T0}, 23")
    a(f"s_max_u32 s{S_T0}, s{S_T0}, 16")
    a(f"s_sub_u32 s{S_SC}, 264, s{S_T0}")
    a(f"s_lshl_b32 s{S_SC}, s{S_SC}, 23")
    a(f"s_sub_u32 s{S_ISC}, s{S_T0}, 10")
    a(f"s_lshl_b32 s{S_ISC}, s{S_ISC}, 23")
    for j, (m, f) in tmp.items():
        a(f"v_mul_f32 v{E(j)}, v{E(j)}, v{m}")
        a(f"v_mul_f32 v{E(j)+1}, v{E(j)+1}, v{m}")
    for j in range(12):
        if j not in tmp:
            cmul(a, E(j), E(j - 1), E(j - 1))
    a.c("Y tile")
    tog = [0]

    def put(row, x, neg):
        t = 46 + tog[0]
        tog[0] ^= 1
        a(f"v_cvt_pk_f16_f32 v{t}, v{x}, {'-' if neg else ''}v{x+1}")
        a(f"ds_write_b32 v220, v{t} offset:{288*row}")

    Y = {1: E(3), 2: E(4), 4: E(5), 8: E(6)}
    nxt = 60
    a("v_mov_b32 v46, 0x3c00")
    a("ds_write_b32 v220, v46")
    tog[0] = 1
    for b in (1, 2, 4, 8):
        put(b, Y[b], True)
    for b in (3, 5, 6, 7):
        hi = 2 if b == 3 else 4
        Y[b] = nxt; nxt += 2
        cmul(a, Y[b], Y[hi], Y[b - hi])
        put(b, Y[b], True)
    for b in range(9, 16):
        t = 48 + 2 * (b & 1)
        cmul(a, t, Y[8], Y[b - 8])
        put(b, t, True)
    YF = 160
    for s in range(4):
        a(f"ds_read_b128 {vr(YF+4*s,4)}, v221 offset:{64*s}")
    a.c("Z, W")
    Z = {1: E(0), 2: E(1), 4: E(2)}
    nxt = 60
    for r in (3, 5, 6, 7):
        hi = 2 if r == 3 else 4
        Z[r] = nxt; nxt += 2
        cmul(a, Z[r], Z[hi], Z[r - hi])
    W = {h: 70 + 2 * h for h in range(17)}
    a(f"v_mul_f32 v{W[0]}, s{S_SC}, v14")
    a(f"v_mul_f32 v{W[0]+1}, s{S_SC}, v15")
    cmul(a, W[1], W[0], E(7))
    XF = 176
    ACC = 140

    def tile_mfma(t):
        for s in range(4):
            a(f"ds_read_b128 {vr(XF+4*s,4)}, v221 offset:{64*s}")

    def tile_mfma2(t):
        for s in range(4):
            if s == 0:
                a("s_waitcnt lgkmcnt(0)")
            c = "0" if s == 0 else vr(ACC + 4 * t, 4)
            a(f"v_mfma_f32_16x16x32_f16 {vr(ACC+4*t,4)}, {vr(XF+4*s,4)}, {vr(YF+4*s,4)}, {c}")

    a.c("X tile 0")
    for h in (0, 1):
        put(8 * h, W[h], False)
        for r in range(1, 8):
            t = 48 + 2 * (r & 1)
            cmul(a, t, W[h], Z[r])
            put(8 * h + r, t, False)
    tile_mfma(0)
    cmul(a, W[2], W[0], E(8))
    cmul(a, W[3], W[1], E(8))
    for h in range(4, 8):
        cmul(a, W[h], W[h - 4], E(9))
    tile_mfma2(0)
    a.c("X tile 1")
    k = 0
    for G in range(2):
        for r in range(4):
            aa = r >> 1; s = 2 * G + (r & 1)
            h = 2 + aa; zr = 2 * s
            if zr == 0:
                put(4 * G + r, W[h], False)
            else:
                t = 48 + 2 * (k & 1); k += 1
                cmul(a, t, W[h], Z[zr])
                put(4 * G + r, t, False)
    for G in (2, 3):
        for r in range(4):
            aa = 2 * (r >> 1) + (G - 2); s = r & 1
            h = 4 + aa; zr = 4 * s
            if zr == 0:
                put(4 * G + r, W[h], False)
            else:
                t = 48 + 2 * (k & 1); k += 1
                cmul(a, t, W[h], Z[zr])
                put(4 * G + r, t, False)
    tile_mfma(1)
    for h in range(8, 16):
        cmul(a, W[h], W[h - 8], E(10))
    cmul(a, W[16], W[0], E(11))
    tile_mfma2(1)
    a.c("X tile 2")
    for h in range(8, 17):
        put(h - 8, W[h], False)
    tile_mfma(2)
    for t, offs, ad in ((0, (0, 4, 8, 12), 222), (1, (0, 4, 256, 260), 223)):
        for r in range(4):
            a(f"v_mul_f32 v{ACC+4*t+r}, s{S_ISC}, v{ACC+4*t+r}")
    tile_mfma2(2)
    for t, offs, ad in ((0, (0, 4, 8, 12), 222), (1, (0, 4, 256, 260), 223)):
        for r in range(4):
            a(f"ds_add_f32 v{ad}, v{ACC+4*t+r} offset:{offs[r]}")
    a("s_nop 3")
    for r in range(4):
        a(f"v_mul_f32 v{ACC+8+r}, s{S_ISC}, v{ACC+8+r}")
    for r in range(4):
        a(f"ds_add_f32 v224, v{ACC+8+r} offset:{64*r}")
    a(f"s_lshl_b32 s{S_T0}, s{S_KC}, 2")
    a(f"s_add_u32 s{S_T0}, s{S_T0}, {CNT+16}")
    a(f"v_mov_b32 v17, s{S_T0}")
    a("v_mov_b32 v16, 1")
    a("s_mov_b64 exec, 1")
    a("ds_add_u32 v17, v16")
    a("s_mov_b64 exec, -1")
    a(f"s_mov_b32 s{S_SPIN}, 0")
    a.lab("L_kspin")
    a("ds_read_b32 v16, v17")
    a(f"s_add_u32 s{S_SPIN}, s{S_SPIN}, 1")
    a("s_waitcnt lgkmcnt(0)")
    a(f"v_readfirstlane_b32 s{S_T0}, v16")
    a(f"s_cmp_ge_u32 s{S_SPIN}, {hex(SPIN_MAX)}")
    a("s_cbranch_scc1 L_kspin_done")
    a(f"s_cmp_lt_u32 s{S_T0}, 2")
    a("s_cbranch_scc1 L_kspin")
    a.lab("L_kspin_done")
    a.c("expansion")
    for g in range(2):
        for i in range(8):
            a(f"ds_read_b32 v{20+8*g+i}, v{XA+8*g+i} offset:{KC-IDXBIAS}")
    for g in range(2):
        a(f"s_waitcnt lgkmcnt({8 if g == 0 else 3})")
        for j in range(4):
            a(f"v_cvt_pk_bf16_f32 v{40+4*g+j}, v{20+8*g+2*j}, v{20+8*g+2*j+1}")
        a(f"ds_write_b128 v{216+g}, {vr(40+4*g,4)} offset:{G1(0)+448}")
        a(f"ds_write2_b32 v{218+g}, v{40+4*g}, v{41+4*g} offset0:0 offset1:1")
        a(f"ds_write2_b32 v{218+g}, v{42+4*g}, v{43+4*g} offset0:2 offset1:3")


def conv(a):
    a.c("==== conv (waves 0..3), q = wave")
    a(f"s_mul_i32 s{S_T0}, s{S_WV}, {CONV}")
    a("v_and_b32 v2, 15, v1")
    a("v_lshrrev_b32 v3, 4, v1")
    a("v_and_b32 v4, 1, v2")
    a("v_lshrrev_b32 v5, 1, v2")
    a(f"v_mul_u32_u24 v6, {FSTR}, v4")
    a("v_lshl_add_u32 v6, v3, 4, v6")
    a("v_lshlrev_b32 v8, 3, v5")
    a("v_sub_u32 v6, v6, v8")
    a(f"s_add_u32 s{S_T1}, s{S_T0}, 56")
    a(f"v_add_u32 v6, s{S_T1}, v6")
    a(f"v_mul_u32_u24 v7, {GSTR}, v4")
    a("v_lshl_add_u32 v7, v3, 4, v7")
    a("v_lshl_add_u32 v7, v5, 6, v7")
    a(f"s_add_u32 s{S_T1}, s{S_T0}, {2*FSTR}")
    a(f"v_add_u32 v7, s{S_T1}, v7")
    a("v_lshl_add_u32 v9, v3, 2, v4")
    a("v_lshl_add_u32 v9, v5, 4, v9")
    a(f"s_lshl_b32 s{S_T1}, s{S_WV}, 12")
    a(f"s_add_u32 s{S_T1}, s{S_T1}, {YS}")
    a(f"v_lshl_add_u32 v9, v9, 2, s{S_T1}")


def conv_main(a):
    ACC = 20
    BUF = [52, 116]

    def loads(r):
        b = BUF[r & 1]
        L = []
        for i in range(8):
            L.append(f"ds_read_b128 {vr(b+32+4*i,4)}, v7 offset:{512*i+64*r}")
            L.append(f"ds_read_b64 {vr(b+4*i,2)}, v6 offset:{512*(7-i)+64*r}")
            L.append(f"ds_read_b64 {vr(b+4*i+2,2)}, v6 offset:{512*(7-i)+64*r+8}")
        return L

    for s in loads(0):
        a(s)
    a("s_waitcnt lgkmcnt(0)")
    for r in range(8):
        b = BUF[r & 1]
        nl = loads(r + 1) if r < 7 else []
        mf = []
        for c1 in range(8):
            for tau in range(c1, 8):
                e1 = tau - c1
                c = "0" if (r == 0 and c1 == 0) else vr(ACC + 4 * tau, 4)
                mf.append(f"v_mfma_f32_16x16x32_bf16 {vr(ACC+4*tau,4)}, {vr(b+4*e1,4)}, {vr(b+32+4*c1,4)}, {c}")
        for i, m in enumerate(mf):
            a(m)
            if i < len(nl):
                a(nl[i])
        if r < 7:
            a("s_waitcnt lgkmcnt(0)")
    a("s_nop 7")
    a.c("stage y")
    for tau in range(8):
        c = ACC + 4 * tau
        a(f"v_cvt_pk_bf16_f32 v{c}, v{c}, v{c+1}")
        a(f"v_cvt_pk_bf16_f32 v{c+1}, v{c+2}, v{c+3}")
        a(f"ds_write_b32 v9, v{c} offset:{512*tau}")
        a(f"ds_write_b32 v9, v{c+1} offset:{512*tau+8}")


def gate_stage(a, sc):
    a.c("---- gate staging")
    a("v_and_b32 v7, 0xff, v0")
    a("v_lshlrev_b32 v7, 5, v7")
    a(f"s_mov_b32 s{S_T0}, {hex(WS_G)}")
    a(f"buffer_load_dwordx4 v[20:23], v7, s[{R_WS}:{R_WS+3}], s{S_T0} offen{sc}")
    a(f"buffer_load_dwordx4 v[24:27], v7, s[{R_WS}:{R_WS+3}], s{S_T0} offen offset:16{sc}")
    a(f"v_add_u32 v7, {GS}, v7")
    a("s_waitcnt vmcnt(0)")
    a("ds_write_b128 v7, v[20:23]")
    a("ds_write_b128 v7, v[24:27] offset:16")


def epilogue(a):
    a.c("==== epilogue: 512 threads x 4 rows")
    srd(a, R_OUT, P_OUT, 0x200000)
    a("v_lshlrev_b32 v2, 3, v0")
    a(f"v_add_u32 v3, {YS}, v2")
    a("v_sub_u32 v4, 4088, v2")
    a("v_lshlrev_b32 v5, 4, v0")
    a(f"v_add_u32 v5, {GS}, v5")
    for q in range(4):
        a(f"ds_read_b64 {vr(20+2*q,2)}, v3 offset:{4096*q}")
    for q in range(4):
        a(f"ds_read_b64 {vr(28+2*q,2)}, v4 offset:{F1(q)}")
    a("ds_read_b128 v[36:39], v5")
    a(f"s_lshl_b32 s{S_T0}, s{S_D0}, 1")
    a(f"v_lshl_add_u32 v6, v0, 12, s{S_T0}")
    a(f"s_lshl_b32 s{S_DS}, s{S_RAWDS}, 16")
    a(f"s_and_b32 s{S_DS+1}, s{S_RAWDS}, s{S_HI}")
    a(f"s_lshl_b32 s{S_DM}, s{S_RAWDM}, 16")
    a(f"s_and_b32 s{S_DM+1}, s{S_RAWDM}, s{S_HI}")
    a("s_waitcnt lgkmcnt(0)")

    def ext(d, reg, hi):
        if hi:
            a(f"v_and_b32 v{d}, s{S_HI}, v{reg}")
        else:
            a(f"v_lshlrev_b32 v{d}, 16, v{reg}")

    for r in range(4):
        YA, YB, U, KV, GG, T = 40, 42, 44, 46, 48, 50
        for ch in range(2):
            ext(YA + ch, 20 + 2 * ch + (r >> 1), r & 1)
            ext(YB + ch, 24 + 2 * ch + (r >> 1), r & 1)
            x = 3 - r
            ext(U + ch, 28 + 2 * ch + (x >> 1), x & 1)
            ext(KV + ch, 32 + 2 * ch + (x >> 1), x & 1)
        unpack2(a, GG, 36 + r)
        a(f"v_pk_mul_f32 {vr(T,2)}, {vr(U,2)}, {sr(S_DS,2)}")
        a(f"v_pk_mul_f32 {vr(KV,2)}, {vr(KV,2)}, {sr(S_DM,2)}")
        rnd(a, T, T); rnd(a, T + 1, T + 1)
        rnd(a, KV, KV); rnd(a, KV + 1, KV + 1)
        a(f"v_pk_add_f32 {vr(YA,2)}, {vr(YA,2)}, {vr(T,2)}")
        a(f"v_pk_add_f32 {vr(YB,2)}, {vr(YB,2)}, {vr(KV,2)}")
        rnd(a, YA, YA); rnd(a, YA + 1, YA + 1)
        rnd(a, YB, YB); rnd(a, YB + 1, YB + 1)
        a(f"v_pk_mul_f32 {vr(YB,2)}, {vr(YB,2)}, {vr(U,2)}")
        a(f"v_pk_mul_f32 {vr(YA,2)}, {vr(YA,2)}, {vr(GG,2)} op_sel:[0,0] op_sel_hi:[1,0]")
        rnd(a, YB, YB); rnd(a, YB + 1, YB + 1)
        rnd(a, YA, YA); rnd(a, YA + 1, YA + 1)
        a(f"v_pk_mul_f32 {vr(YB,2)}, {vr(YB,2)}, {vr(GG,2)} op_sel:[0,1] op_sel_hi:[1,1]")
        rnd(a, YB, YB); rnd(a, YB + 1, YB + 1)
        a(f"v_pk_add_f32 {vr(YA,2)}, {vr(YA,2)}, {vr(YB,2)}")
        a(f"v_cvt_pk_bf16_f32 v{52+r}, v{YA}, v{YA+1}")
        a(f"buffer_store_dword v{52+r}, v6, s[{R_OUT}:{R_OUT+3}], 0 offen offset:{1024*r}")


def load_small_scalars(a):
    a(f"s_lshl_b32 s{S_T3}, s{S_D0}, 1")
    a(f"s_load_dword s{S_RAWDS}, s[{P_DSK}:{P_DSK+1}], s{S_T3}")
    a(f"s_load_dword s{S_RAWDM}, s[{P_SSMD}:{P_SSMD+1}], s{S_T3}")


def kd(name, vgpr=256):
    return f""".section .rodata,"a"
.p2align 6
.amdhsa_kernel {name}
  .amdhsa_next_free_vgpr {vgpr}
  .amdhsa_next_free_sgpr 102
  .amdhsa_accum_offset {vgpr}
  .amdhsa_group_segment_fixed_size 0
  .amdhsa_kernarg_size 136
  .amdhsa_user_sgpr_count 2
  .amdhsa_user_sgpr_kernarg_segment_ptr 1
  .amdhsa_system_sgpr_workgroup_id_x 1
  .amdhsa_float_denorm_mode_32 3
.end_amdhsa_kernel
"""


def header(name):
    return f""".globl {name}
.p2align 8
.type {name},@function
{name}:
"""


def gen_dual():
    out = []
    out.append(f"; @launch kernel=p1_kernel grid=(256,1,1) block=(256,1,1) lds=0\n")
    out.append(f"; @launch kernel={NAME}_kernel grid=(256,1,1) block=(512,1,1) lds={LDS_TOTAL}\n")
    out.append('.amdgcn_target "amdgcn-amd-amdhsa--gfx950"\n.text\n')
    a = A()
    prologue(a, "L_end1")
    a("s_waitcnt lgkmcnt(0)")
    n = phase1_loads(a, False)
    phase1_compute(a, n, "")
    a.lab("L_end1")
    a("s_endpgm")
    out.append(header("p1_kernel") + a.text())
    a = A()
    prologue(a, "L_end")
    a(f"s_cmp_ge_u32 s{S_WV}, 4")
    a("s_cbranch_scc1 L_kgen")
    a("s_waitcnt lgkmcnt(0)")
    load_small_scalars(a)
    srd(a, R_WS, P_WS, WS_SIZE)
    ssmk_loads(a)
    a("s_barrier")
    a("s_waitcnt vmcnt(0)")
    ssmk_to_lds(a)
    phase2_loads(a, "")
    conv(a)
    a("s_waitcnt lgkmcnt(0)")
    a("s_barrier")
    conv_main(a)
    a("s_waitcnt lgkmcnt(0)")
    a("s_barrier")
    a("s_branch L_epi")
    a.lab("L_kgen")
    kgen(a)
    load_small_scalars(a)
    srd(a, R_WS, P_WS, WS_SIZE)
    a("s_waitcnt lgkmcnt(0)")
    a("s_barrier")
    gate_stage(a, "")
    a("s_waitcnt lgkmcnt(0)")
    a("s_barrier")
    a.lab("L_epi")
    epilogue(a)
    a.lab("L_end")
    a("s_endpgm")
    out.append(header(NAME + "_kernel") + a.text())
    out.append(kd("p1_kernel"))
    out.append(kd(NAME + "_kernel"))
    return "".join(out)


if __name__ == "__main__":
    mode = sys.argv[1] if len(sys.argv) > 1 else "dual"
    outp = sys.argv[2] if len(sys.argv) > 2 else f"cdna_kernels/{NAME}.s"
    txt = {"dual": gen_dual}[mode]()
    open(outp, "w").write(txt)
    print("wrote", outp, len(txt), "bytes; LDS", LDS_TOTAL)
```

```python
import sys, struct

NAME = "gated_mix__ssm_conv_s4d__ssm_conv_h3__prompt"
OPT = dict(stamp=False, prefetch=True, split=False)


def f2u(x):
    return struct.unpack("<I", struct.pack("<f", x))[0]


class A:
    def __init__(self):
        self.l = []

    def __call__(self, s):
        self.l.append("    " + s)

    def lab(self, s):
        self.l.append(s + ":")

    def c(self, s):
        self.l.append("    ; " + s)

    def text(self):
        return "\n".join(self.l) + "\n"


def vr(a, n=1):
    return f"v{a}" if n == 1 else f"v[{a}:{a+n-1}]"


def sr(a, n=1):
    return f"s{a}" if n == 1 else f"s[{a}:{a+n-1}]"


FSTR = 4224
GSTR = 4640
CONV = 2 * FSTR + 2 * GSTR
def F0(q): return q * CONV
def F1(q): return q * CONV + FSTR
def G0(q): return q * CONV + 2 * FSTR
def G1(q): return q * CONV + 2 * FSTR + GSTR
KC = 4 * CONV
KCSZ = 768 * 8
TBL = KC + 2 * KCSZ
TBLSZ = 16 * 288
GS = TBL + 4 * TBLSZ
CNT = GS + 8192
YS = CNT + 64
YSZ = 4608
LDS_TOTAL = YS + 4 * YSZ
IDXBIAS = 8 * 0x4280

WS_U = 0
WS_KV = 0x200000
WS_G = 0x400000
WS_ST = 0x600000
WS_SIZE = 0x800000

P_U, P_LAR, P_AIM, P_CR, P_CI, P_LDT, P_DSK, P_Q = 16, 18, 20, 22, 24, 26, 28, 30
P_K, P_V, P_SHK, P_SSMK, P_SSMD, P_GW, P_OUT, P_DBG = 32, 34, 36, 38, 40, 42, 44, 46
P_WS = 48
S_WV, S_CG, S_TB, S_D0 = 3, 4, 5, 6
S_HI = 50
S_T0, S_T1, S_T2, S_T3 = 8, 9, 10, 11
R_U, R_K, R_V, R_WS, R_OUT, R_DBG = 52, 56, 60, 64, 68, 72
S_SELLO, S_SELHI, S_4096, S_KV0, S_KV1 = 76, 77, 78, 79, 80
S_DS, S_DM = 82, 84
S_RAWDS, S_RAWDM = 86, 87
S_SC, S_ISC = 89, 90
S_SPIN = 91
S_KC, S_HM = 92, 93
S_PC = 12

L2E = 0x3FB8AA3B
L2E_LO = 0x32A57060
LN2 = 0x3F317218
SPIN_MAX = 0x40000
SC = " sc1"


def stamp(a, idx):
    if not OPT["stamp"]:
        return
    a("s_memrealtime s[94:95]")
    a("s_memtime s[96:97]")
    a("s_waitcnt lgkmcnt(0)")
    a(f"v_writelane_b32 v255, s94, {idx}")
    a(f"v_writelane_b32 v255, s96, {32+idx}")


def stamp_out(a):
    if not OPT["stamp"]:
        return
    a("s_waitcnt vmcnt(0)")
    stamp(a, 15)
    a(f"s_lshl_b32 s{S_T0}, s2, 3")
    a(f"s_add_u32 s{S_T0}, s{S_T0}, s{S_WV}")
    a(f"s_lshl_b32 s{S_T0}, s{S_T0}, 8")
    a(f"s_add_u32 s{S_T0}, s{S_T0}, {hex(WS_ST + 0x80000)}")
    a(f"v_lshl_add_u32 v254, v1, 2, s{S_T0}")
    a(f"buffer_store_dword v255, v254, s[{R_WS}:{R_WS+3}], 0 offen")


def srd(a, r, p, size):
    a(f"s_mov_b32 s{r}, s{p}")
    a(f"s_and_b32 s{r+1}, s{p+1}, 0xffff")
    a(f"s_mov_b32 s{r+2}, {hex(size)}")
    a(f"s_mov_b32 s{r+3}, 0x20000")


def rnd(a, d, s):
    a(f"v_cvt_pk_bf16_f32 v{d}, 0, v{s}")


def unpack2(a, d, s):
    a(f"v_lshlrev_b32 v{d}, 16, v{s}")
    a(f"v_and_b32 v{d+1}, s{S_HI}, v{s}")


def cmul_ops(d, x, y):
    assert d not in (x, y) and d % 2 == 0 and x % 2 == 0 and y % 2 == 0
    return [f"v_pk_mul_f32 {vr(d,2)}, {vr(x,2)}, {vr(y,2)} op_sel:[0,0] op_sel_hi:[1,0]",
            f"v_pk_fma_f32 {vr(d,2)}, {vr(x,2)}, {vr(y,2)}, {vr(d,2)} op_sel:[1,1,0] op_sel_hi:[0,1,1] neg_lo:[1,0,0]"]


def cmul(a, d, x, y):
    for o in cmul_ops(d, x, y):
        a(o)


def interleave(a, chains):
    chains = [list(c) for c in chains]
    while any(chains):
        for c in chains:
            if c:
                a(c.pop(0))


def prologue(a):
    a("s_cmp_ge_u32 s2, 256")
    a("s_cbranch_scc1 L_end")
    a("s_load_dwordx16 s[16:31], s[0:1], 0")
    a("s_load_dwordx16 s[32:47], s[0:1], 64")
    a("s_load_dwordx2 s[48:49], s[0:1], 128")
    a("v_lshrrev_b32 v1, 6, v0")
    a(f"s_and_b32 s{S_CG}, s2, 7")
    a(f"v_readfirstlane_b32 s{S_WV}, v1")
    a("v_and_b32 v1, 63, v0")
    a(f"s_lshr_b32 s{S_TB}, s2, 3")
    a(f"s_lshl_b32 s{S_D0}, s{S_CG}, 6")
    a(f"s_lshl_b32 s{S_T0}, s{S_TB}, 1")
    a(f"s_add_u32 s{S_D0}, s{S_D0}, s{S_T0}")
    a(f"s_mov_b32 s{S_HI}, 0xffff0000")
    if OPT["stamp"]:
        a("v_mov_b32 v255, 0")
        stamp(a, 0)


def signal(a, tag):
    a(f"v_mov_b32 v16, {CNT}")
    a("v_mov_b32 v17, 1")
    a("s_mov_b64 exec, 1")
    a("ds_add_rtn_u32 v18, v16, v17")
    a(f"s_lshl_b32 s{S_T0}, s{S_CG}, 5")
    a(f"s_add_u32 s{S_T0}, s{S_T0}, s{S_TB}")
    a(f"v_mov_b32 v16, s{S_T0}")
    a("s_waitcnt lgkmcnt(0)")
    a(f"v_readfirstlane_b32 s{S_T1}, v18")
    a(f"s_cmp_lg_u32 s{S_T1}, 7")
    a(f"s_cbranch_scc1 L_nosig_{tag}")
    a(f"buffer_store_byte v17, v16, s[{R_DBG}:{R_DBG+3}], 0 offen{SC}")
    a.lab(f"L_nosig_{tag}")
    a("s_mov_b64 exec, -1")


def poll_flags(a, tag, voff):
    a(f"s_mov_b32 s{S_SPIN}, 0")
    a(f"s_mov_b32 s{S_T1}, 0x01010101")
    a.lab(f"L_poll_{tag}")
    a(f"buffer_load_dword v18, v{voff}, s[{R_DBG}:{R_DBG+3}], 0 offen{SC}")
    a(f"s_add_u32 s{S_SPIN}, s{S_SPIN}, 1")
    a("s_waitcnt vmcnt(0)")
    a(f"v_cmp_ne_u32 vcc, s{S_T1}, v18")
    a(f"s_cmp_ge_u32 s{S_SPIN}, {hex(SPIN_MAX)}")
    a(f"s_cbranch_scc1 L_poll_{tag}_done")
    a("s_cmp_eq_u64 vcc, 0")
    a(f"s_cbranch_scc1 L_poll_{tag}_done")
    a("s_sleep 2")
    a(f"s_branch L_poll_{tag}")
    a.lab(f"L_poll_{tag}_done")


def lds_spin(a, lab, vaddr, val):
    a(f"s_mov_b32 s{S_SPIN}, 0")
    a.lab(lab)
    a(f"ds_read_b32 v18, v{vaddr}")
    a(f"s_add_u32 s{S_SPIN}, s{S_SPIN}, 1")
    a("s_waitcnt lgkmcnt(0)")
    a(f"v_readfirstlane_b32 s{S_T0}, v18")
    a(f"s_cmp_ge_u32 s{S_SPIN}, {hex(SPIN_MAX*8)}")
    a(f"s_cbranch_scc1 {lab}_done")
    a(f"s_cmp_lt_u32 s{S_T0}, {val}")
    a(f"s_cbranch_scc1 {lab}")
    a.lab(lab + "_done")


def data_waves(a):
    a.c("==== data waves")
    a("v_and_b32 v2, 7, v1")
    a(f"s_lshl_b32 s{S_T0}, s{S_WV}, 3")
    a(f"v_add_u32 v2, s{S_T0}, v2")
    a("v_lshrrev_b32 v3, 3, v1")
    a(f"s_lshl_b32 s{S_T1}, s{S_CG}, 9")
    a(f"v_lshl_add_u32 v6, v2, 4, s{S_T1}")
    a(f"s_lshl_b32 s{S_T0}, s{S_TB}, 16")
    a(f"s_lshl_b32 s{S_T1}, s{S_CG}, 7")
    a(f"s_add_u32 s{S_T0}, s{S_T0}, s{S_T1}")
    a(f"v_lshl_add_u32 v4, v3, 13, s{S_T0}")
    a("v_lshl_add_u32 v4, v2, 2, v4")
    a("v_subrev_u32 v5, 0xc00, v4")
    a(f"s_movk_i32 s{S_4096}, 0x1000")
    a("s_waitcnt lgkmcnt(0)")
    srd(a, R_K, P_K, 0x200000)
    a(f"global_load_dwordx4 v[48:51], v6, s[{P_SHK}:{P_SHK+1}]")
    for j in range(3):
        a(f"buffer_load_dword v{20+j}, v5, s[{R_K}:{R_K+3}], 0 offen offset:{j*1024}")
    for base, R, P in ((23, R_K, None), (31, R_V, P_V), (39, R_U, P_U)):
        if P is not None:
            srd(a, R, P, 0x200000)
        for j in range(8):
            so = "0" if j < 4 else f"s{S_4096}"
            a(f"buffer_load_dword v{base+j}, v4, s[{R}:{R+3}], {so} offen offset:{(j%4)*1024}")
    srd(a, R_WS, P_WS, WS_SIZE)
    srd(a, R_DBG, P_DBG, 256)
    a(f"s_lshl_b32 s{S_T3}, s{S_D0}, 1")
    a(f"s_load_dword s{S_RAWDS}, s[{P_DSK}:{P_DSK+1}], s{S_T3}")
    a(f"s_load_dword s{S_RAWDM}, s[{P_SSMD}:{P_SSMD+1}], s{S_T3}")
    a(f"s_mov_b32 s{S_SELLO}, 0x05040100")
    a(f"s_mov_b32 s{S_SELHI}, 0x07060302")
    a(f"s_mov_b32 s{S_KV0}, {hex(WS_KV)}")
    a(f"s_mov_b32 s{S_KV1}, {hex(WS_KV+4096)}")
    a(f"s_lshl_b32 s{S_T0}, s{S_CG}, 18")
    a(f"s_lshl_b32 s{S_T1}, s{S_TB}, 7")
    a(f"s_sub_u32 s{S_T0}, s{S_T0}, s{S_T1}")
    a(f"s_add_u32 s{S_T0}, s{S_T0}, 4080")
    a(f"v_lshl_add_u32 v10, v2, 13, s{S_T0}")
    a("v_lshlrev_b32 v11, 4, v3")
    a("v_sub_u32 v10, v10, v11")
    a(f"s_lshl_b32 s{S_T0}, s{S_D0}, 12")
    a(f"v_lshl_add_u32 v8, v0, 4, s{S_T0}")
    a("v_add_u32 v9, 0x1000, v8")
    a("v_lshlrev_b32 v14, 4, v0")
    stamp(a, 1)
    a("s_barrier")
    a("s_waitcnt vmcnt(16)")
    stamp(a, 2)
    SP = 80
    a(f"v_lshlrev_b32 v{SP+0}, 16, v48")
    a(f"v_lshlrev_b32 v{SP+1}, 16, v50")
    a(f"v_and_b32 v{SP+2}, s{S_HI}, v48")
    a(f"v_and_b32 v{SP+3}, s{S_HI}, v50")
    a(f"v_lshlrev_b32 v{SP+4}, 16, v49")
    a(f"v_lshlrev_b32 v{SP+5}, 16, v51")
    a(f"v_and_b32 v{SP+6}, s{S_HI}, v49")
    a(f"v_and_b32 v{SP+7}, s{S_HI}, v51")
    KP = 90
    for i in range(11):
        unpack2(a, KP + 2 * i, 20 + i)
    ACC = 112
    T = 128
    for r in range(8):
        a(f"v_pk_mul_f32 {vr(ACC+2*r,2)}, {vr(KP+2*r,2)}, {vr(SP+6,2)}")
    for j in (1, 2, 3):
        for r in range(8):
            a(f"v_pk_fma_f32 {vr(ACC+2*r,2)}, {vr(KP+2*(r+j),2)}, {vr(SP+6-2*j,2)}, {vr(ACC+2*r,2)}")
    a("s_waitcnt vmcnt(8)")
    for r in range(8):
        unpack2(a, T + 2 * r, 31 + r)
    for r in range(8):
        a(f"v_pk_mul_f32 {vr(ACC+2*r,2)}, {vr(ACC+2*r,2)}, {vr(T+2*r,2)}")
    O = 144
    a(f"global_load_dwordx4 v[68:71], v8, s[{P_SSMK}:{P_SSMK+1}]")
    a(f"global_load_dwordx4 v[72:75], v9, s[{P_SSMK}:{P_SSMK+1}]")
    for ch in range(2):
        for j in range(4):
            a(f"v_cvt_pk_bf16_f32 v{O+4*ch+j}, v{ACC+2*(7-2*j)+ch}, v{ACC+2*(6-2*j)+ch}")
        so = S_KV0 if ch == 0 else S_KV1
        a(f"buffer_store_dwordx4 {vr(O+4*ch,4)}, v10, s[{R_WS}:{R_WS+3}], s{so} offen{SC}")
    a("s_waitcnt vmcnt(4)")
    O2 = 152
    for ch, sel in ((0, S_SELLO), (1, S_SELHI)):
        for j in range(4):
            a(f"v_perm_b32 v{O2+4*ch+j}, v{39+6-2*j}, v{39+7-2*j}, s{sel}")
        so = "0" if ch == 0 else f"s{S_4096}"
        a(f"buffer_store_dwordx4 {vr(O2+4*ch,4)}, v10, s[{R_WS}:{R_WS+3}], {so} offen{SC}")
    stamp(a, 3)
    conv_setup(a)
    a("s_waitcnt vmcnt(0)")
    stamp(a, 4)
    signal(a, "d")
    a.c("---- ssm_k -> LDS")
    for ch in range(2):
        q = 2 + ch
        b = 68 + 4 * ch
        a(f"v_add_u32 v15, {G0(q)+452}, v14")
        a(f"ds_write_b128 v15, {vr(b,4)} offset:{GSTR-4}")
        a(f"ds_write2_b32 v15, v{b}, v{b+1} offset0:0 offset1:1")
        a(f"ds_write2_b32 v15, v{b+2}, v{b+3} offset0:2 offset1:3")
    stamp(a, 5)
    a.c("---- wait for producers")
    a(f"v_mov_b32 v16, {CNT+4}")
    a(f"s_cmp_lg_u32 s{S_WV}, 0")
    a("s_cbranch_scc1 L_relay")
    a("v_and_b32 v19, 7, v1")
    a(f"s_lshl_b32 s{S_T0}, s{S_CG}, 5")
    a(f"v_lshl_add_u32 v19, v19, 2, s{S_T0}")
    poll_flags(a, "t", 19)
    a("v_mov_b32 v17, 1")
    a("ds_write_b32 v16, v17")
    a("s_branch L_go")
    a.lab("L_relay")
    lds_spin(a, "L_rspin", 16, 1)
    a.lab("L_go")
    stamp(a, 6)
    a.c("---- phase 2 loads")
    sofs = ["0", f"s{S_4096}", f"s{S_KV0}", f"s{S_KV1}"]
    for q in range(4):
        a(f"buffer_load_dwordx4 {vr(20+8*q,4)}, v8, s[{R_WS}:{R_WS+3}], {sofs[q]} offen{SC}")
        a(f"buffer_load_dword v{24+8*q}, v8, s[{R_WS}:{R_WS+3}], {sofs[q]} offen offset:16{SC}")
    a("v_cmp_eq_u32 vcc, 0xff, v0")
    for q in range(4):
        b = 20 + 8 * q
        a(f"s_waitcnt vmcnt({6-2*q})")
        a(f"ds_write_b128 v14, {vr(b,4)} offset:{F1(q)}")
        a(f"v_cndmask_b32 v{b+4}, v{b+4}, 0, vcc")
        for j in range(4):
            a(f"v_alignbit_b32 v{60+4*q+j}, v{b+j+1}, v{b+j}, 16")
        a(f"ds_write_b128 v14, {vr(60+4*q,4)} offset:{F0(q)}")
    a("s_waitcnt lgkmcnt(0)")
    stamp(a, 7)
    a("s_barrier")
    stamp(a, 8)
    conv_main(a)
    a("s_waitcnt lgkmcnt(0)")
    stamp(a, 9)
    a("s_barrier")
    a("s_branch L_epi")


def conv_setup(a):
    a.c("conv address setup, q = wave")
    a(f"s_mul_i32 s{S_T0}, s{S_WV}, {CONV}")
    a("v_and_b32 v2, 15, v1")
    a("v_lshrrev_b32 v3, 4, v1")
    a("v_and_b32 v4, 1, v2")
    a("v_lshrrev_b32 v5, 1, v2")
    a(f"v_mul_u32_u24 v6, {FSTR}, v4")
    a("v_lshl_add_u32 v6, v3, 4, v6")
    a("v_lshlrev_b32 v11, 3, v5")
    a("v_sub_u32 v6, v6, v11")
    a(f"s_add_u32 s{S_T1}, s{S_T0}, 56")
    a(f"v_add_u32 v6, s{S_T1}, v6")
    a(f"v_mul_u32_u24 v7, {GSTR}, v4")
    a("v_lshl_add_u32 v7, v3, 4, v7")
    a("v_lshl_add_u32 v7, v5, 6, v7")
    a(f"s_add_u32 s{S_T1}, s{S_T0}, {2*FSTR}")
    a(f"v_add_u32 v7, s{S_T1}, v7")
    a("v_lshl_add_u32 v12, v3, 2, v4")
    a("v_mad_u32_u24 v12, v5, 18, v12")
    a(f"s_mul_i32 s{S_T1}, s{S_WV}, {YSZ}")
    a(f"s_add_u32 s{S_T1}, s{S_T1}, {YS}")
    a(f"v_lshl_add_u32 v12, v12, 2, s{S_T1}")


def conv_main(a):
    ACC = 20
    BUF = [52, 116]

    def loads(r):
        b = BUF[r & 1]
        L = []
        for i in range(8):
            L.append(f"ds_read_b128 {vr(b+32+4*i,4)}, v7 offset:{512*i+64*r}")
            L.append(f"ds_read_b64 {vr(b+4*i,2)}, v6 offset:{512*(7-i)+64*r}")
            L.append(f"ds_read_b64 {vr(b+4*i+2,2)}, v6 offset:{512*(7-i)+64*r+8}")
        return L

    a(".p2align 3")
    for s in loads(0):
        a(s)
    a("s_waitcnt lgkmcnt(0)")
    a("s_nop 0")
    for r in range(8):
        b = BUF[r & 1]
        nl = loads(r + 1) if r < 7 else []
        mf = []
        for c1 in range(8):
            for tau in range(c1, 8):
                e1 = tau - c1
                c = "0" if (r == 0 and c1 == 0) else vr(ACC + 4 * tau, 4)
                mf.append(f"v_mfma_f32_16x16x32_bf16 {vr(ACC+4*tau,4)}, {vr(b+4*e1,4)}, {vr(b+32+4*c1,4)}, {c}")
        for i, m in enumerate(mf):
            a(m)
            if i < len(nl):
                a(nl[i])
        if r < 7:
            a("s_waitcnt lgkmcnt(0)")
            a("s_nop 0")
    a.c("stage y")
    for tau in range(8):
        c = ACC + 4 * tau
        if tau == 6:
            a("s_nop 3")
        a(f"v_cvt_pk_bf16_f32 v{c}, v{c}, v{c+1}")
        a(f"v_cvt_pk_bf16_f32 v{c+1}, v{c+2}, v{c+3}")
        a(f"ds_write_b32 v12, v{c} offset:{576*tau}")
        a(f"ds_write_b32 v12, v{c+1} offset:{576*tau+8}")


def kgen_waves(a):
    a.c("==== K generation waves")
    a(f"s_sub_u32 s{S_T0}, s{S_WV}, 4")
    a(f"s_lshr_b32 s{S_KC}, s{S_T0}, 1")
    a(f"s_and_b32 s{S_HM}, s{S_T0}, 1")
    a(f"s_add_u32 s{S_T1}, s{S_D0}, s{S_KC}")
    a(f"s_lshl_b32 s{S_T3}, s{S_T1}, 1")
    a(f"v_mov_b32 v8, s{S_T3}")
    a(f"s_lshl_b32 s{S_T1}, s{S_T1}, 8")
    a(f"s_lshl_b32 s{S_T2}, s{S_HM}, 7")
    a(f"s_add_u32 s{S_T1}, s{S_T1}, s{S_T2}")
    a(f"v_lshl_add_u32 v2, v1, 1, s{S_T1}")
    a(f"s_lshl_b32 s{S_T1}, s2, 13")
    a(f"s_lshl_b32 s{S_T2}, s{S_T0}, 11")
    a(f"s_add_u32 s{S_T1}, s{S_T1}, s{S_T2}")
    a("v_lshlrev_b32 v9, 4, v1")
    a(f"v_add_u32 v10, s{S_T1}, v9")
    if OPT["prefetch"]:
        a(f"s_getpc_b64 s[{S_PC}:{S_PC+1}]")
        a.lab("L_pc")
        a(f"s_sub_u32 s{S_PC}, s{S_PC}, L_pc-{NAME}_kernel")
        a(f"s_subb_u32 s{S_PC+1}, s{S_PC+1}, 0")
        a(f"s_lshl_b32 s{S_T2}, s{S_T0}, 12")
        a(f"v_lshl_add_u32 v11, v1, 6, s{S_T2}")
        a(f"v_min_u32 v11, L_end-{NAME}_kernel, v11")
        a(f"global_load_dword v250, v11, s[{S_PC}:{S_PC+1}]")
    a("s_waitcnt lgkmcnt(0)")
    a(f"global_load_dwordx4 v[228:231], v10, s[{P_U}:{P_U+1}]")
    a(f"global_load_dwordx4 v[232:235], v10, s[{P_U}:{P_U+1}] offset:1024")
    a(f"global_load_dwordx4 v[236:239], v9, s[{P_GW}:{P_GW+1}]")
    a(f"global_load_ushort v7, v8, s[{P_LDT}:{P_LDT+1}]")
    a(f"global_load_ushort v3, v2, s[{P_LAR}:{P_LAR+1}]")
    a(f"global_load_ushort v4, v2, s[{P_AIM}:{P_AIM+1}]")
    a(f"global_load_ushort v5, v2, s[{P_CR}:{P_CR+1}]")
    a(f"global_load_ushort v6, v2, s[{P_CI}:{P_CI+1}]")
    a.c("zero init")
    a("v_and_b32 v19, 0xff, v0")
    for i in range(4):
        a(f"v_mov_b32 v{8+i}, 0")
    a("v_lshrrev_b32 v12, 6, v19")
    a(f"v_mul_u32_u24 v12, {CONV}, v12")
    a("v_bfe_u32 v13, v19, 5, 1")
    a(f"v_mul_u32_u24 v14, {GSTR}, v13")
    a("v_and_b32 v15, 31, v19")
    a("v_min_u32 v16, 28, v15")
    a("v_lshl_add_u32 v16, v16, 4, v14")
    a("v_add_u32 v16, v16, v12")
    a(f"ds_write_b128 v16, v[8:11] offset:{2*FSTR}")
    a(f"v_mul_u32_u24 v14, {FSTR}, v13")
    a("v_and_b32 v16, 3, v15")
    a("v_lshl_add_u32 v16, v16, 4, v14")
    a("v_add_u32 v16, v16, v12")
    a("ds_write_b128 v16, v[8:11] offset:4096")
    a("v_and_b32 v16, 3, v19")
    a("v_lshlrev_b32 v16, 4, v16")
    a(f"v_add_u32 v16, {CNT}, v16")
    a("ds_write_b128 v16, v[8:11]")
    srd(a, R_WS, P_WS, WS_SIZE)
    srd(a, R_DBG, P_DBG, 256)
    a("s_waitcnt lgkmcnt(0)")
    a("s_barrier")
    stamp(a, 1)
    a(f"s_lshl_b32 s{S_T3}, s{S_D0}, 1")
    a(f"s_load_dword s{S_RAWDS}, s[{P_DSK}:{P_DSK+1}], s{S_T3}")
    a(f"s_load_dword s{S_RAWDM}, s[{P_SSMD}:{P_SSMD+1}], s{S_T3}")
    a.c("expansion addresses")
    XA = 200
    a(f"s_lshl_b32 s{S_T0}, s{S_HM}, 10")
    a(f"v_lshl_add_u32 v19, v1, 3, s{S_T0}")
    a(f"s_mul_i32 s{S_T1}, s{S_KC}, {KCSZ}")
    a(f"s_add_u32 s{S_T1}, s{S_T1}, {KC}")
    a(f"s_sub_u32 s{S_T3}, s{S_T1}, {IDXBIAS}")
    a(f"s_mul_i32 s{S_T2}, s{S_KC}, {CONV}")
    a("v_cmp_gt_u32 vcc, 0x100, v19")
    for g in range(2):
        if g == 1:
            a("v_add_u32 v19, 0x200, v19")
        a("v_cvt_f32_u32 v8, v19")
        if g == 0:
            a(f"v_lshl_add_u32 v10, v19, 3, s{S_T1}")
        for i in range(8):
            d = XA + 8 * g + i
            if i == 0:
                a(f"v_cvt_pk_bf16_f32 v{d}, 0, v8")
            else:
                lit = {1: "1.0", 2: "2.0", 4: "4.0"}.get(i, hex(f2u(float(i))))
                a(f"v_add_f32 v9, {lit}, v8")
                a(f"v_cvt_pk_bf16_f32 v{d}, 0, v9")
            a(f"v_lshrrev_b32 v{d}, 13, v{d}")
            a(f"v_add_u32 v{d}, s{S_T3}, v{d}")
            if g == 0:
                a(f"v_add_u32 v9, {8*i}, v10")
                a(f"v_cndmask_b32 v{d}, v{d}, v9, vcc")
        a(f"v_lshl_add_u32 v{216+g}, v19, 1, s{S_T2}")
        a(f"v_add_u32 v{216+g}, {G0(0)+452}, v{216+g}")
    a(f"s_sub_u32 s{S_T0}, s{S_WV}, 4")
    a(f"s_mul_i32 s{S_T0}, s{S_T0}, {TBLSZ}")
    a(f"s_add_u32 s{S_T0}, s{S_T0}, {TBL}")
    a(f"v_lshl_add_u32 v220, v1, 2, s{S_T0}")
    a("v_and_b32 v19, 15, v1")
    a("v_lshrrev_b32 v8, 4, v1")
    a("v_mul_u32_u24 v221, 288, v19")
    a("v_lshl_add_u32 v221, v8, 4, v221")
    a(f"v_add_u32 v221, s{S_T0}, v221")
    a(f"s_lshl_b32 s{S_T0}, s{S_HM}, 2")
    a(f"s_add_u32 s{S_T1}, s{S_T1}, s{S_T0}")
    a("v_lshrrev_b32 v9, 1, v8")
    a("v_and_b32 v10, 1, v8")
    a("v_lshlrev_b32 v222, 7, v9")
    a("v_lshl_add_u32 v222, v10, 2, v222")
    a("v_lshl_add_u32 v222, v19, 3, v222")
    a(f"v_lshl_add_u32 v222, v222, 3, s{S_T1}")
    a("v_lshlrev_b32 v11, 1, v10")
    a("v_lshl_add_u32 v11, v19, 2, v11")
    a("v_add_u32 v11, 0x100, v11")
    a("v_lshlrev_b32 v12, 5, v10")
    a("v_lshl_add_u32 v12, v19, 1, v12")
    a("v_cmp_eq_u32 vcc, 0, v9")
    a("v_add_u32 v12, 0x180, v12")
    a("v_lshl_add_u32 v224, v8, 6, v19")
    a("v_cndmask_b32 v223, v12, v11, vcc")
    a(f"v_lshl_add_u32 v223, v223, 3, s{S_T1}")
    a("v_add_u32 v224, 0x200, v224")
    a(f"v_lshl_add_u32 v224, v224, 3, s{S_T1}")
    a(f"s_sub_u32 s{S_T0}, s{S_WV}, 4")
    a(f"s_lshl_b32 s{S_T0}, s{S_T0}, 3")
    a(f"s_lshl_b32 s{S_T1}, s2, 5")
    a(f"s_add_u32 s{S_T0}, s{S_T0}, s{S_T1}")
    a(f"s_add_u32 s{S_T0}, s{S_T0}, {hex(WS_G)}")
    a(f"v_mov_b32 v225, s{S_T0}")
    stamp(a, 2)
    a.c("---- gate: 2 rows per wave, 8 channels per lane")
    a("s_waitcnt vmcnt(5)")
    stamp(a, 3)
    Wp = 20
    for j in range(4):
        unpack2(a, Wp + 2 * j, 236 + j)
    for row in range(2):
        X = 30 + 8 * row
        for j in range(4):
            unpack2(a, X + 2 * j, 228 + 4 * row + j)
    for row in range(2):
        X = 30 + 8 * row
        for j in range(4):
            a(f"v_pk_mul_f32 {vr(X+2*j,2)}, {vr(X+2*j,2)}, {vr(Wp+2*j,2)}")
    for row in range(2):
        X = 30 + 8 * row
        for j in range(8):
            rnd(a, X + j, X + j)
    for row in range(2):
        X = 30 + 8 * row
        a(f"v_pk_add_f32 {vr(X,2)}, {vr(X,2)}, {vr(X+2,2)}")
        a(f"v_pk_add_f32 {vr(X+4,2)}, {vr(X+4,2)}, {vr(X+6,2)}")
    for row in range(2):
        X = 30 + 8 * row
        a(f"v_pk_add_f32 {vr(X,2)}, {vr(X,2)}, {vr(X+4,2)}")
    a("v_add_f32 v30, v30, v31")
    a("v_add_f32 v38, v38, v39")
    a("s_nop 0")
    for d in ("quad_perm:[1,0,3,2]", "quad_perm:[2,3,0,1]", "row_half_mirror", "row_mirror",
              "row_bcast:15 row_mask:0xa", "row_bcast:31 row_mask:0xc"):
        m = "" if "row_mask" in d else " row_mask:0xf"
        a(f"v_add_f32_dpp v30, v30, v30 {d}{m} bank_mask:0xf")
        a(f"v_add_f32_dpp v38, v38, v38 {d}{m} bank_mask:0xf")
        a("s_nop 0")
    for x in (30, 38):
        rnd(a, x, x)
    for x in (30, 38):
        a(f"v_mul_f32 v{x}, {hex(L2E | 0x80000000)}, v{x}")
    for x in (30, 38):
        a(f"v_exp_f32 v{x}, v{x}")
    a("s_nop 0")
    for x in (30, 38):
        a(f"v_add_f32 v{x}, 1.0, v{x}")
    for x in (30, 38):
        a(f"v_rcp_f32 v{x}, v{x}")
    a("s_nop 0")
    for x in (30, 38):
        rnd(a, x, x)
    for x in (30, 38):
        a(f"v_sub_f32 v{x+1}, 1.0, v{x}")
    a("v_cvt_pk_bf16_f32 v32, v30, v31")
    a("v_cvt_pk_bf16_f32 v33, v38, v39")
    a("s_mov_b32 exec_lo, 0")
    a("s_mov_b32 exec_hi, 0x80000000")
    a(f"buffer_store_dwordx2 v[32:33], v225, s[{R_WS}:{R_WS+3}], 0 offen{SC}")
    a("s_mov_b64 exec, -1")
    a.c("parameters")
    a("s_waitcnt vmcnt(1)")
    stamp(a, 4)
    a("v_lshlrev_b32 v8, 16, v7")
    a("v_lshlrev_b32 v9, 16, v3")
    a(f"s_mov_b32 s{S_T1}, {hex(L2E)}")
    a(f"s_mov_b32 s{S_T2}, {hex(L2E_LO)}")
    for x, p, e in ((8, 10, 12), (9, 11, 13)):
        a(f"v_mul_f32 v{p}, s{S_T1}, v{x}")
        a(f"v_fma_f32 v{e}, v{x}, s{S_T1}, -v{p}")
        a(f"v_fma_f32 v{e}, v{x}, s{S_T2}, v{e}")
        a(f"v_exp_f32 v{p}, v{p}")
        a(f"v_mul_f32 v{e}, {hex(LN2)}, v{e}")
    a("v_lshlrev_b32 v4, 16, v4")
    for x, p, e in ((8, 10, 12), (9, 11, 13)):
        a(f"v_fma_f32 v{p}, v{p}, v{e}, v{p}")
        rnd(a, p, p)
    a("v_mul_f32 v11, v11, v10")
    a(f"v_mul_f32 v11, {hex(L2E | 0x80000000)}, v11")
    a("v_mul_f32 v4, v4, v10")
    a("v_mul_f32 v12, 0.15915494, v4")
    a("v_add_f32 v10, v10, v10")
    a("v_lshlrev_b32 v5, 16, v5")
    a("v_lshlrev_b32 v6, 16, v6")
    a("v_mul_f32 v14, v5, v10")
    a("v_mul_f32 v15, v6, v10")
    a("v_max_f32 v13, |v14|, |v15|")
    E = lambda j: 20 + 2 * j
    tmp = {0: (50, 51), 3: (52, 53), 7: (54, 55)}
    dpps = [f"v_max_u32_dpp v13, v13, v13 {d} bank_mask:0xf" for d in
            ("quad_perm:[1,0,3,2] row_mask:0xf", "quad_perm:[2,3,0,1] row_mask:0xf", "row_half_mirror row_mask:0xf",
             "row_mirror row_mask:0xf", "row_bcast:15 row_mask:0xa", "row_bcast:31 row_mask:0xc")]
    anc = []
    for j, (m, f) in tmp.items():
        if j == 0:
            anc += [f"v_exp_f32 v{m}, v11", f"v_fract_f32 v{f}, v12"]
        else:
            anc += [f"v_mul_f32 v{m}, {hex(f2u(2.0**j))}, v11", f"v_mul_f32 v{f}, {hex(f2u(2.0**j))}, v12",
                    f"v_exp_f32 v{m}, v{m}", f"v_fract_f32 v{f}, v{f}"]
    for j, (m, f) in tmp.items():
        anc += [f"v_cos_f32 v{E(j)}, v{f}", f"v_sin_f32 v{E(j)+1}, v{f}"]
    a.c("anchors")
    k = 0
    for d in dpps:
        a(anc[k]); a(anc[k + 1]); k += 2
        a(d)
    for o in anc[k:]:
        a(o)
    a(f"v_readlane_b32 s{S_T0}, v13, 63")
    for j, (m, f) in tmp.items():
        a(f"v_mul_f32 v{E(j)}, v{E(j)}, v{m}")
        a(f"v_mul_f32 v{E(j)+1}, v{E(j)+1}, v{m}")
    a(f"s_lshr_b32 s{S_T0}, s{S_T0}, 23")
    a(f"s_max_u32 s{S_T0}, s{S_T0}, 16")
    a(f"s_sub_u32 s{S_SC}, 264, s{S_T0}")
    a(f"s_lshl_b32 s{S_SC}, s{S_SC}, 23")
    a(f"s_sub_u32 s{S_ISC}, s{S_T0}, 10")
    a(f"s_lshl_b32 s{S_ISC}, s{S_ISC}, 23")
    interleave(a, [sum([cmul_ops(E(j), E(j - 1), E(j - 1)) for j in js], []) for js in ((4, 5, 6), (8, 9, 10, 11), (1, 2))])
    stamp(a, 5)
    a.c("Y tile")
    tcount = [0]

    def put_ops(row, x, neg):
        t = 44 + (tcount[0] % 4)
        tcount[0] += 1
        return [f"v_cvt_pk_f16_f32 v{t}, v{x}, {'-' if neg else ''}v{x+1}",
                f"ds_write_b32 v220, v{t} offset:{288*row}"]

    def run_items(items):
        for i in range(0, len(items), 2):
            ch = []
            for (d, x, y, row, neg) in items[i:i + 2]:
                ops = [] if x is None else cmul_ops(d, x, y)
                if row is not None:
                    ops += put_ops(row, d, neg)
                ch.append(ops)
            interleave(a, ch)

    Y = {1: E(3), 2: E(4), 4: E(5), 8: E(6), 3: 60, 5: 62, 6: 64, 7: 66}
    a("v_mov_b32 v48, 0x3c00")
    a("ds_write_b32 v220, v48")
    items = [(Y[3], Y[2], Y[1], 3, True), (Y[1], None, None, 1, True),
             (Y[5], Y[4], Y[1], 5, True), (Y[2], None, None, 2, True),
             (Y[6], Y[4], Y[2], 6, True), (Y[4], None, None, 4, True),
             (Y[7], Y[4], Y[3], 7, True), (Y[8], None, None, 8, True)]
    for b in range(9, 16):
        items.append((104 + 2 * (b % 4), Y[8], Y[b - 8], b, True))
    run_items(items)
    YF = 160
    for s in range(4):
        a(f"ds_read_b128 {vr(YF+4*s,4)}, v221 offset:{64*s}")
    a.c("Z, W")
    Z = {1: E(0), 2: E(1), 4: E(2), 3: 60, 5: 62, 6: 64, 7: 66}
    W = {h: 70 + 2 * h for h in range(17)}
    a(f"v_mul_f32 v{W[0]}, s{S_SC}, v14")
    a(f"v_mul_f32 v{W[0]+1}, s{S_SC}, v15")
    run_items([(Z[3], Z[2], Z[1], None, 0), (W[1], W[0], E(7), None, 0),
               (Z[5], Z[4], Z[1], None, 0), (Z[6], Z[4], Z[2], None, 0),
               (Z[7], Z[4], Z[3], None, 0), (W[2], W[0], E(8), None, 0)])
    a("s_waitcnt vmcnt(0)")
    signal(a, "k")
    stamp(a, 6)
    XF = 176
    ACC = 140

    def rd():
        for s in range(4):
            a(f"ds_read_b128 {vr(XF+4*s,4)}, v221 offset:{64*s}")

    def mm(t):
        a("s_waitcnt lgkmcnt(0)")
        for s in range(4):
            c = "0" if s == 0 else vr(ACC + 4 * t, 4)
            a(f"v_mfma_f32_16x16x32_f16 {vr(ACC+4*t,4)}, {vr(XF+4*s,4)}, {vr(YF+4*s,4)}, {c}")

    a.c("X tile 0")
    items = [(W[0], None, None, 0, False), (W[1], None, None, 8, False)]
    k = 0
    for r in range(1, 8):
        for h in (0, 1):
            items.append((104 + 2 * (k % 4), W[h], Z[r], 8 * h + r, False)); k += 1
    run_items(items)
    rd()
    run_items([(W[3], W[1], E(8), None, 0)] + [(W[h], W[h - 4], E(9), None, 0) for h in (4, 5, 6)] + [(W[7], W[3], E(9), None, 0)])
    mm(0)
    a.c("X tile 1")
    items = []
    for G in range(4):
        for r in range(4):
            if G < 2:
                h = 2 + (r >> 1); zr = 2 * (2 * G + (r & 1))
            else:
                h = 4 + 2 * (r >> 1) + (G - 2); zr = 4 * (r & 1)
            if zr == 0:
                items.append((W[h], None, None, 4 * G + r, False))
            else:
                items.append((104 + 2 * (k % 4), W[h], Z[zr], 4 * G + r, False)); k += 1
    run_items(items)
    rd()
    run_items([(W[h], W[h - 8], E(10), None, 0) for h in range(8, 16)] + [(W[16], W[0], E(11), None, 0)])
    mm(1)
    a.c("X tile 2")
    run_items([(W[h], None, None, h - 8, False) for h in range(8, 17)])
    rd()
    for t, offs, ad in ((0, (0, 8, 16, 24), 222), (1, (0, 8, 512, 520), 223)):
        for r in range(4):
            a(f"v_mul_f32 v{ACC+4*t+r}, s{S_ISC}, v{ACC+4*t+r}")
    mm(2)
    for t, offs, ad in ((0, (0, 8, 16, 24), 222), (1, (0, 8, 512, 520), 223)):
        for r in range(4):
            a(f"ds_write_b32 v{ad}, v{ACC+4*t+r} offset:{offs[r]}")
    a(f"s_lshl_b32 s{S_T0}, s{S_KC}, 2")
    a(f"s_add_u32 s{S_T0}, s{S_T0}, {CNT+16}")
    a(f"v_mov_b32 v17, s{S_T0}")
    a("v_mov_b32 v16, 1")
    for r in range(4):
        a(f"v_mul_f32 v{ACC+8+r}, s{S_ISC}, v{ACC+8+r}")
    for r in range(4):
        a(f"ds_write_b32 v224, v{ACC+8+r} offset:{128*r}")
    a("s_mov_b64 exec, 1")
    a("ds_add_u32 v17, v16")
    a("s_mov_b64 exec, -1")
    stamp(a, 7)
    lds_spin(a, "L_kspin", 17, 2)
    stamp(a, 8)
    a.c("expansion")
    for g in range(2):
        for i in range(8):
            a(f"ds_read_b64 {vr(20+16*g+2*i,2)}, v{XA+8*g+i}")
        if g == 1:
            pass
    for g in range(2):
        a(f"s_waitcnt lgkmcnt({8 if g == 0 else 3})")
        for i in range(8):
            b = 20 + 16 * g + 2 * i
            a(f"v_add_f32 v{b}, v{b}, v{b+1}")
        for j in range(4):
            b = 20 + 16 * g + 4 * j
            a(f"v_cvt_pk_bf16_f32 v{56+4*g+j}, v{b}, v{b+2}")
        a(f"ds_write_b128 v{216+g}, {vr(56+4*g,4)} offset:{GSTR-4}")
        a(f"ds_write2_b32 v{216+g}, v{56+4*g}, v{57+4*g} offset0:0 offset1:1")
        a(f"ds_write2_b32 v{216+g}, v{58+4*g}, v{59+4*g} offset0:2 offset1:3")
    a("s_waitcnt lgkmcnt(0)")
    stamp(a, 9)
    a("s_barrier")
    stamp(a, 10)
    a.c("---- gate staging")
    a("v_lshlrev_b32 v19, 2, v1")
    poll_flags(a, "g", 19)
    a("v_and_b32 v7, 0xff, v0")
    a("v_lshlrev_b32 v7, 5, v7")
    a(f"s_mov_b32 s{S_T0}, {hex(WS_G)}")
    a(f"buffer_load_dwordx4 v[20:23], v7, s[{R_WS}:{R_WS+3}], s{S_T0} offen{SC}")
    a(f"buffer_load_dwordx4 v[24:27], v7, s[{R_WS}:{R_WS+3}], s{S_T0} offen offset:16{SC}")
    a(f"v_add_u32 v7, {GS}, v7")
    a("s_waitcnt vmcnt(0)")
    a("ds_write_b128 v7, v[20:23]")
    a("ds_write_b128 v7, v[24:27] offset:16")
    a("s_waitcnt lgkmcnt(0)")
    stamp(a, 11)
    a("s_barrier")


def epilogue(a):
    a.c("==== epilogue: 512 threads x 4 rows")
    stamp(a, 12)
    srd(a, R_OUT, P_OUT, 0x200000)
    a("v_lshlrev_b32 v2, 3, v0")
    a("v_lshrrev_b32 v3, 3, v0")
    a("v_lshl_add_u32 v3, v3, 3, v2")
    a(f"v_add_u32 v3, {YS}, v3")
    a("v_sub_u32 v4, 4088, v2")
    a("v_lshlrev_b32 v5, 4, v0")
    a(f"v_add_u32 v5, {GS}, v5")
    for q in range(4):
        a(f"ds_read_b64 {vr(20+2*q,2)}, v3 offset:{YSZ*q}")
    for q in range(4):
        a(f"ds_read_b64 {vr(28+2*q,2)}, v4 offset:{F1(q)}")
    a("ds_read_b128 v[36:39], v5")
    a(f"s_lshl_b32 s{S_T0}, s{S_D0}, 1")
    a(f"v_lshl_add_u32 v6, v0, 12, s{S_T0}")
    a(f"s_lshl_b32 s{S_DS}, s{S_RAWDS}, 16")
    a(f"s_and_b32 s{S_DS+1}, s{S_RAWDS}, s{S_HI}")
    a(f"s_lshl_b32 s{S_DM}, s{S_RAWDM}, 16")
    a(f"s_and_b32 s{S_DM+1}, s{S_RAWDM}, s{S_HI}")
    a("s_waitcnt lgkmcnt(0)")

    def ext(d, reg, hi):
        if hi:
            a(f"v_and_b32 v{d}, s{S_HI}, v{reg}")
        else:
            a(f"v_lshlrev_b32 v{d}, 16, v{reg}")

    for r in range(4):
        B = 40 + 12 * (r & 1)
        YA, YB, U, KV, GG = B, B + 2, B + 4, B + 6, B + 8
        for ch in range(2):
            x = 3 - r
            ext(KV + ch, 32 + 2 * ch + (x >> 1), x & 1)
            ext(YB + ch, 24 + 2 * ch + (r >> 1), r & 1)
            ext(U + ch, 28 + 2 * ch + (x >> 1), x & 1)
            ext(YA + ch, 20 + 2 * ch + (r >> 1), r & 1)
        a(f"v_pk_fma_f32 {vr(YB,2)}, {vr(KV,2)}, {sr(S_DM,2)}, {vr(YB,2)}")
        unpack2(a, GG, 36 + r)
        a(f"v_pk_fma_f32 {vr(YA,2)}, {vr(U,2)}, {sr(S_DS,2)}, {vr(YA,2)}")
        a(f"v_pk_mul_f32 {vr(YB,2)}, {vr(YB,2)}, {vr(U,2)}")
        a(f"v_pk_mul_f32 {vr(YA,2)}, {vr(YA,2)}, {vr(GG,2)} op_sel:[0,0] op_sel_hi:[1,0]")
        a(f"v_pk_fma_f32 {vr(YA,2)}, {vr(YB,2)}, {vr(GG,2)}, {vr(YA,2)} op_sel:[0,1,0] op_sel_hi:[1,1,1]")
        a(f"v_cvt_pk_bf16_f32 v{64+r}, v{YA}, v{YA+1}")
        a(f"buffer_store_dword v{64+r}, v6, s[{R_OUT}:{R_OUT+3}], 0 offen offset:{1024*r}")
    stamp(a, 14)
    stamp_out(a)


def kd(name, vgpr=256):
    return f""".section .rodata,"a"
.p2align 6
.amdhsa_kernel {name}
  .amdhsa_next_free_vgpr {vgpr}
  .amdhsa_next_free_sgpr 102
  .amdhsa_accum_offset {vgpr}
  .amdhsa_group_segment_fixed_size 0
  .amdhsa_kernarg_size 136
  .amdhsa_user_sgpr_count 2
  .amdhsa_user_sgpr_kernarg_segment_ptr 1
  .amdhsa_system_sgpr_workgroup_id_x 1
  .amdhsa_float_denorm_mode_32 3
.end_amdhsa_kernel
"""


def gen():
    out = [f"; @launch grid=(256,1,1) block=(512,1,1) lds={LDS_TOTAL}\n",
           '.amdgcn_target "amdgcn-amd-amdhsa--gfx950"\n.text\n',
           f".globl {NAME}_kernel\n.p2align 8\n.type {NAME}_kernel,@function\n{NAME}_kernel:\n"]
    a = A()
    prologue(a)
    a(f"s_cmp_ge_u32 s{S_WV}, 4")
    a("s_cbranch_scc1 L_kgen")
    data_waves(a)
    a.lab("L_kgen")
    kgen_waves(a)
    a.lab("L_epi")
    epilogue(a)
    a.lab("L_end")
    a("s_endpgm")
    out.append(a.text())
    out.append(kd(NAME + "_kernel"))
    return "".join(out)


if __name__ == "__main__":
    outp = sys.argv[1] if len(sys.argv) > 1 else f"cdna_kernels/{NAME}.s"
    for x in sys.argv[2:]:
        k, v = x.split("=")
        OPT[k] = int(v)
    txt = gen()
    open(outp, "w").write(txt)
    print("wrote", outp, len(txt), "bytes; LDS", LDS_TOTAL)
```

```python
import sys, struct

NAME = "gated_mix__ssm_conv_s4d__ssm_conv_h3__prompt"
OPT = dict(stamp=0, prefetch=1, groups="0123,45,67", pollsleep=4, hprio=2)


def f2u(x):
    return struct.unpack("<I", struct.pack("<f", x))[0]


class A:
    def __init__(self):
        self.l = []

    def __call__(self, s):
        self.l.append("    " + s)

    def lab(self, s):
        self.l.append(s + ":")

    def c(self, s):
        self.l.append("    ; " + s)

    def text(self):
        return "\n".join(self.l) + "\n"


def vr(a, n=1):
    return f"v{a}" if n == 1 else f"v[{a}:{a+n-1}]"


def sr(a, n=1):
    return f"s{a}" if n == 1 else f"s[{a}:{a+n-1}]"


KSTR = 4160
XSZ = 4576
CONV = 16 + 4 * KSTR + XSZ + 16
assert CONV % 16 == 0
def KR(q, s): return q * CONV + 16 + s * KSTR
def XB(q): return q * CONV + 16 + 4 * KSTR
KC = 4 * CONV
KCSZ = 776 * 8
TBL = KC + 2 * KCSZ
TBLSZ = 16 * 288
CNT = TBL + 4 * TBLSZ
YS = CNT + 256
YSZ = 8 * 16 * 40
LDS_TOTAL = YS + 4 * YSZ
IDXBIAS = 8 * 0x4280
C_SIG, C_GO, C_NONCE, C_KG, C_Y = CNT, CNT + 4, CNT + 8, CNT + 16, CNT + 32

WS_U = 0
WS_KV = 0x200000
WS_G = 0x400000
WS_FLAG = 0x410000
WS_ST = 0x600000
WS_SIZE = 0x800000

P_U, P_LAR, P_AIM, P_CR, P_CI, P_LDT, P_DSK, P_Q = 16, 18, 20, 22, 24, 26, 28, 30
P_K, P_V, P_SHK, P_SSMK, P_SSMD, P_GW, P_OUT, P_DBG = 32, 34, 36, 38, 40, 42, 44, 46
P_WS = 48
S_WV, S_CG, S_TB, S_D0 = 3, 4, 5, 6
S_HI = 50
S_LO = 51
S_T0, S_T1, S_T2, S_T3 = 8, 9, 10, 11
R_U, R_K, R_V, R_WS, R_OUT, R_DBG = 52, 56, 60, 64, 68, 72
S_SELLO, S_SELHI, S_4096, S_KV0, S_KV1 = 76, 77, 78, 79, 80
S_DS, S_DM = 82, 84
S_RAWDS, S_RAWDM = 86, 87
S_SC, S_ISC = 89, 90
S_SPIN = 91
S_KC, S_HM = 92, 93
S_PC = 12
S_NON = 14

L2E = 0x3FB8AA3B
L2E_LO = 0x32A57060
LN2 = 0x3F317218
SPIN_MAX = 0x40000
SC = " sc1"


def stamp(a, idx):
    if not OPT["stamp"]:
        return
    a("s_memrealtime s[94:95]")
    a("s_memtime s[96:97]")
    a("s_waitcnt lgkmcnt(0)")
    a(f"v_writelane_b32 v255, s94, {idx}")
    a(f"v_writelane_b32 v255, s96, {32+idx}")


def stamp_out(a):
    if not OPT["stamp"]:
        return
    a("s_waitcnt vmcnt(0)")
    stamp(a, 15)
    a(f"s_lshl_b32 s{S_T0}, s2, 3")
    a(f"s_add_u32 s{S_T0}, s{S_T0}, s{S_WV}")
    a(f"s_lshl_b32 s{S_T0}, s{S_T0}, 8")
    a(f"s_add_u32 s{S_T0}, s{S_T0}, {hex(WS_ST + 0x80000)}")
    a(f"v_lshl_add_u32 v254, v1, 2, s{S_T0}")
    a(f"buffer_store_dword v255, v254, s[{R_WS}:{R_WS+3}], 0 offen")


def srd(a, r, p, size):
    a(f"s_mov_b32 s{r}, s{p}")
    a(f"s_and_b32 s{r+1}, s{p+1}, 0xffff")
    a(f"s_mov_b32 s{r+2}, {hex(size)}")
    a(f"s_mov_b32 s{r+3}, 0x20000")


def rnd(a, d, s):
    a(f"v_cvt_pk_bf16_f32 v{d}, 0, v{s}")


def unpack2(a, d, s):
    a(f"v_lshlrev_b32 v{d}, 16, v{s}")
    a(f"v_and_b32 v{d+1}, s{S_HI}, v{s}")


def ext(a, d, reg, hi):
    if hi:
        a(f"v_and_b32 v{d}, s{S_HI}, v{reg}")
    else:
        a(f"v_lshlrev_b32 v{d}, 16, v{reg}")


def cmul_ops(d, x, y):
    assert d not in (x, y) and d % 2 == 0 and x % 2 == 0 and y % 2 == 0
    return [f"v_pk_mul_f32 {vr(d,2)}, {vr(x,2)}, {vr(y,2)} op_sel:[0,0] op_sel_hi:[1,0]",
            f"v_fma_f32 v{d}, -v{x+1}, v{y+1}, v{d}",
            f"v_fmac_f32 v{d+1}, v{x}, v{y+1}"]


def interleave(a, chains):
    chains = [list(c) for c in chains]
    while any(chains):
        for c in chains:
            if c:
                a(c.pop(0))


def groups():
    return [[int(ch) for ch in g] for g in OPT["groups"].split(",")]


def prologue(a):
    a("s_cmp_ge_u32 s2, 256")
    a("s_cbranch_scc1 L_end")
    a("s_load_dwordx16 s[16:31], s[0:1], 0")
    a("s_load_dwordx16 s[32:47], s[0:1], 64")
    a("s_load_dwordx2 s[48:49], s[0:1], 128")
    a("v_lshrrev_b32 v1, 6, v0")
    a(f"s_and_b32 s{S_CG}, s2, 7")
    a(f"v_readfirstlane_b32 s{S_WV}, v1")
    a("v_and_b32 v1, 63, v0")
    a.c("zero init of LDS pads (512 threads)")
    for i in range(4):
        a(f"v_mov_b32 v{8+i}, 0")
    a("v_lshrrev_b32 v12, 5, v0")
    a(f"v_mul_u32_u24 v12, {CONV}, v12")
    a("v_and_b32 v13, 31, v0")
    a("v_min_u32 v13, 29, v13")
    a("v_lshl_add_u32 v12, v13, 4, v12")
    a(f"v_add_u32 v12, {XB(0)}, v12")
    a("v_bfe_u32 v13, v0, 4, 2")
    a(f"v_mul_u32_u24 v13, {CONV}, v13")
    a("v_bfe_u32 v14, v0, 2, 2")
    a(f"v_mad_u32_u24 v13, v14, s{S_T3}, v13" if False else f"v_mul_u32_u24 v14, {KSTR}, v14")
    a("v_and_b32 v15, 3, v0")
    a("v_min_u32 v15, 2, v15")
    a("v_lshl_add_u32 v14, v15, 4, v14")
    a("v_add_u32 v13, v13, v14")
    a(f"v_add_u32 v13, {KR(0,0)+4080}, v13")
    a("v_cmp_gt_u32 vcc, 0x80, v0")
    a("v_and_b32 v14, 15, v0")
    a("v_lshlrev_b32 v14, 4, v14")
    a("v_cndmask_b32 v12, v13, v12, vcc")
    a(f"v_add_u32 v14, {CNT}, v14")
    a("v_cmp_gt_u32 vcc, 0xc0, v0")
    a("v_and_b32 v15, 1, v0")
    a(f"v_mul_u32_u24 v15, {KCSZ}, v15")
    a("v_cndmask_b32 v12, v14, v12, vcc")
    a(f"v_add_u32 v15, {KC+768*8}, v15")
    a("v_cmp_gt_u32 vcc, 0xd0, v0")
    a(f"s_lshr_b32 s{S_TB}, s2, 3")
    a(f"s_lshl_b32 s{S_D0}, s{S_CG}, 6")
    a("v_cndmask_b32 v12, v15, v12, vcc")
    a(f"s_cmp_ge_u32 s{S_WV}, 4")
    a("s_cbranch_scc1 L_noz")
    a("ds_write_b128 v12, v[8:11]")
    a.lab("L_noz")
    a(f"s_lshl_b32 s{S_T0}, s{S_TB}, 1")
    a(f"s_add_u32 s{S_D0}, s{S_D0}, s{S_T0}")
    a(f"s_mov_b32 s{S_HI}, 0xffff0000")
    a(f"s_mov_b32 s{S_LO}, 0xffff")
    if OPT["stamp"]:
        a("v_mov_b32 v255, 0")
        stamp(a, 0)


def signal(a, tag):
    a(f"v_mov_b32 v16, {C_SIG}")
    a("v_mov_b32 v17, 1")
    a("s_mov_b64 exec, 1")
    a("ds_add_rtn_u32 v18, v16, v17")
    a("ds_read_b64 v[16:17], v16 offset:8")
    a(f"s_lshl_b32 s{S_T0}, s{S_CG}, 12")
    a(f"s_lshl_b32 s{S_T1}, s{S_TB}, 3")
    a(f"s_add_u32 s{S_T0}, s{S_T0}, s{S_T1}")
    a(f"s_add_u32 s{S_T0}, s{S_T0}, {hex(WS_FLAG)}")
    a(f"v_mov_b32 v19, s{S_T0}")
    a("s_waitcnt lgkmcnt(0)")
    a(f"v_readfirstlane_b32 s{S_T1}, v18")
    a(f"s_cmp_lg_u32 s{S_T1}, 7")
    a(f"s_cbranch_scc1 L_nosig_{tag}")
    a(f"buffer_store_dwordx2 v[16:17], v19, s[{R_WS}:{R_WS+3}], 0 offen{SC}")
    a.lab(f"L_nosig_{tag}")
    a("s_mov_b64 exec, -1")


def lds_spin(a, lab, vaddr, val, sleep=0):
    a(f"s_mov_b32 s{S_SPIN}, 0")
    a.lab(lab)
    a(f"ds_read_b32 v18, v{vaddr}")
    a(f"s_add_u32 s{S_SPIN}, s{S_SPIN}, 1")
    a("s_waitcnt lgkmcnt(0)")
    a(f"v_readfirstlane_b32 s{S_T0}, v18")
    a(f"s_cmp_ge_u32 s{S_SPIN}, {hex(SPIN_MAX*8)}")
    a(f"s_cbranch_scc1 {lab}_done")
    a(f"s_cmp_ge_u32 s{S_T0}, {val}")
    a(f"s_cbranch_scc1 {lab}_done")
    if sleep:
        a(f"s_sleep {sleep}")
    a(f"s_branch {lab}")
    a.lab(lab + "_done")


def k_copies(a, vaddr, P3, P2):
    a(f"ds_write_b128 v{vaddr}, {vr(P3,4)} offset:{3*KSTR+4}")
    a(f"ds_write_b128 v{vaddr}, {vr(P2,4)} offset:{2*KSTR+4}")
    a(f"ds_write2_b32 v{vaddr}, v{P2}, v{P2+1} offset0:0 offset1:1")
    a(f"ds_write2_b32 v{vaddr}, v{P2+2}, v{P2+3} offset0:2 offset1:3")
    a(f"v_add_u32 v{vaddr}, {KSTR}, v{vaddr}")
    a(f"ds_write2_b32 v{vaddr}, v{P3}, v{P3+1} offset0:0 offset1:1")
    a(f"ds_write2_b32 v{vaddr}, v{P3+2}, v{P3+3} offset0:2 offset1:3")


def data_waves(a):
    a.c("==== data waves")
    a("v_and_b32 v2, 7, v1")
    a(f"s_lshl_b32 s{S_T0}, s{S_WV}, 3")
    a(f"v_add_u32 v2, s{S_T0}, v2")
    a("v_lshrrev_b32 v3, 3, v1")
    a(f"s_lshl_b32 s{S_T1}, s{S_CG}, 9")
    a(f"v_lshl_add_u32 v6, v2, 4, s{S_T1}")
    a(f"s_lshl_b32 s{S_T0}, s{S_TB}, 16")
    a(f"s_lshl_b32 s{S_T1}, s{S_CG}, 7")
    a(f"s_add_u32 s{S_T0}, s{S_T0}, s{S_T1}")
    a(f"v_lshl_add_u32 v4, v3, 13, s{S_T0}")
    a("v_lshl_add_u32 v4, v2, 2, v4")
    a("v_subrev_u32 v5, 0xc00, v4")
    a(f"s_movk_i32 s{S_4096}, 0x1000")
    a(f"s_memrealtime s[{S_NON}:{S_NON+1}]")
    a("s_waitcnt lgkmcnt(0)")
    a("s_barrier")
    srd(a, R_DBG, P_DBG, 256)
    a(f"s_cmp_lg_u32 s{S_WV}, 0")
    a("s_cbranch_scc1 L_nocas")
    a(f"s_or_b32 s{S_NON}, s{S_NON}, 1")
    a(f"v_mov_b32 v52, s{S_NON}")
    a(f"v_mov_b32 v53, s{S_NON+1}")
    a("v_mov_b32 v54, 0")
    a("v_mov_b32 v55, 0")
    a(f"s_lshl_b32 s{S_T0}, s{S_CG}, 5")
    a(f"v_mov_b32 v56, s{S_T0}")
    a("s_mov_b64 exec, 1")
    a(f"buffer_atomic_cmpswap_x2 v[52:55], v56, s[{R_DBG}:{R_DBG+3}], 0 offen sc0")
    a("s_mov_b64 exec, -1")
    a.lab("L_nocas")
    srd(a, R_K, P_K, 0x200000)
    a(f"global_load_dwordx4 v[48:51], v6, s[{P_SHK}:{P_SHK+1}]")
    for j in range(3):
        a(f"buffer_load_dword v{20+j}, v5, s[{R_K}:{R_K+3}], 0 offen offset:{j*1024}")
    for base, R, P in ((23, R_K, None), (31, R_V, P_V), (39, R_U, P_U)):
        if P is not None:
            srd(a, R, P, 0x200000)
        for j in range(8):
            so = "0" if j < 4 else f"s{S_4096}"
            a(f"buffer_load_dword v{base+j}, v4, s[{R}:{R+3}], {so} offen offset:{(j%4)*1024}")
    srd(a, R_WS, P_WS, WS_SIZE)
    a(f"s_mov_b32 s{S_SELLO}, 0x05040100")
    a(f"s_mov_b32 s{S_SELHI}, 0x07060302")
    a(f"s_mov_b32 s{S_KV0}, {hex(WS_KV)}")
    a(f"s_mov_b32 s{S_KV1}, {hex(WS_KV+4096)}")
    a(f"s_lshl_b32 s{S_T0}, s{S_CG}, 18")
    a(f"s_lshl_b32 s{S_T1}, s{S_TB}, 7")
    a(f"s_add_u32 s{S_T0}, s{S_T0}, s{S_T1}")
    a(f"v_lshl_add_u32 v10, v2, 13, s{S_T0}")
    a("v_lshl_add_u32 v10, v3, 4, v10")
    a(f"s_lshl_b32 s{S_T0}, s{S_D0}, 12")
    a(f"v_lshl_add_u32 v8, v0, 4, s{S_T0}")
    a("v_add_u32 v9, 0x1000, v8")
    a("v_lshlrev_b32 v14, 4, v0")
    a("v_subrev_u32 v11, 4, v8")
    a(f"v_max_i32 v11, s{S_T0}, v11")
    stamp(a, 1)
    a("s_waitcnt vmcnt(16)")
    stamp(a, 2)
    SP = 80
    a(f"v_lshlrev_b32 v{SP+0}, 16, v48")
    a(f"v_lshlrev_b32 v{SP+1}, 16, v50")
    a(f"v_and_b32 v{SP+2}, s{S_HI}, v48")
    a(f"v_and_b32 v{SP+3}, s{S_HI}, v50")
    a(f"v_lshlrev_b32 v{SP+4}, 16, v49")
    a(f"v_lshlrev_b32 v{SP+5}, 16, v51")
    a(f"v_and_b32 v{SP+6}, s{S_HI}, v49")
    a(f"v_and_b32 v{SP+7}, s{S_HI}, v51")
    KP = 90
    for i in range(11):
        unpack2(a, KP + 2 * i, 20 + i)
    ACC = 112
    T = 128
    for r in range(8):
        a(f"v_pk_mul_f32 {vr(ACC+2*r,2)}, {vr(KP+2*r,2)}, {vr(SP+6,2)}")
    for j in (1, 2, 3):
        for r in range(8):
            a(f"v_pk_fma_f32 {vr(ACC+2*r,2)}, {vr(KP+2*(r+j),2)}, {vr(SP+6-2*j,2)}, {vr(ACC+2*r,2)}")
    a("s_waitcnt vmcnt(8)")
    for r in range(8):
        unpack2(a, T + 2 * r, 31 + r)
    for r in range(8):
        a(f"v_pk_mul_f32 {vr(ACC+2*r,2)}, {vr(ACC+2*r,2)}, {vr(T+2*r,2)}")
    O = 144
    for ch in range(2):
        for j in range(4):
            a(f"v_cvt_pk_bf16_f32 v{O+4*ch+j}, v{ACC+2*(2*j)+ch}, v{ACC+2*(2*j+1)+ch}")
        so = S_KV0 if ch == 0 else S_KV1
        a(f"buffer_store_dwordx4 {vr(O+4*ch,4)}, v10, s[{R_WS}:{R_WS+3}], s{so} offen{SC}")
    a("s_waitcnt vmcnt(2)")
    O2 = 152
    for ch, sel in ((0, S_SELLO), (1, S_SELHI)):
        for j in range(4):
            a(f"v_perm_b32 v{O2+4*ch+j}, v{39+2*j+1}, v{39+2*j}, s{sel}")
        so = "0" if ch == 0 else f"s{S_4096}"
        a(f"buffer_store_dwordx4 {vr(O2+4*ch,4)}, v10, s[{R_WS}:{R_WS+3}], {so} offen{SC}")
    a(f"global_load_dwordx4 v[68:71], v8, s[{P_SSMK}:{P_SSMK+1}]")
    a(f"global_load_dword v67, v11, s[{P_SSMK}:{P_SSMK+1}]")
    a(f"global_load_dwordx4 v[74:77], v9, s[{P_SSMK}:{P_SSMK+1}]")
    a(f"global_load_dword v73, v9, s[{P_SSMK}:{P_SSMK+1}] offset:-4")
    stamp(a, 3)
    conv_setup(a)
    a("s_waitcnt vmcnt(0)")
    a(f"s_cmp_lg_u32 s{S_WV}, 0")
    a("s_cbranch_scc1 L_nn")
    a(f"v_readfirstlane_b32 s{S_T0}, v52")
    a(f"v_readfirstlane_b32 s{S_T1}, v53")
    a(f"s_or_b32 s{S_T2}, s{S_T0}, s{S_T1}")
    a(f"s_cmp_eq_u32 s{S_T2}, 0")
    a(f"s_cselect_b32 s{S_NON}, s{S_NON}, s{S_T0}")
    a(f"s_cselect_b32 s{S_NON+1}, s{S_NON+1}, s{S_T1}")
    a(f"v_mov_b32 v52, s{S_NON}")
    a(f"v_mov_b32 v53, s{S_NON+1}")
    a(f"v_mov_b32 v16, {C_NONCE}")
    a("ds_write_b64 v16, v[52:53]")
    a.lab("L_nn")
    stamp(a, 4)
    signal(a, "d")
    a.c("---- ssm_k -> LDS (reversed, 4 copies)")
    a("v_cmp_eq_u32 vcc, 0, v0")
    a("v_sub_u32 v15, 4076, v14")
    for ch in range(2):
        q = 2 + ch
        L = 68 + 6 * ch
        P3, P2 = 20 + 8 * ch, 24 + 8 * ch
        a(f"v_cndmask_b32 v{L-1}, v{L-1}, 0, vcc")
        for d in range(4):
            a(f"v_alignbit_b32 v{P3+d}, v{L+3-d}, v{L+3-d}, 16")
            a(f"v_bfi_b32 v{P2+d}, s{S_LO}, v{L+3-d}, v{L+2-d}")
        a(f"v_add_u32 v{36+ch}, {KR(q,0)}, v15")
        k_copies(a, 36 + ch, P3, P2)
    stamp(a, 5)
    a.c("---- wait for producers")
    a(f"v_mov_b32 v16, {C_GO}")
    a(f"s_cmp_lg_u32 s{S_WV}, 0")
    a("s_cbranch_scc1 L_relay")
    a("v_and_b32 v19, 31, v1")
    a(f"s_lshl_b32 s{S_T0}, s{S_CG}, 12")
    a(f"s_add_u32 s{S_T0}, s{S_T0}, {hex(WS_FLAG)}")
    a(f"v_lshl_add_u32 v19, v19, 3, s{S_T0}")
    a(f"s_mov_b32 s{S_SPIN}, 0")
    a.lab("L_poll")
    a(f"buffer_load_dwordx2 v[40:41], v19, s[{R_WS}:{R_WS+3}], 0 offen{SC}")
    a(f"s_add_u32 s{S_SPIN}, s{S_SPIN}, 1")
    a("s_waitcnt vmcnt(0)")
    a(f"v_cmp_ne_u64 vcc, s[{S_NON}:{S_NON+1}], v[40:41]")
    a(f"s_cmp_ge_u32 s{S_SPIN}, {hex(SPIN_MAX)}")
    a("s_cbranch_scc1 L_poll_done")
    a("s_cmp_eq_u64 vcc, 0")
    a("s_cbranch_scc1 L_poll_done")
    a(f"s_sleep {OPT['pollsleep']}")
    a("s_branch L_poll")
    a.lab("L_poll_done")
    a("v_mov_b32 v17, 1")
    a("ds_write_b32 v16, v17")
    a("s_branch L_go")
    a.lab("L_relay")
    lds_spin(a, "L_rspin", 16, 1, sleep=1)
    a.lab("L_go")
    stamp(a, 6)
    a.c("---- phase 2 loads")
    sofs = ["0", f"s{S_4096}", f"s{S_KV0}", f"s{S_KV1}"]
    for q in range(4):
        a(f"buffer_load_dwordx4 {vr(20+4*q,4)}, v8, s[{R_WS}:{R_WS+3}], {sofs[q]} offen{SC}")
    a(f"v_add_u32 v15, {XB(2)+480}, v14")
    for q in range(4):
        a(f"s_waitcnt vmcnt({3-q})")
        if q < 2:
            a(f"ds_write_b128 v14, {vr(20+4*q,4)} offset:{XB(q)+480}")
        else:
            a(f"ds_write_b128 v15, {vr(20+4*q,4)} offset:{XB(q)-XB(2)}")
    a("s_waitcnt lgkmcnt(0)")
    stamp(a, 7)
    a("s_barrier")
    stamp(a, 8)
    conv_main(a)
    if OPT["stamp"]:
        stamp(a, 9)
        stamp_out(a)
    a("s_endpgm")


def conv_setup(a):
    a.c("conv address setup, q = wave")
    a(f"s_mul_i32 s{S_T0}, s{S_WV}, {CONV}")
    a("v_and_b32 v2, 15, v1")
    a("v_lshrrev_b32 v3, 4, v1")
    a("v_and_b32 v4, 3, v2")
    a("v_lshrrev_b32 v5, 2, v2")
    a(f"v_mul_u32_u24 v6, {KSTR}, v4")
    a("v_lshl_add_u32 v6, v3, 4, v6")
    a("v_lshlrev_b32 v5, 3, v5")
    a("v_sub_u32 v6, v6, v5")
    a(f"s_add_u32 s{S_T1}, s{S_T0}, {KR(0,0)+24}")
    a(f"v_add_u32 v6, s{S_T1}, v6")
    a("v_lshlrev_b32 v7, 4, v3")
    a("v_lshl_add_u32 v7, v2, 5, v7")
    a(f"s_add_u32 s{S_T1}, s{S_T0}, {XB(0)}")
    a(f"v_add_u32 v7, s{S_T1}, v7")
    a("v_mul_u32_u24 v12, 40, v2")
    a("v_lshl_add_u32 v12, v3, 3, v12")
    a(f"s_mul_i32 s{S_T1}, s{S_WV}, {YSZ}")
    a(f"s_add_u32 s{S_T1}, s{S_T1}, {YS}")
    a(f"v_add_u32 v12, s{S_T1}, v12")
    a(f"s_lshl_b32 s{S_T1}, s{S_WV}, 2")
    a(f"s_add_u32 s{S_T1}, s{S_T1}, {C_Y}")
    a(f"v_mov_b32 v13, s{S_T1}")


def conv_main(a):
    ACC = 20
    BUF = [52, 116]
    grp = groups()
    steps = []
    for gi, g in enumerate(grp):
        hi = max(g)
        per = 2 if hi <= 3 else 1
        for r0 in range(0, 8, per):
            steps.append((gi, list(range(r0, r0 + per))))

    def step_plan(si):
        gi, rs = steps[si]
        g = grp[gi]
        hi = max(g)
        nfr = hi + 1
        b = BUF[si & 1]
        loads, mf = [], []
        for k, r in enumerate(rs):
            fb = b + 16 * k if len(rs) > 1 else b
            gb = b + 32 + (16 * k if len(rs) > 1 else 0)
            pairs = [(e1, tau - e1, tau) for tau in g for e1 in range(tau + 1)]
            pairs.sort(key=lambda p: (max(p[0], p[1]), p[2]))
            need = sorted(set([p[0] for p in pairs]))
            for i in range(nfr):
                loads.append((("G", k, i), f"ds_read_b128 {vr(gb+4*i,4)}, v7 offset:{512*i+64*r}"))
                loads.append((("F", k, i, 0), f"ds_read_b64 {vr(fb+4*i,2)}, v6 offset:{512*(7-i)+64*r}"))
                loads.append((("F", k, i), f"ds_read_b64 {vr(fb+4*i+2,2)}, v6 offset:{512*(7-i)+64*r+8}"))
            for (e1, c1, tau) in pairs:
                mf.append((tau, ("F", k, e1), ("G", k, c1), fb + 4 * e1, gb + 4 * c1))
        return loads, mf

    plans = [step_plan(si) for si in range(len(steps))]
    seq = [0]
    done = [0]
    when = {}

    def lds(s, key=None):
        a(s)
        if key is not None:
            when[key] = seq[0]
        seq[0] += 1

    def need(idx):
        if idx < done[0]:
            return
        n = seq[0] - idx - 1
        n = min(n, 15)
        a(f"s_waitcnt lgkmcnt({n})")
        a("s_nop 0")
        done[0] = seq[0] - n

    a(".p2align 3")
    for key, s in plans[0][0]:
        lds(s, (0,) + key)
    started = set()
    mark = [0]
    pending = []
    for si in range(len(steps)):
        loads, mf = plans[si]
        nl = list(plans[si + 1][0]) if si + 1 < len(steps) else []
        nm = len(mf)
        slots = max(1, int(nm * 0.8))
        per = -(-len(nl) // slots) if nl else 0
        for i, (tau, fk, gk, fr, gr) in enumerate(mf):
            need(max(when[(si,) + fk], when[(si,) + gk]))
            c = vr(ACC + 4 * tau, 4) if tau in started else "0"
            started.add(tau)
            a(f"v_mfma_f32_16x16x32_bf16 {vr(ACC+4*tau,4)}, {vr(fr,4)}, {vr(gr,4)}, {c}")
            if pending and len(a.l) - mark[0] >= 9:
                for _ in range(2):
                    if pending:
                        op = pending.pop(0)
                        if op.startswith("ds_"):
                            lds(op)
                        else:
                            a(op)
            for _ in range(per):
                if nl:
                    key, s = nl.pop(0)
                    lds(s, (si + 1,) + key)
        assert not nl
        gi = steps[si][0]
        if si + 1 == len(steps) or steps[si + 1][0] != gi:
            assert not pending
            mark[0] = len(a.l)
            for tau in grp[gi]:
                c = ACC + 4 * tau
                pending.append(f"v_cvt_pk_bf16_f32 v{c}, v{c}, v{c+1}")
                pending.append(f"v_cvt_pk_bf16_f32 v{c+1}, v{c+2}, v{c+3}")
                pending.append(f"ds_write_b64 v12, {vr(c,2)} offset:{640*tau}")
            pending.append(f"ds_write_b32 v13, v13 offset:{16*gi}")
    a("s_nop 7")
    for op in pending:
        a(op)


def kgen_waves(a):
    a.c("==== K generation waves")
    a(f"s_sub_u32 s{S_T0}, s{S_WV}, 4")
    a(f"s_lshr_b32 s{S_KC}, s{S_T0}, 1")
    a(f"s_and_b32 s{S_HM}, s{S_T0}, 1")
    a(f"s_add_u32 s{S_T1}, s{S_D0}, s{S_KC}")
    a(f"s_lshl_b32 s{S_T3}, s{S_T1}, 1")
    a(f"v_mov_b32 v8, s{S_T3}")
    a(f"s_lshl_b32 s{S_T1}, s{S_T1}, 8")
    a(f"s_lshl_b32 s{S_T2}, s{S_HM}, 7")
    a(f"s_add_u32 s{S_T1}, s{S_T1}, s{S_T2}")
    a(f"v_lshl_add_u32 v2, v1, 1, s{S_T1}")
    a(f"s_lshl_b32 s{S_T1}, s2, 13")
    a(f"s_lshl_b32 s{S_T2}, s{S_T0}, 11")
    a(f"s_add_u32 s{S_T1}, s{S_T1}, s{S_T2}")
    a("v_lshlrev_b32 v9, 4, v1")
    a(f"v_add_u32 v10, s{S_T1}, v9")
    if OPT["prefetch"]:
        a(f"s_getpc_b64 s[{S_PC}:{S_PC+1}]")
        a.lab("L_pc")
        a(f"s_sub_u32 s{S_PC}, s{S_PC}, L_pc-{NAME}_kernel")
        a(f"s_subb_u32 s{S_PC+1}, s{S_PC+1}, 0")
        a(f"s_lshl_b32 s{S_T2}, s{S_T0}, 12")
        a(f"v_lshl_add_u32 v11, v1, 6, s{S_T2}")
        a(f"v_min_u32 v11, L_end-{NAME}_kernel, v11")
        a(f"global_load_dword v250, v11, s[{S_PC}:{S_PC+1}]")
    a("s_waitcnt lgkmcnt(0)")
    a("s_barrier")
    a(f"global_load_dwordx4 v[228:231], v10, s[{P_U}:{P_U+1}]")
    a(f"global_load_dwordx4 v[232:235], v10, s[{P_U}:{P_U+1}] offset:1024")
    a(f"global_load_dwordx4 v[236:239], v9, s[{P_GW}:{P_GW+1}]")
    a(f"global_load_ushort v7, v8, s[{P_LDT}:{P_LDT+1}]")
    a(f"global_load_ushort v3, v2, s[{P_LAR}:{P_LAR+1}]")
    a(f"global_load_ushort v4, v2, s[{P_AIM}:{P_AIM+1}]")
    a(f"global_load_ushort v5, v2, s[{P_CR}:{P_CR+1}]")
    a(f"global_load_ushort v6, v2, s[{P_CI}:{P_CI+1}]")
    srd(a, R_WS, P_WS, WS_SIZE)
    srd(a, R_DBG, P_DBG, 256)
    srd(a, R_OUT, P_OUT, 0x200000)
    stamp(a, 1)
    a(f"s_lshl_b32 s{S_T3}, s{S_D0}, 1")
    a(f"s_load_dword s{S_RAWDS}, s[{P_DSK}:{P_DSK+1}], s{S_T3}")
    a(f"s_load_dword s{S_RAWDM}, s[{P_SSMD}:{P_SSMD+1}], s{S_T3}")
    a.c("expansion addresses: chunk j = 128*hm + 64*g + lane ; l = 2047 - 8j - k, k=0..8")
    XA = 196
    a(f"s_lshl_b32 s{S_T0}, s{S_HM}, 7")
    a(f"v_add_u32 v19, s{S_T0}, v1")
    a(f"s_mul_i32 s{S_T1}, s{S_KC}, {KCSZ}")
    a(f"s_add_u32 s{S_T1}, s{S_T1}, {KC}")
    a(f"s_sub_u32 s{S_T3}, s{S_T1}, {IDXBIAS}")
    a(f"s_mul_i32 s{S_T2}, s{S_KC}, {CONV}")
    a(f"s_add_u32 s{S_T2}, s{S_T2}, {KR(0,0)-4}")
    for g in range(2):
        if g == 1:
            a("v_add_u32 v19, 64, v19")
        a("v_lshlrev_b32 v11, 3, v19")
        a("v_sub_u32 v11, 2047, v11")
        a("v_cvt_f32_u32 v8, v11")
        if g == 1:
            a("v_cmp_gt_u32 vcc, 0x100, v11")
            a(f"v_lshl_add_u32 v10, v11, 3, s{S_T1}")
        for k in range(9):
            d = XA + 9 * g + k
            if k == 0:
                a(f"v_cvt_pk_bf16_f32 v{d}, 0, v8")
            else:
                lit = {1: "-1.0", 2: "-2.0", 4: "-4.0"}.get(k, hex(f2u(-float(k))))
                a(f"v_add_f32 v9, {lit}, v8")
                a(f"v_cvt_pk_bf16_f32 v{d}, 0, v9")
            a(f"v_lshrrev_b32 v{d}, 13, v{d}")
            a(f"v_add_u32 v{d}, s{S_T3}, v{d}")
            if g == 1:
                a(f"v_subrev_u32 v9, {8*k}, v10")
                a(f"v_cndmask_b32 v{d}, v{d}, v9, vcc")
        a(f"v_lshl_add_u32 v{216+g}, v19, 4, s{S_T2}")
    a("v_cmp_eq_u32 vcc, 0xff, v19")
    a(f"s_add_u32 s{S_T0}, s{S_T1}, {768*8}")
    a(f"v_mov_b32 v9, s{S_T0}")
    a(f"v_cndmask_b32 v{XA+17}, v{XA+17}, v9, vcc")
    a(f"s_sub_u32 s{S_T0}, s{S_WV}, 4")
    a(f"s_mul_i32 s{S_T0}, s{S_T0}, {TBLSZ}")
    a(f"s_add_u32 s{S_T0}, s{S_T0}, {TBL}")
    a(f"v_lshl_add_u32 v220, v1, 2, s{S_T0}")
    a("v_and_b32 v19, 15, v1")
    a("v_lshrrev_b32 v8, 4, v1")
    a("v_mul_u32_u24 v221, 288, v19")
    a("v_lshl_add_u32 v221, v8, 4, v221")
    a(f"v_add_u32 v221, s{S_T0}, v221")
    a(f"s_lshl_b32 s{S_T0}, s{S_HM}, 2")
    a(f"s_add_u32 s{S_T1}, s{S_T1}, s{S_T0}")
    a("v_lshrrev_b32 v9, 1, v8")
    a("v_and_b32 v10, 1, v8")
    a("v_lshlrev_b32 v222, 7, v9")
    a("v_lshl_add_u32 v222, v10, 2, v222")
    a("v_lshl_add_u32 v222, v19, 3, v222")
    a(f"v_lshl_add_u32 v222, v222, 3, s{S_T1}")
    a("v_lshlrev_b32 v11, 1, v10")
    a("v_lshl_add_u32 v11, v19, 2, v11")
    a("v_add_u32 v11, 0x100, v11")
    a("v_lshlrev_b32 v12, 5, v10")
    a("v_lshl_add_u32 v12, v19, 1, v12")
    a("v_cmp_eq_u32 vcc, 0, v9")
    a("v_add_u32 v12, 0x180, v12")
    a("v_lshl_add_u32 v224, v8, 6, v19")
    a("v_cndmask_b32 v223, v12, v11, vcc")
    a(f"v_lshl_add_u32 v223, v223, 3, s{S_T1}")
    a("v_add_u32 v224, 0x200, v224")
    a(f"v_lshl_add_u32 v224, v224, 3, s{S_T1}")
    a(f"s_sub_u32 s{S_T0}, s{S_WV}, 4")
    a(f"s_lshl_b32 s{S_T0}, s{S_T0}, 3")
    a(f"s_lshl_b32 s{S_T1}, s2, 5")
    a(f"s_add_u32 s{S_T0}, s{S_T0}, s{S_T1}")
    a(f"s_add_u32 s{S_T0}, s{S_T0}, {hex(WS_G)}")
    a(f"v_mov_b32 v225, s{S_T0}")
    stamp(a, 2)
    a.c("---- gate: 2 rows per wave, 8 channels per lane")
    a("s_waitcnt vmcnt(5)")
    stamp(a, 3)
    Wp = 20
    for j in range(4):
        unpack2(a, Wp + 2 * j, 236 + j)
    for row in range(2):
        X = 30 + 8 * row
        for j in range(4):
            unpack2(a, X + 2 * j, 228 + 4 * row + j)
    for row in range(2):
        X = 30 + 8 * row
        for j in range(4):
            a(f"v_pk_mul_f32 {vr(X+2*j,2)}, {vr(X+2*j,2)}, {vr(Wp+2*j,2)}")
    for row in range(2):
        X = 30 + 8 * row
        for j in range(8):
            rnd(a, X + j, X + j)
    for row in range(2):
        X = 30 + 8 * row
        a(f"v_pk_add_f32 {vr(X,2)}, {vr(X,2)}, {vr(X+2,2)}")
        a(f"v_pk_add_f32 {vr(X+4,2)}, {vr(X+4,2)}, {vr(X+6,2)}")
    for row in range(2):
        X = 30 + 8 * row
        a(f"v_pk_add_f32 {vr(X,2)}, {vr(X,2)}, {vr(X+4,2)}")
    a("v_add_f32 v30, v30, v31")
    a("v_add_f32 v38, v38, v39")
    a("s_nop 0")
    for d in ("quad_perm:[1,0,3,2]", "quad_perm:[2,3,0,1]", "row_half_mirror", "row_mirror",
              "row_bcast:15 row_mask:0xa", "row_bcast:31 row_mask:0xc"):
        m = "" if "row_mask" in d else " row_mask:0xf"
        a(f"v_add_f32_dpp v30, v30, v30 {d}{m} bank_mask:0xf")
        a(f"v_add_f32_dpp v38, v38, v38 {d}{m} bank_mask:0xf")
        a("s_nop 0")
    for x in (30, 38):
        rnd(a, x, x)
    for x in (30, 38):
        a(f"v_mul_f32 v{x}, {hex(L2E | 0x80000000)}, v{x}")
    for x in (30, 38):
        a(f"v_exp_f32 v{x}, v{x}")
    a("s_nop 0")
    for x in (30, 38):
        a(f"v_add_f32 v{x}, 1.0, v{x}")
    for x in (30, 38):
        a(f"v_rcp_f32 v{x}, v{x}")
    a("s_nop 0")
    for x in (30, 38):
        rnd(a, x, x)
    for x in (30, 38):
        a(f"v_sub_f32 v{x+1}, 1.0, v{x}")
    a("v_cvt_pk_bf16_f32 v32, v30, v31")
    a("v_cvt_pk_bf16_f32 v33, v38, v39")
    a("s_mov_b32 exec_lo, 0")
    a("s_mov_b32 exec_hi, 0x80000000")
    a(f"buffer_store_dwordx2 v[32:33], v225, s[{R_WS}:{R_WS+3}], 0 offen{SC}")
    a("s_mov_b64 exec, -1")
    a.c("parameters")
    a("s_waitcnt vmcnt(1)")
    stamp(a, 4)
    a("v_lshlrev_b32 v8, 16, v7")
    a("v_lshlrev_b32 v9, 16, v3")
    a(f"s_mov_b32 s{S_T1}, {hex(L2E)}")
    a(f"s_mov_b32 s{S_T2}, {hex(L2E_LO)}")
    for x, p, e in ((8, 10, 12), (9, 11, 13)):
        a(f"v_mul_f32 v{p}, s{S_T1}, v{x}")
        a(f"v_fma_f32 v{e}, v{x}, s{S_T1}, -v{p}")
        a(f"v_fma_f32 v{e}, v{x}, s{S_T2}, v{e}")
        a(f"v_exp_f32 v{p}, v{p}")
        a(f"v_mul_f32 v{e}, {hex(LN2)}, v{e}")
    a("v_lshlrev_b32 v4, 16, v4")
    for x, p, e in ((8, 10, 12), (9, 11, 13)):
        a(f"v_fma_f32 v{p}, v{p}, v{e}, v{p}")
        rnd(a, p, p)
    a("v_mul_f32 v11, v11, v10")
    a(f"v_mul_f32 v11, {hex(L2E | 0x80000000)}, v11")
    a("v_mul_f32 v4, v4, v10")
    a("v_mul_f32 v12, 0.15915494, v4")
    a("v_add_f32 v10, v10, v10")
    a("v_lshlrev_b32 v5, 16, v5")
    a("v_lshlrev_b32 v6, 16, v6")
    a("v_mul_f32 v14, v5, v10")
    a("v_mul_f32 v15, v6, v10")
    a("v_max_f32 v13, |v14|, |v15|")
    E = lambda j: 20 + 2 * j
    tmp = {0: (50, 51), 3: (52, 53), 7: (54, 55)}
    dpps = [f"v_max_u32_dpp v13, v13, v13 {d} bank_mask:0xf" for d in
            ("quad_perm:[1,0,3,2] row_mask:0xf", "quad_perm:[2,3,0,1] row_mask:0xf", "row_half_mirror row_mask:0xf",
             "row_mirror row_mask:0xf", "row_bcast:15 row_mask:0xa", "row_bcast:31 row_mask:0xc")]
    anc = []
    for j, (m, f) in tmp.items():
        if j == 0:
            anc += [f"v_exp_f32 v{m}, v11", f"v_fract_f32 v{f}, v12"]
        else:
            anc += [f"v_mul_f32 v{m}, {hex(f2u(2.0**j))}, v11", f"v_mul_f32 v{f}, {hex(f2u(2.0**j))}, v12",
                    f"v_exp_f32 v{m}, v{m}", f"v_fract_f32 v{f}, v{f}"]
    for j, (m, f) in tmp.items():
        anc += [f"v_cos_f32 v{E(j)}, v{f}", f"v_sin_f32 v{E(j)+1}, v{f}"]
    a.c("anchors")
    k = 0
    for d in dpps:
        a(anc[k]); a(anc[k + 1]); k += 2
        a(d)
    for o in anc[k:]:
        a(o)
    a(f"v_readlane_b32 s{S_T0}, v13, 63")
    for j, (m, f) in tmp.items():
        a(f"v_mul_f32 v{E(j)}, v{E(j)}, v{m}")
        a(f"v_mul_f32 v{E(j)+1}, v{E(j)+1}, v{m}")
    a(f"s_lshr_b32 s{S_T0}, s{S_T0}, 23")
    a(f"s_max_u32 s{S_T0}, s{S_T0}, 16")
    a(f"s_sub_u32 s{S_SC}, 264, s{S_T0}")
    a(f"s_lshl_b32 s{S_SC}, s{S_SC}, 23")
    a(f"s_sub_u32 s{S_ISC}, s{S_T0}, 10")
    a(f"s_lshl_b32 s{S_ISC}, s{S_ISC}, 23")
    interleave(a, [sum([cmul_ops(E(j), E(j - 1), E(j - 1)) for j in js], []) for js in ((4, 5, 6), (8, 9, 10, 11), (1, 2))])
    stamp(a, 5)
    a.c("Y tile")
    tcount = [0]

    def put_ops(row, x, neg):
        t = 44 + (tcount[0] % 4)
        tcount[0] += 1
        return [f"v_cvt_pk_f16_f32 v{t}, v{x}, {'-' if neg else ''}v{x+1}",
                f"ds_write_b32 v220, v{t} offset:{288*row}"]

    def run_items(items):
        for i in range(0, len(items), 2):
            ch = []
            for (d, x, y, row, neg) in items[i:i + 2]:
                ops = [] if x is None else cmul_ops(d, x, y)
                if row is not None:
                    ops += put_ops(row, d, neg)
                ch.append(ops)
            interleave(a, ch)

    Y = {1: E(3), 2: E(4), 4: E(5), 8: E(6), 3: 60, 5: 62, 6: 64, 7: 66}
    a("v_mov_b32 v48, 0x3c00")
    a("ds_write_b32 v220, v48")
    items = [(Y[3], Y[2], Y[1], 3, True), (Y[1], None, None, 1, True),
             (Y[5], Y[4], Y[1], 5, True), (Y[2], None, None, 2, True),
             (Y[6], Y[4], Y[2], 6, True), (Y[4], None, None, 4, True),
             (Y[7], Y[4], Y[3], 7, True), (Y[8], None, None, 8, True)]
    for b in range(9, 16):
        items.append((104 + 2 * (b % 4), Y[8], Y[b - 8], b, True))
    run_items(items)
    YF = 160
    for s in range(4):
        a(f"ds_read_b128 {vr(YF+4*s,4)}, v221 offset:{64*s}")
    a.c("Z, W")
    Z = {1: E(0), 2: E(1), 4: E(2), 3: 60, 5: 62, 6: 64, 7: 66}
    W = {h: 70 + 2 * h for h in range(17)}
    a(f"v_mul_f32 v{W[0]}, s{S_SC}, v14")
    a(f"v_mul_f32 v{W[0]+1}, s{S_SC}, v15")
    run_items([(Z[3], Z[2], Z[1], None, 0), (W[1], W[0], E(7), None, 0),
               (Z[5], Z[4], Z[1], None, 0), (Z[6], Z[4], Z[2], None, 0),
               (Z[7], Z[4], Z[3], None, 0), (W[2], W[0], E(8), None, 0)])
    a("s_waitcnt vmcnt(0)")
    signal(a, "k")
    stamp(a, 6)
    XF = 176
    ACC = 140

    XFT = [112, 128, 176]
    ACC = 144

    def rd(t):
        for s in range(4):
            a(f"ds_read_b128 {vr(XFT[t]+4*s,4)}, v221 offset:{64*s}")

    def mm(t):
        for s in range(4):
            c = "0" if s == 0 else vr(ACC + 4 * t, 4)
            a(f"v_mfma_f32_16x16x32_f16 {vr(ACC+4*t,4)}, {vr(XFT[t]+4*s,4)}, {vr(YF+4*s,4)}, {c}")

    a.c("X tile 0")
    items = [(W[0], None, None, 0, False), (W[1], None, None, 8, False)]
    k = 0
    for r in range(1, 8):
        for h in (0, 1):
            items.append((104 + 2 * (k % 4), W[h], Z[r], 8 * h + r, False)); k += 1
    run_items(items)
    rd(0)
    run_items([(W[3], W[1], E(8), None, 0)] + [(W[h], W[h - 4], E(9), None, 0) for h in (4, 5, 6)] + [(W[7], W[3], E(9), None, 0)])
    a.c("X tile 1")
    items = []
    for G in range(4):
        for r in range(4):
            if G < 2:
                h = 2 + (r >> 1); zr = 2 * (2 * G + (r & 1))
            else:
                h = 4 + 2 * (r >> 1) + (G - 2); zr = 4 * (r & 1)
            if zr == 0:
                items.append((W[h], None, None, 4 * G + r, False))
            else:
                items.append((104 + 2 * (k % 4), W[h], Z[zr], 4 * G + r, False)); k += 1
    run_items(items)
    rd(1)
    a.c("X tile 2")
    run_items([(W[h], W[h - 8], E(10), h - 8, False) for h in range(8, 16)] + [(W[16], W[0], E(11), 8, False)])
    rd(2)
    a("s_waitcnt lgkmcnt(4)")
    mm(0)
    mm(1)
    a("s_waitcnt lgkmcnt(0)")
    mm(2)
    a("s_nop 3")
    for t in (0, 1):
        for r in range(4):
            a(f"v_mul_f32 v{ACC+4*t+r}, s{S_ISC}, v{ACC+4*t+r}")
    for t, offs, ad in ((0, (0, 8, 16, 24), 222), (1, (0, 8, 512, 520), 223)):
        for r in range(4):
            a(f"ds_write_b32 v{ad}, v{ACC+4*t+r} offset:{offs[r]}")
    a(f"s_lshl_b32 s{S_T0}, s{S_KC}, 2")
    a(f"s_add_u32 s{S_T0}, s{S_T0}, {C_KG}")
    a(f"v_mov_b32 v17, s{S_T0}")
    a("v_mov_b32 v16, 1")
    for r in range(4):
        a(f"v_mul_f32 v{ACC+8+r}, s{S_ISC}, v{ACC+8+r}")
    for r in range(4):
        a(f"ds_write_b32 v224, v{ACC+8+r} offset:{128*r}")
    a("s_mov_b64 exec, 1")
    a("ds_add_u32 v17, v16")
    a("s_mov_b64 exec, -1")
    stamp(a, 7)
    lds_spin(a, "L_kspin", 17, 2)
    stamp(a, 8)
    a.c("expansion")
    for g in range(2):
        for k in range(9):
            a(f"ds_read_b64 {vr(20+18*g+2*k,2)}, v{XA+9*g+k}")
        a("s_waitcnt lgkmcnt(0)")
        for k in range(9):
            b = 20 + 18 * g + 2 * k
            a(f"v_add_f32 v{b}, v{b}, v{b+1}")
        P3, P2 = 60 + 8 * g, 64 + 8 * g
        for j in range(4):
            b = 20 + 18 * g + 4 * j
            a(f"v_cvt_pk_bf16_f32 v{P3+j}, v{b}, v{b+2}")
            a(f"v_cvt_pk_bf16_f32 v{P2+j}, v{b+2}, v{b+4}")
        k_copies(a, 216 + g, P3, P2)
    a("s_waitcnt lgkmcnt(0)")
    stamp(a, 9)
    a("s_barrier")
    stamp(a, 10)
    helper_epilogue(a)


def helper_epilogue(a):
    grp = groups()
    a.c("==== helper epilogue (waves 4..7): thread i = tid-256")
    if OPT["hprio"]:
        a(f"s_setprio {OPT['hprio']}")
    a("v_and_b32 v2, 0xff, v0")
    a("v_lshrrev_b32 v3, 3, v1")
    a("v_lshlrev_b32 v4, 5, v3")
    a("v_and_b32 v5, 7, v1")
    a("v_lshlrev_b32 v5, 5, v5")
    a("v_lshl_add_u32 v5, v3, 12, v5")
    a(f"v_add_u32 v5, {hex(WS_FLAG)}, v5")
    a(f"s_mov_b32 s{S_SPIN}, 0")
    a.lab("L_gpoll")
    a(f"buffer_load_dwordx2 v[20:21], v4, s[{R_DBG}:{R_DBG+3}], 0 offen{SC}")
    a(f"buffer_load_dwordx4 v[24:27], v5, s[{R_WS}:{R_WS+3}], 0 offen{SC}")
    a(f"buffer_load_dwordx4 v[28:31], v5, s[{R_WS}:{R_WS+3}], 0 offen offset:16{SC}")
    a(f"s_add_u32 s{S_SPIN}, s{S_SPIN}, 1")
    a("s_waitcnt vmcnt(0)")
    a("v_cmp_eq_u64 vcc, 0, v[20:21]")
    a(f"s_mov_b64 s[{S_T0}:{S_T0+1}], vcc")
    for j in range(4):
        a(f"v_cmp_ne_u64 vcc, v[20:21], {vr(24+2*j,2)}")
        a(f"s_or_b64 s[{S_T0}:{S_T0+1}], s[{S_T0}:{S_T0+1}], vcc")
    a(f"s_cmp_ge_u32 s{S_SPIN}, {hex(SPIN_MAX)}")
    a("s_cbranch_scc1 L_gpoll_done")
    a(f"s_cmp_eq_u64 s[{S_T0}:{S_T0+1}], 0")
    a("s_cbranch_scc1 L_gpoll_done")
    a("s_sleep 8")
    a("s_branch L_gpoll")
    a.lab("L_gpoll_done")
    GR = 20
    XR = 28
    a(f"s_mov_b32 s{S_T2}, {hex(WS_G)}")
    pos = 0
    for gi, g in enumerate(grp):
        n = len(g); R0 = 256 * g[0]
        sh = {1: 0, 2: 1, 4: 2, 8: 3}[n]
        a(f"v_lshlrev_b32 v{10+gi}, {sh}, v2")
        a(f"v_add_u32 v{10+gi}, {R0}, v{10+gi}")
        a(f"v_lshlrev_b32 v3, 2, v{10+gi}")
        op = {1: "dword", 2: "dwordx2", 4: "dwordx4"}[n]
        a(f"buffer_load_{op} {vr(GR+pos,n)}, v3, s[{R_WS}:{R_WS+3}], s{S_T2} offen{SC}")
        a(f"v_lshlrev_b32 v3, 1, v{10+gi}")
        a(f"v_add_u32 v4, {XB(2)+480}, v3")
        lop = {2: "b32", 4: "b64"}[n]
        for q in range(4):
            if q < 2:
                a(f"ds_read_{lop} {vr(XR+4*q+pos//2,n//2)}, v3 offset:{XB(q)+480}")
            else:
                a(f"ds_read_{lop} {vr(XR+4*q+pos//2,n//2)}, v4 offset:{XB(q)-XB(2)}")
        pos += n
    assert pos == 8
    a(f"s_lshl_b32 s{S_DS}, s{S_RAWDS}, 16")
    a(f"s_and_b32 s{S_DS+1}, s{S_RAWDS}, s{S_HI}")
    a(f"s_lshl_b32 s{S_DM}, s{S_RAWDM}, 16")
    a(f"s_and_b32 s{S_DM+1}, s{S_RAWDM}, s{S_HI}")
    a(f"s_lshl_b32 s{S_T3}, s{S_D0}, 1")
    a("s_waitcnt vmcnt(0) lgkmcnt(0)")
    stamp(a, 11)
    PR = 48
    for r in range(8):
        B = PR + 6 * r
        GG, CB, P, U, KV = B, B + 2, B + 4, 100, 102
        unpack2(a, GG, GR + r)
        for ch in range(2):
            ext(a, U + ch, XR + 4 * ch + r // 2, r & 1)
            ext(a, KV + ch, XR + 4 * (2 + ch) + r // 2, r & 1)
        for ch in range(2):
            a(f"v_mul_f32 v{CB+ch}, v{U+ch}, v{GG+1}")
            a(f"v_mul_f32 v{P+ch}, v{U+ch}, v{GG}")
            a(f"v_mul_f32 v{KV+ch}, s{S_DM+ch}, v{KV+ch}")
        for ch in range(2):
            a(f"v_mul_f32 v{P+ch}, s{S_DS+ch}, v{P+ch}")
        for ch in range(2):
            a(f"v_fmac_f32 v{P+ch}, v{KV+ch}, v{CB+ch}")
    for gi, g in enumerate(grp):
        a(f"v_lshrrev_b32 v3, 4, v{10+gi}")
        a(f"v_lshlrev_b32 v3, 3, v3")
        a(f"v_lshl_add_u32 v3, v{10+gi}, 1, v3")
        a(f"v_add_u32 v{14+gi}, {YS}, v3")
        a(f"v_lshl_add_u32 v{10+gi}, v{10+gi}, 10, s{S_T3}")
    a(f"v_mov_b32 v5, {C_Y}")
    pos = 0
    for gi, g in enumerate(grp):
        n = len(g)
        a(f"s_mov_b32 s{S_SPIN}, 0")
        a.lab(f"L_yspin{gi}")
        a(f"ds_read_b128 v[104:107], v5 offset:{16*gi}")
        a(f"s_add_u32 s{S_SPIN}, s{S_SPIN}, 1")
        a("s_waitcnt lgkmcnt(0)")
        a("v_min_u32 v104, v104, v105")
        a("v_min3_u32 v104, v104, v106, v107")
        a(f"s_cmp_ge_u32 s{S_SPIN}, {hex(SPIN_MAX*8)}")
        a(f"v_readfirstlane_b32 s{S_T0}, v104")
        a(f"s_cbranch_scc1 L_yspin{gi}_done")
        a(f"s_cmp_lg_u32 s{S_T0}, 0")
        a(f"s_cbranch_scc1 L_yspin{gi}_done")
        a("s_sleep 1")
        a(f"s_branch L_yspin{gi}")
        a.lab(f"L_yspin{gi}_done")
        stamp(a, 12 + gi)
        lop = {2: "b32", 4: "b64"}[n]
        YR = 108
        for q in range(4):
            a(f"ds_read_{lop} {vr(YR+2*q,n//2)}, v{14+gi} offset:{YSZ*q}")
        a("s_waitcnt lgkmcnt(0)")
        for k in range(n):
            r = pos + k
            B = PR + 6 * r
            GG, CB, P = B, B + 2, B + 4
            YA, YB = 116 + 4 * (k & 1), 118 + 4 * (k & 1)
            for ch in range(2):
                ext(a, YA + ch, YR + 2 * ch + k // 2, k & 1)
                ext(a, YB + ch, YR + 2 * (2 + ch) + k // 2, k & 1)
            for ch in range(2):
                a(f"v_fmac_f32 v{P+ch}, v{YA+ch}, v{GG}")
            for ch in range(2):
                a(f"v_fmac_f32 v{P+ch}, v{YB+ch}, v{CB+ch}")
            a(f"v_cvt_pk_bf16_f32 v{P}, v{P}, v{P+1}")
            a(f"buffer_store_dword v{P}, v{10+gi}, s[{R_OUT}:{R_OUT+3}], 0 offen offset:{1024*k}")
        pos += n
    stamp_out(a)


def kd(name, vgpr=256):
    return f""".section .rodata,"a"
.p2align 6
.amdhsa_kernel {name}
  .amdhsa_next_free_vgpr {vgpr}
  .amdhsa_next_free_sgpr 102
  .amdhsa_accum_offset {vgpr}
  .amdhsa_group_segment_fixed_size 0
  .amdhsa_kernarg_size 136
  .amdhsa_user_sgpr_count 2
  .amdhsa_user_sgpr_kernarg_segment_ptr 1
  .amdhsa_system_sgpr_workgroup_id_x 1
  .amdhsa_float_denorm_mode_32 3
.end_amdhsa_kernel
"""


def gen():
    out = [f"; @launch grid=(256,1,1) block=(512,1,1) lds={LDS_TOTAL}\n",
           '.amdgcn_target "amdgcn-amd-amdhsa--gfx950"\n.text\n',
           f".globl {NAME}_kernel\n.p2align 8\n.type {NAME}_kernel,@function\n{NAME}_kernel:\n"]
    a = A()
    prologue(a)
    a(f"s_cmp_ge_u32 s{S_WV}, 4")
    a("s_cbranch_scc1 L_kgen")
    data_waves(a)
    a.lab("L_kgen")
    kgen_waves(a)
    a.lab("L_end")
    a("s_endpgm")
    out.append(a.text())
    out.append(kd(NAME + "_kernel"))
    return "".join(out)


if __name__ == "__main__":
    outp = sys.argv[1] if len(sys.argv) > 1 else f"cdna_kernels/{NAME}.s"
    for x in sys.argv[2:]:
        k, v = x.split("=")
        OPT[k] = v if k == "groups" else int(v)
    txt = gen()
    open(outp, "w").write(txt)
    print("wrote", outp, len(txt), "bytes; LDS", LDS_TOTAL)
```

```python
import sys, struct

NAME = "gated_mix__ssm_conv_s4d__ssm_conv_h3__prompt"
OPT = dict(stamp=0, prefetch=1, groups="0123,45,67", pollsleep=4, hprio=2)


def f2u(x):
    return struct.unpack("<I", struct.pack("<f", x))[0]


class A:
    def __init__(self):
        self.l = []

    def __call__(self, s):
        self.l.append("    " + s)

    def lab(self, s):
        self.l.append(s + ":")

    def c(self, s):
        self.l.append("    ; " + s)

    def text(self):
        return "\n".join(self.l) + "\n"


def vr(a, n=1):
    return f"v{a}" if n == 1 else f"v[{a}:{a+n-1}]"


def sr(a, n=1):
    return f"s{a}" if n == 1 else f"s[{a}:{a+n-1}]"


KSTR = 4160
XSZ = 4576
CONV = 16 + 4 * KSTR + XSZ + 16
assert CONV % 16 == 0
def KR(q, s): return q * CONV + 16 + s * KSTR
def XB(q): return q * CONV + 16 + 4 * KSTR
KC = 4 * CONV
KCSZ = 776 * 8
TBL = KC + 2 * KCSZ
TBLSZ = 16 * 288
CNT = TBL + 4 * TBLSZ
YS = CNT + 256
YSZ = 8 * 16 * 40
LDS_TOTAL = YS + 4 * YSZ
IDXBIAS = 8 * 0x4280
C_SIG, C_GO, C_NONCE, C_KG, C_Y = CNT, CNT + 4, CNT + 8, CNT + 16, CNT + 32

WS_U = 0
WS_KV = 0x200000
WS_G = 0x400000
WS_FLAG = 0x410000
WS_ST = 0x600000
WS_SIZE = 0x800000

P_U, P_LAR, P_AIM, P_CR, P_CI, P_LDT, P_DSK, P_Q = 16, 18, 20, 22, 24, 26, 28, 30
P_K, P_V, P_SHK, P_SSMK, P_SSMD, P_GW, P_OUT, P_DBG = 32, 34, 36, 38, 40, 42, 44, 46
P_WS = 48
S_WV, S_CG, S_TB, S_D0 = 3, 4, 5, 6
S_HI = 50
S_LO = 51
S_T0, S_T1, S_T2, S_T3 = 8, 9, 10, 11
R_U, R_K, R_V, R_WS, R_OUT, R_DBG = 52, 56, 60, 64, 68, 72
S_SELLO, S_SELHI, S_4096, S_KV0, S_KV1 = 76, 77, 78, 79, 80
S_DS, S_DM = 82, 84
S_RAWDS, S_RAWDM = 86, 87
S_SC, S_ISC = 89, 90
S_SPIN = 91
S_KC, S_HM = 92, 93
S_PC = 12
S_NON = 14

L2E = 0x3FB8AA3B
L2E_LO = 0x32A57060
LN2 = 0x3F317218
SPIN_MAX = 0x40000
SC = " sc1"


DSLOT = {("d", 0): 2, ("d", 2): 3, ("d", 4): 4, ("d", 6): 5, ("d", 8): 6, ("d", 9): 7,
         ("k", 4): 10, ("k", 9): 11, ("k", 11): 12, ("k", 12): 13, ("k", 13): 14, ("k", 15): 15}
ROLE = ["d"]


def stamp(a, idx):
    if OPT["stamp"] == 3:
        sl = DSLOT.get((ROLE[0], idx))
        if sl is None:
            return
        a("s_memrealtime s[94:95]")
        a("s_waitcnt lgkmcnt(0)")
        a("v_mov_b32 v253, s94")
        a(f"v_mov_b32 v252, {4*sl}")
        a("s_mov_b64 s[98:99], exec")
        a("s_mov_b64 exec, 1")
        a(f"global_atomic_umax v252, v253, s[{P_DBG}:{P_DBG+1}]")
        a("s_mov_b64 exec, s[98:99]")
        return
    if not OPT["stamp"]:
        return
    a("s_memrealtime s[94:95]")
    a("s_memtime s[96:97]")
    a("s_waitcnt lgkmcnt(0)")
    a(f"v_writelane_b32 v255, s94, {idx}")
    a(f"v_writelane_b32 v255, s96, {32+idx}")


def fstamp(a, idx):
    if OPT["stamp"] == 2:
        stamp(a, idx)


def stamp_out(a):
    if not OPT["stamp"]:
        return
    a("s_waitcnt vmcnt(0)")
    stamp(a, 15)
    if OPT["stamp"] == 3:
        return
    a(f"s_lshl_b32 s{S_T0}, s2, 3")
    a(f"s_add_u32 s{S_T0}, s{S_T0}, s{S_WV}")
    a(f"s_lshl_b32 s{S_T0}, s{S_T0}, 8")
    a(f"s_add_u32 s{S_T0}, s{S_T0}, {hex(WS_ST + 0x80000)}")
    a(f"v_lshl_add_u32 v254, v1, 2, s{S_T0}")
    a(f"buffer_store_dword v255, v254, s[{R_WS}:{R_WS+3}], 0 offen")


def srd(a, r, p, size):
    a(f"s_mov_b32 s{r}, s{p}")
    a(f"s_and_b32 s{r+1}, s{p+1}, 0xffff")
    a(f"s_mov_b32 s{r+2}, {hex(size)}")
    a(f"s_mov_b32 s{r+3}, 0x20000")


def rnd(a, d, s):
    a(f"v_cvt_pk_bf16_f32 v{d}, 0, v{s}")


def unpack2(a, d, s):
    a(f"v_lshlrev_b32 v{d}, 16, v{s}")
    a(f"v_and_b32 v{d+1}, s{S_HI}, v{s}")


def ext(a, d, reg, hi):
    if hi:
        a(f"v_and_b32 v{d}, s{S_HI}, v{reg}")
    else:
        a(f"v_lshlrev_b32 v{d}, 16, v{reg}")


def cmul_ops(d, x, y):
    assert d not in (x, y) and d % 2 == 0 and x % 2 == 0 and y % 2 == 0
    return [f"v_pk_mul_f32 {vr(d,2)}, {vr(x,2)}, {vr(y,2)} op_sel:[0,0] op_sel_hi:[1,0]",
            f"v_fma_f32 v{d}, -v{x+1}, v{y+1}, v{d}",
            f"v_fmac_f32 v{d+1}, v{x}, v{y+1}"]


def interleave(a, chains):
    chains = [list(c) for c in chains]
    while any(chains):
        for c in chains:
            if c:
                a(c.pop(0))


def groups():
    return [[int(ch) for ch in g] for g in OPT["groups"].split(",")]


def prologue(a):
    a("s_cmp_ge_u32 s2, 256")
    a("s_cbranch_scc1 L_end")
    a("s_load_dwordx16 s[16:31], s[0:1], 0")
    a("s_load_dwordx16 s[32:47], s[0:1], 64")
    a("s_load_dwordx2 s[48:49], s[0:1], 128")
    a("v_lshrrev_b32 v1, 6, v0")
    a(f"s_and_b32 s{S_CG}, s2, 7")
    a(f"v_readfirstlane_b32 s{S_WV}, v1")
    a("v_and_b32 v1, 63, v0")
    a.c("zero init of LDS pads (512 threads)")
    for i in range(4):
        a(f"v_mov_b32 v{8+i}, 0")
    a("v_lshrrev_b32 v12, 5, v0")
    a(f"v_mul_u32_u24 v12, {CONV}, v12")
    a("v_and_b32 v13, 31, v0")
    a("v_min_u32 v13, 29, v13")
    a("v_lshl_add_u32 v12, v13, 4, v12")
    a(f"v_add_u32 v12, {XB(0)}, v12")
    a("v_bfe_u32 v13, v0, 4, 2")
    a(f"v_mul_u32_u24 v13, {CONV}, v13")
    a("v_bfe_u32 v14, v0, 2, 2")
    a(f"v_mad_u32_u24 v13, v14, s{S_T3}, v13" if False else f"v_mul_u32_u24 v14, {KSTR}, v14")
    a("v_and_b32 v15, 3, v0")
    a("v_min_u32 v15, 2, v15")
    a("v_lshl_add_u32 v14, v15, 4, v14")
    a("v_add_u32 v13, v13, v14")
    a(f"v_add_u32 v13, {KR(0,0)+4080}, v13")
    a("v_cmp_gt_u32 vcc, 0x80, v0")
    a("v_and_b32 v14, 15, v0")
    a("v_lshlrev_b32 v14, 4, v14")
    a("v_cndmask_b32 v12, v13, v12, vcc")
    a(f"v_add_u32 v14, {CNT}, v14")
    a("v_cmp_gt_u32 vcc, 0xc0, v0")
    a("v_and_b32 v15, 1, v0")
    a(f"v_mul_u32_u24 v15, {KCSZ}, v15")
    a("v_cndmask_b32 v12, v14, v12, vcc")
    a(f"v_add_u32 v15, {KC+768*8}, v15")
    a("v_cmp_gt_u32 vcc, 0xd0, v0")
    a(f"s_lshr_b32 s{S_TB}, s2, 3")
    a(f"s_lshl_b32 s{S_D0}, s{S_CG}, 6")
    a("v_cndmask_b32 v12, v15, v12, vcc")
    a(f"s_cmp_ge_u32 s{S_WV}, 4")
    a("s_cbranch_scc1 L_noz")
    a("ds_write_b128 v12, v[8:11]")
    a.lab("L_noz")
    a(f"s_lshl_b32 s{S_T0}, s{S_TB}, 1")
    a(f"s_add_u32 s{S_D0}, s{S_D0}, s{S_T0}")
    a(f"s_mov_b32 s{S_HI}, 0xffff0000")
    a(f"s_mov_b32 s{S_LO}, 0xffff")
    if OPT["stamp"]:
        a("v_mov_b32 v255, 0")
        stamp(a, 0)


def signal(a, tag):
    a(f"v_mov_b32 v16, {C_SIG}")
    a("v_mov_b32 v17, 1")
    a("s_mov_b64 exec, 1")
    a("ds_add_rtn_u32 v18, v16, v17")
    a("ds_read_b64 v[16:17], v16 offset:8")
    a(f"s_lshl_b32 s{S_T0}, s{S_CG}, 12")
    a(f"s_lshl_b32 s{S_T1}, s{S_TB}, 3")
    a(f"s_add_u32 s{S_T0}, s{S_T0}, s{S_T1}")
    a(f"s_add_u32 s{S_T0}, s{S_T0}, {hex(WS_FLAG)}")
    a(f"v_mov_b32 v19, s{S_T0}")
    a("s_waitcnt lgkmcnt(0)")
    a(f"v_readfirstlane_b32 s{S_T1}, v18")
    a(f"s_cmp_lg_u32 s{S_T1}, 7")
    a(f"s_cbranch_scc1 L_nosig_{tag}")
    a(f"buffer_store_dwordx2 v[16:17], v19, s[{R_WS}:{R_WS+3}], 0 offen{SC}")
    a.lab(f"L_nosig_{tag}")
    a("s_mov_b64 exec, -1")


def lds_spin(a, lab, vaddr, val, sleep=0):
    a(f"s_mov_b32 s{S_SPIN}, 0")
    a.lab(lab)
    a(f"ds_read_b32 v18, v{vaddr}")
    a(f"s_add_u32 s{S_SPIN}, s{S_SPIN}, 1")
    a("s_waitcnt lgkmcnt(0)")
    a(f"v_readfirstlane_b32 s{S_T0}, v18")
    a(f"s_cmp_ge_u32 s{S_SPIN}, {hex(SPIN_MAX*8)}")
    a(f"s_cbranch_scc1 {lab}_done")
    a(f"s_cmp_ge_u32 s{S_T0}, {val}")
    a(f"s_cbranch_scc1 {lab}_done")
    if sleep:
        a(f"s_sleep {sleep}")
    a(f"s_branch {lab}")
    a.lab(lab + "_done")


def k_copies(a, vaddr, P3, P2):
    a(f"ds_write_b128 v{vaddr}, {vr(P3,4)} offset:{3*KSTR+4}")
    a(f"ds_write_b128 v{vaddr}, {vr(P2,4)} offset:{2*KSTR+4}")
    a(f"ds_write2_b32 v{vaddr}, v{P2}, v{P2+1} offset0:0 offset1:1")
    a(f"ds_write2_b32 v{vaddr}, v{P2+2}, v{P2+3} offset0:2 offset1:3")
    a(f"v_add_u32 v{vaddr}, {KSTR}, v{vaddr}")
    a(f"ds_write2_b32 v{vaddr}, v{P3}, v{P3+1} offset0:0 offset1:1")
    a(f"ds_write2_b32 v{vaddr}, v{P3+2}, v{P3+3} offset0:2 offset1:3")


def data_waves(a):
    a.c("==== data waves")
    a("v_and_b32 v2, 7, v1")
    a(f"s_lshl_b32 s{S_T0}, s{S_WV}, 3")
    a(f"v_add_u32 v2, s{S_T0}, v2")
    a("v_lshrrev_b32 v3, 3, v1")
    a(f"s_lshl_b32 s{S_T1}, s{S_CG}, 9")
    a(f"v_lshl_add_u32 v6, v2, 4, s{S_T1}")
    a(f"s_lshl_b32 s{S_T0}, s{S_TB}, 16")
    a(f"s_lshl_b32 s{S_T1}, s{S_CG}, 7")
    a(f"s_add_u32 s{S_T0}, s{S_T0}, s{S_T1}")
    a(f"v_lshl_add_u32 v4, v3, 13, s{S_T0}")
    a("v_lshl_add_u32 v4, v2, 2, v4")
    a("v_subrev_u32 v5, 0xc00, v4")
    a(f"s_movk_i32 s{S_4096}, 0x1000")
    a(f"s_memrealtime s[{S_NON}:{S_NON+1}]")
    a("s_waitcnt lgkmcnt(0)")
    fstamp(a, 16)
    a("s_barrier")
    fstamp(a, 17)
    srd(a, R_DBG, P_DBG, 256)
    a(f"s_cmp_lg_u32 s{S_WV}, 0")
    a("s_cbranch_scc1 L_nocas")
    a(f"s_or_b32 s{S_NON}, s{S_NON}, 1")
    a(f"v_mov_b32 v52, s{S_NON}")
    a(f"v_mov_b32 v53, s{S_NON+1}")
    a("v_mov_b32 v54, 0")
    a("v_mov_b32 v55, 0")
    a(f"s_lshl_b32 s{S_T0}, s{S_CG}, 5")
    a(f"v_mov_b32 v56, s{S_T0}")
    a("s_mov_b64 exec, 1")
    a(f"buffer_atomic_cmpswap_x2 v[52:55], v56, s[{R_DBG}:{R_DBG+3}], 0 offen sc0")
    a("s_mov_b64 exec, -1")
    a.lab("L_nocas")
    fstamp(a, 18)
    srd(a, R_K, P_K, 0x200000)
    a(f"global_load_dwordx4 v[48:51], v6, s[{P_SHK}:{P_SHK+1}]")
    fstamp(a, 19)
    for j in range(3):
        a(f"buffer_load_dword v{20+j}, v5, s[{R_K}:{R_K+3}], 0 offen offset:{j*1024}")
    for base, R, P in ((23, R_K, None), (31, R_V, P_V), (39, R_U, P_U)):
        fstamp(a, 20 + (base - 23) // 8)
        if P is not None:
            srd(a, R, P, 0x200000)
        for j in range(8):
            so = "0" if j < 4 else f"s{S_4096}"
            a(f"buffer_load_dword v{base+j}, v4, s[{R}:{R+3}], {so} offen offset:{(j%4)*1024}")
    srd(a, R_WS, P_WS, WS_SIZE)
    a(f"s_mov_b32 s{S_SELLO}, 0x05040100")
    a(f"s_mov_b32 s{S_SELHI}, 0x07060302")
    a(f"s_mov_b32 s{S_KV0}, {hex(WS_KV)}")
    a(f"s_mov_b32 s{S_KV1}, {hex(WS_KV+4096)}")
    a(f"s_lshl_b32 s{S_T0}, s{S_CG}, 18")
    a(f"s_lshl_b32 s{S_T1}, s{S_TB}, 7")
    a(f"s_add_u32 s{S_T0}, s{S_T0}, s{S_T1}")
    a(f"v_lshl_add_u32 v10, v2, 13, s{S_T0}")
    a("v_lshl_add_u32 v10, v3, 4, v10")
    a(f"s_lshl_b32 s{S_T0}, s{S_D0}, 12")
    a(f"v_lshl_add_u32 v8, v0, 4, s{S_T0}")
    a("v_add_u32 v9, 0x1000, v8")
    a("v_lshlrev_b32 v14, 4, v0")
    a("v_subrev_u32 v11, 4, v8")
    a(f"v_max_i32 v11, s{S_T0}, v11")
    stamp(a, 1)
    a("s_waitcnt vmcnt(16)")
    stamp(a, 2)
    SP = 80
    a(f"v_lshlrev_b32 v{SP+0}, 16, v48")
    a(f"v_lshlrev_b32 v{SP+1}, 16, v50")
    a(f"v_and_b32 v{SP+2}, s{S_HI}, v48")
    a(f"v_and_b32 v{SP+3}, s{S_HI}, v50")
    a(f"v_lshlrev_b32 v{SP+4}, 16, v49")
    a(f"v_lshlrev_b32 v{SP+5}, 16, v51")
    a(f"v_and_b32 v{SP+6}, s{S_HI}, v49")
    a(f"v_and_b32 v{SP+7}, s{S_HI}, v51")
    KP = 90
    for i in range(11):
        unpack2(a, KP + 2 * i, 20 + i)
    ACC = 112
    T = 128
    for r in range(8):
        a(f"v_pk_mul_f32 {vr(ACC+2*r,2)}, {vr(KP+2*r,2)}, {vr(SP+6,2)}")
    for j in (1, 2, 3):
        for r in range(8):
            a(f"v_pk_fma_f32 {vr(ACC+2*r,2)}, {vr(KP+2*(r+j),2)}, {vr(SP+6-2*j,2)}, {vr(ACC+2*r,2)}")
    a("s_waitcnt vmcnt(8)")
    for r in range(8):
        unpack2(a, T + 2 * r, 31 + r)
    for r in range(8):
        a(f"v_pk_mul_f32 {vr(ACC+2*r,2)}, {vr(ACC+2*r,2)}, {vr(T+2*r,2)}")
    O = 144
    for ch in range(2):
        for j in range(4):
            a(f"v_cvt_pk_bf16_f32 v{O+4*ch+j}, v{ACC+2*(2*j)+ch}, v{ACC+2*(2*j+1)+ch}")
        so = S_KV0 if ch == 0 else S_KV1
        a(f"buffer_store_dwordx4 {vr(O+4*ch,4)}, v10, s[{R_WS}:{R_WS+3}], s{so} offen{SC}")
    a("s_waitcnt vmcnt(2)")
    O2 = 152
    for ch, sel in ((0, S_SELLO), (1, S_SELHI)):
        for j in range(4):
            a(f"v_perm_b32 v{O2+4*ch+j}, v{39+2*j+1}, v{39+2*j}, s{sel}")
        so = "0" if ch == 0 else f"s{S_4096}"
        a(f"buffer_store_dwordx4 {vr(O2+4*ch,4)}, v10, s[{R_WS}:{R_WS+3}], {so} offen{SC}")
    a(f"global_load_dwordx4 v[68:71], v8, s[{P_SSMK}:{P_SSMK+1}]")
    a(f"global_load_dword v67, v11, s[{P_SSMK}:{P_SSMK+1}]")
    a(f"global_load_dwordx4 v[74:77], v9, s[{P_SSMK}:{P_SSMK+1}]")
    a(f"global_load_dword v73, v9, s[{P_SSMK}:{P_SSMK+1}] offset:-4")
    stamp(a, 3)
    conv_setup(a)
    a("s_waitcnt vmcnt(0)")
    a(f"s_cmp_lg_u32 s{S_WV}, 0")
    a("s_cbranch_scc1 L_nn")
    a(f"v_readfirstlane_b32 s{S_T0}, v52")
    a(f"v_readfirstlane_b32 s{S_T1}, v53")
    a(f"s_or_b32 s{S_T2}, s{S_T0}, s{S_T1}")
    a(f"s_cmp_eq_u32 s{S_T2}, 0")
    a(f"s_cselect_b32 s{S_NON}, s{S_NON}, s{S_T0}")
    a(f"s_cselect_b32 s{S_NON+1}, s{S_NON+1}, s{S_T1}")
    a(f"v_mov_b32 v52, s{S_NON}")
    a(f"v_mov_b32 v53, s{S_NON+1}")
    a(f"v_mov_b32 v16, {C_NONCE}")
    a("ds_write_b64 v16, v[52:53]")
    a.lab("L_nn")
    stamp(a, 4)
    signal(a, "d")
    a.c("---- ssm_k -> LDS (reversed, 4 copies)")
    a("v_cmp_eq_u32 vcc, 0, v0")
    a("v_sub_u32 v15, 4076, v14")
    for ch in range(2):
        q = 2 + ch
        L = 68 + 6 * ch
        P3, P2 = 20 + 8 * ch, 24 + 8 * ch
        a(f"v_cndmask_b32 v{L-1}, v{L-1}, 0, vcc")
        for d in range(4):
            a(f"v_alignbit_b32 v{P3+d}, v{L+3-d}, v{L+3-d}, 16")
            a(f"v_bfi_b32 v{P2+d}, s{S_LO}, v{L+3-d}, v{L+2-d}")
        a(f"v_add_u32 v{36+ch}, {KR(q,0)}, v15")
        k_copies(a, 36 + ch, P3, P2)
    stamp(a, 5)
    a.c("---- wait for producers")
    a(f"v_mov_b32 v16, {C_GO}")
    a(f"s_cmp_lg_u32 s{S_WV}, 0")
    a("s_cbranch_scc1 L_relay")
    a("v_and_b32 v19, 31, v1")
    a(f"s_lshl_b32 s{S_T0}, s{S_CG}, 12")
    a(f"s_add_u32 s{S_T0}, s{S_T0}, {hex(WS_FLAG)}")
    a(f"v_lshl_add_u32 v19, v19, 3, s{S_T0}")
    a(f"s_mov_b32 s{S_SPIN}, 0")
    a.lab("L_poll")
    a(f"buffer_load_dwordx2 v[40:41], v19, s[{R_WS}:{R_WS+3}], 0 offen{SC}")
    a(f"s_add_u32 s{S_SPIN}, s{S_SPIN}, 1")
    a("s_waitcnt vmcnt(0)")
    a(f"v_cmp_ne_u64 vcc, s[{S_NON}:{S_NON+1}], v[40:41]")
    a(f"s_cmp_ge_u32 s{S_SPIN}, {hex(SPIN_MAX)}")
    a("s_cbranch_scc1 L_poll_done")
    a("s_cmp_eq_u64 vcc, 0")
    a("s_cbranch_scc1 L_poll_done")
    a(f"s_sleep {OPT['pollsleep']}")
    a("s_branch L_poll")
    a.lab("L_poll_done")
    a("v_mov_b32 v17, 1")
    a("ds_write_b32 v16, v17")
    a("s_branch L_go")
    a.lab("L_relay")
    lds_spin(a, "L_rspin", 16, 1, sleep=1)
    a.lab("L_go")
    stamp(a, 6)
    a.c("---- phase 2 loads")
    sofs = ["0", f"s{S_4096}", f"s{S_KV0}", f"s{S_KV1}"]
    for q in range(4):
        a(f"buffer_load_dwordx4 {vr(20+4*q,4)}, v8, s[{R_WS}:{R_WS+3}], {sofs[q]} offen{SC}")
    a(f"v_add_u32 v15, {XB(2)+480}, v14")
    for q in range(4):
        a(f"s_waitcnt vmcnt({3-q})")
        if q < 2:
            a(f"ds_write_b128 v14, {vr(20+4*q,4)} offset:{XB(q)+480}")
        else:
            a(f"ds_write_b128 v15, {vr(20+4*q,4)} offset:{XB(q)-XB(2)}")
    a("s_waitcnt lgkmcnt(0)")
    stamp(a, 7)
    a("s_barrier")
    stamp(a, 8)
    conv_main(a)
    if OPT["stamp"]:
        stamp(a, 9)
        stamp_out(a)
    a("s_endpgm")


def conv_setup(a):
    a.c("conv address setup, q = wave")
    a(f"s_mul_i32 s{S_T0}, s{S_WV}, {CONV}")
    a("v_and_b32 v2, 15, v1")
    a("v_lshrrev_b32 v3, 4, v1")
    a("v_and_b32 v4, 3, v2")
    a("v_lshrrev_b32 v5, 2, v2")
    a(f"v_mul_u32_u24 v6, {KSTR}, v4")
    a("v_lshl_add_u32 v6, v3, 4, v6")
    a("v_lshlrev_b32 v5, 3, v5")
    a("v_sub_u32 v6, v6, v5")
    a(f"s_add_u32 s{S_T1}, s{S_T0}, {KR(0,0)+24}")
    a(f"v_add_u32 v6, s{S_T1}, v6")
    a("v_lshlrev_b32 v7, 4, v3")
    a("v_lshl_add_u32 v7, v2, 5, v7")
    a(f"s_add_u32 s{S_T1}, s{S_T0}, {XB(0)}")
    a(f"v_add_u32 v7, s{S_T1}, v7")
    a("v_mul_u32_u24 v12, 40, v2")
    a("v_lshl_add_u32 v12, v3, 3, v12")
    a(f"s_mul_i32 s{S_T1}, s{S_WV}, {YSZ}")
    a(f"s_add_u32 s{S_T1}, s{S_T1}, {YS}")
    a(f"v_add_u32 v12, s{S_T1}, v12")
    a(f"s_lshl_b32 s{S_T1}, s{S_WV}, 2")
    a(f"s_add_u32 s{S_T1}, s{S_T1}, {C_Y}")
    a(f"v_mov_b32 v13, s{S_T1}")


def conv_main(a):
    ACC = 20
    BUF = [52, 116]
    grp = groups()
    steps = []
    for gi, g in enumerate(grp):
        hi = max(g)
        per = 2 if hi <= 3 else 1
        for r0 in range(0, 8, per):
            steps.append((gi, list(range(r0, r0 + per))))

    def step_plan(si):
        gi, rs = steps[si]
        g = grp[gi]
        hi = max(g)
        nfr = hi + 1
        b = BUF[si & 1]
        loads, mf = [], []
        for k, r in enumerate(rs):
            fb = b + 16 * k if len(rs) > 1 else b
            gb = b + 32 + (16 * k if len(rs) > 1 else 0)
            pairs = [(e1, tau - e1, tau) for tau in g for e1 in range(tau + 1)]
            pairs.sort(key=lambda p: (max(p[0], p[1]), p[2]))
            need = sorted(set([p[0] for p in pairs]))
            for i in range(nfr):
                loads.append((("G", k, i), f"ds_read_b128 {vr(gb+4*i,4)}, v7 offset:{512*i+64*r}"))
                loads.append((("F", k, i, 0), f"ds_read_b64 {vr(fb+4*i,2)}, v6 offset:{512*(7-i)+64*r}"))
                loads.append((("F", k, i), f"ds_read_b64 {vr(fb+4*i+2,2)}, v6 offset:{512*(7-i)+64*r+8}"))
            for (e1, c1, tau) in pairs:
                mf.append((tau, ("F", k, e1), ("G", k, c1), fb + 4 * e1, gb + 4 * c1))
        return loads, mf

    plans = [step_plan(si) for si in range(len(steps))]
    seq = [0]
    done = [0]
    when = {}

    def lds(s, key=None):
        a(s)
        if key is not None:
            when[key] = seq[0]
        seq[0] += 1

    def need(idx):
        if idx < done[0]:
            return
        n = seq[0] - idx - 1
        n = min(n, 15)
        a(f"s_waitcnt lgkmcnt({n})")
        a("s_nop 0")
        done[0] = seq[0] - n

    a(".p2align 3")
    for key, s in plans[0][0]:
        lds(s, (0,) + key)
    started = set()
    mark = [0]
    pending = []
    for si in range(len(steps)):
        loads, mf = plans[si]
        nl = list(plans[si + 1][0]) if si + 1 < len(steps) else []
        nm = len(mf)
        slots = max(1, int(nm * 0.8))
        per = -(-len(nl) // slots) if nl else 0
        for i, (tau, fk, gk, fr, gr) in enumerate(mf):
            need(max(when[(si,) + fk], when[(si,) + gk]))
            c = vr(ACC + 4 * tau, 4) if tau in started else "0"
            started.add(tau)
            a(f"v_mfma_f32_16x16x32_bf16 {vr(ACC+4*tau,4)}, {vr(fr,4)}, {vr(gr,4)}, {c}")
            if pending and len(a.l) - mark[0] >= 9:
                for _ in range(2):
                    if pending:
                        op = pending.pop(0)
                        if op.startswith("ds_"):
                            lds(op)
                        else:
                            a(op)
            for _ in range(per):
                if nl:
                    key, s = nl.pop(0)
                    lds(s, (si + 1,) + key)
        assert not nl
        gi = steps[si][0]
        if si + 1 == len(steps) or steps[si + 1][0] != gi:
            assert not pending
            mark[0] = len(a.l)
            for tau in grp[gi]:
                c = ACC + 4 * tau
                pending.append(f"v_cvt_pk_bf16_f32 v{c}, v{c}, v{c+1}")
                pending.append(f"v_cvt_pk_bf16_f32 v{c+1}, v{c+2}, v{c+3}")
                pending.append(f"ds_write_b64 v12, {vr(c,2)} offset:{640*tau}")
            pending.append(f"ds_write_b32 v13, v13 offset:{16*gi}")
    a("s_nop 7")
    for op in pending:
        a(op)


def kgen_waves(a):
    a.c("==== K generation waves")
    a(f"s_sub_u32 s{S_T0}, s{S_WV}, 4")
    a(f"s_lshr_b32 s{S_KC}, s{S_T0}, 1")
    a(f"s_and_b32 s{S_HM}, s{S_T0}, 1")
    a(f"s_add_u32 s{S_T1}, s{S_D0}, s{S_KC}")
    a(f"s_lshl_b32 s{S_T3}, s{S_T1}, 1")
    a(f"v_mov_b32 v8, s{S_T3}")
    a(f"s_lshl_b32 s{S_T1}, s{S_T1}, 8")
    a(f"s_lshl_b32 s{S_T2}, s{S_HM}, 7")
    a(f"s_add_u32 s{S_T1}, s{S_T1}, s{S_T2}")
    a(f"v_lshl_add_u32 v2, v1, 1, s{S_T1}")
    a(f"s_lshl_b32 s{S_T1}, s2, 13")
    a(f"s_lshl_b32 s{S_T2}, s{S_T0}, 11")
    a(f"s_add_u32 s{S_T1}, s{S_T1}, s{S_T2}")
    a("v_lshlrev_b32 v9, 4, v1")
    a(f"v_add_u32 v10, s{S_T1}, v9")
    if OPT["prefetch"]:
        a(f"s_getpc_b64 s[{S_PC}:{S_PC+1}]")
        a.lab("L_pc")
        a(f"s_sub_u32 s{S_PC}, s{S_PC}, L_pc-{NAME}_kernel")
        a(f"s_subb_u32 s{S_PC+1}, s{S_PC+1}, 0")
        a(f"s_lshl_b32 s{S_T2}, s{S_T0}, 12")
        a(f"v_lshl_add_u32 v11, v1, 6, s{S_T2}")
        a(f"v_min_u32 v11, L_end-{NAME}_kernel, v11")
        a(f"global_load_dword v250, v11, s[{S_PC}:{S_PC+1}]")
    a("s_waitcnt lgkmcnt(0)")
    fstamp(a, 16)
    a("s_barrier")
    fstamp(a, 17)
    a(f"global_load_dwordx4 v[228:231], v10, s[{P_U}:{P_U+1}]")
    a(f"global_load_dwordx4 v[232:235], v10, s[{P_U}:{P_U+1}] offset:1024")
    fstamp(a, 18)
    a(f"global_load_dwordx4 v[236:239], v9, s[{P_GW}:{P_GW+1}]")
    fstamp(a, 19)
    a(f"global_load_ushort v7, v8, s[{P_LDT}:{P_LDT+1}]")
    fstamp(a, 20)
    a(f"global_load_ushort v3, v2, s[{P_LAR}:{P_LAR+1}]")
    fstamp(a, 21)
    a(f"global_load_ushort v4, v2, s[{P_AIM}:{P_AIM+1}]")
    fstamp(a, 22)
    a(f"global_load_ushort v5, v2, s[{P_CR}:{P_CR+1}]")
    fstamp(a, 23)
    a(f"global_load_ushort v6, v2, s[{P_CI}:{P_CI+1}]")
    srd(a, R_WS, P_WS, WS_SIZE)
    srd(a, R_DBG, P_DBG, 256)
    srd(a, R_OUT, P_OUT, 0x200000)
    stamp(a, 1)
    a(f"s_lshl_b32 s{S_T3}, s{S_D0}, 1")
    a(f"s_load_dword s{S_RAWDS}, s[{P_DSK}:{P_DSK+1}], s{S_T3}")
    a(f"s_load_dword s{S_RAWDM}, s[{P_SSMD}:{P_SSMD+1}], s{S_T3}")
    a.c("expansion addresses: chunk j = 128*hm + 64*g + lane ; l = 2047 - 8j - k, k=0..8")
    XA = 196
    a(f"s_lshl_b32 s{S_T0}, s{S_HM}, 7")
    a(f"v_add_u32 v19, s{S_T0}, v1")
    a(f"s_mul_i32 s{S_T1}, s{S_KC}, {KCSZ}")
    a(f"s_add_u32 s{S_T1}, s{S_T1}, {KC}")
    a(f"s_sub_u32 s{S_T3}, s{S_T1}, {IDXBIAS}")
    a(f"s_mul_i32 s{S_T2}, s{S_KC}, {CONV}")
    a(f"s_add_u32 s{S_T2}, s{S_T2}, {KR(0,0)-4}")
    for g in range(2):
        if g == 1:
            a("v_add_u32 v19, 64, v19")
        a("v_lshlrev_b32 v11, 3, v19")
        a("v_sub_u32 v11, 2047, v11")
        a("v_cvt_f32_u32 v8, v11")
        if g == 1:
            a("v_cmp_gt_u32 vcc, 0x100, v11")
            a(f"v_lshl_add_u32 v10, v11, 3, s{S_T1}")
        for k in range(9):
            d = XA + 9 * g + k
            if k == 0:
                a(f"v_cvt_pk_bf16_f32 v{d}, 0, v8")
            else:
                lit = {1: "-1.0", 2: "-2.0", 4: "-4.0"}.get(k, hex(f2u(-float(k))))
                a(f"v_add_f32 v9, {lit}, v8")
                a(f"v_cvt_pk_bf16_f32 v{d}, 0, v9")
            a(f"v_lshrrev_b32 v{d}, 13, v{d}")
            a(f"v_add_u32 v{d}, s{S_T3}, v{d}")
            if g == 1:
                a(f"v_subrev_u32 v9, {8*k}, v10")
                a(f"v_cndmask_b32 v{d}, v{d}, v9, vcc")
        a(f"v_lshl_add_u32 v{216+g}, v19, 4, s{S_T2}")
    a("v_cmp_eq_u32 vcc, 0xff, v19")
    a(f"s_add_u32 s{S_T0}, s{S_T1}, {768*8}")
    a(f"v_mov_b32 v9, s{S_T0}")
    a(f"v_cndmask_b32 v{XA+17}, v{XA+17}, v9, vcc")
    a(f"s_sub_u32 s{S_T0}, s{S_WV}, 4")
    a(f"s_mul_i32 s{S_T0}, s{S_T0}, {TBLSZ}")
    a(f"s_add_u32 s{S_T0}, s{S_T0}, {TBL}")
    a(f"v_lshl_add_u32 v220, v1, 2, s{S_T0}")
    a("v_and_b32 v19, 15, v1")
    a("v_lshrrev_b32 v8, 4, v1")
    a("v_mul_u32_u24 v221, 288, v19")
    a("v_lshl_add_u32 v221, v8, 4, v221")
    a(f"v_add_u32 v221, s{S_T0}, v221")
    a(f"s_lshl_b32 s{S_T0}, s{S_HM}, 2")
    a(f"s_add_u32 s{S_T1}, s{S_T1}, s{S_T0}")
    a("v_lshrrev_b32 v9, 1, v8")
    a("v_and_b32 v10, 1, v8")
    a("v_lshlrev_b32 v222, 7, v9")
    a("v_lshl_add_u32 v222, v10, 2, v222")
    a("v_lshl_add_u32 v222, v19, 3, v222")
    a(f"v_lshl_add_u32 v222, v222, 3, s{S_T1}")
    a("v_lshlrev_b32 v11, 1, v10")
    a("v_lshl_add_u32 v11, v19, 2, v11")
    a("v_add_u32 v11, 0x100, v11")
    a("v_lshlrev_b32 v12, 5, v10")
    a("v_lshl_add_u32 v12, v19, 1, v12")
    a("v_cmp_eq_u32 vcc, 0, v9")
    a("v_add_u32 v12, 0x180, v12")
    a("v_lshl_add_u32 v224, v8, 6, v19")
    a("v_cndmask_b32 v223, v12, v11, vcc")
    a(f"v_lshl_add_u32 v223, v223, 3, s{S_T1}")
    a("v_add_u32 v224, 0x200, v224")
    a(f"v_lshl_add_u32 v224, v224, 3, s{S_T1}")
    a(f"s_sub_u32 s{S_T0}, s{S_WV}, 4")
    a(f"s_lshl_b32 s{S_T0}, s{S_T0}, 3")
    a(f"s_lshl_b32 s{S_T1}, s2, 5")
    a(f"s_add_u32 s{S_T0}, s{S_T0}, s{S_T1}")
    a(f"s_add_u32 s{S_T0}, s{S_T0}, {hex(WS_G)}")
    a(f"v_mov_b32 v225, s{S_T0}")
    stamp(a, 2)
    a.c("---- gate: 2 rows per wave, 8 channels per lane")
    a("s_waitcnt vmcnt(5)")
    stamp(a, 3)
    Wp = 20
    for j in range(4):
        unpack2(a, Wp + 2 * j, 236 + j)
    for row in range(2):
        X = 30 + 8 * row
        for j in range(4):
            unpack2(a, X + 2 * j, 228 + 4 * row + j)
    for row in range(2):
        X = 30 + 8 * row
        for j in range(4):
            a(f"v_pk_mul_f32 {vr(X+2*j,2)}, {vr(X+2*j,2)}, {vr(Wp+2*j,2)}")
    for row in range(2):
        X = 30 + 8 * row
        for j in range(8):
            rnd(a, X + j, X + j)
    for row in range(2):
        X = 30 + 8 * row
        a(f"v_pk_add_f32 {vr(X,2)}, {vr(X,2)}, {vr(X+2,2)}")
        a(f"v_pk_add_f32 {vr(X+4,2)}, {vr(X+4,2)}, {vr(X+6,2)}")
    for row in range(2):
        X = 30 + 8 * row
        a(f"v_pk_add_f32 {vr(X,2)}, {vr(X,2)}, {vr(X+4,2)}")
    a("v_add_f32 v30, v30, v31")
    a("v_add_f32 v38, v38, v39")
    a("s_nop 0")
    for d in ("quad_perm:[1,0,3,2]", "quad_perm:[2,3,0,1]", "row_half_mirror", "row_mirror",
              "row_bcast:15 row_mask:0xa", "row_bcast:31 row_mask:0xc"):
        m = "" if "row_mask" in d else " row_mask:0xf"
        a(f"v_add_f32_dpp v30, v30, v30 {d}{m} bank_mask:0xf")
        a(f"v_add_f32_dpp v38, v38, v38 {d}{m} bank_mask:0xf")
        a("s_nop 0")
    for x in (30, 38):
        rnd(a, x, x)
    for x in (30, 38):
        a(f"v_mul_f32 v{x}, {hex(L2E | 0x80000000)}, v{x}")
    for x in (30, 38):
        a(f"v_exp_f32 v{x}, v{x}")
    a("s_nop 0")
    for x in (30, 38):
        a(f"v_add_f32 v{x}, 1.0, v{x}")
    for x in (30, 38):
        a(f"v_rcp_f32 v{x}, v{x}")
    a("s_nop 0")
    for x in (30, 38):
        rnd(a, x, x)
    for x in (30, 38):
        a(f"v_sub_f32 v{x+1}, 1.0, v{x}")
    a("v_cvt_pk_bf16_f32 v32, v30, v31")
    a("v_cvt_pk_bf16_f32 v33, v38, v39")
    a("s_mov_b32 exec_lo, 0")
    a("s_mov_b32 exec_hi, 0x80000000")
    a(f"buffer_store_dwordx2 v[32:33], v225, s[{R_WS}:{R_WS+3}], 0 offen{SC}")
    a("s_mov_b64 exec, -1")
    a.c("parameters")
    a("s_waitcnt vmcnt(1)")
    stamp(a, 4)
    a("v_lshlrev_b32 v8, 16, v7")
    a("v_lshlrev_b32 v9, 16, v3")
    a(f"s_mov_b32 s{S_T1}, {hex(L2E)}")
    a(f"s_mov_b32 s{S_T2}, {hex(L2E_LO)}")
    for x, p, e in ((8, 10, 12), (9, 11, 13)):
        a(f"v_mul_f32 v{p}, s{S_T1}, v{x}")
        a(f"v_fma_f32 v{e}, v{x}, s{S_T1}, -v{p}")
        a(f"v_fma_f32 v{e}, v{x}, s{S_T2}, v{e}")
        a(f"v_exp_f32 v{p}, v{p}")
        a(f"v_mul_f32 v{e}, {hex(LN2)}, v{e}")
    a("v_lshlrev_b32 v4, 16, v4")
    for x, p, e in ((8, 10, 12), (9, 11, 13)):
        a(f"v_fma_f32 v{p}, v{p}, v{e}, v{p}")
        rnd(a, p, p)
    a("v_mul_f32 v11, v11, v10")
    a(f"v_mul_f32 v11, {hex(L2E | 0x80000000)}, v11")
    a("v_mul_f32 v4, v4, v10")
    a("v_mul_f32 v12, 0.15915494, v4")
    a("v_add_f32 v10, v10, v10")
    a("v_lshlrev_b32 v5, 16, v5")
    a("v_lshlrev_b32 v6, 16, v6")
    a("v_mul_f32 v14, v5, v10")
    a("v_mul_f32 v15, v6, v10")
    a("v_max_f32 v13, |v14|, |v15|")
    E = lambda j: 20 + 2 * j
    tmp = {0: (50, 51), 3: (52, 53), 7: (54, 55)}
    dpps = [f"v_max_u32_dpp v13, v13, v13 {d} bank_mask:0xf" for d in
            ("quad_perm:[1,0,3,2] row_mask:0xf", "quad_perm:[2,3,0,1] row_mask:0xf", "row_half_mirror row_mask:0xf",
             "row_mirror row_mask:0xf", "row_bcast:15 row_mask:0xa", "row_bcast:31 row_mask:0xc")]
    anc = []
    for j, (m, f) in tmp.items():
        if j == 0:
            anc += [f"v_exp_f32 v{m}, v11", f"v_fract_f32 v{f}, v12"]
        else:
            anc += [f"v_mul_f32 v{m}, {hex(f2u(2.0**j))}, v11", f"v_mul_f32 v{f}, {hex(f2u(2.0**j))}, v12",
                    f"v_exp_f32 v{m}, v{m}", f"v_fract_f32 v{f}, v{f}"]
    for j, (m, f) in tmp.items():
        anc += [f"v_cos_f32 v{E(j)}, v{f}", f"v_sin_f32 v{E(j)+1}, v{f}"]
    a.c("anchors")
    k = 0
    for d in dpps:
        a(anc[k]); a(anc[k + 1]); k += 2
        a(d)
    for o in anc[k:]:
        a(o)
    a(f"v_readlane_b32 s{S_T0}, v13, 63")
    for j, (m, f) in tmp.items():
        a(f"v_mul_f32 v{E(j)}, v{E(j)}, v{m}")
        a(f"v_mul_f32 v{E(j)+1}, v{E(j)+1}, v{m}")
    a(f"s_lshr_b32 s{S_T0}, s{S_T0}, 23")
    a(f"s_max_u32 s{S_T0}, s{S_T0}, 16")
    a(f"s_sub_u32 s{S_SC}, 264, s{S_T0}")
    a(f"s_lshl_b32 s{S_SC}, s{S_SC}, 23")
    a(f"s_sub_u32 s{S_ISC}, s{S_T0}, 10")
    a(f"s_lshl_b32 s{S_ISC}, s{S_ISC}, 23")
    interleave(a, [sum([cmul_ops(E(j), E(j - 1), E(j - 1)) for j in js], []) for js in ((4, 5, 6), (8, 9, 10, 11), (1, 2))])
    stamp(a, 5)
    a.c("Y tile")
    tcount = [0]

    def put_ops(row, x, neg):
        t = 44 + (tcount[0] % 4)
        tcount[0] += 1
        return [f"v_cvt_pk_f16_f32 v{t}, v{x}, {'-' if neg else ''}v{x+1}",
                f"ds_write_b32 v220, v{t} offset:{288*row}"]

    def run_items(items):
        for i in range(0, len(items), 2):
            ch = []
            for (d, x, y, row, neg) in items[i:i + 2]:
                ops = [] if x is None else cmul_ops(d, x, y)
                if row is not None:
                    ops += put_ops(row, d, neg)
                ch.append(ops)
            interleave(a, ch)

    Y = {1: E(3), 2: E(4), 4: E(5), 8: E(6), 3: 60, 5: 62, 6: 64, 7: 66}
    a("v_mov_b32 v48, 0x3c00")
    a("ds_write_b32 v220, v48")
    items = [(Y[3], Y[2], Y[1], 3, True), (Y[1], None, None, 1, True),
             (Y[5], Y[4], Y[1], 5, True), (Y[2], None, None, 2, True),
             (Y[6], Y[4], Y[2], 6, True), (Y[4], None, None, 4, True),
             (Y[7], Y[4], Y[3], 7, True), (Y[8], None, None, 8, True)]
    for b in range(9, 16):
        items.append((104 + 2 * (b % 4), Y[8], Y[b - 8], b, True))
    run_items(items)
    YF = 160
    for s in range(4):
        a(f"ds_read_b128 {vr(YF+4*s,4)}, v221 offset:{64*s}")
    a.c("Z, W")
    Z = {1: E(0), 2: E(1), 4: E(2), 3: 60, 5: 62, 6: 64, 7: 66}
    W = {h: 70 + 2 * h for h in range(17)}
    a(f"v_mul_f32 v{W[0]}, s{S_SC}, v14")
    a(f"v_mul_f32 v{W[0]+1}, s{S_SC}, v15")
    run_items([(Z[3], Z[2], Z[1], None, 0), (W[1], W[0], E(7), None, 0),
               (Z[5], Z[4], Z[1], None, 0), (Z[6], Z[4], Z[2], None, 0),
               (Z[7], Z[4], Z[3], None, 0), (W[2], W[0], E(8), None, 0)])
    a("s_waitcnt vmcnt(0)")
    signal(a, "k")
    stamp(a, 6)
    XF = 176
    ACC = 140

    XFT = [112, 128, 176]
    ACC = 144

    def rd(t):
        for s in range(4):
            a(f"ds_read_b128 {vr(XFT[t]+4*s,4)}, v221 offset:{64*s}")

    def mm(t):
        for s in range(4):
            c = "0" if s == 0 else vr(ACC + 4 * t, 4)
            a(f"v_mfma_f32_16x16x32_f16 {vr(ACC+4*t,4)}, {vr(XFT[t]+4*s,4)}, {vr(YF+4*s,4)}, {c}")

    a.c("X tile 0")
    items = [(W[0], None, None, 0, False), (W[1], None, None, 8, False)]
    k = 0
    for r in range(1, 8):
        for h in (0, 1):
            items.append((104 + 2 * (k % 4), W[h], Z[r], 8 * h + r, False)); k += 1
    run_items(items)
    rd(0)
    run_items([(W[3], W[1], E(8), None, 0)] + [(W[h], W[h - 4], E(9), None, 0) for h in (4, 5, 6)] + [(W[7], W[3], E(9), None, 0)])
    a.c("X tile 1")
    items = []
    for G in range(4):
        for r in range(4):
            if G < 2:
                h = 2 + (r >> 1); zr = 2 * (2 * G + (r & 1))
            else:
                h = 4 + 2 * (r >> 1) + (G - 2); zr = 4 * (r & 1)
            if zr == 0:
                items.append((W[h], None, None, 4 * G + r, False))
            else:
                items.append((104 + 2 * (k % 4), W[h], Z[zr], 4 * G + r, False)); k += 1
    run_items(items)
    rd(1)
    a.c("X tile 2")
    run_items([(W[h], W[h - 8], E(10), h - 8, False) for h in range(8, 16)] + [(W[16], W[0], E(11), 8, False)])
    rd(2)
    a("s_waitcnt lgkmcnt(4)")
    mm(0)
    mm(1)
    a("s_waitcnt lgkmcnt(0)")
    mm(2)
    a("s_nop 3")
    for t in (0, 1):
        for r in range(4):
            a(f"v_mul_f32 v{ACC+4*t+r}, s{S_ISC}, v{ACC+4*t+r}")
    for t, offs, ad in ((0, (0, 8, 16, 24), 222), (1, (0, 8, 512, 520), 223)):
        for r in range(4):
            a(f"ds_write_b32 v{ad}, v{ACC+4*t+r} offset:{offs[r]}")
    a(f"s_lshl_b32 s{S_T0}, s{S_KC}, 2")
    a(f"s_add_u32 s{S_T0}, s{S_T0}, {C_KG}")
    a(f"v_mov_b32 v17, s{S_T0}")
    a("v_mov_b32 v16, 1")
    for r in range(4):
        a(f"v_mul_f32 v{ACC+8+r}, s{S_ISC}, v{ACC+8+r}")
    for r in range(4):
        a(f"ds_write_b32 v224, v{ACC+8+r} offset:{128*r}")
    a("s_mov_b64 exec, 1")
    a("ds_add_u32 v17, v16")
    a("s_mov_b64 exec, -1")
    stamp(a, 7)
    lds_spin(a, "L_kspin", 17, 2)
    stamp(a, 8)
    a.c("expansion")
    for g in range(2):
        for k in range(9):
            a(f"ds_read_b64 {vr(20+18*g+2*k,2)}, v{XA+9*g+k}")
        a("s_waitcnt lgkmcnt(0)")
        for k in range(9):
            b = 20 + 18 * g + 2 * k
            a(f"v_add_f32 v{b}, v{b}, v{b+1}")
        P3, P2 = 60 + 8 * g, 64 + 8 * g
        for j in range(4):
            b = 20 + 18 * g + 4 * j
            a(f"v_cvt_pk_bf16_f32 v{P3+j}, v{b}, v{b+2}")
            a(f"v_cvt_pk_bf16_f32 v{P2+j}, v{b+2}, v{b+4}")
        k_copies(a, 216 + g, P3, P2)
    a("s_waitcnt lgkmcnt(0)")
    stamp(a, 9)
    a("s_barrier")
    stamp(a, 10)
    helper_epilogue(a)


def helper_epilogue(a):
    grp = groups()
    a.c("==== helper epilogue (waves 4..7): thread i = tid-256")
    if OPT["hprio"]:
        a(f"s_setprio {OPT['hprio']}")
    a("v_and_b32 v2, 0xff, v0")
    a("v_lshrrev_b32 v3, 3, v1")
    a("v_lshlrev_b32 v4, 5, v3")
    a("v_and_b32 v5, 7, v1")
    a("v_lshlrev_b32 v5, 5, v5")
    a("v_lshl_add_u32 v5, v3, 12, v5")
    a(f"v_add_u32 v5, {hex(WS_FLAG)}, v5")
    a(f"s_mov_b32 s{S_SPIN}, 0")
    a.lab("L_gpoll")
    a(f"buffer_load_dwordx2 v[20:21], v4, s[{R_DBG}:{R_DBG+3}], 0 offen{SC}")
    a(f"buffer_load_dwordx4 v[24:27], v5, s[{R_WS}:{R_WS+3}], 0 offen{SC}")
    a(f"buffer_load_dwordx4 v[28:31], v5, s[{R_WS}:{R_WS+3}], 0 offen offset:16{SC}")
    a(f"s_add_u32 s{S_SPIN}, s{S_SPIN}, 1")
    a("s_waitcnt vmcnt(0)")
    a("v_cmp_eq_u64 vcc, 0, v[20:21]")
    a(f"s_mov_b64 s[{S_T0}:{S_T0+1}], vcc")
    for j in range(4):
        a(f"v_cmp_ne_u64 vcc, v[20:21], {vr(24+2*j,2)}")
        a(f"s_or_b64 s[{S_T0}:{S_T0+1}], s[{S_T0}:{S_T0+1}], vcc")
    a(f"s_cmp_ge_u32 s{S_SPIN}, {hex(SPIN_MAX)}")
    a("s_cbranch_scc1 L_gpoll_done")
    a(f"s_cmp_eq_u64 s[{S_T0}:{S_T0+1}], 0")
    a("s_cbranch_scc1 L_gpoll_done")
    a("s_sleep 8")
    a("s_branch L_gpoll")
    a.lab("L_gpoll_done")
    GR = 20
    XR = 28
    a(f"s_mov_b32 s{S_T2}, {hex(WS_G)}")
    pos = 0
    for gi, g in enumerate(grp):
        n = len(g); R0 = 256 * g[0]
        sh = {1: 0, 2: 1, 4: 2, 8: 3}[n]
        a(f"v_lshlrev_b32 v{10+gi}, {sh}, v2")
        a(f"v_add_u32 v{10+gi}, {R0}, v{10+gi}")
        a(f"v_lshlrev_b32 v3, 2, v{10+gi}")
        op = {1: "dword", 2: "dwordx2", 4: "dwordx4"}[n]
        a(f"buffer_load_{op} {vr(GR+pos,n)}, v3, s[{R_WS}:{R_WS+3}], s{S_T2} offen{SC}")
        a(f"v_lshlrev_b32 v3, 1, v{10+gi}")
        a(f"v_add_u32 v4, {XB(2)+480}, v3")
        lop = {2: "b32", 4: "b64"}[n]
        for q in range(4):
            if q < 2:
                a(f"ds_read_{lop} {vr(XR+4*q+pos//2,n//2)}, v3 offset:{XB(q)+480}")
            else:
                a(f"ds_read_{lop} {vr(XR+4*q+pos//2,n//2)}, v4 offset:{XB(q)-XB(2)}")
        pos += n
    assert pos == 8
    a(f"s_lshl_b32 s{S_DS}, s{S_RAWDS}, 16")
    a(f"s_and_b32 s{S_DS+1}, s{S_RAWDS}, s{S_HI}")
    a(f"s_lshl_b32 s{S_DM}, s{S_RAWDM}, 16")
    a(f"s_and_b32 s{S_DM+1}, s{S_RAWDM}, s{S_HI}")
    a(f"s_lshl_b32 s{S_T3}, s{S_D0}, 1")
    a("s_waitcnt vmcnt(0) lgkmcnt(0)")
    stamp(a, 11)
    PR = 48
    for r in range(8):
        B = PR + 6 * r
        GG, CB, P, U, KV = B, B + 2, B + 4, 100, 102
        unpack2(a, GG, GR + r)
        for ch in range(2):
            ext(a, U + ch, XR + 4 * ch + r // 2, r & 1)
            ext(a, KV + ch, XR + 4 * (2 + ch) + r // 2, r & 1)
        for ch in range(2):
            a(f"v_mul_f32 v{CB+ch}, v{U+ch}, v{GG+1}")
            a(f"v_mul_f32 v{P+ch}, v{U+ch}, v{GG}")
            a(f"v_mul_f32 v{KV+ch}, s{S_DM+ch}, v{KV+ch}")
        for ch in range(2):
            a(f"v_mul_f32 v{P+ch}, s{S_DS+ch}, v{P+ch}")
        for ch in range(2):
            a(f"v_fmac_f32 v{P+ch}, v{KV+ch}, v{CB+ch}")
    for gi, g in enumerate(grp):
        a(f"v_lshrrev_b32 v3, 4, v{10+gi}")
        a(f"v_lshlrev_b32 v3, 3, v3")
        a(f"v_lshl_add_u32 v3, v{10+gi}, 1, v3")
        a(f"v_add_u32 v{14+gi}, {YS}, v3")
        a(f"v_lshl_add_u32 v{10+gi}, v{10+gi}, 10, s{S_T3}")
    a(f"v_mov_b32 v5, {C_Y}")
    pos = 0
    for gi, g in enumerate(grp):
        n = len(g)
        a(f"s_mov_b32 s{S_SPIN}, 0")
        a.lab(f"L_yspin{gi}")
        a(f"ds_read_b128 v[104:107], v5 offset:{16*gi}")
        a(f"s_add_u32 s{S_SPIN}, s{S_SPIN}, 1")
        a("s_waitcnt lgkmcnt(0)")
        a("v_min_u32 v104, v104, v105")
        a("v_min3_u32 v104, v104, v106, v107")
        a(f"s_cmp_ge_u32 s{S_SPIN}, {hex(SPIN_MAX*8)}")
        a(f"v_readfirstlane_b32 s{S_T0}, v104")
        a(f"s_cbranch_scc1 L_yspin{gi}_done")
        a(f"s_cmp_lg_u32 s{S_T0}, 0")
        a(f"s_cbranch_scc1 L_yspin{gi}_done")
        a("s_sleep 1")
        a(f"s_branch L_yspin{gi}")
        a.lab(f"L_yspin{gi}_done")
        stamp(a, 12 + gi)
        lop = {2: "b32", 4: "b64"}[n]
        YR = 108
        for q in range(4):
            a(f"ds_read_{lop} {vr(YR+2*q,n//2)}, v{14+gi} offset:{YSZ*q}")
        a("s_waitcnt lgkmcnt(0)")
        for k in range(n):
            r = pos + k
            B = PR + 6 * r
            GG, CB, P = B, B + 2, B + 4
            YA, YB = 116 + 4 * (k & 1), 118 + 4 * (k & 1)
            for ch in range(2):
                ext(a, YA + ch, YR + 2 * ch + k // 2, k & 1)
                ext(a, YB + ch, YR + 2 * (2 + ch) + k // 2, k & 1)
            for ch in range(2):
                a(f"v_fmac_f32 v{P+ch}, v{YA+ch}, v{GG}")
            for ch in range(2):
                a(f"v_fmac_f32 v{P+ch}, v{YB+ch}, v{CB+ch}")
            a(f"v_cvt_pk_bf16_f32 v{P}, v{P}, v{P+1}")
            a(f"buffer_store_dword v{P}, v{10+gi}, s[{R_OUT}:{R_OUT+3}], 0 offen offset:{1024*k}")
        pos += n
    stamp_out(a)


def kd(name, vgpr=256):
    return f""".section .rodata,"a"
.p2align 6
.amdhsa_kernel {name}
  .amdhsa_next_free_vgpr {vgpr}
  .amdhsa_next_free_sgpr 102
  .amdhsa_accum_offset {vgpr}
  .amdhsa_group_segment_fixed_size 0
  .amdhsa_kernarg_size 136
  .amdhsa_user_sgpr_count 2
  .amdhsa_user_sgpr_kernarg_segment_ptr 1
  .amdhsa_system_sgpr_workgroup_id_x 1
  .amdhsa_float_denorm_mode_32 3
.end_amdhsa_kernel
"""


def gen():
    out = [f"; @launch grid=(256,1,1) block=(512,1,1) lds={LDS_TOTAL}\n",
           '.amdgcn_target "amdgcn-amd-amdhsa--gfx950"\n.text\n',
           f".globl {NAME}_kernel\n.p2align 8\n.type {NAME}_kernel,@function\n{NAME}_kernel:\n"]
    a = A()
    prologue(a)
    a(f"s_cmp_ge_u32 s{S_WV}, 4")
    a("s_cbranch_scc1 L_kgen")
    data_waves(a)
    a.lab("L_kgen")
    ROLE[0] = "k"
    kgen_waves(a)
    a.lab("L_end")
    a("s_endpgm")
    out.append(a.text())
    out.append(kd(NAME + "_kernel"))
    return "".join(out)


if __name__ == "__main__":
    outp = sys.argv[1] if len(sys.argv) > 1 else f"cdna_kernels/{NAME}.s"
    for x in sys.argv[2:]:
        k, v = x.split("=")
        OPT[k] = v if k == "groups" else int(v)
    txt = gen()
    open(outp, "w").write(txt)
    print("wrote", outp, len(txt), "bytes; LDS", LDS_TOTAL)
```

```python
import sys, struct

NAME = "gated_mix__ssm_conv_s4d__ssm_conv_h3__prompt"
OPT = dict(stamp=0, prefetch=1, groups="0123,45,67", pollsleep=4, hprio=2, swg=0)


def f2u(x):
    return struct.unpack("<I", struct.pack("<f", x))[0]


class A:
    def __init__(self):
        self.l = []

    def __call__(self, s):
        self.l.append("    " + s)

    def lab(self, s):
        self.l.append(s + ":")

    def c(self, s):
        self.l.append("    ; " + s)

    def text(self):
        return "\n".join(self.l) + "\n"


def vr(a, n=1):
    return f"v{a}" if n == 1 else f"v[{a}:{a+n-1}]"


def sr(a, n=1):
    return f"s{a}" if n == 1 else f"s[{a}:{a+n-1}]"


KSTR = 4160
XSZ = 4576
CONV = 16 + 4 * KSTR + XSZ + 16
assert CONV % 16 == 0
def KR(q, s): return q * CONV + 16 + s * KSTR
def XB(q): return q * CONV + 16 + 4 * KSTR
KC = 4 * CONV
KCSZ = 776 * 8
TBL = KC + 2 * KCSZ
TBLSZ = 16 * 288
CNT = TBL + 4 * TBLSZ
YS = CNT + 256
YSZ = 8 * 16 * 40
LDS_TOTAL = YS + 4 * YSZ
IDXBIAS = 8 * 0x4280
C_SIG, C_GO, C_NONCE, C_KG, C_Y = CNT, CNT + 4, CNT + 8, CNT + 16, CNT + 32

WS_U = 0
WS_KV = 0x200000
WS_G = 0x400000
WS_FLAG = 0x410000
WS_ST = 0x600000
WS_SIZE = 0x800000

P_U, P_LAR, P_AIM, P_CR, P_CI, P_LDT, P_DSK, P_Q = 16, 18, 20, 22, 24, 26, 28, 30
P_K, P_V, P_SHK, P_SSMK, P_SSMD, P_GW, P_OUT, P_DBG = 32, 34, 36, 38, 40, 42, 44, 46
P_WS = 48
S_WV, S_CG, S_TB, S_D0 = 3, 4, 5, 6
S_HI = 50
S_LO = 51
S_T0, S_T1, S_T2, S_T3 = 8, 9, 10, 11
R_U, R_K, R_V, R_WS, R_OUT, R_DBG = 52, 56, 60, 64, 68, 72
S_SELLO, S_SELHI, S_4096, S_KV0, S_KV1 = 76, 77, 78, 79, 80
S_DS, S_DM = 82, 84
S_RAWDS, S_RAWDM = 86, 87
S_SC, S_ISC = 89, 90
S_SPIN = 91
S_KC, S_HM = 92, 93
S_PC = 12
S_NON = 14

L2E = 0x3FB8AA3B
L2E_LO = 0x32A57060
LN2 = 0x3F317218
SPIN_MAX = 0x40000
SC = " sc1"


DSLOT = {("d", 0): 2, ("d", 2): 3, ("d", 4): 4, ("d", 6): 5, ("d", 8): 6, ("d", 9): 7,
         ("k", 4): 10, ("k", 9): 11, ("k", 11): 12, ("k", 12): 13, ("k", 13): 14, ("k", 15): 15}
ROLE = ["d"]


def stamp(a, idx):
    if OPT["stamp"] == 4:
        sl = DSLOT.get((ROLE[0], idx))
        if sl is None:
            return
        a("s_memrealtime s[94:95]")
        a("s_waitcnt lgkmcnt(0)")
        a(f"v_writelane_b32 v255, s94, {sl}")
        return
    if OPT["stamp"] == 3:
        sl = DSLOT.get((ROLE[0], idx))
        if sl is None:
            return
        a("s_memrealtime s[94:95]")
        a("s_waitcnt lgkmcnt(0)")
        a("v_mov_b32 v253, s94")
        a(f"v_mov_b32 v252, {4*sl}")
        a("s_mov_b64 s[98:99], exec")
        a("s_mov_b64 exec, 1")
        a(f"global_atomic_umax v252, v253, s[{P_DBG}:{P_DBG+1}]")
        a("s_mov_b64 exec, s[98:99]")
        return
    if not OPT["stamp"]:
        return
    a("s_memrealtime s[94:95]")
    a("s_memtime s[96:97]")
    a("s_waitcnt lgkmcnt(0)")
    a(f"v_writelane_b32 v255, s94, {idx}")
    a(f"v_writelane_b32 v255, s96, {32+idx}")


def fstamp(a, idx):
    if OPT["stamp"] == 2:
        stamp(a, idx)


def stamp_out(a):
    if not OPT["stamp"]:
        return
    a("s_waitcnt vmcnt(0)")
    stamp(a, 15)
    if OPT["stamp"] == 3:
        return
    if OPT["stamp"] == 4:
        mask = sum(1 << sl for (r, i), sl in DSLOT.items() if r == ROLE[0])
        a(f"s_cmp_lg_u32 s2, {OPT['swg']}")
        a(f"s_cbranch_scc1 L_ns_{ROLE[0]}")
        a(f"s_and_b32 s{S_T0}, s{S_WV}, 3")
        a(f"s_cmp_lg_u32 s{S_T0}, 0")
        a(f"s_cbranch_scc1 L_ns_{ROLE[0]}")
        a("v_lshlrev_b32 v254, 2, v1")
        a(f"s_mov_b64 exec, {hex(mask)}")
        a(f"buffer_store_dword v255, v254, s[{R_DBG}:{R_DBG+3}], 0 offen")
        a.lab(f"L_ns_{ROLE[0]}")
        return
    a(f"s_lshl_b32 s{S_T0}, s2, 3")
    a(f"s_add_u32 s{S_T0}, s{S_T0}, s{S_WV}")
    a(f"s_lshl_b32 s{S_T0}, s{S_T0}, 8")
    a(f"s_add_u32 s{S_T0}, s{S_T0}, {hex(WS_ST + 0x80000)}")
    a(f"v_lshl_add_u32 v254, v1, 2, s{S_T0}")
    a(f"buffer_store_dword v255, v254, s[{R_WS}:{R_WS+3}], 0 offen")


def srd(a, r, p, size):
    a(f"s_mov_b32 s{r}, s{p}")
    a(f"s_and_b32 s{r+1}, s{p+1}, 0xffff")
    a(f"s_mov_b32 s{r+2}, {hex(size)}")
    a(f"s_mov_b32 s{r+3}, 0x20000")


def rnd(a, d, s):
    a(f"v_cvt_pk_bf16_f32 v{d}, 0, v{s}")


def unpack2(a, d, s):
    a(f"v_lshlrev_b32 v{d}, 16, v{s}")
    a(f"v_and_b32 v{d+1}, s{S_HI}, v{s}")


def ext(a, d, reg, hi):
    if hi:
        a(f"v_and_b32 v{d}, s{S_HI}, v{reg}")
    else:
        a(f"v_lshlrev_b32 v{d}, 16, v{reg}")


def cmul_ops(d, x, y):
    assert d not in (x, y) and d % 2 == 0 and x % 2 == 0 and y % 2 == 0
    return [f"v_pk_mul_f32 {vr(d,2)}, {vr(x,2)}, {vr(y,2)} op_sel:[0,0] op_sel_hi:[1,0]",
            f"v_fma_f32 v{d}, -v{x+1}, v{y+1}, v{d}",
            f"v_fmac_f32 v{d+1}, v{x}, v{y+1}"]


def interleave(a, chains):
    chains = [list(c) for c in chains]
    while any(chains):
        for c in chains:
            if c:
                a(c.pop(0))


def groups():
    return [[int(ch) for ch in g] for g in OPT["groups"].split(",")]


def prologue(a):
    a("s_cmp_ge_u32 s2, 256")
    a("s_cbranch_scc1 L_end")
    a("s_load_dwordx16 s[16:31], s[0:1], 0")
    a("s_load_dwordx16 s[32:47], s[0:1], 64")
    a("s_load_dwordx2 s[48:49], s[0:1], 128")
    a("v_lshrrev_b32 v1, 6, v0")
    a(f"s_and_b32 s{S_CG}, s2, 7")
    a(f"v_readfirstlane_b32 s{S_WV}, v1")
    a("v_and_b32 v1, 63, v0")
    a.c("zero init of LDS pads (512 threads)")
    for i in range(4):
        a(f"v_mov_b32 v{8+i}, 0")
    a("v_lshrrev_b32 v12, 5, v0")
    a(f"v_mul_u32_u24 v12, {CONV}, v12")
    a("v_and_b32 v13, 31, v0")
    a("v_min_u32 v13, 29, v13")
    a("v_lshl_add_u32 v12, v13, 4, v12")
    a(f"v_add_u32 v12, {XB(0)}, v12")
    a("v_bfe_u32 v13, v0, 4, 2")
    a(f"v_mul_u32_u24 v13, {CONV}, v13")
    a("v_bfe_u32 v14, v0, 2, 2")
    a(f"v_mad_u32_u24 v13, v14, s{S_T3}, v13" if False else f"v_mul_u32_u24 v14, {KSTR}, v14")
    a("v_and_b32 v15, 3, v0")
    a("v_min_u32 v15, 2, v15")
    a("v_lshl_add_u32 v14, v15, 4, v14")
    a("v_add_u32 v13, v13, v14")
    a(f"v_add_u32 v13, {KR(0,0)+4080}, v13")
    a("v_cmp_gt_u32 vcc, 0x80, v0")
    a("v_and_b32 v14, 15, v0")
    a("v_lshlrev_b32 v14, 4, v14")
    a("v_cndmask_b32 v12, v13, v12, vcc")
    a(f"v_add_u32 v14, {CNT}, v14")
    a("v_cmp_gt_u32 vcc, 0xc0, v0")
    a("v_and_b32 v15, 1, v0")
    a(f"v_mul_u32_u24 v15, {KCSZ}, v15")
    a("v_cndmask_b32 v12, v14, v12, vcc")
    a(f"v_add_u32 v15, {KC+768*8}, v15")
    a("v_cmp_gt_u32 vcc, 0xd0, v0")
    a(f"s_lshr_b32 s{S_TB}, s2, 3")
    a(f"s_lshl_b32 s{S_D0}, s{S_CG}, 6")
    a("v_cndmask_b32 v12, v15, v12, vcc")
    a(f"s_cmp_ge_u32 s{S_WV}, 4")
    a("s_cbranch_scc1 L_noz")
    a("ds_write_b128 v12, v[8:11]")
    a.lab("L_noz")
    a(f"s_lshl_b32 s{S_T0}, s{S_TB}, 1")
    a(f"s_add_u32 s{S_D0}, s{S_D0}, s{S_T0}")
    a(f"s_mov_b32 s{S_HI}, 0xffff0000")
    a(f"s_mov_b32 s{S_LO}, 0xffff")
    if OPT["stamp"]:
        a("v_mov_b32 v255, 0")
        stamp(a, 0)


def signal(a, tag):
    a(f"v_mov_b32 v16, {C_SIG}")
    a("v_mov_b32 v17, 1")
    a("s_mov_b64 exec, 1")
    a("ds_add_rtn_u32 v18, v16, v17")
    a("ds_read_b64 v[16:17], v16 offset:8")
    a(f"s_lshl_b32 s{S_T0}, s{S_CG}, 12")
    a(f"s_lshl_b32 s{S_T1}, s{S_TB}, 3")
    a(f"s_add_u32 s{S_T0}, s{S_T0}, s{S_T1}")
    a(f"s_add_u32 s{S_T0}, s{S_T0}, {hex(WS_FLAG)}")
    a(f"v_mov_b32 v19, s{S_T0}")
    a("s_waitcnt lgkmcnt(0)")
    a(f"v_readfirstlane_b32 s{S_T1}, v18")
    a(f"s_cmp_lg_u32 s{S_T1}, 7")
    a(f"s_cbranch_scc1 L_nosig_{tag}")
    a(f"buffer_store_dwordx2 v[16:17], v19, s[{R_WS}:{R_WS+3}], 0 offen{SC}")
    a.lab(f"L_nosig_{tag}")
    a("s_mov_b64 exec, -1")


def lds_spin(a, lab, vaddr, val, sleep=0):
    a(f"s_mov_b32 s{S_SPIN}, 0")
    a.lab(lab)
    a(f"ds_read_b32 v18, v{vaddr}")
    a(f"s_add_u32 s{S_SPIN}, s{S_SPIN}, 1")
    a("s_waitcnt lgkmcnt(0)")
    a(f"v_readfirstlane_b32 s{S_T0}, v18")
    a(f"s_cmp_ge_u32 s{S_SPIN}, {hex(SPIN_MAX*8)}")
    a(f"s_cbranch_scc1 {lab}_done")
    a(f"s_cmp_ge_u32 s{S_T0}, {val}")
    a(f"s_cbranch_scc1 {lab}_done")
    if sleep:
        a(f"s_sleep {sleep}")
    a(f"s_branch {lab}")
    a.lab(lab + "_done")


def k_copies(a, vaddr, P3, P2):
    a(f"ds_write_b128 v{vaddr}, {vr(P3,4)} offset:{3*KSTR+4}")
    a(f"ds_write_b128 v{vaddr}, {vr(P2,4)} offset:{2*KSTR+4}")
    a(f"ds_write2_b32 v{vaddr}, v{P2}, v{P2+1} offset0:0 offset1:1")
    a(f"ds_write2_b32 v{vaddr}, v{P2+2}, v{P2+3} offset0:2 offset1:3")
    a(f"v_add_u32 v{vaddr}, {KSTR}, v{vaddr}")
    a(f"ds_write2_b32 v{vaddr}, v{P3}, v{P3+1} offset0:0 offset1:1")
    a(f"ds_write2_b32 v{vaddr}, v{P3+2}, v{P3+3} offset0:2 offset1:3")


def data_waves(a):
    a.c("==== data waves")
    a("v_and_b32 v2, 7, v1")
    a(f"s_lshl_b32 s{S_T0}, s{S_WV}, 3")
    a(f"v_add_u32 v2, s{S_T0}, v2")
    a("v_lshrrev_b32 v3, 3, v1")
    a(f"s_lshl_b32 s{S_T1}, s{S_CG}, 9")
    a(f"v_lshl_add_u32 v6, v2, 4, s{S_T1}")
    a(f"s_lshl_b32 s{S_T0}, s{S_TB}, 16")
    a(f"s_lshl_b32 s{S_T1}, s{S_CG}, 7")
    a(f"s_add_u32 s{S_T0}, s{S_T0}, s{S_T1}")
    a(f"v_lshl_add_u32 v4, v3, 13, s{S_T0}")
    a("v_lshl_add_u32 v4, v2, 2, v4")
    a("v_subrev_u32 v5, 0xc00, v4")
    a(f"s_movk_i32 s{S_4096}, 0x1000")
    a(f"s_memrealtime s[{S_NON}:{S_NON+1}]")
    a("s_waitcnt lgkmcnt(0)")
    fstamp(a, 16)
    a("s_barrier")
    fstamp(a, 17)
    srd(a, R_DBG, P_DBG, 256)
    a(f"s_cmp_lg_u32 s{S_WV}, 0")
    a("s_cbranch_scc1 L_nocas")
    a(f"s_or_b32 s{S_NON}, s{S_NON}, 1")
    a(f"v_mov_b32 v52, s{S_NON}")
    a(f"v_mov_b32 v53, s{S_NON+1}")
    a("v_mov_b32 v54, 0")
    a("v_mov_b32 v55, 0")
    a(f"s_lshl_b32 s{S_T0}, s{S_CG}, 5")
    a(f"v_mov_b32 v56, s{S_T0}")
    a("s_mov_b64 exec, 1")
    a(f"buffer_atomic_cmpswap_x2 v[52:55], v56, s[{R_DBG}:{R_DBG+3}], 0 offen sc0")
    a("s_mov_b64 exec, -1")
    a.lab("L_nocas")
    fstamp(a, 18)
    srd(a, R_K, P_K, 0x200000)
    a(f"global_load_dwordx4 v[48:51], v6, s[{P_SHK}:{P_SHK+1}]")
    fstamp(a, 19)
    for j in range(3):
        a(f"buffer_load_dword v{20+j}, v5, s[{R_K}:{R_K+3}], 0 offen offset:{j*1024}")
    for base, R, P in ((23, R_K, None), (31, R_V, P_V), (39, R_U, P_U)):
        fstamp(a, 20 + (base - 23) // 8)
        if P is not None:
            srd(a, R, P, 0x200000)
        for j in range(8):
            so = "0" if j < 4 else f"s{S_4096}"
            a(f"buffer_load_dword v{base+j}, v4, s[{R}:{R+3}], {so} offen offset:{(j%4)*1024}")
    srd(a, R_WS, P_WS, WS_SIZE)
    a(f"s_mov_b32 s{S_SELLO}, 0x05040100")
    a(f"s_mov_b32 s{S_SELHI}, 0x07060302")
    a(f"s_mov_b32 s{S_KV0}, {hex(WS_KV)}")
    a(f"s_mov_b32 s{S_KV1}, {hex(WS_KV+4096)}")
    a(f"s_lshl_b32 s{S_T0}, s{S_CG}, 18")
    a(f"s_lshl_b32 s{S_T1}, s{S_TB}, 7")
    a(f"s_add_u32 s{S_T0}, s{S_T0}, s{S_T1}")
    a(f"v_lshl_add_u32 v10, v2, 13, s{S_T0}")
    a("v_lshl_add_u32 v10, v3, 4, v10")
    a(f"s_lshl_b32 s{S_T0}, s{S_D0}, 12")
    a(f"v_lshl_add_u32 v8, v0, 4, s{S_T0}")
    a("v_add_u32 v9, 0x1000, v8")
    a("v_lshlrev_b32 v14, 4, v0")
    a("v_subrev_u32 v11, 4, v8")
    a(f"v_max_i32 v11, s{S_T0}, v11")
    stamp(a, 1)
    a("s_waitcnt vmcnt(16)")
    stamp(a, 2)
    SP = 80
    a(f"v_lshlrev_b32 v{SP+0}, 16, v48")
    a(f"v_lshlrev_b32 v{SP+1}, 16, v50")
    a(f"v_and_b32 v{SP+2}, s{S_HI}, v48")
    a(f"v_and_b32 v{SP+3}, s{S_HI}, v50")
    a(f"v_lshlrev_b32 v{SP+4}, 16, v49")
    a(f"v_lshlrev_b32 v{SP+5}, 16, v51")
    a(f"v_and_b32 v{SP+6}, s{S_HI}, v49")
    a(f"v_and_b32 v{SP+7}, s{S_HI}, v51")
    KP = 90
    for i in range(11):
        unpack2(a, KP + 2 * i, 20 + i)
    ACC = 112
    T = 128
    for r in range(8):
        a(f"v_pk_mul_f32 {vr(ACC+2*r,2)}, {vr(KP+2*r,2)}, {vr(SP+6,2)}")
    for j in (1, 2, 3):
        for r in range(8):
            a(f"v_pk_fma_f32 {vr(ACC+2*r,2)}, {vr(KP+2*(r+j),2)}, {vr(SP+6-2*j,2)}, {vr(ACC+2*r,2)}")
    a("s_waitcnt vmcnt(8)")
    for r in range(8):
        unpack2(a, T + 2 * r, 31 + r)
    for r in range(8):
        a(f"v_pk_mul_f32 {vr(ACC+2*r,2)}, {vr(ACC+2*r,2)}, {vr(T+2*r,2)}")
    O = 144
    for ch in range(2):
        for j in range(4):
            a(f"v_cvt_pk_bf16_f32 v{O+4*ch+j}, v{ACC+2*(2*j)+ch}, v{ACC+2*(2*j+1)+ch}")
        so = S_KV0 if ch == 0 else S_KV1
        a(f"buffer_store_dwordx4 {vr(O+4*ch,4)}, v10, s[{R_WS}:{R_WS+3}], s{so} offen{SC}")
    a("s_waitcnt vmcnt(2)")
    O2 = 152
    for ch, sel in ((0, S_SELLO), (1, S_SELHI)):
        for j in range(4):
            a(f"v_perm_b32 v{O2+4*ch+j}, v{39+2*j+1}, v{39+2*j}, s{sel}")
        so = "0" if ch == 0 else f"s{S_4096}"
        a(f"buffer_store_dwordx4 {vr(O2+4*ch,4)}, v10, s[{R_WS}:{R_WS+3}], {so} offen{SC}")
    a(f"global_load_dwordx4 v[68:71], v8, s[{P_SSMK}:{P_SSMK+1}]")
    a(f"global_load_dword v67, v11, s[{P_SSMK}:{P_SSMK+1}]")
    a(f"global_load_dwordx4 v[74:77], v9, s[{P_SSMK}:{P_SSMK+1}]")
    a(f"global_load_dword v73, v9, s[{P_SSMK}:{P_SSMK+1}] offset:-4")
    stamp(a, 3)
    conv_setup(a)
    a("s_waitcnt vmcnt(0)")
    a(f"s_cmp_lg_u32 s{S_WV}, 0")
    a("s_cbranch_scc1 L_nn")
    a(f"v_readfirstlane_b32 s{S_T0}, v52")
    a(f"v_readfirstlane_b32 s{S_T1}, v53")
    a(f"s_or_b32 s{S_T2}, s{S_T0}, s{S_T1}")
    a(f"s_cmp_eq_u32 s{S_T2}, 0")
    a(f"s_cselect_b32 s{S_NON}, s{S_NON}, s{S_T0}")
    a(f"s_cselect_b32 s{S_NON+1}, s{S_NON+1}, s{S_T1}")
    a(f"v_mov_b32 v52, s{S_NON}")
    a(f"v_mov_b32 v53, s{S_NON+1}")
    a(f"v_mov_b32 v16, {C_NONCE}")
    a("ds_write_b64 v16, v[52:53]")
    a.lab("L_nn")
    stamp(a, 4)
    signal(a, "d")
    a.c("---- ssm_k -> LDS (reversed, 4 copies)")
    a("v_cmp_eq_u32 vcc, 0, v0")
    a("v_sub_u32 v15, 4076, v14")
    for ch in range(2):
        q = 2 + ch
        L = 68 + 6 * ch
        P3, P2 = 20 + 8 * ch, 24 + 8 * ch
        a(f"v_cndmask_b32 v{L-1}, v{L-1}, 0, vcc")
        for d in range(4):
            a(f"v_alignbit_b32 v{P3+d}, v{L+3-d}, v{L+3-d}, 16")
            a(f"v_bfi_b32 v{P2+d}, s{S_LO}, v{L+3-d}, v{L+2-d}")
        a(f"v_add_u32 v{36+ch}, {KR(q,0)}, v15")
        k_copies(a, 36 + ch, P3, P2)
    stamp(a, 5)
    a.c("---- wait for producers")
    a(f"v_mov_b32 v16, {C_GO}")
    a(f"s_cmp_lg_u32 s{S_WV}, 0")
    a("s_cbranch_scc1 L_relay")
    a("v_and_b32 v19, 31, v1")
    a(f"s_lshl_b32 s{S_T0}, s{S_CG}, 12")
    a(f"s_add_u32 s{S_T0}, s{S_T0}, {hex(WS_FLAG)}")
    a(f"v_lshl_add_u32 v19, v19, 3, s{S_T0}")
    a(f"s_mov_b32 s{S_SPIN}, 0")
    a.lab("L_poll")
    a(f"buffer_load_dwordx2 v[40:41], v19, s[{R_WS}:{R_WS+3}], 0 offen{SC}")
    a(f"s_add_u32 s{S_SPIN}, s{S_SPIN}, 1")
    a("s_waitcnt vmcnt(0)")
    a(f"v_cmp_ne_u64 vcc, s[{S_NON}:{S_NON+1}], v[40:41]")
    a(f"s_cmp_ge_u32 s{S_SPIN}, {hex(SPIN_MAX)}")
    a("s_cbranch_scc1 L_poll_done")
    a("s_cmp_eq_u64 vcc, 0")
    a("s_cbranch_scc1 L_poll_done")
    a(f"s_sleep {OPT['pollsleep']}")
    a("s_branch L_poll")
    a.lab("L_poll_done")
    a("v_mov_b32 v17, 1")
    a("ds_write_b32 v16, v17")
    a("s_branch L_go")
    a.lab("L_relay")
    lds_spin(a, "L_rspin", 16, 1, sleep=1)
    a.lab("L_go")
    stamp(a, 6)
    a.c("---- phase 2 loads")
    sofs = ["0", f"s{S_4096}", f"s{S_KV0}", f"s{S_KV1}"]
    for q in range(4):
        a(f"buffer_load_dwordx4 {vr(20+4*q,4)}, v8, s[{R_WS}:{R_WS+3}], {sofs[q]} offen{SC}")
    a(f"v_add_u32 v15, {XB(2)+480}, v14")
    for q in range(4):
        a(f"s_waitcnt vmcnt({3-q})")
        if q < 2:
            a(f"ds_write_b128 v14, {vr(20+4*q,4)} offset:{XB(q)+480}")
        else:
            a(f"ds_write_b128 v15, {vr(20+4*q,4)} offset:{XB(q)-XB(2)}")
    a("s_waitcnt lgkmcnt(0)")
    stamp(a, 7)
    a("s_barrier")
    stamp(a, 8)
    conv_main(a)
    if OPT["stamp"]:
        stamp(a, 9)
        stamp_out(a)
    a("s_endpgm")


def conv_setup(a):
    a.c("conv address setup, q = wave")
    a(f"s_mul_i32 s{S_T0}, s{S_WV}, {CONV}")
    a("v_and_b32 v2, 15, v1")
    a("v_lshrrev_b32 v3, 4, v1")
    a("v_and_b32 v4, 3, v2")
    a("v_lshrrev_b32 v5, 2, v2")
    a(f"v_mul_u32_u24 v6, {KSTR}, v4")
    a("v_lshl_add_u32 v6, v3, 4, v6")
    a("v_lshlrev_b32 v5, 3, v5")
    a("v_sub_u32 v6, v6, v5")
    a(f"s_add_u32 s{S_T1}, s{S_T0}, {KR(0,0)+24}")
    a(f"v_add_u32 v6, s{S_T1}, v6")
    a("v_lshlrev_b32 v7, 4, v3")
    a("v_lshl_add_u32 v7, v2, 5, v7")
    a(f"s_add_u32 s{S_T1}, s{S_T0}, {XB(0)}")
    a(f"v_add_u32 v7, s{S_T1}, v7")
    a("v_mul_u32_u24 v12, 40, v2")
    a("v_lshl_add_u32 v12, v3, 3, v12")
    a(f"s_mul_i32 s{S_T1}, s{S_WV}, {YSZ}")
    a(f"s_add_u32 s{S_T1}, s{S_T1}, {YS}")
    a(f"v_add_u32 v12, s{S_T1}, v12")
    a(f"s_lshl_b32 s{S_T1}, s{S_WV}, 2")
    a(f"s_add_u32 s{S_T1}, s{S_T1}, {C_Y}")
    a(f"v_mov_b32 v13, s{S_T1}")


def conv_main(a):
    ACC = 20
    BUF = [52, 116]
    grp = groups()
    steps = []
    for gi, g in enumerate(grp):
        hi = max(g)
        per = 2 if hi <= 3 else 1
        for r0 in range(0, 8, per):
            steps.append((gi, list(range(r0, r0 + per))))

    def step_plan(si):
        gi, rs = steps[si]
        g = grp[gi]
        hi = max(g)
        nfr = hi + 1
        b = BUF[si & 1]
        loads, mf = [], []
        for k, r in enumerate(rs):
            fb = b + 16 * k if len(rs) > 1 else b
            gb = b + 32 + (16 * k if len(rs) > 1 else 0)
            pairs = [(e1, tau - e1, tau) for tau in g for e1 in range(tau + 1)]
            pairs.sort(key=lambda p: (max(p[0], p[1]), p[2]))
            need = sorted(set([p[0] for p in pairs]))
            for i in range(nfr):
                loads.append((("G", k, i), f"ds_read_b128 {vr(gb+4*i,4)}, v7 offset:{512*i+64*r}"))
                loads.append((("F", k, i, 0), f"ds_read_b64 {vr(fb+4*i,2)}, v6 offset:{512*(7-i)+64*r}"))
                loads.append((("F", k, i), f"ds_read_b64 {vr(fb+4*i+2,2)}, v6 offset:{512*(7-i)+64*r+8}"))
            for (e1, c1, tau) in pairs:
                mf.append((tau, ("F", k, e1), ("G", k, c1), fb + 4 * e1, gb + 4 * c1))
        return loads, mf

    plans = [step_plan(si) for si in range(len(steps))]
    seq = [0]
    done = [0]
    when = {}

    def lds(s, key=None):
        a(s)
        if key is not None:
            when[key] = seq[0]
        seq[0] += 1

    def need(idx):
        if idx < done[0]:
            return
        n = seq[0] - idx - 1
        n = min(n, 15)
        a(f"s_waitcnt lgkmcnt({n})")
        a("s_nop 0")
        done[0] = seq[0] - n

    a(".p2align 3")
    for key, s in plans[0][0]:
        lds(s, (0,) + key)
    started = set()
    mark = [0]
    pending = []
    for si in range(len(steps)):
        loads, mf = plans[si]
        nl = list(plans[si + 1][0]) if si + 1 < len(steps) else []
        nm = len(mf)
        slots = max(1, int(nm * 0.8))
        per = -(-len(nl) // slots) if nl else 0
        for i, (tau, fk, gk, fr, gr) in enumerate(mf):
            need(max(when[(si,) + fk], when[(si,) + gk]))
            c = vr(ACC + 4 * tau, 4) if tau in started else "0"
            started.add(tau)
            a(f"v_mfma_f32_16x16x32_bf16 {vr(ACC+4*tau,4)}, {vr(fr,4)}, {vr(gr,4)}, {c}")
            if pending and len(a.l) - mark[0] >= 9:
                for _ in range(2):
                    if pending:
                        op = pending.pop(0)
                        if op.startswith("ds_"):
                            lds(op)
                        else:
                            a(op)
            for _ in range(per):
                if nl:
                    key, s = nl.pop(0)
                    lds(s, (si + 1,) + key)
        assert not nl
        gi = steps[si][0]
        if si + 1 == len(steps) or steps[si + 1][0] != gi:
            assert not pending
            mark[0] = len(a.l)
            for tau in grp[gi]:
                c = ACC + 4 * tau
                pending.append(f"v_cvt_pk_bf16_f32 v{c}, v{c}, v{c+1}")
                pending.append(f"v_cvt_pk_bf16_f32 v{c+1}, v{c+2}, v{c+3}")
                pending.append(f"ds_write_b64 v12, {vr(c,2)} offset:{640*tau}")
            pending.append(f"ds_write_b32 v13, v13 offset:{16*gi}")
    a("s_nop 7")
    for op in pending:
        a(op)


def kgen_waves(a):
    a.c("==== K generation waves")
    a(f"s_sub_u32 s{S_T0}, s{S_WV}, 4")
    a(f"s_lshr_b32 s{S_KC}, s{S_T0}, 1")
    a(f"s_and_b32 s{S_HM}, s{S_T0}, 1")
    a(f"s_add_u32 s{S_T1}, s{S_D0}, s{S_KC}")
    a(f"s_lshl_b32 s{S_T3}, s{S_T1}, 1")
    a(f"v_mov_b32 v8, s{S_T3}")
    a(f"s_lshl_b32 s{S_T1}, s{S_T1}, 8")
    a(f"s_lshl_b32 s{S_T2}, s{S_HM}, 7")
    a(f"s_add_u32 s{S_T1}, s{S_T1}, s{S_T2}")
    a(f"v_lshl_add_u32 v2, v1, 1, s{S_T1}")
    a(f"s_lshl_b32 s{S_T1}, s2, 13")
    a(f"s_lshl_b32 s{S_T2}, s{S_T0}, 11")
    a(f"s_add_u32 s{S_T1}, s{S_T1}, s{S_T2}")
    a("v_lshlrev_b32 v9, 4, v1")
    a(f"v_add_u32 v10, s{S_T1}, v9")
    if OPT["prefetch"]:
        a(f"s_getpc_b64 s[{S_PC}:{S_PC+1}]")
        a.lab("L_pc")
        a(f"s_sub_u32 s{S_PC}, s{S_PC}, L_pc-{NAME}_kernel")
        a(f"s_subb_u32 s{S_PC+1}, s{S_PC+1}, 0")
        a(f"s_lshl_b32 s{S_T2}, s{S_T0}, 12")
        a(f"v_lshl_add_u32 v11, v1, 6, s{S_T2}")
        a(f"v_min_u32 v11, L_end-{NAME}_kernel, v11")
        a(f"global_load_dword v250, v11, s[{S_PC}:{S_PC+1}]")
    a("s_waitcnt lgkmcnt(0)")
    fstamp(a, 16)
    a("s_barrier")
    fstamp(a, 17)
    a(f"global_load_dwordx4 v[228:231], v10, s[{P_U}:{P_U+1}]")
    a(f"global_load_dwordx4 v[232:235], v10, s[{P_U}:{P_U+1}] offset:1024")
    fstamp(a, 18)
    a(f"global_load_dwordx4 v[236:239], v9, s[{P_GW}:{P_GW+1}]")
    fstamp(a, 19)
    a(f"global_load_ushort v7, v8, s[{P_LDT}:{P_LDT+1}]")
    fstamp(a, 20)
    a(f"global_load_ushort v3, v2, s[{P_LAR}:{P_LAR+1}]")
    fstamp(a, 21)
    a(f"global_load_ushort v4, v2, s[{P_AIM}:{P_AIM+1}]")
    fstamp(a, 22)
    a(f"global_load_ushort v5, v2, s[{P_CR}:{P_CR+1}]")
    fstamp(a, 23)
    a(f"global_load_ushort v6, v2, s[{P_CI}:{P_CI+1}]")
    srd(a, R_WS, P_WS, WS_SIZE)
    srd(a, R_DBG, P_DBG, 256)
    srd(a, R_OUT, P_OUT, 0x200000)
    stamp(a, 1)
    a(f"s_lshl_b32 s{S_T3}, s{S_D0}, 1")
    a(f"s_load_dword s{S_RAWDS}, s[{P_DSK}:{P_DSK+1}], s{S_T3}")
    a(f"s_load_dword s{S_RAWDM}, s[{P_SSMD}:{P_SSMD+1}], s{S_T3}")
    a.c("expansion addresses: chunk j = 128*hm + 64*g + lane ; l = 2047 - 8j - k, k=0..8")
    XA = 196
    a(f"s_lshl_b32 s{S_T0}, s{S_HM}, 7")
    a(f"v_add_u32 v19, s{S_T0}, v1")
    a(f"s_mul_i32 s{S_T1}, s{S_KC}, {KCSZ}")
    a(f"s_add_u32 s{S_T1}, s{S_T1}, {KC}")
    a(f"s_sub_u32 s{S_T3}, s{S_T1}, {IDXBIAS}")
    a(f"s_mul_i32 s{S_T2}, s{S_KC}, {CONV}")
    a(f"s_add_u32 s{S_T2}, s{S_T2}, {KR(0,0)-4}")
    for g in range(2):
        if g == 1:
            a("v_add_u32 v19, 64, v19")
        a("v_lshlrev_b32 v11, 3, v19")
        a("v_sub_u32 v11, 2047, v11")
        a("v_cvt_f32_u32 v8, v11")
        if g == 1:
            a("v_cmp_gt_u32 vcc, 0x100, v11")
            a(f"v_lshl_add_u32 v10, v11, 3, s{S_T1}")
        for k in range(9):
            d = XA + 9 * g + k
            if k == 0:
                a(f"v_cvt_pk_bf16_f32 v{d}, 0, v8")
            else:
                lit = {1: "-1.0", 2: "-2.0", 4: "-4.0"}.get(k, hex(f2u(-float(k))))
                a(f"v_add_f32 v9, {lit}, v8")
                a(f"v_cvt_pk_bf16_f32 v{d}, 0, v9")
            a(f"v_lshrrev_b32 v{d}, 13, v{d}")
            a(f"v_add_u32 v{d}, s{S_T3}, v{d}")
            if g == 1:
                a(f"v_subrev_u32 v9, {8*k}, v10")
                a(f"v_cndmask_b32 v{d}, v{d}, v9, vcc")
        a(f"v_lshl_add_u32 v{216+g}, v19, 4, s{S_T2}")
    a("v_cmp_eq_u32 vcc, 0xff, v19")
    a(f"s_add_u32 s{S_T0}, s{S_T1}, {768*8}")
    a(f"v_mov_b32 v9, s{S_T0}")
    a(f"v_cndmask_b32 v{XA+17}, v{XA+17}, v9, vcc")
    a(f"s_sub_u32 s{S_T0}, s{S_WV}, 4")
    a(f"s_mul_i32 s{S_T0}, s{S_T0}, {TBLSZ}")
    a(f"s_add_u32 s{S_T0}, s{S_T0}, {TBL}")
    a(f"v_lshl_add_u32 v220, v1, 2, s{S_T0}")
    a("v_and_b32 v19, 15, v1")
    a("v_lshrrev_b32 v8, 4, v1")
    a("v_mul_u32_u24 v221, 288, v19")
    a("v_lshl_add_u32 v221, v8, 4, v221")
    a(f"v_add_u32 v221, s{S_T0}, v221")
    a(f"s_lshl_b32 s{S_T0}, s{S_HM}, 2")
    a(f"s_add_u32 s{S_T1}, s{S_T1}, s{S_T0}")
    a("v_lshrrev_b32 v9, 1, v8")
    a("v_and_b32 v10, 1, v8")
    a("v_lshlrev_b32 v222, 7, v9")
    a("v_lshl_add_u32 v222, v10, 2, v222")
    a("v_lshl_add_u32 v222, v19, 3, v222")
    a(f"v_lshl_add_u32 v222, v222, 3, s{S_T1}")
    a("v_lshlrev_b32 v11, 1, v10")
    a("v_lshl_add_u32 v11, v19, 2, v11")
    a("v_add_u32 v11, 0x100, v11")
    a("v_lshlrev_b32 v12, 5, v10")
    a("v_lshl_add_u32 v12, v19, 1, v12")
    a("v_cmp_eq_u32 vcc, 0, v9")
    a("v_add_u32 v12, 0x180, v12")
    a("v_lshl_add_u32 v224, v8, 6, v19")
    a("v_cndmask_b32 v223, v12, v11, vcc")
    a(f"v_lshl_add_u32 v223, v223, 3, s{S_T1}")
    a("v_add_u32 v224, 0x200, v224")
    a(f"v_lshl_add_u32 v224, v224, 3, s{S_T1}")
    a(f"s_sub_u32 s{S_T0}, s{S_WV}, 4")
    a(f"s_lshl_b32 s{S_T0}, s{S_T0}, 3")
    a(f"s_lshl_b32 s{S_T1}, s2, 5")
    a(f"s_add_u32 s{S_T0}, s{S_T0}, s{S_T1}")
    a(f"s_add_u32 s{S_T0}, s{S_T0}, {hex(WS_G)}")
    a(f"v_mov_b32 v225, s{S_T0}")
    stamp(a, 2)
    a.c("---- gate: 2 rows per wave, 8 channels per lane")
    a("s_waitcnt vmcnt(5)")
    stamp(a, 3)
    Wp = 20
    for j in range(4):
        unpack2(a, Wp + 2 * j, 236 + j)
    for row in range(2):
        X = 30 + 8 * row
        for j in range(4):
            unpack2(a, X + 2 * j, 228 + 4 * row + j)
    for row in range(2):
        X = 30 + 8 * row
        for j in range(4):
            a(f"v_pk_mul_f32 {vr(X+2*j,2)}, {vr(X+2*j,2)}, {vr(Wp+2*j,2)}")
    for row in range(2):
        X = 30 + 8 * row
        for j in range(8):
            rnd(a, X + j, X + j)
    for row in range(2):
        X = 30 + 8 * row
        a(f"v_pk_add_f32 {vr(X,2)}, {vr(X,2)}, {vr(X+2,2)}")
        a(f"v_pk_add_f32 {vr(X+4,2)}, {vr(X+4,2)}, {vr(X+6,2)}")
    for row in range(2):
        X = 30 + 8 * row
        a(f"v_pk_add_f32 {vr(X,2)}, {vr(X,2)}, {vr(X+4,2)}")
    a("v_add_f32 v30, v30, v31")
    a("v_add_f32 v38, v38, v39")
    a("s_nop 0")
    for d in ("quad_perm:[1,0,3,2]", "quad_perm:[2,3,0,1]", "row_half_mirror", "row_mirror",
              "row_bcast:15 row_mask:0xa", "row_bcast:31 row_mask:0xc"):
        m = "" if "row_mask" in d else " row_mask:0xf"
        a(f"v_add_f32_dpp v30, v30, v30 {d}{m} bank_mask:0xf")
        a(f"v_add_f32_dpp v38, v38, v38 {d}{m} bank_mask:0xf")
        a("s_nop 0")
    for x in (30, 38):
        rnd(a, x, x)
    for x in (30, 38):
        a(f"v_mul_f32 v{x}, {hex(L2E | 0x80000000)}, v{x}")
    for x in (30, 38):
        a(f"v_exp_f32 v{x}, v{x}")
    a("s_nop 0")
    for x in (30, 38):
        a(f"v_add_f32 v{x}, 1.0, v{x}")
    for x in (30, 38):
        a(f"v_rcp_f32 v{x}, v{x}")
    a("s_nop 0")
    for x in (30, 38):
        rnd(a, x, x)
    for x in (30, 38):
        a(f"v_sub_f32 v{x+1}, 1.0, v{x}")
    a("v_cvt_pk_bf16_f32 v32, v30, v31")
    a("v_cvt_pk_bf16_f32 v33, v38, v39")
    a("s_mov_b32 exec_lo, 0")
    a("s_mov_b32 exec_hi, 0x80000000")
    a(f"buffer_store_dwordx2 v[32:33], v225, s[{R_WS}:{R_WS+3}], 0 offen{SC}")
    a("s_mov_b64 exec, -1")
    a.c("parameters")
    a("s_waitcnt vmcnt(1)")
    stamp(a, 4)
    a("v_lshlrev_b32 v8, 16, v7")
    a("v_lshlrev_b32 v9, 16, v3")
    a(f"s_mov_b32 s{S_T1}, {hex(L2E)}")
    a(f"s_mov_b32 s{S_T2}, {hex(L2E_LO)}")
    for x, p, e in ((8, 10, 12), (9, 11, 13)):
        a(f"v_mul_f32 v{p}, s{S_T1}, v{x}")
        a(f"v_fma_f32 v{e}, v{x}, s{S_T1}, -v{p}")
        a(f"v_fma_f32 v{e}, v{x}, s{S_T2}, v{e}")
        a(f"v_exp_f32 v{p}, v{p}")
        a(f"v_mul_f32 v{e}, {hex(LN2)}, v{e}")
    a("v_lshlrev_b32 v4, 16, v4")
    for x, p, e in ((8, 10, 12), (9, 11, 13)):
        a(f"v_fma_f32 v{p}, v{p}, v{e}, v{p}")
        rnd(a, p, p)
    a("v_mul_f32 v11, v11, v10")
    a(f"v_mul_f32 v11, {hex(L2E | 0x80000000)}, v11")
    a("v_mul_f32 v4, v4, v10")
    a("v_mul_f32 v12, 0.15915494, v4")
    a("v_add_f32 v10, v10, v10")
    a("v_lshlrev_b32 v5, 16, v5")
    a("v_lshlrev_b32 v6, 16, v6")
    a("v_mul_f32 v14, v5, v10")
    a("v_mul_f32 v15, v6, v10")
    a("v_max_f32 v13, |v14|, |v15|")
    E = lambda j: 20 + 2 * j
    tmp = {0: (50, 51), 3: (52, 53), 7: (54, 55)}
    dpps = [f"v_max_u32_dpp v13, v13, v13 {d} bank_mask:0xf" for d in
            ("quad_perm:[1,0,3,2] row_mask:0xf", "quad_perm:[2,3,0,1] row_mask:0xf", "row_half_mirror row_mask:0xf",
             "row_mirror row_mask:0xf", "row_bcast:15 row_mask:0xa", "row_bcast:31 row_mask:0xc")]
    anc = []
    for j, (m, f) in tmp.items():
        if j == 0:
            anc += [f"v_exp_f32 v{m}, v11", f"v_fract_f32 v{f}, v12"]
        else:
            anc += [f"v_mul_f32 v{m}, {hex(f2u(2.0**j))}, v11", f"v_mul_f32 v{f}, {hex(f2u(2.0**j))}, v12",
                    f"v_exp_f32 v{m}, v{m}", f"v_fract_f32 v{f}, v{f}"]
    for j, (m, f) in tmp.items():
        anc += [f"v_cos_f32 v{E(j)}, v{f}", f"v_sin_f32 v{E(j)+1}, v{f}"]
    a.c("anchors")
    k = 0
    for d in dpps:
        a(anc[k]); a(anc[k + 1]); k += 2
        a(d)
    for o in anc[k:]:
        a(o)
    a(f"v_readlane_b32 s{S_T0}, v13, 63")
    for j, (m, f) in tmp.items():
        a(f"v_mul_f32 v{E(j)}, v{E(j)}, v{m}")
        a(f"v_mul_f32 v{E(j)+1}, v{E(j)+1}, v{m}")
    a(f"s_lshr_b32 s{S_T0}, s{S_T0}, 23")
    a(f"s_max_u32 s{S_T0}, s{S_T0}, 16")
    a(f"s_sub_u32 s{S_SC}, 264, s{S_T0}")
    a(f"s_lshl_b32 s{S_SC}, s{S_SC}, 23")
    a(f"s_sub_u32 s{S_ISC}, s{S_T0}, 10")
    a(f"s_lshl_b32 s{S_ISC}, s{S_ISC}, 23")
    interleave(a, [sum([cmul_ops(E(j), E(j - 1), E(j - 1)) for j in js], []) for js in ((4, 5, 6), (8, 9, 10, 11), (1, 2))])
    stamp(a, 5)
    a.c("Y tile")
    tcount = [0]

    def put_ops(row, x, neg):
        t = 44 + (tcount[0] % 4)
        tcount[0] += 1
        return [f"v_cvt_pk_f16_f32 v{t}, v{x}, {'-' if neg else ''}v{x+1}",
                f"ds_write_b32 v220, v{t} offset:{288*row}"]

    def run_items(items):
        for i in range(0, len(items), 2):
            ch = []
            for (d, x, y, row, neg) in items[i:i + 2]:
                ops = [] if x is None else cmul_ops(d, x, y)
                if row is not None:
                    ops += put_ops(row, d, neg)
                ch.append(ops)
            interleave(a, ch)

    Y = {1: E(3), 2: E(4), 4: E(5), 8: E(6), 3: 60, 5: 62, 6: 64, 7: 66}
    a("v_mov_b32 v48, 0x3c00")
    a("ds_write_b32 v220, v48")
    items = [(Y[3], Y[2], Y[1], 3, True), (Y[1], None, None, 1, True),
             (Y[5], Y[4], Y[1], 5, True), (Y[2], None, None, 2, True),
             (Y[6], Y[4], Y[2], 6, True), (Y[4], None, None, 4, True),
             (Y[7], Y[4], Y[3], 7, True), (Y[8], None, None, 8, True)]
    for b in range(9, 16):
        items.append((104 + 2 * (b % 4), Y[8], Y[b - 8], b, True))
    run_items(items)
    YF = 160
    for s in range(4):
        a(f"ds_read_b128 {vr(YF+4*s,4)}, v221 offset:{64*s}")
    a.c("Z, W")
    Z = {1: E(0), 2: E(1), 4: E(2), 3: 60, 5: 62, 6: 64, 7: 66}
    W = {h: 70 + 2 * h for h in range(17)}
    a(f"v_mul_f32 v{W[0]}, s{S_SC}, v14")
    a(f"v_mul_f32 v{W[0]+1}, s{S_SC}, v15")
    run_items([(Z[3], Z[2], Z[1], None, 0), (W[1], W[0], E(7), None, 0),
               (Z[5], Z[4], Z[1], None, 0), (Z[6], Z[4], Z[2], None, 0),
               (Z[7], Z[4], Z[3], None, 0), (W[2], W[0], E(8), None, 0)])
    a("s_waitcnt vmcnt(0)")
    signal(a, "k")
    stamp(a, 6)
    XF = 176
    ACC = 140

    XFT = [112, 128, 176]
    ACC = 144

    def rd(t):
        for s in range(4):
            a(f"ds_read_b128 {vr(XFT[t]+4*s,4)}, v221 offset:{64*s}")

    def mm(t):
        for s in range(4):
            c = "0" if s == 0 else vr(ACC + 4 * t, 4)
            a(f"v_mfma_f32_16x16x32_f16 {vr(ACC+4*t,4)}, {vr(XFT[t]+4*s,4)}, {vr(YF+4*s,4)}, {c}")

    a.c("X tile 0")
    items = [(W[0], None, None, 0, False), (W[1], None, None, 8, False)]
    k = 0
    for r in range(1, 8):
        for h in (0, 1):
            items.append((104 + 2 * (k % 4), W[h], Z[r], 8 * h + r, False)); k += 1
    run_items(items)
    rd(0)
    run_items([(W[3], W[1], E(8), None, 0)] + [(W[h], W[h - 4], E(9), None, 0) for h in (4, 5, 6)] + [(W[7], W[3], E(9), None, 0)])
    a.c("X tile 1")
    items = []
    for G in range(4):
        for r in range(4):
            if G < 2:
                h = 2 + (r >> 1); zr = 2 * (2 * G + (r & 1))
            else:
                h = 4 + 2 * (r >> 1) + (G - 2); zr = 4 * (r & 1)
            if zr == 0:
                items.append((W[h], None, None, 4 * G + r, False))
            else:
                items.append((104 + 2 * (k % 4), W[h], Z[zr], 4 * G + r, False)); k += 1
    run_items(items)
    rd(1)
    a.c("X tile 2")
    run_items([(W[h], W[h - 8], E(10), h - 8, False) for h in range(8, 16)] + [(W[16], W[0], E(11), 8, False)])
    rd(2)
    a("s_waitcnt lgkmcnt(4)")
    mm(0)
    mm(1)
    a("s_waitcnt lgkmcnt(0)")
    mm(2)
    a("s_nop 3")
    for t in (0, 1):
        for r in range(4):
            a(f"v_mul_f32 v{ACC+4*t+r}, s{S_ISC}, v{ACC+4*t+r}")
    for t, offs, ad in ((0, (0, 8, 16, 24), 222), (1, (0, 8, 512, 520), 223)):
        for r in range(4):
            a(f"ds_write_b32 v{ad}, v{ACC+4*t+r} offset:{offs[r]}")
    a(f"s_lshl_b32 s{S_T0}, s{S_KC}, 2")
    a(f"s_add_u32 s{S_T0}, s{S_T0}, {C_KG}")
    a(f"v_mov_b32 v17, s{S_T0}")
    a("v_mov_b32 v16, 1")
    for r in range(4):
        a(f"v_mul_f32 v{ACC+8+r}, s{S_ISC}, v{ACC+8+r}")
    for r in range(4):
        a(f"ds_write_b32 v224, v{ACC+8+r} offset:{128*r}")
    a("s_mov_b64 exec, 1")
    a("ds_add_u32 v17, v16")
    a("s_mov_b64 exec, -1")
    stamp(a, 7)
    lds_spin(a, "L_kspin", 17, 2)
    stamp(a, 8)
    a.c("expansion")
    for g in range(2):
        for k in range(9):
            a(f"ds_read_b64 {vr(20+18*g+2*k,2)}, v{XA+9*g+k}")
        a("s_waitcnt lgkmcnt(0)")
        for k in range(9):
            b = 20 + 18 * g + 2 * k
            a(f"v_add_f32 v{b}, v{b}, v{b+1}")
        P3, P2 = 60 + 8 * g, 64 + 8 * g
        for j in range(4):
            b = 20 + 18 * g + 4 * j
            a(f"v_cvt_pk_bf16_f32 v{P3+j}, v{b}, v{b+2}")
            a(f"v_cvt_pk_bf16_f32 v{P2+j}, v{b+2}, v{b+4}")
        k_copies(a, 216 + g, P3, P2)
    a("s_waitcnt lgkmcnt(0)")
    stamp(a, 9)
    a("s_barrier")
    stamp(a, 10)
    helper_epilogue(a)


def helper_epilogue(a):
    grp = groups()
    a.c("==== helper epilogue (waves 4..7): thread i = tid-256")
    if OPT["hprio"]:
        a(f"s_setprio {OPT['hprio']}")
    a("v_and_b32 v2, 0xff, v0")
    a("v_lshrrev_b32 v3, 3, v1")
    a("v_lshlrev_b32 v4, 5, v3")
    a("v_and_b32 v5, 7, v1")
    a("v_lshlrev_b32 v5, 5, v5")
    a("v_lshl_add_u32 v5, v3, 12, v5")
    a(f"v_add_u32 v5, {hex(WS_FLAG)}, v5")
    a(f"s_mov_b32 s{S_SPIN}, 0")
    a.lab("L_gpoll")
    a(f"buffer_load_dwordx2 v[20:21], v4, s[{R_DBG}:{R_DBG+3}], 0 offen{SC}")
    a(f"buffer_load_dwordx4 v[24:27], v5, s[{R_WS}:{R_WS+3}], 0 offen{SC}")
    a(f"buffer_load_dwordx4 v[28:31], v5, s[{R_WS}:{R_WS+3}], 0 offen offset:16{SC}")
    a(f"s_add_u32 s{S_SPIN}, s{S_SPIN}, 1")
    a("s_waitcnt vmcnt(0)")
    a("v_cmp_eq_u64 vcc, 0, v[20:21]")
    a(f"s_mov_b64 s[{S_T0}:{S_T0+1}], vcc")
    for j in range(4):
        a(f"v_cmp_ne_u64 vcc, v[20:21], {vr(24+2*j,2)}")
        a(f"s_or_b64 s[{S_T0}:{S_T0+1}], s[{S_T0}:{S_T0+1}], vcc")
    a(f"s_cmp_ge_u32 s{S_SPIN}, {hex(SPIN_MAX)}")
    a("s_cbranch_scc1 L_gpoll_done")
    a(f"s_cmp_eq_u64 s[{S_T0}:{S_T0+1}], 0")
    a("s_cbranch_scc1 L_gpoll_done")
    a("s_sleep 8")
    a("s_branch L_gpoll")
    a.lab("L_gpoll_done")
    GR = 20
    XR = 28
    a(f"s_mov_b32 s{S_T2}, {hex(WS_G)}")
    pos = 0
    for gi, g in enumerate(grp):
        n = len(g); R0 = 256 * g[0]
        sh = {1: 0, 2: 1, 4: 2, 8: 3}[n]
        a(f"v_lshlrev_b32 v{10+gi}, {sh}, v2")
        a(f"v_add_u32 v{10+gi}, {R0}, v{10+gi}")
        a(f"v_lshlrev_b32 v3, 2, v{10+gi}")
        op = {1: "dword", 2: "dwordx2", 4: "dwordx4"}[n]
        a(f"buffer_load_{op} {vr(GR+pos,n)}, v3, s[{R_WS}:{R_WS+3}], s{S_T2} offen{SC}")
        a(f"v_lshlrev_b32 v3, 1, v{10+gi}")
        a(f"v_add_u32 v4, {XB(2)+480}, v3")
        lop = {2: "b32", 4: "b64"}[n]
        for q in range(4):
            if q < 2:
                a(f"ds_read_{lop} {vr(XR+4*q+pos//2,n//2)}, v3 offset:{XB(q)+480}")
            else:
                a(f"ds_read_{lop} {vr(XR+4*q+pos//2,n//2)}, v4 offset:{XB(q)-XB(2)}")
        pos += n
    assert pos == 8
    a(f"s_lshl_b32 s{S_DS}, s{S_RAWDS}, 16")
    a(f"s_and_b32 s{S_DS+1}, s{S_RAWDS}, s{S_HI}")
    a(f"s_lshl_b32 s{S_DM}, s{S_RAWDM}, 16")
    a(f"s_and_b32 s{S_DM+1}, s{S_RAWDM}, s{S_HI}")
    a(f"s_lshl_b32 s{S_T3}, s{S_D0}, 1")
    a("s_waitcnt vmcnt(0) lgkmcnt(0)")
    stamp(a, 11)
    PR = 48
    for r in range(8):
        B = PR + 6 * r
        GG, CB, P, U, KV = B, B + 2, B + 4, 100, 102
        unpack2(a, GG, GR + r)
        for ch in range(2):
            ext(a, U + ch, XR + 4 * ch + r // 2, r & 1)
            ext(a, KV + ch, XR + 4 * (2 + ch) + r // 2, r & 1)
        for ch in range(2):
            a(f"v_mul_f32 v{CB+ch}, v{U+ch}, v{GG+1}")
            a(f"v_mul_f32 v{P+ch}, v{U+ch}, v{GG}")
            a(f"v_mul_f32 v{KV+ch}, s{S_DM+ch}, v{KV+ch}")
        for ch in range(2):
            a(f"v_mul_f32 v{P+ch}, s{S_DS+ch}, v{P+ch}")
        for ch in range(2):
            a(f"v_fmac_f32 v{P+ch}, v{KV+ch}, v{CB+ch}")
    for gi, g in enumerate(grp):
        a(f"v_lshrrev_b32 v3, 4, v{10+gi}")
        a(f"v_lshlrev_b32 v3, 3, v3")
        a(f"v_lshl_add_u32 v3, v{10+gi}, 1, v3")
        a(f"v_add_u32 v{14+gi}, {YS}, v3")
        a(f"v_lshl_add_u32 v{10+gi}, v{10+gi}, 10, s{S_T3}")
    a(f"v_mov_b32 v5, {C_Y}")
    pos = 0
    for gi, g in enumerate(grp):
        n = len(g)
        a(f"s_mov_b32 s{S_SPIN}, 0")
        a.lab(f"L_yspin{gi}")
        a(f"ds_read_b128 v[104:107], v5 offset:{16*gi}")
        a(f"s_add_u32 s{S_SPIN}, s{S_SPIN}, 1")
        a("s_waitcnt lgkmcnt(0)")
        a("v_min_u32 v104, v104, v105")
        a("v_min3_u32 v104, v104, v106, v107")
        a(f"s_cmp_ge_u32 s{S_SPIN}, {hex(SPIN_MAX*8)}")
        a(f"v_readfirstlane_b32 s{S_T0}, v104")
        a(f"s_cbranch_scc1 L_yspin{gi}_done")
        a(f"s_cmp_lg_u32 s{S_T0}, 0")
        a(f"s_cbranch_scc1 L_yspin{gi}_done")
        a("s_sleep 1")
        a(f"s_branch L_yspin{gi}")
        a.lab(f"L_yspin{gi}_done")
        stamp(a, 12 + gi)
        lop = {2: "b32", 4: "b64"}[n]
        YR = 108
        for q in range(4):
            a(f"ds_read_{lop} {vr(YR+2*q,n//2)}, v{14+gi} offset:{YSZ*q}")
        a("s_waitcnt lgkmcnt(0)")
        for k in range(n):
            r = pos + k
            B = PR + 6 * r
            GG, CB, P = B, B + 2, B + 4
            YA, YB = 116 + 4 * (k & 1), 118 + 4 * (k & 1)
            for ch in range(2):
                ext(a, YA + ch, YR + 2 * ch + k // 2, k & 1)
                ext(a, YB + ch, YR + 2 * (2 + ch) + k // 2, k & 1)
            for ch in range(2):
                a(f"v_fmac_f32 v{P+ch}, v{YA+ch}, v{GG}")
            for ch in range(2):
                a(f"v_fmac_f32 v{P+ch}, v{YB+ch}, v{CB+ch}")
            a(f"v_cvt_pk_bf16_f32 v{P}, v{P}, v{P+1}")
            a(f"buffer_store_dword v{P}, v{10+gi}, s[{R_OUT}:{R_OUT+3}], 0 offen offset:{1024*k}")
        pos += n
    stamp_out(a)


def kd(name, vgpr=256):
    return f""".section .rodata,"a"
.p2align 6
.amdhsa_kernel {name}
  .amdhsa_next_free_vgpr {vgpr}
  .amdhsa_next_free_sgpr 102
  .amdhsa_accum_offset {vgpr}
  .amdhsa_group_segment_fixed_size 0
  .amdhsa_kernarg_size 136
  .amdhsa_user_sgpr_count 2
  .amdhsa_user_sgpr_kernarg_segment_ptr 1
  .amdhsa_system_sgpr_workgroup_id_x 1
  .amdhsa_float_denorm_mode_32 3
.end_amdhsa_kernel
"""


def gen():
    out = [f"; @launch grid=(256,1,1) block=(512,1,1) lds={LDS_TOTAL}\n",
           '.amdgcn_target "amdgcn-amd-amdhsa--gfx950"\n.text\n',
           f".globl {NAME}_kernel\n.p2align 8\n.type {NAME}_kernel,@function\n{NAME}_kernel:\n"]
    a = A()
    prologue(a)
    a(f"s_cmp_ge_u32 s{S_WV}, 4")
    a("s_cbranch_scc1 L_kgen")
    data_waves(a)
    a.lab("L_kgen")
    ROLE[0] = "k"
    kgen_waves(a)
    a.lab("L_end")
    a("s_endpgm")
    out.append(a.text())
    out.append(kd(NAME + "_kernel"))
    return "".join(out)


if __name__ == "__main__":
    outp = sys.argv[1] if len(sys.argv) > 1 else f"cdna_kernels/{NAME}.s"
    for x in sys.argv[2:]:
        k, v = x.split("=")
        OPT[k] = v if k == "groups" else int(v)
    txt = gen()
    open(outp, "w").write(txt)
    print("wrote", outp, len(txt), "bytes; LDS", LDS_TOTAL)
```

```python
import sys, struct

NAME = "gated_mix__ssm_conv_s4d__ssm_conv_h3__prompt"
OPT = dict(stamp=0, groups="0123,4567", pollsleep=2, hprio=2, map=0, dprio=2, wslack=5, fullflag=1, frac=100)
NV = 168
VST, VST2 = 167, 166


def f2u(x):
    return struct.unpack("<I", struct.pack("<f", x))[0]


class A:
    def __init__(self):
        self.l = []

    def __call__(self, s):
        self.l.append("    " + s)

    def lab(self, s):
        self.l.append(s + ":")

    def c(self, s):
        self.l.append("    ; " + s)

    def text(self):
        return "\n".join(self.l) + "\n"


def vr(a, n=1):
    assert a + n <= NV, (a, n)
    return f"v{a}" if n == 1 else f"v[{a}:{a+n-1}]"


def sr(a, n=1):
    return f"s{a}" if n == 1 else f"s[{a}:{a+n-1}]"


KSTR = 4160
XSZ = 4576
CONV = 16 + 4 * KSTR + XSZ + 16
def KR(q, s): return q * CONV + 16 + s * KSTR
def XB(q): return q * CONV + 16 + 4 * KSTR
KC = 4 * CONV
KCSZ = 776 * 8
TBL = KC + 2 * KCSZ
TBLSZ = 16 * 288
CNT = TBL + 4 * TBLSZ
YS = CNT + 256
YSZ = 8 * 16 * 40
P1S = YS
P1K, P1V, P1U = P1S + 1024, P1S + 9216, P1S + 17408
LDS_TOTAL = YS + 25600
IDXBIAS = 8 * 0x4280
C_SIG, C_P1, C_KG, C_Y = CNT, CNT + 4, CNT + 16, CNT + 32

WS_KV = 0x200000
WS_G = 0x400000
WS_FLAG = 0x410000
WS_ST = 0x600000
WS_SIZE = 0x800000

P_U, P_LAR, P_AIM, P_CR, P_CI, P_LDT, P_DSK, P_Q = 16, 18, 20, 22, 24, 26, 28, 30
P_K, P_V, P_SHK, P_SSMK, P_SSMD, P_GW, P_OUT, P_DBG = 32, 34, 36, 38, 40, 42, 44, 46
P_WS = 48
S_WV, S_CG, S_TB, S_D0 = 3, 4, 5, 6
S_PCG, S_PTB, S_GB, S_W4 = 7, 98, 99, 100
S_HI, S_LO = 50, 51
S_T0, S_T1, S_T2, S_T3 = 8, 9, 10, 11
R_U, R_K, R_V, R_WS, R_OUT, R_DBG = 52, 56, 60, 64, 68, 72
S_SELLO, S_SELHI, S_4096, S_KV0, S_KV1 = 76, 77, 78, 79, 80
S_DS, S_DM = 82, 84
S_RAWDS, S_RAWDM = 86, 87
S_SC, S_ISC = 89, 90
S_SPIN = 91
S_KC, S_HM = 92, 93
S_PC = 12
S_NON = 14

L2E = 0x3FB8AA3B
L2E_LO = 0x32A57060
LN2 = 0x3F317218
SPIN_MAX = 0x40000
SC = " sc1"


def stamp(a, idx):
    if not OPT["stamp"]:
        return
    a("s_memrealtime s[94:95]")
    a("s_memtime s[96:97]")
    a("s_waitcnt lgkmcnt(0)")
    a(f"v_writelane_b32 v{VST}, s94, {idx}")
    a(f"v_writelane_b32 v{VST}, s96, {32+idx}")


def stamp_out(a):
    if not OPT["stamp"]:
        return
    a("s_waitcnt vmcnt(0)")
    stamp(a, 15)
    a(f"s_lshl_b32 s{S_T0}, s2, 4")
    a(f"s_add_u32 s{S_T0}, s{S_T0}, s{S_WV}")
    a(f"s_lshl_b32 s{S_T0}, s{S_T0}, 8")
    a(f"s_add_u32 s{S_T0}, s{S_T0}, {hex(WS_ST)}")
    a(f"v_lshl_add_u32 v{VST2}, v1, 2, s{S_T0}")
    a(f"buffer_store_dword v{VST}, v{VST2}, s[{R_WS}:{R_WS+3}], 0 offen")


def srd(a, r, p, size):
    a(f"s_mov_b32 s{r}, s{p}")
    a(f"s_and_b32 s{r+1}, s{p+1}, 0xffff")
    a(f"s_mov_b32 s{r+2}, {hex(size)}")
    a(f"s_mov_b32 s{r+3}, 0x20000")


def rnd(a, d, s):
    a(f"v_cvt_pk_bf16_f32 v{d}, 0, v{s}")


def unpack2(a, d, s):
    a(f"v_lshlrev_b32 v{d}, 16, v{s}")
    a(f"v_and_b32 v{d+1}, s{S_HI}, v{s}")


def ext(a, d, reg, hi):
    if hi:
        a(f"v_and_b32 v{d}, s{S_HI}, v{reg}")
    else:
        a(f"v_lshlrev_b32 v{d}, 16, v{reg}")


def cmul_ops(d, x, y):
    assert d not in (x, y) and d % 2 == 0 and x % 2 == 0 and y % 2 == 0
    return [f"v_pk_mul_f32 {vr(d,2)}, {vr(x,2)}, {vr(y,2)} op_sel:[0,0] op_sel_hi:[1,0]",
            f"v_fma_f32 v{d}, -v{x+1}, v{y+1}, v{d}",
            f"v_fmac_f32 v{d+1}, v{x}, v{y+1}"]


def interleave(a, chains):
    chains = [list(c) for c in chains]
    while any(chains):
        for c in chains:
            if c:
                a(c.pop(0))


def groups():
    return [[int(ch) for ch in g] for g in OPT["groups"].split(",")]


def lds_spin(a, lab, vaddr, vtmp, val, sleep=0):
    a(f"s_mov_b32 s{S_SPIN}, 0")
    a.lab(lab)
    a(f"ds_read_b32 v{vtmp}, v{vaddr}")
    a(f"s_add_u32 s{S_SPIN}, s{S_SPIN}, 1")
    a("s_waitcnt lgkmcnt(0)")
    a(f"v_readfirstlane_b32 s{S_T0}, v{vtmp}")
    a(f"s_cmp_ge_u32 s{S_SPIN}, {hex(SPIN_MAX*8)}")
    a(f"s_cbranch_scc1 {lab}_done")
    a(f"s_cmp_ge_u32 s{S_T0}, {val}")
    a(f"s_cbranch_scc1 {lab}_done")
    if sleep:
        a(f"s_sleep {sleep}")
    a(f"s_branch {lab}")
    a.lab(lab + "_done")


def nonce_check(a, tag, vn, vzero):
    a(f"s_mov_b32 s{S_SPIN}, 0")
    a(f"s_branch L_nchk_{tag}")
    a.lab(f"L_npoll_{tag}")
    a(f"buffer_load_dwordx2 {vr(vn,2)}, v{vzero}, s[{R_DBG}:{R_DBG+3}], 0 offen{SC}")
    a(f"s_add_u32 s{S_SPIN}, s{S_SPIN}, 1")
    a.lab(f"L_nchk_{tag}")
    a("s_waitcnt vmcnt(0)")
    a(f"v_readfirstlane_b32 s{S_NON}, v{vn}")
    a(f"v_readfirstlane_b32 s{S_NON+1}, v{vn+1}")
    a(f"s_cmp_ge_u32 s{S_SPIN}, {hex(SPIN_MAX)}")
    a(f"s_cbranch_scc1 L_npoll_done_{tag}")
    a(f"s_cmp_eq_u32 s{S_NON}, 0")
    a(f"s_cbranch_scc1 L_npoll_{tag}")
    a.lab(f"L_npoll_done_{tag}")


def k_copies(a, vaddr, P3, P2):
    a(f"ds_write_b128 v{vaddr}, {vr(P3,4)} offset:{3*KSTR+4}")
    a(f"ds_write_b128 v{vaddr}, {vr(P2,4)} offset:{2*KSTR+4}")
    a(f"ds_write2_b32 v{vaddr}, v{P2}, v{P2+1} offset0:0 offset1:1")
    a(f"ds_write2_b32 v{vaddr}, v{P2+2}, v{P2+3} offset0:2 offset1:3")
    a(f"v_add_u32 v{vaddr}, {KSTR}, v{vaddr}")
    a(f"ds_write2_b32 v{vaddr}, v{P3}, v{P3+1} offset0:0 offset1:1")
    a(f"ds_write2_b32 v{vaddr}, v{P3+2}, v{P3+3} offset0:2 offset1:3")


def prologue(a):
    a("s_cmp_ge_u32 s2, 256")
    a("s_cbranch_scc1 L_end")
    a("s_load_dwordx16 s[16:31], s[0:1], 0")
    a("s_load_dwordx16 s[32:47], s[0:1], 64")
    a("s_load_dwordx2 s[48:49], s[0:1], 128")
    a(f"s_getpc_b64 s[{S_PC}:{S_PC+1}]")
    a.lab("L_pc0")
    a("v_lshlrev_b32 v2, 5, v0")
    a("v_min_u32 v2, L_end-L_pc0, v2")
    a(f"global_load_dword v165, v2, s[{S_PC}:{S_PC+1}]")
    a("v_lshrrev_b32 v1, 6, v0")
    a(f"s_and_b32 s{S_CG}, s2, 7")
    a(f"v_readfirstlane_b32 s{S_WV}, v1")
    a("v_and_b32 v1, 63, v0")
    a("v_and_b32 v0, 0xff, v0")
    a(f"s_lshr_b32 s{S_TB}, s2, 3")
    a(f"s_lshl_b32 s{S_D0}, s{S_CG}, 6")
    a(f"s_lshl_b32 s{S_T0}, s{S_TB}, 1")
    a(f"s_add_u32 s{S_D0}, s{S_D0}, s{S_T0}")
    a(f"s_mov_b32 s{S_HI}, 0xffff0000")
    a(f"s_mov_b32 s{S_LO}, 0xffff")
    a(f"s_and_b32 s{S_W4}, s{S_WV}, 3")
    if OPT["map"] == 0:
        a(f"s_mov_b32 s{S_PCG}, s{S_CG}")
        a(f"s_mov_b32 s{S_PTB}, s{S_TB}")
    else:
        a(f"s_and_b32 s{S_PCG}, s{S_TB}, 7")
        a(f"s_lshr_b32 s{S_T0}, s2, 6")
        a(f"s_lshl_b32 s{S_T0}, s{S_T0}, 3")
        a(f"s_add_u32 s{S_PTB}, s{S_T0}, s{S_CG}")
    a(f"s_lshl_b32 s{S_GB}, s{S_PTB}, 3")
    a(f"s_add_u32 s{S_GB}, s{S_GB}, s{S_PCG}")
    if OPT["stamp"]:
        a(f"v_mov_b32 v{VST}, 0")
        stamp(a, 0)
    a(f"s_cmp_ge_u32 s{S_WV}, 8")
    a("s_cbranch_scc1 L_aux")
    a(f"s_cmp_ge_u32 s{S_WV}, 4")
    a("s_cbranch_scc1 L_kgen")


def data_waves(a):
    a.c("==== data waves")
    if OPT["dprio"]:
        a(f"s_setprio {OPT['dprio']}")
    a("v_and_b32 v6, 7, v1")
    a("v_lshrrev_b32 v7, 3, v1")
    a(f"s_lshl_b32 s{S_T2}, s{S_WV}, 1")
    a(f"v_xor_b32 v9, s{S_T2}, v6")
    a(f"s_lshl_b32 s{S_T0}, s{S_PTB}, 16")
    a(f"s_lshl_b32 s{S_T1}, s{S_PCG}, 7")
    a(f"s_add_u32 s{S_T0}, s{S_T0}, s{S_T1}")
    a(f"s_lshl_b32 s{S_T1}, s{S_WV}, 13")
    a(f"s_add_u32 s{S_T0}, s{S_T0}, s{S_T1}")
    a(f"v_lshl_add_u32 v8, v7, 10, s{S_T0}")
    a("v_lshl_add_u32 v8, v9, 4, v8")
    a("v_subrev_u32 v9, 0x8000, v8")
    a(f"s_lshl_b32 s{S_T0}, s{S_WV}, 3")
    a(f"v_add_u32 v6, s{S_T0}, v6")
    a(f"s_lshl_b32 s{S_T1}, s{S_PCG}, 9")
    a(f"v_lshl_add_u32 v10, v6, 4, s{S_T1}")
    a(f"s_movk_i32 s{S_4096}, 0x1000")
    a(f"s_mov_b32 s{S_KV0}, 0x8000")
    a(f"s_lshl_b32 s{S_T3}, s{S_WV}, 10")
    a(f"s_memrealtime s[{S_NON}:{S_NON+1}]")
    a("s_waitcnt lgkmcnt(0)")
    srd(a, R_K, P_K, 0x200000)
    a(f"s_cmp_lg_u32 s{S_WV}, 3")
    a("s_cbranch_scc1 L_nohalo")
    a(f"s_mov_b32 m0, {P1K-1024}")
    a("s_nop 0")
    a(f"buffer_load_dwordx4 v9, s[{R_K}:{R_K+3}], 0 offen lds")
    a.lab("L_nohalo")
    for base, R, P in ((P1K, R_K, None), (P1V, R_V, P_V), (P1U, R_U, P_U)):
        if P is not None:
            srd(a, R, P, 0x200000)
        a(f"s_add_u32 m0, s{S_T3}, {base}")
        a("s_nop 0")
        a(f"buffer_load_dwordx4 v8, s[{R}:{R+3}], 0 offen lds")
        a(f"s_add_u32 m0, s{S_T3}, {base+4096}")
        a("s_nop 0")
        a(f"buffer_load_dwordx4 v8, s[{R}:{R+3}], s{S_KV0} offen lds")
    a(f"global_load_dwordx4 v[48:51], v10, s[{P_SHK}:{P_SHK+1}]")
    srd(a, R_DBG, P_DBG, 256)
    a("v_mov_b32 v56, 0")
    a(f"s_or_b32 s{S_T0}, s{S_WV}, s2")
    a(f"s_cmp_lg_u32 s{S_T0}, 0")
    a("s_cbranch_scc1 L_nonon")
    a(f"s_or_b32 s{S_NON}, s{S_NON}, 1")
    a(f"v_mov_b32 v52, s{S_NON}")
    a(f"v_mov_b32 v53, s{S_NON+1}")
    a("s_mov_b64 exec, 1")
    a(f"buffer_store_dwordx2 v[52:53], v56, s[{R_DBG}:{R_DBG+3}], 0 offen{SC}")
    a("s_mov_b64 exec, -1")
    a.lab("L_nonon")
    srd(a, R_WS, P_WS, WS_SIZE)
    a(f"s_mov_b32 s{S_SELLO}, 0x05040100")
    a(f"s_mov_b32 s{S_SELHI}, 0x07060302")
    a(f"s_mov_b32 s{S_KV0}, {hex(WS_KV)}")
    a(f"s_mov_b32 s{S_KV1}, {hex(WS_KV+4096)}")
    a(f"s_lshl_b32 s{S_T0}, s{S_PCG}, 18")
    a(f"s_lshl_b32 s{S_T1}, s{S_PTB}, 7")
    a(f"s_add_u32 s{S_T0}, s{S_T0}, s{S_T1}")
    a(f"v_lshl_add_u32 v10, v6, 13, s{S_T0}")
    a("v_lshl_add_u32 v10, v7, 4, v10")
    a("v_lshrrev_b32 v12, 2, v6")
    a("v_and_b32 v13, 3, v6")
    a("v_lshlrev_b32 v15, 1, v7")
    a("v_and_b32 v16, 7, v15")
    a("v_xor_b32 v16, v16, v12")
    a("v_lshlrev_b32 v8, 10, v7")
    a("v_lshl_add_u32 v8, v13, 2, v8")
    a(f"v_add_u32 v8, {P1S}, v8")
    a("v_add_u32 v15, 6, v15")
    a("v_and_b32 v15, 7, v15")
    a("v_xor_b32 v15, v15, v12")
    a("v_lshl_add_u32 v9, v15, 4, v8")
    a("v_lshl_add_u32 v8, v16, 4, v8")
    a(f"s_lshl_b32 s{S_T0}, s{S_D0}, 12")
    a(f"v_lshl_add_u32 v11, v0, 4, s{S_T0}")
    a("v_lshlrev_b32 v14, 4, v0")
    a(f"v_add_u32 v15, {XB(2)+480}, v14")
    a("v_and_b32 v19, 7, v1")
    a(f"s_lshl_b32 s{S_T0}, s{S_CG}, 12")
    a(f"s_lshl_b32 s{S_T1}, s{S_WV}, 10")
    a(f"s_add_u32 s{S_T0}, s{S_T0}, s{S_T1}")
    a(f"s_add_u32 s{S_T0}, s{S_T0}, {hex(WS_FLAG)}")
    a(f"v_lshl_add_u32 v19, v19, 7, s{S_T0}")
    a(f"s_lshl_b32 s{S_T0}, s{S_PCG}, 12")
    a(f"s_lshl_b32 s{S_T1}, s{S_PTB}, 7")
    a(f"s_add_u32 s{S_T0}, s{S_T0}, s{S_T1}")
    a(f"s_add_u32 s{S_T0}, s{S_T0}, {hex(WS_FLAG)}")
    if OPT["fullflag"]:
        a(f"v_lshl_add_u32 v18, v1, 3, s{S_T0}")
    else:
        a(f"v_mov_b32 v18, s{S_T0}")
    conv_setup(a)
    a(f"v_mov_b32 v16, {C_SIG}")
    a("v_mov_b32 v17, 1")
    a("s_barrier")
    stamp(a, 1)
    a("s_waitcnt vmcnt(0)")
    a("s_mov_b64 exec, 1")
    a("ds_add_u32 v16, v17 offset:4")
    a("s_mov_b64 exec, -1")
    a(f"buffer_load_dwordx2 v[52:53], v56, s[{R_DBG}:{R_DBG+3}], 0 offen{SC}")
    SP = 60
    a(f"v_lshlrev_b32 v{SP+0}, 16, v48")
    a(f"v_lshlrev_b32 v{SP+1}, 16, v50")
    a(f"v_and_b32 v{SP+2}, s{S_HI}, v48")
    a(f"v_and_b32 v{SP+3}, s{S_HI}, v50")
    a(f"v_lshlrev_b32 v{SP+4}, 16, v49")
    a(f"v_lshlrev_b32 v{SP+5}, 16, v51")
    a(f"v_and_b32 v{SP+6}, s{S_HI}, v49")
    a(f"v_and_b32 v{SP+7}, s{S_HI}, v51")
    a(f"v_mov_b32 v12, {C_P1}")
    lds_spin(a, "L_p1spin", 12, 13, 4)
    stamp(a, 2)
    for j in range(8):
        a(f"ds_read_b32 v{39+j}, v8 offset:{P1U-P1S+j*128}")
    for j in range(3):
        a(f"ds_read_b32 v{20+j}, v9 offset:{(5+j)*128}")
    for base, off in ((23, P1K), (31, P1V)):
        for j in range(8):
            a(f"ds_read_b32 v{base+j}, v8 offset:{off-P1S+j*128}")
    a("s_waitcnt lgkmcnt(15)")
    O2 = 130
    for ch, sel in ((0, S_SELLO), (1, S_SELHI)):
        for j in range(4):
            a(f"v_perm_b32 v{O2+4*ch+j}, v{39+2*j+1}, v{39+2*j}, s{sel}")
        so = "0" if ch == 0 else f"s{S_4096}"
        a(f"buffer_store_dwordx4 {vr(O2+4*ch,4)}, v10, s[{R_WS}:{R_WS+3}], {so} offen{SC}")
    KP = 68
    a("s_waitcnt lgkmcnt(8)")
    for i in range(11):
        unpack2(a, KP + 2 * i, 20 + i)
    ACC = 90
    T = 106
    for r in range(8):
        a(f"v_pk_mul_f32 {vr(ACC+2*r,2)}, {vr(KP+2*r,2)}, {vr(SP+6,2)}")
    for j in (1, 2, 3):
        for r in range(8):
            a(f"v_pk_fma_f32 {vr(ACC+2*r,2)}, {vr(KP+2*(r+j),2)}, {vr(SP+6-2*j,2)}, {vr(ACC+2*r,2)}")
    a("s_waitcnt lgkmcnt(0)")
    for r in range(8):
        unpack2(a, T + 2 * r, 31 + r)
    for r in range(8):
        a(f"v_pk_mul_f32 {vr(ACC+2*r,2)}, {vr(ACC+2*r,2)}, {vr(T+2*r,2)}")
    O = 122
    for ch in range(2):
        for j in range(4):
            a(f"v_cvt_pk_bf16_f32 v{O+4*ch+j}, v{ACC+2*(2*j)+ch}, v{ACC+2*(2*j+1)+ch}")
        so = S_KV0 if ch == 0 else S_KV1
        a(f"buffer_store_dwordx4 {vr(O+4*ch,4)}, v10, s[{R_WS}:{R_WS+3}], s{so} offen{SC}")
    stamp(a, 3)
    nonce_check(a, "d", 52, 56)
    stamp(a, 4)
    a.c("---- signal")
    a("s_mov_b64 exec, 1")
    a("ds_add_rtn_u32 v13, v16, v17")
    a("s_waitcnt lgkmcnt(0)")
    a(f"v_readfirstlane_b32 s{S_T1}, v13")
    a(f"s_cmp_lg_u32 s{S_T1}, 3")
    a("s_cbranch_scc1 L_nosig")
    if OPT["fullflag"]:
        a("s_mov_b64 exec, 0xffff")
    a(f"buffer_store_dwordx2 v[52:53], v18, s[{R_WS}:{R_WS+3}], 0 offen{SC}")
    a.lab("L_nosig")
    a("s_mov_b64 exec, -1")
    a.c("---- wait for this wave's 8 producers")
    a(f"s_mov_b32 s{S_SPIN}, 0")
    a.lab("L_poll")
    a(f"buffer_load_dwordx2 v[40:41], v19, s[{R_WS}:{R_WS+3}], 0 offen{SC}")
    a(f"s_add_u32 s{S_SPIN}, s{S_SPIN}, 1")
    a("s_waitcnt vmcnt(0)")
    a(f"v_cmp_ne_u64 vcc, s[{S_NON}:{S_NON+1}], v[40:41]")
    a(f"s_cmp_ge_u32 s{S_SPIN}, {hex(SPIN_MAX)}")
    a("s_cbranch_scc1 L_poll_done")
    a("s_cmp_eq_u64 vcc, 0")
    a("s_cbranch_scc1 L_poll_done")
    a(f"s_sleep {OPT['pollsleep']}")
    a("s_branch L_poll")
    a.lab("L_poll_done")
    stamp(a, 6)
    a.c("---- phase 2 loads")
    sofs = ["0", f"s{S_4096}", f"s{S_KV0}", f"s{S_KV1}"]
    for q in range(4):
        a(f"buffer_load_dwordx4 {vr(20+4*q,4)}, v11, s[{R_WS}:{R_WS+3}], {sofs[q]} offen{SC}")
    for q in range(4):
        a(f"s_waitcnt vmcnt({3-q})")
        if q < 2:
            a(f"ds_write_b128 v14, {vr(20+4*q,4)} offset:{XB(q)+480}")
        else:
            a(f"ds_write_b128 v15, {vr(20+4*q,4)} offset:{XB(q)-XB(2)}")
    a("s_waitcnt lgkmcnt(0)")
    stamp(a, 7)
    if OPT["dprio"]:
        a("s_setprio 0")
    a("s_barrier")
    stamp(a, 8)
    conv_main(a)
    if OPT["stamp"]:
        stamp(a, 9)
        stamp_out(a)
    a("s_endpgm")


def conv_setup(a):
    a.c("conv address setup, q = wave")
    a(f"s_mul_i32 s{S_T0}, s{S_WV}, {CONV}")
    a("v_and_b32 v12, 15, v1")
    a("v_lshrrev_b32 v13, 4, v1")
    a("v_and_b32 v16, 3, v12")
    a("v_lshrrev_b32 v17, 2, v12")
    a(f"v_mul_u32_u24 v2, {KSTR}, v16")
    a("v_lshl_add_u32 v2, v13, 4, v2")
    a("v_lshlrev_b32 v17, 3, v17")
    a("v_sub_u32 v2, v2, v17")
    a(f"s_add_u32 s{S_T1}, s{S_T0}, {KR(0,0)+24}")
    a(f"v_add_u32 v2, s{S_T1}, v2")
    a("v_lshlrev_b32 v3, 4, v13")
    a("v_lshl_add_u32 v3, v12, 5, v3")
    a(f"s_add_u32 s{S_T1}, s{S_T0}, {XB(0)}")
    a(f"v_add_u32 v3, s{S_T1}, v3")
    a("v_mul_u32_u24 v4, 40, v12")
    a("v_lshl_add_u32 v4, v13, 3, v4")
    a(f"s_mul_i32 s{S_T1}, s{S_WV}, {YSZ}")
    a(f"s_add_u32 s{S_T1}, s{S_T1}, {YS}")
    a(f"v_add_u32 v4, s{S_T1}, v4")
    a(f"s_lshl_b32 s{S_T1}, s{S_WV}, 2")
    a(f"s_add_u32 s{S_T1}, s{S_T1}, {C_Y}")
    a(f"v_mov_b32 v5, s{S_T1}")


def conv_main(a):
    ACC = 6
    BUF = [38, 102]
    grp = groups()
    steps = []
    for gi, g in enumerate(grp):
        hi = max(g)
        per = 2 if hi <= 3 else 1
        for r0 in range(0, 8, per):
            steps.append((gi, list(range(r0, r0 + per))))

    def step_plan(si):
        gi, rs = steps[si]
        g = grp[gi]
        nfr = max(g) + 1
        b = BUF[si & 1]
        loads, mf = [], []
        for k, r in enumerate(rs):
            fb = b + 16 * k if len(rs) > 1 else b
            gb = b + 32 + (16 * k if len(rs) > 1 else 0)
            pairs = [(e1, tau - e1, tau) for tau in g for e1 in range(tau + 1)]
            pairs.sort(key=lambda p: (max(p[0], p[1]), p[2]))
            for i in range(nfr):
                loads.append((("G", k, i), f"ds_read_b128 {vr(gb+4*i,4)}, v3 offset:{512*i+64*r}"))
                loads.append((("F", k, i, 0), f"ds_read_b64 {vr(fb+4*i,2)}, v2 offset:{512*(7-i)+64*r}"))
                loads.append((("F", k, i), f"ds_read_b64 {vr(fb+4*i+2,2)}, v2 offset:{512*(7-i)+64*r+8}"))
            for (e1, c1, tau) in pairs:
                mf.append((tau, ("F", k, e1), ("G", k, c1), fb + 4 * e1, gb + 4 * c1))
        return loads, mf

    plans = [step_plan(si) for si in range(len(steps))]
    seq = [0]
    done = [0]
    when = {}

    def lds(s, key=None):
        a(s)
        if key is not None:
            when[key] = seq[0]
        seq[0] += 1

    def need(idx):
        if idx < done[0]:
            return
        n = min(seq[0] - idx - 1, OPT["wslack"] if seq[0] > 30 else 15)
        a(f"s_waitcnt lgkmcnt({n})")
        a("s_nop 0")
        done[0] = seq[0] - n

    a(".p2align 3")
    for key, s in plans[0][0]:
        lds(s, (0,) + key)
    started = set()
    mark = [0]
    pending = []
    for si in range(len(steps)):
        loads, mf = plans[si]
        nl = list(plans[si + 1][0]) if si + 1 < len(steps) else []
        nm = len(mf)
        slots = max(1, nm * OPT["frac"] // 100)
        ntot = len(nl)
        for i, (tau, fk, gk, fr, gr) in enumerate(mf):
            need(max(when[(si,) + fk], when[(si,) + gk]))
            c = vr(ACC + 4 * tau, 4) if tau in started else "0"
            started.add(tau)
            a(f"v_mfma_f32_16x16x32_bf16 {vr(ACC+4*tau,4)}, {vr(fr,4)}, {vr(gr,4)}, {c}")
            if pending and len(a.l) - mark[0] >= 9:
                for _ in range(2):
                    if pending:
                        op = pending.pop(0)
                        if op.startswith("ds_"):
                            lds(op)
                        else:
                            a(op)
            want = min(ntot, -(-ntot * (i + 1) // slots))
            while ntot - len(nl) < want:
                key, s = nl.pop(0)
                lds(s, (si + 1,) + key)
        assert not nl
        gi = steps[si][0]
        if si + 1 == len(steps) or steps[si + 1][0] != gi:
            assert not pending
            mark[0] = len(a.l)
            for tau in grp[gi]:
                c = ACC + 4 * tau
                pending.append(f"v_cvt_pk_bf16_f32 v{c}, v{c}, v{c+1}")
                pending.append(f"v_cvt_pk_bf16_f32 v{c+1}, v{c+2}, v{c+3}")
                pending.append(f"ds_write_b64 v4, {vr(c,2)} offset:{640*tau}")
            pending.append(f"ds_write_b32 v5, v5 offset:{16*gi}")
    a("s_nop 7")
    for op in pending:
        a(op)


XA = 154


def expansion_addr(a, g):
    a.c("expansion addresses")
    a(f"s_lshr_b32 s{S_KC}, s{S_W4}, 1")
    a(f"s_and_b32 s{S_HM}, s{S_W4}, 1")
    a(f"s_lshl_b32 s{S_T0}, s{S_HM}, 7")
    a(f"s_add_u32 s{S_T0}, s{S_T0}, {64*g}")
    a(f"v_add_u32 v12, s{S_T0}, v1")
    a(f"s_mul_i32 s{S_T1}, s{S_KC}, {KCSZ}")
    a(f"s_add_u32 s{S_T1}, s{S_T1}, {KC}")
    a(f"s_sub_u32 s{S_T3}, s{S_T1}, {IDXBIAS}")
    a(f"s_mul_i32 s{S_T2}, s{S_KC}, {CONV}")
    a(f"s_add_u32 s{S_T2}, s{S_T2}, {KR(0,0)-4}")
    a("v_lshlrev_b32 v11, 3, v12")
    a("v_sub_u32 v11, 2047, v11")
    a("v_cvt_f32_u32 v8, v11")
    if g == 1:
        a("v_cmp_gt_u32 vcc, 0x100, v11")
        a(f"v_lshl_add_u32 v10, v11, 3, s{S_T1}")
    for k in range(9):
        d = XA + k
        if k == 0:
            a(f"v_cvt_pk_bf16_f32 v{d}, 0, v8")
        else:
            lit = {1: "-1.0", 2: "-2.0", 4: "-4.0"}.get(k, hex(f2u(-float(k))))
            a(f"v_add_f32 v9, {lit}, v8")
            a(f"v_cvt_pk_bf16_f32 v{d}, 0, v9")
        a(f"v_lshrrev_b32 v{d}, 13, v{d}")
        a(f"v_add_u32 v{d}, s{S_T3}, v{d}")
        if g == 1:
            a(f"v_subrev_u32 v9, {8*k}, v10")
            a(f"v_cndmask_b32 v{d}, v{d}, v9, vcc")
    a(f"v_lshl_add_u32 v163, v12, 4, s{S_T2}")
    if g == 1:
        a("v_cmp_eq_u32 vcc, 0xff, v12")
        a(f"s_add_u32 s{S_T0}, s{S_T1}, {768*8}")
        a(f"v_mov_b32 v9, s{S_T0}")
        a(f"v_cndmask_b32 v{XA+8}, v{XA+8}, v9, vcc")
    a(f"s_lshl_b32 s{S_T0}, s{S_KC}, 2")
    a(f"s_add_u32 s{S_T0}, s{S_T0}, {C_KG}")
    a(f"v_mov_b32 v164, s{S_T0}")


def expansion(a, tag):
    lds_spin(a, f"L_kspin_{tag}", 164, 8, 2, sleep=(1 if tag == "a" else 0))
    stamp(a, 8)
    a.c("expansion")
    B = 100
    for k in range(9):
        a(f"ds_read_b64 {vr(B+2*k,2)}, v{XA+k}")
    a("s_waitcnt lgkmcnt(0)")
    for k in range(9):
        a(f"v_add_f32 v{B+2*k}, v{B+2*k}, v{B+2*k+1}")
    P3, P2 = 120, 124
    for j in range(4):
        b = B + 4 * j
        a(f"v_cvt_pk_bf16_f32 v{P3+j}, v{b}, v{b+2}")
        a(f"v_cvt_pk_bf16_f32 v{P2+j}, v{b+2}, v{b+4}")
    k_copies(a, 163, P3, P2)


def kgen_waves(a):
    a.c("==== K generation waves")
    a(f"s_lshr_b32 s{S_KC}, s{S_W4}, 1")
    a(f"s_and_b32 s{S_HM}, s{S_W4}, 1")
    a(f"s_add_u32 s{S_T1}, s{S_D0}, s{S_KC}")
    a(f"s_lshl_b32 s{S_T3}, s{S_T1}, 1")
    a(f"v_mov_b32 v8, s{S_T3}")
    a(f"s_lshl_b32 s{S_T1}, s{S_T1}, 8")
    a(f"s_lshl_b32 s{S_T2}, s{S_HM}, 7")
    a(f"s_add_u32 s{S_T1}, s{S_T1}, s{S_T2}")
    a(f"v_lshl_add_u32 v2, v1, 1, s{S_T1}")
    a("s_waitcnt lgkmcnt(0)")
    a(f"global_load_ushort v7, v8, s[{P_LDT}:{P_LDT+1}]")
    a(f"global_load_ushort v3, v2, s[{P_LAR}:{P_LAR+1}]")
    a(f"global_load_ushort v4, v2, s[{P_AIM}:{P_AIM+1}]")
    a(f"global_load_ushort v5, v2, s[{P_CR}:{P_CR+1}]")
    a(f"global_load_ushort v6, v2, s[{P_CI}:{P_CI+1}]")
    if OPT["stamp"]:
        srd(a, R_WS, P_WS, WS_SIZE)
    expansion_addr(a, 0)
    TBW, TBR, KA0, KA1, KA2 = 16, 17, 18, 19, 49
    a(f"s_mul_i32 s{S_T0}, s{S_W4}, {TBLSZ}")
    a(f"s_add_u32 s{S_T0}, s{S_T0}, {TBL}")
    a(f"v_lshl_add_u32 v{TBW}, v1, 2, s{S_T0}")
    a("v_and_b32 v13, 15, v1")
    a("v_lshrrev_b32 v8, 4, v1")
    a(f"v_mul_u32_u24 v{TBR}, 288, v13")
    a(f"v_lshl_add_u32 v{TBR}, v8, 4, v{TBR}")
    a(f"v_add_u32 v{TBR}, s{S_T0}, v{TBR}")
    a(f"s_lshl_b32 s{S_T0}, s{S_HM}, 2")
    a(f"s_add_u32 s{S_T1}, s{S_T1}, s{S_T0}")
    a("v_lshrrev_b32 v9, 1, v8")
    a("v_and_b32 v10, 1, v8")
    a(f"v_lshlrev_b32 v{KA0}, 7, v9")
    a(f"v_lshl_add_u32 v{KA0}, v10, 2, v{KA0}")
    a(f"v_lshl_add_u32 v{KA0}, v13, 3, v{KA0}")
    a(f"v_lshl_add_u32 v{KA0}, v{KA0}, 3, s{S_T1}")
    a("v_lshlrev_b32 v11, 1, v10")
    a("v_lshl_add_u32 v11, v13, 2, v11")
    a("v_add_u32 v11, 0x100, v11")
    a("v_lshlrev_b32 v12, 5, v10")
    a("v_lshl_add_u32 v12, v13, 1, v12")
    a("v_cmp_eq_u32 vcc, 0, v9")
    a("v_add_u32 v12, 0x180, v12")
    a(f"v_lshl_add_u32 v{KA2}, v8, 6, v13")
    a(f"v_cndmask_b32 v{KA1}, v12, v11, vcc")
    a(f"v_lshl_add_u32 v{KA1}, v{KA1}, 3, s{S_T1}")
    a(f"v_add_u32 v{KA2}, 0x200, v{KA2}")
    a(f"v_lshl_add_u32 v{KA2}, v{KA2}, 3, s{S_T1}")
    a("s_barrier")
    stamp(a, 2)
    a.c("parameters")
    a("s_waitcnt vmcnt(0)")
    stamp(a, 4)
    a("v_lshlrev_b32 v8, 16, v7")
    a("v_lshlrev_b32 v9, 16, v3")
    a(f"s_mov_b32 s{S_T1}, {hex(L2E)}")
    a(f"s_mov_b32 s{S_T2}, {hex(L2E_LO)}")
    for x, p, e in ((8, 10, 12), (9, 11, 13)):
        a(f"v_mul_f32 v{p}, s{S_T1}, v{x}")
        a(f"v_fma_f32 v{e}, v{x}, s{S_T1}, -v{p}")
        a(f"v_fma_f32 v{e}, v{x}, s{S_T2}, v{e}")
        a(f"v_exp_f32 v{p}, v{p}")
        a(f"v_mul_f32 v{e}, {hex(LN2)}, v{e}")
    a("v_lshlrev_b32 v4, 16, v4")
    for x, p, e in ((8, 10, 12), (9, 11, 13)):
        a(f"v_fma_f32 v{p}, v{p}, v{e}, v{p}")
        rnd(a, p, p)
    a("v_mul_f32 v11, v11, v10")
    a(f"v_mul_f32 v11, {hex(L2E | 0x80000000)}, v11")
    a("v_mul_f32 v4, v4, v10")
    a("v_mul_f32 v12, 0.15915494, v4")
    a("v_add_f32 v10, v10, v10")
    a("v_lshlrev_b32 v5, 16, v5")
    a("v_lshlrev_b32 v6, 16, v6")
    a("v_mul_f32 v14, v5, v10")
    a("v_mul_f32 v15, v6, v10")
    a("v_max_f32 v13, |v14|, |v15|")
    E = lambda j: 20 + 2 * j
    tmp = {0: (50, 51), 3: (52, 53), 7: (54, 55)}
    dpps = [f"v_max_u32_dpp v13, v13, v13 {d} bank_mask:0xf" for d in
            ("quad_perm:[1,0,3,2] row_mask:0xf", "quad_perm:[2,3,0,1] row_mask:0xf", "row_half_mirror row_mask:0xf",
             "row_mirror row_mask:0xf", "row_bcast:15 row_mask:0xa", "row_bcast:31 row_mask:0xc")]
    anc = []
    for j, (m, f) in tmp.items():
        if j == 0:
            anc += [f"v_exp_f32 v{m}, v11", f"v_fract_f32 v{f}, v12"]
        else:
            anc += [f"v_mul_f32 v{m}, {hex(f2u(2.0**j))}, v11", f"v_mul_f32 v{f}, {hex(f2u(2.0**j))}, v12",
                    f"v_exp_f32 v{m}, v{m}", f"v_fract_f32 v{f}, v{f}"]
    for j, (m, f) in tmp.items():
        anc += [f"v_cos_f32 v{E(j)}, v{f}", f"v_sin_f32 v{E(j)+1}, v{f}"]
    a.c("anchors")
    k = 0
    for d in dpps:
        a(anc[k]); a(anc[k + 1]); k += 2
        a(d)
    for o in anc[k:]:
        a(o)
    a(f"v_readlane_b32 s{S_T0}, v13, 63")
    for j, (m, f) in tmp.items():
        a(f"v_mul_f32 v{E(j)}, v{E(j)}, v{m}")
        a(f"v_mul_f32 v{E(j)+1}, v{E(j)+1}, v{m}")
    a(f"s_lshr_b32 s{S_T0}, s{S_T0}, 23")
    a(f"s_max_u32 s{S_T0}, s{S_T0}, 16")
    a(f"s_sub_u32 s{S_SC}, 264, s{S_T0}")
    a(f"s_lshl_b32 s{S_SC}, s{S_SC}, 23")
    a(f"s_sub_u32 s{S_ISC}, s{S_T0}, 10")
    a(f"s_lshl_b32 s{S_ISC}, s{S_ISC}, 23")
    interleave(a, [sum([cmul_ops(E(j), E(j - 1), E(j - 1)) for j in js], []) for js in ((4, 5, 6), (8, 9, 10, 11), (1, 2))])
    stamp(a, 5)
    a.c("Y tile")
    tcount = [0]

    def put_ops(row, x, neg):
        t = 44 + (tcount[0] % 4)
        tcount[0] += 1
        return [f"v_cvt_pk_f16_f32 v{t}, v{x}, {'-' if neg else ''}v{x+1}",
                f"ds_write_b32 v{TBW}, v{t} offset:{288*row}"]

    def run_items(items):
        for i in range(0, len(items), 2):
            ch = []
            for (d, x, y, row, neg) in items[i:i + 2]:
                ops = [] if x is None else cmul_ops(d, x, y)
                if row is not None:
                    ops += put_ops(row, d, neg)
                ch.append(ops)
            interleave(a, ch)

    CT = 98
    Y = {1: E(3), 2: E(4), 4: E(5), 8: E(6), 3: 56, 5: 58, 6: 60, 7: 62}
    a("v_mov_b32 v48, 0x3c00")
    a(f"ds_write_b32 v{TBW}, v48")
    items = [(Y[3], Y[2], Y[1], 3, True), (Y[1], None, None, 1, True),
             (Y[5], Y[4], Y[1], 5, True), (Y[2], None, None, 2, True),
             (Y[6], Y[4], Y[2], 6, True), (Y[4], None, None, 4, True),
             (Y[7], Y[4], Y[3], 7, True), (Y[8], None, None, 8, True)]
    for b in range(9, 16):
        items.append((CT + 2 * (b % 4), Y[8], Y[b - 8], b, True))
    run_items(items)
    YF = 106
    for s in range(4):
        a(f"ds_read_b128 {vr(YF+4*s,4)}, v{TBR} offset:{64*s}")
    a.c("Z, W")
    Z = {1: E(0), 2: E(1), 4: E(2), 3: 56, 5: 58, 6: 60, 7: 62}
    W = {h: 64 + 2 * h for h in range(17)}
    a(f"v_mul_f32 v{W[0]}, s{S_SC}, v14")
    a(f"v_mul_f32 v{W[0]+1}, s{S_SC}, v15")
    run_items([(Z[3], Z[2], Z[1], None, 0), (W[1], W[0], E(7), None, 0),
               (Z[5], Z[4], Z[1], None, 0), (Z[6], Z[4], Z[2], None, 0),
               (Z[7], Z[4], Z[3], None, 0), (W[2], W[0], E(8), None, 0)])
    stamp(a, 6)
    XFT = [122, 138, 20]
    ACC = 36

    def rd(t):
        for s in range(4):
            a(f"ds_read_b128 {vr(XFT[t]+4*s,4)}, v{TBR} offset:{64*s}")

    def mm(t):
        for s in range(4):
            c = "0" if s == 0 else vr(ACC + 4 * t, 4)
            a(f"v_mfma_f32_16x16x32_f16 {vr(ACC+4*t,4)}, {vr(XFT[t]+4*s,4)}, {vr(YF+4*s,4)}, {c}")

    a.c("X tile 0")
    items = [(W[0], None, None, 0, False), (W[1], None, None, 8, False)]
    k = 0
    for r in range(1, 8):
        for h in (0, 1):
            items.append((CT + 2 * (k % 4), W[h], Z[r], 8 * h + r, False)); k += 1
    run_items(items)
    rd(0)
    run_items([(W[3], W[1], E(8), None, 0)] + [(W[h], W[h - 4], E(9), None, 0) for h in (4, 5, 6)] + [(W[7], W[3], E(9), None, 0)])
    a.c("X tile 1")
    items = []
    for G in range(4):
        for r in range(4):
            if G < 2:
                h = 2 + (r >> 1); zr = 2 * (2 * G + (r & 1))
            else:
                h = 4 + 2 * (r >> 1) + (G - 2); zr = 4 * (r & 1)
            if zr == 0:
                items.append((W[h], None, None, 4 * G + r, False))
            else:
                items.append((CT + 2 * (k % 4), W[h], Z[zr], 4 * G + r, False)); k += 1
    run_items(items)
    rd(1)
    a.c("X tile 2")
    run_items([(W[h], W[h - 8], E(10), h - 8, False) for h in range(8, 16)] + [(W[16], W[0], E(11), 8, False)])
    rd(2)
    a("s_waitcnt lgkmcnt(4)")
    mm(0)
    mm(1)
    a("s_waitcnt lgkmcnt(0)")
    mm(2)
    a("v_mov_b32 v8, 1")
    a("s_nop 2")
    for t in (0, 1):
        for r in range(4):
            a(f"v_mul_f32 v{ACC+4*t+r}, s{S_ISC}, v{ACC+4*t+r}")
    for t, offs, ad in ((0, (0, 8, 16, 24), KA0), (1, (0, 8, 512, 520), KA1)):
        for r in range(4):
            a(f"ds_write_b32 v{ad}, v{ACC+4*t+r} offset:{offs[r]}")
    for r in range(4):
        a(f"v_mul_f32 v{ACC+8+r}, s{S_ISC}, v{ACC+8+r}")
    for r in range(4):
        a(f"ds_write_b32 v{KA2}, v{ACC+8+r} offset:{128*r}")
    a("s_mov_b64 exec, 1")
    a("ds_add_u32 v164, v8")
    a("s_mov_b64 exec, -1")
    stamp(a, 7)
    expansion(a, "k")
    a("s_waitcnt lgkmcnt(0)")
    stamp(a, 9)
    a("s_barrier")
    stamp_out(a)
    a("s_endpgm")


def gate_compute(a, XR, WR, T):
    Wp = T
    X0 = T + 8
    for j in range(4):
        unpack2(a, Wp + 2 * j, WR + j)
    for row in range(2):
        X = X0 + 8 * row
        for j in range(4):
            unpack2(a, X + 2 * j, XR + 4 * row + j)
    for row in range(2):
        X = X0 + 8 * row
        for j in range(4):
            a(f"v_pk_mul_f32 {vr(X+2*j,2)}, {vr(X+2*j,2)}, {vr(Wp+2*j,2)}")
    for row in range(2):
        X = X0 + 8 * row
        for j in range(8):
            rnd(a, X + j, X + j)
    for row in range(2):
        X = X0 + 8 * row
        a(f"v_pk_add_f32 {vr(X,2)}, {vr(X,2)}, {vr(X+2,2)}")
        a(f"v_pk_add_f32 {vr(X+4,2)}, {vr(X+4,2)}, {vr(X+6,2)}")
    for row in range(2):
        X = X0 + 8 * row
        a(f"v_pk_add_f32 {vr(X,2)}, {vr(X,2)}, {vr(X+4,2)}")
    A0, A1 = X0, X0 + 8
    a(f"v_add_f32 v{A0}, v{A0}, v{A0+1}")
    a(f"v_add_f32 v{A1}, v{A1}, v{A1+1}")
    a("s_nop 0")
    for d in ("quad_perm:[1,0,3,2]", "quad_perm:[2,3,0,1]", "row_half_mirror", "row_mirror",
              "row_bcast:15 row_mask:0xa", "row_bcast:31 row_mask:0xc"):
        m = "" if "row_mask" in d else " row_mask:0xf"
        a(f"v_add_f32_dpp v{A0}, v{A0}, v{A0} {d}{m} bank_mask:0xf")
        a(f"v_add_f32_dpp v{A1}, v{A1}, v{A1} {d}{m} bank_mask:0xf")
        a("s_nop 0")
    for x in (A0, A1):
        rnd(a, x, x)
    for x in (A0, A1):
        a(f"v_mul_f32 v{x}, {hex(L2E | 0x80000000)}, v{x}")
    for x in (A0, A1):
        a(f"v_exp_f32 v{x}, v{x}")
    a("s_nop 0")
    for x in (A0, A1):
        a(f"v_add_f32 v{x}, 1.0, v{x}")
    for x in (A0, A1):
        a(f"v_rcp_f32 v{x}, v{x}")
    a("s_nop 0")
    for x in (A0, A1):
        rnd(a, x, x)
    for x in (A0, A1):
        a(f"v_sub_f32 v{x+1}, 1.0, v{x}")
    a(f"v_cvt_pk_bf16_f32 v{T}, v{A0}, v{A0+1}")
    a(f"v_mov_b32 v{T+1}, s{S_NON}")
    a(f"v_cvt_pk_bf16_f32 v{T+2}, v{A1}, v{A1+1}")
    a(f"v_mov_b32 v{T+3}, s{S_NON}")


def aux_waves(a):
    grp = groups()
    a.c("==== aux waves; v0 = thread index 0..255")
    a.c("zero init of LDS pads")
    for i in range(4):
        a(f"v_mov_b32 v{8+i}, 0")
    a("v_lshrrev_b32 v12, 5, v0")
    a(f"v_mul_u32_u24 v12, {CONV}, v12")
    a("v_and_b32 v13, 31, v0")
    a("v_min_u32 v13, 29, v13")
    a("v_lshl_add_u32 v12, v13, 4, v12")
    a(f"v_add_u32 v12, {XB(0)}, v12")
    a("v_bfe_u32 v13, v0, 4, 2")
    a(f"v_mul_u32_u24 v13, {CONV}, v13")
    a("v_bfe_u32 v14, v0, 2, 2")
    a(f"v_mul_u32_u24 v14, {KSTR}, v14")
    a("v_and_b32 v15, 3, v0")
    a("v_min_u32 v15, 2, v15")
    a("v_lshl_add_u32 v14, v15, 4, v14")
    a("v_add_u32 v13, v13, v14")
    a(f"v_add_u32 v13, {KR(0,0)+4080}, v13")
    a("v_cmp_gt_u32 vcc, 0x80, v0")
    a("v_and_b32 v14, 15, v0")
    a("v_lshlrev_b32 v14, 4, v14")
    a("v_cndmask_b32 v12, v13, v12, vcc")
    a(f"v_add_u32 v14, {CNT}, v14")
    a("v_cmp_gt_u32 vcc, 0xc0, v0")
    a("v_and_b32 v15, 1, v0")
    a(f"v_mul_u32_u24 v15, {KCSZ}, v15")
    a("v_cndmask_b32 v12, v14, v12, vcc")
    a(f"v_add_u32 v15, {KC+768*8}, v15")
    a("v_cmp_gt_u32 vcc, 0xd0, v0")
    a("s_nop 1")
    a("v_cndmask_b32 v12, v15, v12, vcc")
    a("ds_write_b128 v12, v[8:11]")
    a("s_waitcnt lgkmcnt(0)")
    a("s_barrier")
    stamp(a, 1)
    srd(a, R_WS, P_WS, WS_SIZE)
    srd(a, R_DBG, P_DBG, 256)
    srd(a, R_OUT, P_OUT, 0x200000)
    expansion_addr(a, 1)
    a(f"s_lshl_b32 s{S_T0}, s{S_D0}, 12")
    a(f"v_lshl_add_u32 v2, v0, 4, s{S_T0}")
    a("v_add_u32 v3, 0x1000, v2")
    a("v_subrev_u32 v4, 4, v2")
    a(f"v_max_i32 v4, s{S_T0}, v4")
    a(f"s_lshl_b32 s{S_T1}, s{S_GB}, 13")
    a(f"s_lshl_b32 s{S_T2}, s{S_W4}, 11")
    a(f"s_add_u32 s{S_T1}, s{S_T1}, s{S_T2}")
    a("v_lshlrev_b32 v6, 4, v1")
    a(f"v_add_u32 v5, s{S_T1}, v6")
    a(f"s_lshl_b32 s{S_T0}, s{S_W4}, 4")
    a(f"s_lshl_b32 s{S_T1}, s{S_GB}, 6")
    a(f"s_add_u32 s{S_T0}, s{S_T0}, s{S_T1}")
    a(f"s_add_u32 s{S_T0}, s{S_T0}, {hex(WS_G)}")
    a(f"v_mov_b32 v7, s{S_T0}")
    a("v_mov_b32 v56, 0")
    a(f"s_lshl_b32 s{S_T3}, s{S_D0}, 1")
    EA = {}
    for gi, g in enumerate(grp):
        n = len(g); R0 = 256 * g[0]
        sh = {2: 1, 4: 2}[n]
        GO, XA1, XA2, YA_, OO = 140 + gi, 143 + gi, 146 + gi, 149 + gi, 13 + gi
        if gi == 2:
            YA_ = 152
        EA[gi] = (GO, XA1, XA2, YA_, OO)
        a(f"v_lshlrev_b32 v8, {sh}, v0")
        a(f"v_add_u32 v8, {R0}, v8")
        a(f"v_lshlrev_b32 v{GO}, 3, v8")
        a(f"v_lshlrev_b32 v{XA1}, 1, v8")
        a(f"v_add_u32 v{XA2}, {XB(2)+480}, v{XA1}")
        a("v_lshrrev_b32 v9, 4, v8")
        a(f"v_lshl_add_u32 v9, v9, 3, v{XA1}")
        a(f"v_add_u32 v{YA_}, {YS}, v9")
        a(f"v_lshl_add_u32 v{OO}, v8, 10, s{S_T3}")
    a(f"s_load_dword s{S_RAWDS}, s[{P_DSK}:{P_DSK+1}], s{S_T3}")
    a(f"s_load_dword s{S_RAWDM}, s[{P_SSMD}:{P_SSMD+1}], s{S_T3}")
    a(f"v_mov_b32 v12, {C_P1}")
    lds_spin(a, "L_aspin", 12, 8, 4, sleep=2)
    stamp(a, 2)
    a(f"global_load_dwordx4 v[80:83], v5, s[{P_U}:{P_U+1}]")
    a(f"global_load_dwordx4 v[84:87], v5, s[{P_U}:{P_U+1}] offset:1024")
    a(f"global_load_dwordx4 v[88:91], v6, s[{P_GW}:{P_GW+1}]")
    a(f"buffer_load_dwordx2 v[52:53], v56, s[{R_DBG}:{R_DBG+3}], 0 offen{SC}")
    a(f"global_load_dwordx4 v[68:71], v2, s[{P_SSMK}:{P_SSMK+1}]")
    a(f"global_load_dword v67, v4, s[{P_SSMK}:{P_SSMK+1}]")
    a(f"global_load_dwordx4 v[74:77], v3, s[{P_SSMK}:{P_SSMK+1}]")
    a(f"global_load_dword v73, v3, s[{P_SSMK}:{P_SSMK+1}] offset:-4")
    a(f"s_lshl_b32 s{S_DS}, s{S_RAWDS}, 16")
    a(f"s_and_b32 s{S_DS+1}, s{S_RAWDS}, s{S_HI}")
    a(f"s_lshl_b32 s{S_DM}, s{S_RAWDM}, 16")
    a(f"s_and_b32 s{S_DM+1}, s{S_RAWDM}, s{S_HI}")
    a("v_lshlrev_b32 v9, 4, v0")
    a("v_sub_u32 v9, 4076, v9")
    nonce_check(a, "a", 52, 56)
    stamp(a, 3)
    a.c("---- gate")
    gate_compute(a, 80, 88, 100)
    a("s_mov_b32 exec_lo, 0")
    a("s_mov_b32 exec_hi, 0x80000000")
    a(f"buffer_store_dwordx4 v[100:103], v7, s[{R_WS}:{R_WS+3}], 0 offen{SC}")
    a("s_mov_b64 exec, -1")
    a.c("---- ssm_k -> LDS (reversed, 4 copies)")
    a("v_cmp_eq_u32 vcc, 0, v0")
    a("s_nop 1")
    for ch in range(2):
        q = 2 + ch
        L = 68 + 6 * ch
        P3, P2 = 20 + 8 * ch, 24 + 8 * ch
        a(f"v_cndmask_b32 v{L-1}, v{L-1}, 0, vcc")
        for d in range(4):
            a(f"v_alignbit_b32 v{P3+d}, v{L+3-d}, v{L+3-d}, 16")
            a(f"v_bfi_b32 v{P2+d}, s{S_LO}, v{L+3-d}, v{L+2-d}")
        a(f"v_add_u32 v{36+ch}, {KR(q,0)}, v9")
        k_copies(a, 36 + ch, P3, P2)
    stamp(a, 4)
    expansion(a, "a")
    a("s_waitcnt lgkmcnt(0)")
    stamp(a, 9)
    GR = 20
    XR = 36

    def gloads():
        pos = 0
        for gi, g in enumerate(grp):
            n = len(g)
            for h in range(n // 2):
                a(f"buffer_load_dwordx4 {vr(GR+2*pos+4*h,4)}, v{EA[gi][0]}, s[{R_WS}:{R_WS+3}], s{S_T2} offen offset:{16*h}{SC}")
            pos += n

    a(f"s_mov_b32 s{S_T2}, {hex(WS_G)}")
    a("s_barrier")
    stamp(a, 10)
    if OPT["hprio"]:
        a(f"s_setprio {OPT['hprio']}")
    gloads()
    pos = 0
    for gi, g in enumerate(grp):
        n = len(g)
        lop = {2: "b32", 4: "b64"}[n]
        for q in range(4):
            if q < 2:
                a(f"ds_read_{lop} {vr(XR+4*q+pos//2,n//2)}, v{EA[gi][1]} offset:{XB(q)+480}")
            else:
                a(f"ds_read_{lop} {vr(XR+4*q+pos//2,n//2)}, v{EA[gi][2]} offset:{XB(q)-XB(2)}")
        pos += n
    assert pos == 8
    PR = 52
    a("s_waitcnt lgkmcnt(0)")
    for r in range(8):
        B = PR + 6 * r
        U, UD, UK = B, B + 2, B + 4
        for ch in range(2):
            ext(a, U + ch, XR + 4 * ch + r // 2, r & 1)
            ext(a, UK + ch, XR + 4 * (2 + ch) + r // 2, r & 1)
        for ch in range(2):
            a(f"v_mul_f32 v{UD+ch}, s{S_DS+ch}, v{U+ch}")
            a(f"v_mul_f32 v{UK+ch}, s{S_DM+ch}, v{UK+ch}")
    a(f"s_mov_b32 s{S_SPIN}, 0")
    a("s_branch L_gchk")
    a.lab("L_gpoll")
    a("s_sleep 4")
    gloads()
    a(f"s_add_u32 s{S_SPIN}, s{S_SPIN}, 1")
    a.lab("L_gchk")
    a("s_waitcnt vmcnt(0)")
    a(f"v_xor_b32 v8, s{S_NON}, v{GR+1}")
    for r in range(1, 8):
        a(f"v_xor_b32 v9, s{S_NON}, v{GR+2*r+1}")
        a("v_or_b32 v8, v8, v9")
    a("v_cmp_ne_u32 vcc, 0, v8")
    a(f"s_cmp_ge_u32 s{S_SPIN}, {hex(SPIN_MAX)}")
    a("s_cbranch_scc1 L_gpoll_done")
    a("s_cmp_eq_u64 vcc, 0")
    a("s_cbranch_scc0 L_gpoll")
    a.lab("L_gpoll_done")
    stamp(a, 11)
    for r in range(8):
        B = PR + 6 * r
        U, UD, UK = B, B + 2, B + 4
        G0, G1 = GR + 2 * r, GR + 2 * r + 1
        a(f"v_and_b32 v{G1}, s{S_HI}, v{G0}")
        a(f"v_lshlrev_b32 v{G0}, 16, v{G0}")
        for ch in range(2):
            a(f"v_mul_f32 v{U+ch}, v{U+ch}, v{G1}")
            a(f"v_mul_f32 v{UD+ch}, v{UD+ch}, v{G0}")
        for ch in range(2):
            a(f"v_fmac_f32 v{UD+ch}, v{UK+ch}, v{U+ch}")
    a(f"v_mov_b32 v5, {C_Y}")
    pos = 0
    for gi, g in enumerate(grp):
        n = len(g)
        a(f"s_mov_b32 s{S_SPIN}, 0")
        a.lab(f"L_yspin{gi}")
        a(f"ds_read_b128 v[104:107], v5 offset:{16*gi}")
        a(f"s_add_u32 s{S_SPIN}, s{S_SPIN}, 1")
        a("s_waitcnt lgkmcnt(0)")
        a("v_min_u32 v104, v104, v105")
        a("v_min3_u32 v104, v104, v106, v107")
        a(f"s_cmp_ge_u32 s{S_SPIN}, {hex(SPIN_MAX*8)}")
        a(f"v_readfirstlane_b32 s{S_T0}, v104")
        a(f"s_cbranch_scc1 L_yspin{gi}_done")
        a(f"s_cmp_lg_u32 s{S_T0}, 0")
        a(f"s_cbranch_scc1 L_yspin{gi}_done")
        a("s_sleep 1")
        a(f"s_branch L_yspin{gi}")
        a.lab(f"L_yspin{gi}_done")
        stamp(a, 12 + gi)
        lop = {2: "b32", 4: "b64"}[n]
        YR = 108
        for q in range(4):
            a(f"ds_read_{lop} {vr(YR+2*q,n//2)}, v{EA[gi][3]} offset:{YSZ*q}")
        a("s_waitcnt lgkmcnt(0)")
        for k in range(n):
            r = pos + k
            B = PR + 6 * r
            CB, P = B, B + 2
            G0 = GR + 2 * r
            YA, YB = 116 + 4 * (k & 1), 118 + 4 * (k & 1)
            for ch in range(2):
                ext(a, YA + ch, YR + 2 * ch + k // 2, k & 1)
                ext(a, YB + ch, YR + 2 * (2 + ch) + k // 2, k & 1)
            for ch in range(2):
                a(f"v_fmac_f32 v{P+ch}, v{YA+ch}, v{G0}")
            for ch in range(2):
                a(f"v_fmac_f32 v{P+ch}, v{YB+ch}, v{CB+ch}")
            a(f"v_cvt_pk_bf16_f32 v{P}, v{P}, v{P+1}")
            a(f"buffer_store_dword v{P}, v{EA[gi][4]}, s[{R_OUT}:{R_OUT+3}], 0 offen offset:{1024*k}")
        pos += n
    stamp_out(a)


def kd(name):
    return f""".section .rodata,"a"
.p2align 6
.amdhsa_kernel {name}
  .amdhsa_next_free_vgpr {NV}
  .amdhsa_next_free_sgpr 102
  .amdhsa_accum_offset {NV}
  .amdhsa_group_segment_fixed_size 0
  .amdhsa_kernarg_size 136
  .amdhsa_user_sgpr_count 2
  .amdhsa_user_sgpr_kernarg_segment_ptr 1
  .amdhsa_system_sgpr_workgroup_id_x 1
  .amdhsa_float_denorm_mode_32 3
.end_amdhsa_kernel
"""


def gen():
    out = [f"; @launch grid=(256,1,1) block=(768,1,1) lds={LDS_TOTAL}\n",
           '.amdgcn_target "amdgcn-amd-amdhsa--gfx950"\n.text\n',
           f".globl {NAME}_kernel\n.p2align 8\n.type {NAME}_kernel,@function\n{NAME}_kernel:\n"]
    a = A()
    prologue(a)
    data_waves(a)
    a.lab("L_kgen")
    kgen_waves(a)
    a.lab("L_aux")
    aux_waves(a)
    a.lab("L_end")
    a("s_endpgm")
    out.append(a.text())
    out.append(kd(NAME + "_kernel"))
    return "".join(out)


if __name__ == "__main__":
    outp = sys.argv[1] if len(sys.argv) > 1 else f"cdna_kernels/{NAME}.s"
    for x in sys.argv[2:]:
        k, v = x.split("=")
        OPT[k] = v if k == "groups" else int(v)
    txt = gen()
    open(outp, "w").write(txt)
    print("wrote", outp, len(txt), "bytes; LDS", LDS_TOTAL)
```

```python
import sys, struct

NAME = "gated_mix__ssm_conv_s4d__ssm_conv_h3__prompt"
OPT = dict(stamp=0, groups="0123,4567", pollsleep=2, hprio=2, map=0, dprio=2, wslack=5, fullflag=1, frac=100, auxmode=0, plan="", exp=0, tw=0)
NV = 168
VST, VST2 = 167, 166


def f2u(x):
    return struct.unpack("<I", struct.pack("<f", x))[0]


class A:
    def __init__(self):
        self.l = []

    def __call__(self, s):
        self.l.append("    " + s)

    def lab(self, s):
        self.l.append(s + ":")

    def c(self, s):
        self.l.append("    ; " + s)

    def text(self):
        return "\n".join(self.l) + "\n"


def vr(a, n=1):
    assert a + n <= NV, (a, n)
    return f"v{a}" if n == 1 else f"v[{a}:{a+n-1}]"


def sr(a, n=1):
    return f"s{a}" if n == 1 else f"s[{a}:{a+n-1}]"


KSTR = 4160
XSZ = 4576
CONV = 16 + 4 * KSTR + XSZ + 16
def KR(q, s): return q * CONV + 16 + s * KSTR
def XB(q): return q * CONV + 16 + 4 * KSTR
KC = 4 * CONV
KCSZ = 776 * 8
TBL = KC + 2 * KCSZ
TBLSZ = 16 * 288
CNT = TBL + 4 * TBLSZ
YS = CNT + 256
YSZ = 8 * 16 * 40
P1S = YS
P1K, P1V, P1U = P1S + 1024, P1S + 9216, P1S + 17408
LDS_TOTAL = YS + 25600
IDXBIAS = 8 * 0x4280
C_SIG, C_P1, C_KG, C_Y = CNT, CNT + 4, CNT + 16, CNT + 32

WS_KV = 0x200000
WS_G = 0x400000
WS_FLAG = 0x410000
WS_ST = 0x600000
WS_SIZE = 0x800000

P_U, P_LAR, P_AIM, P_CR, P_CI, P_LDT, P_DSK, P_Q = 16, 18, 20, 22, 24, 26, 28, 30
P_K, P_V, P_SHK, P_SSMK, P_SSMD, P_GW, P_OUT, P_DBG = 32, 34, 36, 38, 40, 42, 44, 46
P_WS = 48
S_WV, S_CG, S_TB, S_D0 = 3, 4, 5, 6
S_PCG, S_PTB, S_GB, S_W4 = 7, 98, 99, 100
S_HI, S_LO = 50, 51
S_T0, S_T1, S_T2, S_T3 = 8, 9, 10, 11
R_U, R_K, R_V, R_WS, R_OUT, R_DBG = 52, 56, 60, 64, 68, 72
S_SELLO, S_SELHI, S_4096, S_KV0, S_KV1 = 76, 77, 78, 79, 80
S_DS, S_DM = 82, 84
S_RAWDS, S_RAWDM = 86, 87
S_SC, S_ISC = 89, 90
S_SPIN = 91
S_KC, S_HM = 92, 93
S_PC = 12
S_NON = 14

L2E = 0x3FB8AA3B
L2E_LO = 0x32A57060
LN2 = 0x3F317218
SPIN_MAX = 0x40000
SC = " sc1"


def stamp(a, idx):
    if not OPT["stamp"]:
        return
    a("s_memrealtime s[94:95]")
    a("s_memtime s[96:97]")
    a("s_waitcnt lgkmcnt(0)")
    a(f"v_writelane_b32 v{VST}, s94, {idx}")
    a(f"v_writelane_b32 v{VST}, s96, {32+idx}")


def stamp_out(a):
    if not OPT["stamp"]:
        return
    a("s_waitcnt vmcnt(0)")
    stamp(a, 15)
    a(f"s_lshl_b32 s{S_T0}, s2, 4")
    a(f"s_add_u32 s{S_T0}, s{S_T0}, s{S_WV}")
    a(f"s_lshl_b32 s{S_T0}, s{S_T0}, 8")
    a(f"s_add_u32 s{S_T0}, s{S_T0}, {hex(WS_ST)}")
    a(f"v_lshl_add_u32 v{VST2}, v1, 2, s{S_T0}")
    a(f"buffer_store_dword v{VST}, v{VST2}, s[{R_WS}:{R_WS+3}], 0 offen")


def srd(a, r, p, size):
    a(f"s_mov_b32 s{r}, s{p}")
    a(f"s_and_b32 s{r+1}, s{p+1}, 0xffff")
    a(f"s_mov_b32 s{r+2}, {hex(size)}")
    a(f"s_mov_b32 s{r+3}, 0x20000")


def rnd(a, d, s):
    a(f"v_cvt_pk_bf16_f32 v{d}, 0, v{s}")


def unpack2(a, d, s):
    a(f"v_lshlrev_b32 v{d}, 16, v{s}")
    a(f"v_and_b32 v{d+1}, s{S_HI}, v{s}")


def ext(a, d, reg, hi):
    if hi:
        a(f"v_and_b32 v{d}, s{S_HI}, v{reg}")
    else:
        a(f"v_lshlrev_b32 v{d}, 16, v{reg}")


def cmul_ops(d, x, y):
    assert d not in (x, y) and d % 2 == 0 and x % 2 == 0 and y % 2 == 0
    return [f"v_pk_mul_f32 {vr(d,2)}, {vr(x,2)}, {vr(y,2)} op_sel:[0,0] op_sel_hi:[1,0]",
            f"v_fma_f32 v{d}, -v{x+1}, v{y+1}, v{d}",
            f"v_fmac_f32 v{d+1}, v{x}, v{y+1}"]


def interleave(a, chains):
    chains = [list(c) for c in chains]
    while any(chains):
        for c in chains:
            if c:
                a(c.pop(0))


def groups():
    return [[int(ch) for ch in g] for g in OPT["groups"].split(",")]


def lds_spin(a, lab, vaddr, vtmp, val, sleep=0):
    a(f"s_mov_b32 s{S_SPIN}, 0")
    a.lab(lab)
    a(f"ds_read_b32 v{vtmp}, v{vaddr}")
    a(f"s_add_u32 s{S_SPIN}, s{S_SPIN}, 1")
    a("s_waitcnt lgkmcnt(0)")
    a(f"v_readfirstlane_b32 s{S_T0}, v{vtmp}")
    a(f"s_cmp_ge_u32 s{S_SPIN}, {hex(SPIN_MAX*8)}")
    a(f"s_cbranch_scc1 {lab}_done")
    a(f"s_cmp_ge_u32 s{S_T0}, {val}")
    a(f"s_cbranch_scc1 {lab}_done")
    if sleep:
        a(f"s_sleep {sleep}")
    a(f"s_branch {lab}")
    a.lab(lab + "_done")


def nonce_check(a, tag, vn, vzero):
    a(f"s_mov_b32 s{S_SPIN}, 0")
    a(f"s_branch L_nchk_{tag}")
    a.lab(f"L_npoll_{tag}")
    a(f"buffer_load_dwordx2 {vr(vn,2)}, v{vzero}, s[{R_DBG}:{R_DBG+3}], 0 offen{SC}")
    a(f"s_add_u32 s{S_SPIN}, s{S_SPIN}, 1")
    a.lab(f"L_nchk_{tag}")
    a("s_waitcnt vmcnt(0)")
    a(f"v_readfirstlane_b32 s{S_NON}, v{vn}")
    a(f"v_readfirstlane_b32 s{S_NON+1}, v{vn+1}")
    a(f"s_cmp_ge_u32 s{S_SPIN}, {hex(SPIN_MAX)}")
    a(f"s_cbranch_scc1 L_npoll_done_{tag}")
    a(f"s_cmp_eq_u32 s{S_NON}, 0")
    a(f"s_cbranch_scc1 L_npoll_{tag}")
    a.lab(f"L_npoll_done_{tag}")


def k_copies(a, vaddr, P3, P2):
    a(f"ds_write_b128 v{vaddr}, {vr(P3,4)} offset:{3*KSTR+4}")
    a(f"ds_write_b128 v{vaddr}, {vr(P2,4)} offset:{2*KSTR+4}")
    a(f"ds_write2_b32 v{vaddr}, v{P2}, v{P2+1} offset0:0 offset1:1")
    a(f"ds_write2_b32 v{vaddr}, v{P2+2}, v{P2+3} offset0:2 offset1:3")
    a(f"v_add_u32 v{vaddr}, {KSTR}, v{vaddr}")
    a(f"ds_write2_b32 v{vaddr}, v{P3}, v{P3+1} offset0:0 offset1:1")
    a(f"ds_write2_b32 v{vaddr}, v{P3+2}, v{P3+3} offset0:2 offset1:3")


def prologue(a):
    a("s_cmp_ge_u32 s2, 256")
    a("s_cbranch_scc1 L_end")
    a("s_load_dwordx16 s[16:31], s[0:1], 0")
    a("s_load_dwordx16 s[32:47], s[0:1], 64")
    a("s_load_dwordx2 s[48:49], s[0:1], 128")
    a(f"s_getpc_b64 s[{S_PC}:{S_PC+1}]")
    a.lab("L_pc0")
    a("v_lshlrev_b32 v2, 5, v0")
    a("v_min_u32 v2, L_end-L_pc0, v2")
    a(f"global_load_dword v165, v2, s[{S_PC}:{S_PC+1}]")
    a("v_lshrrev_b32 v1, 6, v0")
    a(f"s_and_b32 s{S_CG}, s2, 7")
    a(f"v_readfirstlane_b32 s{S_WV}, v1")
    a("v_and_b32 v1, 63, v0")
    a("v_and_b32 v0, 0xff, v0")
    a(f"s_lshr_b32 s{S_TB}, s2, 3")
    a(f"s_lshl_b32 s{S_D0}, s{S_CG}, 6")
    a(f"s_lshl_b32 s{S_T0}, s{S_TB}, 1")
    a(f"s_add_u32 s{S_D0}, s{S_D0}, s{S_T0}")
    a(f"s_mov_b32 s{S_HI}, 0xffff0000")
    a(f"s_mov_b32 s{S_LO}, 0xffff")
    a(f"s_and_b32 s{S_W4}, s{S_WV}, 3")
    if OPT["map"] == 0:
        a(f"s_mov_b32 s{S_PCG}, s{S_CG}")
        a(f"s_mov_b32 s{S_PTB}, s{S_TB}")
    else:
        a(f"s_and_b32 s{S_PCG}, s{S_TB}, 7")
        a(f"s_lshr_b32 s{S_T0}, s2, 6")
        a(f"s_lshl_b32 s{S_T0}, s{S_T0}, 3")
        a(f"s_add_u32 s{S_PTB}, s{S_T0}, s{S_CG}")
    a(f"s_lshl_b32 s{S_GB}, s{S_PTB}, 3")
    a(f"s_add_u32 s{S_GB}, s{S_GB}, s{S_PCG}")
    if OPT["stamp"]:
        a(f"v_mov_b32 v{VST}, 0")
        stamp(a, 0)
    a(f"s_cmp_ge_u32 s{S_WV}, 8")
    a("s_cbranch_scc1 L_aux")
    a(f"s_cmp_ge_u32 s{S_WV}, 4")
    a("s_cbranch_scc1 L_kgen")


def data_waves(a):
    a.c("==== data waves")
    if OPT["dprio"]:
        a(f"s_setprio {OPT['dprio']}")
    a("v_and_b32 v57, 7, v1")
    a("v_lshrrev_b32 v7, 3, v1")
    a(f"v_xor_b32 v9, s{S_WV}, v57")
    a(f"s_lshl_b32 s{S_T0}, s{S_PTB}, 16")
    a(f"s_lshl_b32 s{S_T1}, s{S_PCG}, 7")
    a(f"s_add_u32 s{S_T0}, s{S_T0}, s{S_T1}")
    a(f"s_lshl_b32 s{S_T1}, s{S_WV}, 13")
    a(f"s_add_u32 s{S_T0}, s{S_T0}, s{S_T1}")
    a(f"v_lshl_add_u32 v8, v7, 10, s{S_T0}")
    a("v_lshl_add_u32 v8, v9, 4, v8")
    a("v_xor_b32 v58, 64, v8")
    a("v_subrev_u32 v9, 0x8000, v58")
    a(f"s_lshl_b32 s{S_T0}, s{S_WV}, 3")
    a(f"v_add_u32 v6, s{S_T0}, v7")
    a(f"s_lshl_b32 s{S_T1}, s{S_PCG}, 9")
    a(f"v_lshl_add_u32 v10, v6, 4, s{S_T1}")
    a(f"s_movk_i32 s{S_4096}, 0x1000")
    a(f"s_mov_b32 s{S_KV0}, 0x8000")
    a(f"s_lshl_b32 s{S_T3}, s{S_WV}, 10")
    a(f"s_memrealtime s[{S_NON}:{S_NON+1}]")
    a("s_waitcnt lgkmcnt(0)")
    srd(a, R_K, P_K, 0x200000)
    a(f"s_cmp_lg_u32 s{S_WV}, 3")
    a("s_cbranch_scc1 L_nohalo")
    a(f"s_mov_b32 m0, {P1K-1024}")
    a("s_nop 0")
    a(f"buffer_load_dwordx4 v9, s[{R_K}:{R_K+3}], 0 offen lds")
    a.lab("L_nohalo")
    for base, R, P in ((P1K, R_K, None), (P1V, R_V, P_V), (P1U, R_U, P_U)):
        if P is not None:
            srd(a, R, P, 0x200000)
        a(f"s_add_u32 m0, s{S_T3}, {base}")
        a("s_nop 0")
        a(f"buffer_load_dwordx4 v8, s[{R}:{R+3}], 0 offen lds")
        a(f"s_add_u32 m0, s{S_T3}, {base+4096}")
        a("s_nop 0")
        a(f"buffer_load_dwordx4 v58, s[{R}:{R+3}], s{S_KV0} offen lds")
    a(f"global_load_dwordx4 v[48:51], v10, s[{P_SHK}:{P_SHK+1}]")
    srd(a, R_DBG, P_DBG, 256)
    a("v_mov_b32 v56, 0")
    a(f"s_or_b32 s{S_T0}, s{S_WV}, s2")
    a(f"s_cmp_lg_u32 s{S_T0}, 0")
    a("s_cbranch_scc1 L_nonon")
    a(f"s_or_b32 s{S_NON}, s{S_NON}, 1")
    a(f"v_mov_b32 v52, s{S_NON}")
    a(f"v_mov_b32 v53, s{S_NON+1}")
    a("s_mov_b64 exec, 1")
    a(f"buffer_store_dwordx2 v[52:53], v56, s[{R_DBG}:{R_DBG+3}], 0 offen{SC}")
    a("s_mov_b64 exec, -1")
    a.lab("L_nonon")
    srd(a, R_WS, P_WS, WS_SIZE)
    a(f"s_mov_b32 s{S_SELLO}, 0x05040100")
    a(f"s_mov_b32 s{S_SELHI}, 0x07060302")
    a(f"s_mov_b32 s{S_KV0}, {hex(WS_KV)}")
    a(f"s_mov_b32 s{S_KV1}, {hex(WS_KV+4096)}")
    a(f"s_lshl_b32 s{S_T0}, s{S_PCG}, 18")
    a(f"s_lshl_b32 s{S_T1}, s{S_PTB}, 7")
    a(f"s_add_u32 s{S_T0}, s{S_T0}, s{S_T1}")
    a(f"v_lshl_add_u32 v10, v6, 13, s{S_T0}")
    a("v_lshl_add_u32 v10, v57, 4, v10")
    a("v_lshrrev_b32 v12, 2, v6")
    a("v_and_b32 v13, 3, v6")
    a("v_xor_b32 v16, v57, v12")
    a("v_lshlrev_b32 v8, 10, v57")
    a("v_lshl_add_u32 v8, v13, 2, v8")
    a(f"v_add_u32 v8, {P1S}, v8")
    a("v_add_u32 v15, 7, v57")
    a("v_and_b32 v15, 7, v15")
    a("v_xor_b32 v15, v15, v12")
    a("v_lshl_add_u32 v9, v15, 4, v8")
    a("v_lshl_add_u32 v8, v16, 4, v8")
    a(f"s_lshl_b32 s{S_T0}, s{S_D0}, 12")
    a(f"v_lshl_add_u32 v11, v0, 4, s{S_T0}")
    a("v_lshlrev_b32 v14, 4, v0")
    a(f"v_add_u32 v15, {XB(2)+480}, v14")
    a("v_and_b32 v19, 7, v1")
    a(f"s_lshl_b32 s{S_T0}, s{S_CG}, 12")
    a(f"s_lshl_b32 s{S_T1}, s{S_WV}, 10")
    a(f"s_add_u32 s{S_T0}, s{S_T0}, s{S_T1}")
    a(f"s_add_u32 s{S_T0}, s{S_T0}, {hex(WS_FLAG)}")
    a(f"v_lshl_add_u32 v19, v19, 7, s{S_T0}")
    a(f"s_lshl_b32 s{S_T0}, s{S_PCG}, 12")
    a(f"s_lshl_b32 s{S_T1}, s{S_PTB}, 7")
    a(f"s_add_u32 s{S_T0}, s{S_T0}, s{S_T1}")
    a(f"s_add_u32 s{S_T0}, s{S_T0}, {hex(WS_FLAG)}")
    if OPT["fullflag"]:
        a(f"v_lshl_add_u32 v18, v1, 3, s{S_T0}")
    else:
        a(f"v_mov_b32 v18, s{S_T0}")
    conv_setup(a)
    a(f"v_mov_b32 v16, {C_SIG}")
    a("v_mov_b32 v17, 1")
    a("s_barrier")
    stamp(a, 1)
    a("s_waitcnt vmcnt(0)")
    a("s_mov_b64 exec, 1")
    a("ds_add_u32 v16, v17 offset:4")
    a("s_mov_b64 exec, -1")
    a(f"buffer_load_dwordx2 v[52:53], v56, s[{R_DBG}:{R_DBG+3}], 0 offen{SC}")
    SP = 60
    a(f"v_lshlrev_b32 v{SP+0}, 16, v48")
    a(f"v_lshlrev_b32 v{SP+1}, 16, v50")
    a(f"v_and_b32 v{SP+2}, s{S_HI}, v48")
    a(f"v_and_b32 v{SP+3}, s{S_HI}, v50")
    a(f"v_lshlrev_b32 v{SP+4}, 16, v49")
    a(f"v_lshlrev_b32 v{SP+5}, 16, v51")
    a(f"v_and_b32 v{SP+6}, s{S_HI}, v49")
    a(f"v_and_b32 v{SP+7}, s{S_HI}, v51")
    a(f"v_mov_b32 v12, {C_P1}")
    lds_spin(a, "L_p1spin", 12, 13, 4)
    stamp(a, 2)
    for j in range(8):
        a(f"ds_read_b32 v{39+j}, v8 offset:{P1U-P1S+j*128}")
    for j in range(3):
        a(f"ds_read_b32 v{20+j}, v9 offset:{(5+j)*128}")
    for base, off in ((23, P1K), (31, P1V)):
        for j in range(8):
            a(f"ds_read_b32 v{base+j}, v8 offset:{off-P1S+j*128}")
    a("s_waitcnt lgkmcnt(15)")
    O2 = 130
    for ch, sel in ((0, S_SELLO), (1, S_SELHI)):
        for j in range(4):
            a(f"v_perm_b32 v{O2+4*ch+j}, v{39+2*j+1}, v{39+2*j}, s{sel}")
        so = "0" if ch == 0 else f"s{S_4096}"
        a(f"buffer_store_dwordx4 {vr(O2+4*ch,4)}, v10, s[{R_WS}:{R_WS+3}], {so} offen{SC}")
    KP = 68
    a("s_waitcnt lgkmcnt(8)")
    for i in range(11):
        unpack2(a, KP + 2 * i, 20 + i)
    ACC = 90
    T = 106
    for r in range(8):
        a(f"v_pk_mul_f32 {vr(ACC+2*r,2)}, {vr(KP+2*r,2)}, {vr(SP+6,2)}")
    for j in (1, 2, 3):
        for r in range(8):
            a(f"v_pk_fma_f32 {vr(ACC+2*r,2)}, {vr(KP+2*(r+j),2)}, {vr(SP+6-2*j,2)}, {vr(ACC+2*r,2)}")
    a("s_waitcnt lgkmcnt(0)")
    for r in range(8):
        unpack2(a, T + 2 * r, 31 + r)
    for r in range(8):
        a(f"v_pk_mul_f32 {vr(ACC+2*r,2)}, {vr(ACC+2*r,2)}, {vr(T+2*r,2)}")
    O = 122
    for ch in range(2):
        for j in range(4):
            a(f"v_cvt_pk_bf16_f32 v{O+4*ch+j}, v{ACC+2*(2*j)+ch}, v{ACC+2*(2*j+1)+ch}")
        so = S_KV0 if ch == 0 else S_KV1
        a(f"buffer_store_dwordx4 {vr(O+4*ch,4)}, v10, s[{R_WS}:{R_WS+3}], s{so} offen{SC}")
    stamp(a, 3)
    nonce_check(a, "d", 52, 56)
    stamp(a, 4)
    a.c("---- signal")
    a("s_mov_b64 exec, 1")
    a("ds_add_rtn_u32 v13, v16, v17")
    a("s_waitcnt lgkmcnt(0)")
    a(f"v_readfirstlane_b32 s{S_T1}, v13")
    a(f"s_cmp_lg_u32 s{S_T1}, 3")
    a("s_cbranch_scc1 L_nosig")
    if OPT["fullflag"]:
        a("s_mov_b64 exec, 0xffff")
    a(f"buffer_store_dwordx2 v[52:53], v18, s[{R_WS}:{R_WS+3}], 0 offen{SC}")
    a.lab("L_nosig")
    a("s_mov_b64 exec, -1")
    a.c("---- wait for this wave's 8 producers")
    a(f"s_mov_b32 s{S_SPIN}, 0")
    a.lab("L_poll")
    a(f"buffer_load_dwordx2 v[40:41], v19, s[{R_WS}:{R_WS+3}], 0 offen{SC}")
    a(f"s_add_u32 s{S_SPIN}, s{S_SPIN}, 1")
    a("s_waitcnt vmcnt(0)")
    a(f"v_cmp_ne_u64 vcc, s[{S_NON}:{S_NON+1}], v[40:41]")
    a(f"s_cmp_ge_u32 s{S_SPIN}, {hex(SPIN_MAX)}")
    a("s_cbranch_scc1 L_poll_done")
    a("s_cmp_eq_u64 vcc, 0")
    a("s_cbranch_scc1 L_poll_done")
    a(f"s_sleep {OPT['pollsleep']}")
    a("s_branch L_poll")
    a.lab("L_poll_done")
    stamp(a, 6)
    a.c("---- phase 2 loads")
    sofs = ["0", f"s{S_4096}", f"s{S_KV0}", f"s{S_KV1}"]
    for q in range(4):
        a(f"buffer_load_dwordx4 {vr(20+4*q,4)}, v11, s[{R_WS}:{R_WS+3}], {sofs[q]} offen{SC}")
    for q in range(4):
        a(f"s_waitcnt vmcnt({3-q})")
        if q < 2:
            a(f"ds_write_b128 v14, {vr(20+4*q,4)} offset:{XB(q)+480}")
        else:
            a(f"ds_write_b128 v15, {vr(20+4*q,4)} offset:{XB(q)-XB(2)}")
    a("s_waitcnt lgkmcnt(0)")
    stamp(a, 7)
    if OPT["dprio"]:
        a("s_setprio 0")
    a("s_barrier")
    stamp(a, 8)
    if OPT["exp"]:
        a(f"s_cmp_lt_u32 s{S_WV}, 2")
        a("s_cbranch_scc1 L_convA")
    conv_main(a)
    if OPT["stamp"]:
        stamp(a, 9)
        stamp_out(a)
    a("s_endpgm")
    if OPT["exp"]:
        a.lab("L_convA")
        conv_main(a, OPT["exp"])
        if OPT["stamp"]:
            stamp(a, 9)
            stamp_out(a)
        a("s_endpgm")


def conv_setup(a):
    a.c("conv address setup, q = wave")
    a(f"s_mul_i32 s{S_T0}, s{S_WV}, {CONV}")
    a("v_and_b32 v12, 15, v1")
    a("v_lshrrev_b32 v13, 4, v1")
    a("v_and_b32 v16, 3, v12")
    a("v_lshrrev_b32 v17, 2, v12")
    a(f"v_mul_u32_u24 v2, {KSTR}, v16")
    a("v_lshl_add_u32 v2, v13, 4, v2")
    a("v_lshlrev_b32 v17, 3, v17")
    a("v_sub_u32 v2, v2, v17")
    a(f"s_add_u32 s{S_T1}, s{S_T0}, {KR(0,0)+24}")
    a(f"v_add_u32 v2, s{S_T1}, v2")
    a("v_lshlrev_b32 v3, 4, v13")
    a("v_lshl_add_u32 v3, v12, 5, v3")
    a(f"s_add_u32 s{S_T1}, s{S_T0}, {XB(0)}")
    a(f"v_add_u32 v3, s{S_T1}, v3")
    a("v_mul_u32_u24 v4, 40, v12")
    a("v_lshl_add_u32 v4, v13, 3, v4")
    a(f"s_mul_i32 s{S_T1}, s{S_WV}, {YSZ}")
    a(f"s_add_u32 s{S_T1}, s{S_T1}, {YS}")
    a(f"v_add_u32 v4, s{S_T1}, v4")
    a(f"s_lshl_b32 s{S_T1}, s{S_WV}, 2")
    a(f"s_add_u32 s{S_T1}, s{S_T1}, {C_Y}")
    a(f"v_mov_b32 v5, s{S_T1}")


def conv_main(a, emax=99):
    ACC = 6
    BUF = [38, 102]
    grp = groups()
    steps = []
    if OPT["plan"]:
        for part in OPT["plan"].split(","):
            tl, rr = part.split(":")
            tl = [int(c) for c in tl]
            r0, r1 = [int(x) for x in rr.split("-")]
            per = 2 if max(tl) <= 3 else 1
            for r in range(r0, r1 + 1, per):
                steps.append((tl, list(range(r, r + per))))
    else:
        for g in grp:
            per = 2 if max(g) <= 3 else 1
            for r0 in range(0, 8, per):
                steps.append((g, list(range(r0, r0 + per))))
    last = {}
    cov = {t: set() for t in range(8)}
    for si, (tl, rs) in enumerate(steps):
        for t in tl:
            assert not (cov[t] & set(rs))
            cov[t] |= set(rs)
        for gi, g in enumerate(grp):
            if gi not in last and all(len(cov[t]) == 8 for t in g):
                last[gi] = si
    assert len(last) == len(grp)

    def step_plan(si):
        g, rs = steps[si]
        nfr = max(g) + 1
        b = BUF[si & 1]
        loads, mf = [], []
        for k, r in enumerate(rs):
            fb = b + 16 * k if len(rs) > 1 else b
            gb = b + 32 + (16 * k if len(rs) > 1 else 0)
            pairs = [(e1, tau - e1, tau) for tau in g for e1 in range(tau + 1) if e1 < emax]
            pairs.sort(key=lambda p: (max(p[0], p[1]), p[2]))
            for i in range(nfr):
                if any(p[1] == i for p in pairs):
                    loads.append((("G", k, i), f"ds_read_b128 {vr(gb+4*i,4)}, v3 offset:{512*i+64*r}"))
                if i >= emax:
                    continue
                loads.append((("F", k, i, 0), f"ds_read_b64 {vr(fb+4*i,2)}, v2 offset:{512*(7-i)+64*r}"))
                loads.append((("F", k, i), f"ds_read_b64 {vr(fb+4*i+2,2)}, v2 offset:{512*(7-i)+64*r+8}"))
            for (e1, c1, tau) in pairs:
                mf.append((tau, ("F", k, e1), ("G", k, c1), fb + 4 * e1, gb + 4 * c1))
        return loads, mf

    plans = [step_plan(si) for si in range(len(steps))]
    seq = [0]
    done = [0]
    when = {}

    def lds(s, key=None):
        a(s)
        if key is not None:
            when[key] = seq[0]
        seq[0] += 1

    def need(idx):
        if idx < done[0]:
            return
        n = min(seq[0] - idx - 1, OPT["wslack"] if seq[0] > 30 else 15)
        a(f"s_waitcnt lgkmcnt({n})")
        a("s_nop 0")
        done[0] = seq[0] - n

    a(".p2align 3")
    for key, s in plans[0][0]:
        lds(s, (0,) + key)
    started = set()
    mark = [0]
    pending = []
    for si in range(len(steps)):
        loads, mf = plans[si]
        nl = list(plans[si + 1][0]) if si + 1 < len(steps) else []
        nm = len(mf)
        slots = max(1, nm * OPT["frac"] // 100)
        ntot = len(nl)
        for i, (tau, fk, gk, fr, gr) in enumerate(mf):
            need(max(when[(si,) + fk], when[(si,) + gk]))
            c = vr(ACC + 4 * tau, 4) if tau in started else "0"
            started.add(tau)
            a(f"v_mfma_f32_16x16x32_bf16 {vr(ACC+4*tau,4)}, {vr(fr,4)}, {vr(gr,4)}, {c}")
            if pending and len(a.l) - mark[0] >= 9:
                for _ in range(2):
                    if pending:
                        op = pending.pop(0)
                        if op.startswith("ds_"):
                            lds(op)
                        else:
                            a(op)
            want = min(ntot, -(-ntot * (i + 1) // slots))
            while ntot - len(nl) < want:
                key, s = nl.pop(0)
                lds(s, (si + 1,) + key)
        assert not nl
        for gi in [g_ for g_, l_ in last.items() if l_ == si]:
            assert not pending
            mark[0] = len(a.l)
            for tau in grp[gi]:
                c = ACC + 4 * tau
                pending.append(f"v_cvt_pk_bf16_f32 v{c}, v{c}, v{c+1}")
                pending.append(f"v_cvt_pk_bf16_f32 v{c+1}, v{c+2}, v{c+3}")
                pending.append(f"ds_write_b64 v4, {vr(c,2)} offset:{640*tau}")
            pending.append(f"ds_write_b32 v5, v5 offset:{16*gi}")
    a("s_nop 7")
    for op in pending:
        a(op)


XA = 154


def expansion_addr(a, g):
    a.c("expansion addresses")
    a(f"s_lshr_b32 s{S_KC}, s{S_W4}, 1")
    a(f"s_and_b32 s{S_HM}, s{S_W4}, 1")
    a(f"s_lshl_b32 s{S_T0}, s{S_HM}, 7")
    a(f"s_add_u32 s{S_T0}, s{S_T0}, {64*g}")
    a(f"v_add_u32 v12, s{S_T0}, v1")
    a(f"s_mul_i32 s{S_T1}, s{S_KC}, {KCSZ}")
    a(f"s_add_u32 s{S_T1}, s{S_T1}, {KC}")
    a(f"s_sub_u32 s{S_T3}, s{S_T1}, {IDXBIAS}")
    a(f"s_mul_i32 s{S_T2}, s{S_KC}, {CONV}")
    a(f"s_add_u32 s{S_T2}, s{S_T2}, {KR(0,0)-4}")
    a("v_lshlrev_b32 v11, 3, v12")
    a("v_sub_u32 v11, 2047, v11")
    a("v_cvt_f32_u32 v8, v11")
    if g == 1:
        a("v_cmp_gt_u32 vcc, 0x100, v11")
        a(f"v_lshl_add_u32 v10, v11, 3, s{S_T1}")
    for k in range(9):
        d = XA + k
        if k == 0:
            a(f"v_cvt_pk_bf16_f32 v{d}, 0, v8")
        else:
            lit = {1: "-1.0", 2: "-2.0", 4: "-4.0"}.get(k, hex(f2u(-float(k))))
            a(f"v_add_f32 v9, {lit}, v8")
            a(f"v_cvt_pk_bf16_f32 v{d}, 0, v9")
        a(f"v_lshrrev_b32 v{d}, 13, v{d}")
        a(f"v_add_u32 v{d}, s{S_T3}, v{d}")
        if g == 1:
            a(f"v_subrev_u32 v9, {8*k}, v10")
            a(f"v_cndmask_b32 v{d}, v{d}, v9, vcc")
    a(f"v_lshl_add_u32 v163, v12, 4, s{S_T2}")
    if g == 1:
        a("v_cmp_eq_u32 vcc, 0xff, v12")
        a(f"s_add_u32 s{S_T0}, s{S_T1}, {768*8}")
        a(f"v_mov_b32 v9, s{S_T0}")
        a(f"v_cndmask_b32 v{XA+8}, v{XA+8}, v9, vcc")
    a(f"s_lshl_b32 s{S_T0}, s{S_KC}, 2")
    a(f"s_add_u32 s{S_T0}, s{S_T0}, {C_KG}")
    a(f"v_mov_b32 v164, s{S_T0}")


def expansion(a, tag):
    lds_spin(a, f"L_kspin_{tag}", 164, 8, 2, sleep=(1 if tag == "a" else 0))
    stamp(a, 8)
    a.c("expansion")
    B = 100
    for k in range(9):
        a(f"ds_read_b64 {vr(B+2*k,2)}, v{XA+k}")
    a("s_waitcnt lgkmcnt(0)")
    for k in range(9):
        a(f"v_add_f32 v{B+2*k}, v{B+2*k}, v{B+2*k+1}")
    P3, P2 = 120, 124
    for j in range(4):
        b = B + 4 * j
        a(f"v_cvt_pk_bf16_f32 v{P3+j}, v{b}, v{b+2}")
        a(f"v_cvt_pk_bf16_f32 v{P2+j}, v{b+2}, v{b+4}")
    k_copies(a, 163, P3, P2)


def kgen_waves(a):
    a.c("==== K generation waves")
    a(f"s_lshr_b32 s{S_KC}, s{S_W4}, 1")
    a(f"s_and_b32 s{S_HM}, s{S_W4}, 1")
    a(f"s_add_u32 s{S_T1}, s{S_D0}, s{S_KC}")
    a(f"s_lshl_b32 s{S_T3}, s{S_T1}, 1")
    a(f"v_mov_b32 v8, s{S_T3}")
    a(f"s_lshl_b32 s{S_T1}, s{S_T1}, 8")
    a(f"s_lshl_b32 s{S_T2}, s{S_HM}, 7")
    a(f"s_add_u32 s{S_T1}, s{S_T1}, s{S_T2}")
    a(f"v_lshl_add_u32 v2, v1, 1, s{S_T1}")
    a("s_waitcnt lgkmcnt(0)")
    a(f"global_load_ushort v7, v8, s[{P_LDT}:{P_LDT+1}]")
    a(f"global_load_ushort v3, v2, s[{P_LAR}:{P_LAR+1}]")
    a(f"global_load_ushort v4, v2, s[{P_AIM}:{P_AIM+1}]")
    a(f"global_load_ushort v5, v2, s[{P_CR}:{P_CR+1}]")
    a(f"global_load_ushort v6, v2, s[{P_CI}:{P_CI+1}]")
    if OPT["stamp"]:
        srd(a, R_WS, P_WS, WS_SIZE)
    expansion_addr(a, 0)
    TBW, TBR, KA0, KA1, KA2 = 16, 17, 18, 19, 49
    a(f"s_mul_i32 s{S_T0}, s{S_W4}, {TBLSZ}")
    a(f"s_add_u32 s{S_T0}, s{S_T0}, {TBL}")
    a(f"v_lshl_add_u32 v{TBW}, v1, 2, s{S_T0}")
    a("v_and_b32 v13, 15, v1")
    a("v_lshrrev_b32 v8, 4, v1")
    a(f"v_mul_u32_u24 v{TBR}, 288, v13")
    a(f"v_lshl_add_u32 v{TBR}, v8, 4, v{TBR}")
    a(f"v_add_u32 v{TBR}, s{S_T0}, v{TBR}")
    a(f"s_lshl_b32 s{S_T0}, s{S_HM}, 2")
    a(f"s_add_u32 s{S_T1}, s{S_T1}, s{S_T0}")
    a("v_lshrrev_b32 v9, 1, v8")
    a("v_and_b32 v10, 1, v8")
    a(f"v_lshlrev_b32 v{KA0}, 7, v9")
    a(f"v_lshl_add_u32 v{KA0}, v10, 2, v{KA0}")
    a(f"v_lshl_add_u32 v{KA0}, v13, 3, v{KA0}")
    a(f"v_lshl_add_u32 v{KA0}, v{KA0}, 3, s{S_T1}")
    a("v_lshlrev_b32 v11, 1, v10")
    a("v_lshl_add_u32 v11, v13, 2, v11")
    a("v_add_u32 v11, 0x100, v11")
    a("v_lshlrev_b32 v12, 5, v10")
    a("v_lshl_add_u32 v12, v13, 1, v12")
    a("v_cmp_eq_u32 vcc, 0, v9")
    a("v_add_u32 v12, 0x180, v12")
    a(f"v_lshl_add_u32 v{KA2}, v8, 6, v13")
    a(f"v_cndmask_b32 v{KA1}, v12, v11, vcc")
    a(f"v_lshl_add_u32 v{KA1}, v{KA1}, 3, s{S_T1}")
    a(f"v_add_u32 v{KA2}, 0x200, v{KA2}")
    a(f"v_lshl_add_u32 v{KA2}, v{KA2}, 3, s{S_T1}")
    a("s_barrier")
    stamp(a, 2)
    a.c("parameters")
    a("s_waitcnt vmcnt(0)")
    stamp(a, 4)
    a("v_lshlrev_b32 v8, 16, v7")
    a("v_lshlrev_b32 v9, 16, v3")
    a(f"s_mov_b32 s{S_T1}, {hex(L2E)}")
    a(f"s_mov_b32 s{S_T2}, {hex(L2E_LO)}")
    for x, p, e in ((8, 10, 12), (9, 11, 13)):
        a(f"v_mul_f32 v{p}, s{S_T1}, v{x}")
        a(f"v_fma_f32 v{e}, v{x}, s{S_T1}, -v{p}")
        a(f"v_fma_f32 v{e}, v{x}, s{S_T2}, v{e}")
        a(f"v_exp_f32 v{p}, v{p}")
        a(f"v_mul_f32 v{e}, {hex(LN2)}, v{e}")
    a("v_lshlrev_b32 v4, 16, v4")
    for x, p, e in ((8, 10, 12), (9, 11, 13)):
        a(f"v_fma_f32 v{p}, v{p}, v{e}, v{p}")
        rnd(a, p, p)
    a("v_mul_f32 v11, v11, v10")
    a(f"v_mul_f32 v11, {hex(L2E | 0x80000000)}, v11")
    a("v_mul_f32 v4, v4, v10")
    a("v_mul_f32 v12, 0.15915494, v4")
    a("v_add_f32 v10, v10, v10")
    a("v_lshlrev_b32 v5, 16, v5")
    a("v_lshlrev_b32 v6, 16, v6")
    a("v_mul_f32 v14, v5, v10")
    a("v_mul_f32 v15, v6, v10")
    a("v_max_f32 v13, |v14|, |v15|")
    E = lambda j: 20 + 2 * j
    tmp = {0: (50, 51), 3: (52, 53), 7: (54, 55)}
    dpps = [f"v_max_u32_dpp v13, v13, v13 {d} bank_mask:0xf" for d in
            ("quad_perm:[1,0,3,2] row_mask:0xf", "quad_perm:[2,3,0,1] row_mask:0xf", "row_half_mirror row_mask:0xf",
             "row_mirror row_mask:0xf", "row_bcast:15 row_mask:0xa", "row_bcast:31 row_mask:0xc")]
    anc = []
    for j, (m, f) in tmp.items():
        if j == 0:
            anc += [f"v_exp_f32 v{m}, v11", f"v_fract_f32 v{f}, v12"]
        else:
            anc += [f"v_mul_f32 v{m}, {hex(f2u(2.0**j))}, v11", f"v_mul_f32 v{f}, {hex(f2u(2.0**j))}, v12",
                    f"v_exp_f32 v{m}, v{m}", f"v_fract_f32 v{f}, v{f}"]
    for j, (m, f) in tmp.items():
        anc += [f"v_cos_f32 v{E(j)}, v{f}", f"v_sin_f32 v{E(j)+1}, v{f}"]
    a.c("anchors")
    k = 0
    for d in dpps:
        a(anc[k]); a(anc[k + 1]); k += 2
        a(d)
    for o in anc[k:]:
        a(o)
    a(f"v_readlane_b32 s{S_T0}, v13, 63")
    for j, (m, f) in tmp.items():
        a(f"v_mul_f32 v{E(j)}, v{E(j)}, v{m}")
        a(f"v_mul_f32 v{E(j)+1}, v{E(j)+1}, v{m}")
    a(f"s_lshr_b32 s{S_T0}, s{S_T0}, 23")
    a(f"s_max_u32 s{S_T0}, s{S_T0}, 16")
    a(f"s_sub_u32 s{S_SC}, 264, s{S_T0}")
    a(f"s_lshl_b32 s{S_SC}, s{S_SC}, 23")
    a(f"s_sub_u32 s{S_ISC}, s{S_T0}, 10")
    a(f"s_lshl_b32 s{S_ISC}, s{S_ISC}, 23")
    interleave(a, [sum([cmul_ops(E(j), E(j - 1), E(j - 1)) for j in js], []) for js in ((4, 5, 6), (8, 9, 10, 11), (1, 2))])
    stamp(a, 5)
    a.c("Y tile")
    tcount = [0]

    def put_ops(row, x, neg):
        t = 44 + (tcount[0] % 4)
        tcount[0] += 1
        return [f"v_cvt_pk_f16_f32 v{t}, v{x}, {'-' if neg else ''}v{x+1}",
                f"ds_write_b32 v{TBW}, v{t} offset:{288*row}"]

    def run_items(items):
        for i in range(0, len(items), 2):
            ch = []
            for (d, x, y, row, neg) in items[i:i + 2]:
                ops = [] if x is None else cmul_ops(d, x, y)
                if row is not None:
                    ops += put_ops(row, d, neg)
                ch.append(ops)
            interleave(a, ch)

    CT = 98
    Y = {1: E(3), 2: E(4), 4: E(5), 8: E(6), 3: 56, 5: 58, 6: 60, 7: 62}
    a("v_mov_b32 v48, 0x3c00")
    a(f"ds_write_b32 v{TBW}, v48")
    items = [(Y[3], Y[2], Y[1], 3, True), (Y[1], None, None, 1, True),
             (Y[5], Y[4], Y[1], 5, True), (Y[2], None, None, 2, True),
             (Y[6], Y[4], Y[2], 6, True), (Y[4], None, None, 4, True),
             (Y[7], Y[4], Y[3], 7, True), (Y[8], None, None, 8, True)]
    for b in range(9, 16):
        items.append((CT + 2 * (b % 4), Y[8], Y[b - 8], b, True))
    run_items(items)
    YF = 106
    for s in range(4):
        a(f"ds_read_b128 {vr(YF+4*s,4)}, v{TBR} offset:{64*s}")
    a.c("Z, W")
    Z = {1: E(0), 2: E(1), 4: E(2), 3: 56, 5: 58, 6: 60, 7: 62}
    W = {h: 64 + 2 * h for h in range(17)}
    a(f"v_mul_f32 v{W[0]}, s{S_SC}, v14")
    a(f"v_mul_f32 v{W[0]+1}, s{S_SC}, v15")
    run_items([(Z[3], Z[2], Z[1], None, 0), (W[1], W[0], E(7), None, 0),
               (Z[5], Z[4], Z[1], None, 0), (Z[6], Z[4], Z[2], None, 0),
               (Z[7], Z[4], Z[3], None, 0), (W[2], W[0], E(8), None, 0)])
    stamp(a, 6)
    XFT = [122, 138, 20]
    ACC = 36

    def rd(t):
        for s in range(4):
            a(f"ds_read_b128 {vr(XFT[t]+4*s,4)}, v{TBR} offset:{64*s}")

    def mm(t):
        for s in range(4):
            c = "0" if s == 0 else vr(ACC + 4 * t, 4)
            a(f"v_mfma_f32_16x16x32_f16 {vr(ACC+4*t,4)}, {vr(XFT[t]+4*s,4)}, {vr(YF+4*s,4)}, {c}")

    a.c("X tile 0")
    items = [(W[0], None, None, 0, False), (W[1], None, None, 8, False)]
    k = 0
    for r in range(1, 8):
        for h in (0, 1):
            items.append((CT + 2 * (k % 4), W[h], Z[r], 8 * h + r, False)); k += 1
    run_items(items)
    rd(0)
    run_items([(W[3], W[1], E(8), None, 0)] + [(W[h], W[h - 4], E(9), None, 0) for h in (4, 5, 6)] + [(W[7], W[3], E(9), None, 0)])
    a.c("X tile 1")
    items = []
    for G in range(4):
        for r in range(4):
            if G < 2:
                h = 2 + (r >> 1); zr = 2 * (2 * G + (r & 1))
            else:
                h = 4 + 2 * (r >> 1) + (G - 2); zr = 4 * (r & 1)
            if zr == 0:
                items.append((W[h], None, None, 4 * G + r, False))
            else:
                items.append((CT + 2 * (k % 4), W[h], Z[zr], 4 * G + r, False)); k += 1
    run_items(items)
    rd(1)
    a.c("X tile 2")
    run_items([(W[h], W[h - 8], E(10), h - 8, False) for h in range(8, 16)] + [(W[16], W[0], E(11), 8, False)])
    rd(2)
    a("s_waitcnt lgkmcnt(4)")
    mm(0)
    mm(1)
    a("s_waitcnt lgkmcnt(0)")
    mm(2)
    a("v_mov_b32 v8, 1")
    a("s_nop 2")
    for t in (0, 1):
        for r in range(4):
            a(f"v_mul_f32 v{ACC+4*t+r}, s{S_ISC}, v{ACC+4*t+r}")
    for t, offs, ad in ((0, (0, 8, 16, 24), KA0), (1, (0, 8, 512, 520), KA1)):
        for r in range(4):
            a(f"ds_write_b32 v{ad}, v{ACC+4*t+r} offset:{offs[r]}")
    for r in range(4):
        a(f"v_mul_f32 v{ACC+8+r}, s{S_ISC}, v{ACC+8+r}")
    for r in range(4):
        a(f"ds_write_b32 v{KA2}, v{ACC+8+r} offset:{128*r}")
    a("s_mov_b64 exec, 1")
    a("ds_add_u32 v164, v8")
    a("s_mov_b64 exec, -1")
    stamp(a, 7)
    expansion(a, "k")
    a("s_waitcnt lgkmcnt(0)")
    stamp(a, 9)
    a("s_barrier")
    stamp_out(a)
    a("s_endpgm")


def gate_compute(a, XR, WR, T):
    Wp = T
    X0 = T + 8
    for j in range(4):
        unpack2(a, Wp + 2 * j, WR + j)
    for row in range(2):
        X = X0 + 8 * row
        for j in range(4):
            unpack2(a, X + 2 * j, XR + 4 * row + j)
    for row in range(2):
        X = X0 + 8 * row
        for j in range(4):
            a(f"v_pk_mul_f32 {vr(X+2*j,2)}, {vr(X+2*j,2)}, {vr(Wp+2*j,2)}")
    for row in range(2):
        X = X0 + 8 * row
        for j in range(8):
            rnd(a, X + j, X + j)
    for row in range(2):
        X = X0 + 8 * row
        a(f"v_pk_add_f32 {vr(X,2)}, {vr(X,2)}, {vr(X+2,2)}")
        a(f"v_pk_add_f32 {vr(X+4,2)}, {vr(X+4,2)}, {vr(X+6,2)}")
    for row in range(2):
        X = X0 + 8 * row
        a(f"v_pk_add_f32 {vr(X,2)}, {vr(X,2)}, {vr(X+4,2)}")
    A0, A1 = X0, X0 + 8
    a(f"v_add_f32 v{A0}, v{A0}, v{A0+1}")
    a(f"v_add_f32 v{A1}, v{A1}, v{A1+1}")
    a("s_nop 0")
    for d in ("quad_perm:[1,0,3,2]", "quad_perm:[2,3,0,1]", "row_half_mirror", "row_mirror",
              "row_bcast:15 row_mask:0xa", "row_bcast:31 row_mask:0xc"):
        m = "" if "row_mask" in d else " row_mask:0xf"
        a(f"v_add_f32_dpp v{A0}, v{A0}, v{A0} {d}{m} bank_mask:0xf")
        a(f"v_add_f32_dpp v{A1}, v{A1}, v{A1} {d}{m} bank_mask:0xf")
        a("s_nop 0")
    for x in (A0, A1):
        rnd(a, x, x)
    for x in (A0, A1):
        a(f"v_mul_f32 v{x}, {hex(L2E | 0x80000000)}, v{x}")
    for x in (A0, A1):
        a(f"v_exp_f32 v{x}, v{x}")
    a("s_nop 0")
    for x in (A0, A1):
        a(f"v_add_f32 v{x}, 1.0, v{x}")
    for x in (A0, A1):
        a(f"v_rcp_f32 v{x}, v{x}")
    a("s_nop 0")
    for x in (A0, A1):
        rnd(a, x, x)
    for x in (A0, A1):
        a(f"v_sub_f32 v{x+1}, 1.0, v{x}")
    a(f"v_cvt_pk_bf16_f32 v{T}, v{A0}, v{A0+1}")
    a(f"v_mov_b32 v{T+1}, s{S_NON}")
    a(f"v_cvt_pk_bf16_f32 v{T+2}, v{A1}, v{A1+1}")
    a(f"v_mov_b32 v{T+3}, s{S_NON}")


def aux_waves(a):
    grp = groups()
    a.c("==== aux waves; v0 = thread index 0..255")
    a.c("zero init of LDS pads")
    for i in range(4):
        a(f"v_mov_b32 v{8+i}, 0")
    a("v_lshrrev_b32 v12, 5, v0")
    a(f"v_mul_u32_u24 v12, {CONV}, v12")
    a("v_and_b32 v13, 31, v0")
    a("v_min_u32 v13, 29, v13")
    a("v_lshl_add_u32 v12, v13, 4, v12")
    a(f"v_add_u32 v12, {XB(0)}, v12")
    a("v_bfe_u32 v13, v0, 4, 2")
    a(f"v_mul_u32_u24 v13, {CONV}, v13")
    a("v_bfe_u32 v14, v0, 2, 2")
    a(f"v_mul_u32_u24 v14, {KSTR}, v14")
    a("v_and_b32 v15, 3, v0")
    a("v_min_u32 v15, 2, v15")
    a("v_lshl_add_u32 v14, v15, 4, v14")
    a("v_add_u32 v13, v13, v14")
    a(f"v_add_u32 v13, {KR(0,0)+4080}, v13")
    a("v_cmp_gt_u32 vcc, 0x80, v0")
    a("v_and_b32 v14, 15, v0")
    a("v_lshlrev_b32 v14, 4, v14")
    a("v_cndmask_b32 v12, v13, v12, vcc")
    a(f"v_add_u32 v14, {CNT}, v14")
    a("v_cmp_gt_u32 vcc, 0xc0, v0")
    a("v_and_b32 v15, 1, v0")
    a(f"v_mul_u32_u24 v15, {KCSZ}, v15")
    a("v_cndmask_b32 v12, v14, v12, vcc")
    a(f"v_add_u32 v15, {KC+768*8}, v15")
    a("v_cmp_gt_u32 vcc, 0xd0, v0")
    a("s_nop 1")
    a("v_cndmask_b32 v12, v15, v12, vcc")
    a("ds_write_b128 v12, v[8:11]")
    a("s_waitcnt lgkmcnt(0)")
    a("s_barrier")
    stamp(a, 1)
    srd(a, R_WS, P_WS, WS_SIZE)
    srd(a, R_DBG, P_DBG, 256)
    srd(a, R_OUT, P_OUT, 0x200000)
    expansion_addr(a, 1)
    a(f"s_lshl_b32 s{S_T0}, s{S_D0}, 12")
    a(f"v_lshl_add_u32 v2, v0, 4, s{S_T0}")
    a("v_add_u32 v3, 0x1000, v2")
    a("v_subrev_u32 v4, 4, v2")
    a(f"v_max_i32 v4, s{S_T0}, v4")
    a(f"s_lshl_b32 s{S_T1}, s{S_GB}, 13")
    a(f"s_lshl_b32 s{S_T2}, s{S_W4}, 11")
    a(f"s_add_u32 s{S_T1}, s{S_T1}, s{S_T2}")
    a("v_lshlrev_b32 v6, 4, v1")
    a(f"v_add_u32 v5, s{S_T1}, v6")
    a(f"s_lshl_b32 s{S_T0}, s{S_W4}, 4")
    a(f"s_lshl_b32 s{S_T1}, s{S_GB}, 6")
    a(f"s_add_u32 s{S_T0}, s{S_T0}, s{S_T1}")
    a(f"s_add_u32 s{S_T0}, s{S_T0}, {hex(WS_G)}")
    a(f"v_mov_b32 v7, s{S_T0}")
    a("v_mov_b32 v56, 0")
    a(f"s_lshl_b32 s{S_T3}, s{S_D0}, 1")
    EA = {}
    for gi, g in enumerate(grp):
        n = len(g); R0 = 256 * g[0]
        sh = {2: 1, 4: 2}[n]
        GO, XA1, XA2, YA_, OO = 140 + gi, 143 + gi, 146 + gi, 149 + gi, 13 + gi
        if gi == 2:
            YA_ = 152
        EA[gi] = (GO, XA1, XA2, YA_, OO)
        a(f"v_lshlrev_b32 v8, {sh}, v0")
        a(f"v_add_u32 v8, {R0}, v8")
        a(f"v_lshlrev_b32 v{GO}, 3, v8")
        a(f"v_lshlrev_b32 v{XA1}, 1, v8")
        a(f"v_add_u32 v{XA2}, {XB(2)+480}, v{XA1}")
        a("v_lshrrev_b32 v9, 4, v8")
        a(f"v_lshl_add_u32 v9, v9, 3, v{XA1}")
        a(f"v_add_u32 v{YA_}, {YS}, v9")
        a(f"v_lshl_add_u32 v{OO}, v8, 10, s{S_T3}")
    if OPT["tw"]:
        a(f"s_cmp_lg_u32 s{S_W4}, 0")
        a("s_cbranch_scc1 L_notw")
        a("s_mov_b64 exec, 1")
        a(f"s_lshl_b32 s{S_T0}, s{S_PCG}, 18")
        a(f"s_lshl_b32 s{S_T1}, s{S_PTB}, 7")
        a(f"s_add_u32 s{S_T0}, s{S_T0}, s{S_T1}")
        a(f"v_mov_b32 v8, s{S_T0}")
        a(f"s_mov_b32 s{S_T2}, {hex(WS_KV)}")
        a(f"buffer_load_dword v60, v8, s[{R_WS}:{R_WS+3}], 0 offen nt")
        a(f"buffer_load_dword v61, v8, s[{R_WS}:{R_WS+3}], s{S_T2} offen nt")
        a(f"s_lshl_b32 s{S_T0}, s{S_PCG}, 12")
        a(f"s_add_u32 s{S_T0}, s{S_T0}, s{S_T1}")
        a(f"s_add_u32 s{S_T0}, s{S_T0}, {hex(WS_FLAG)}")
        a(f"v_mov_b32 v8, s{S_T0}")
        a(f"buffer_load_dword v62, v8, s[{R_WS}:{R_WS+3}], 0 offen nt")
        a(f"s_lshl_b32 s{S_T0}, s2, 13")
        a(f"v_mov_b32 v8, s{S_T0}")
        a(f"buffer_load_dword v63, v8, s[{R_OUT}:{R_OUT+3}], 0 offen nt")
        a(f"global_load_dword v64, v2, s[{P_SSMK}:{P_SSMK+1}]")
        a(f"global_load_dword v65, v6, s[{P_GW}:{P_GW+1}]")
        a("s_mov_b64 exec, -1")
        a.lab("L_notw")
    a(f"s_load_dword s{S_RAWDS}, s[{P_DSK}:{P_DSK+1}], s{S_T3}")
    a(f"s_load_dword s{S_RAWDM}, s[{P_SSMD}:{P_SSMD+1}], s{S_T3}")
    def ssmk_loads():
        a(f"global_load_dwordx4 v[68:71], v2, s[{P_SSMK}:{P_SSMK+1}]")
        a(f"global_load_dword v67, v4, s[{P_SSMK}:{P_SSMK+1}]")
        a(f"global_load_dwordx4 v[74:77], v3, s[{P_SSMK}:{P_SSMK+1}]")
        a(f"global_load_dword v73, v3, s[{P_SSMK}:{P_SSMK+1}] offset:-4")

    def gate_loads():
        a(f"global_load_dwordx4 v[80:83], v5, s[{P_U}:{P_U+1}]")
        a(f"global_load_dwordx4 v[84:87], v5, s[{P_U}:{P_U+1}] offset:1024")
        a(f"global_load_dwordx4 v[88:91], v6, s[{P_GW}:{P_GW+1}]")
        a(f"buffer_load_dwordx2 v[52:53], v56, s[{R_DBG}:{R_DBG+3}], 0 offen{SC}")

    def ssmk_copies():
        a.c("---- ssm_k -> LDS (reversed, 4 copies)")
        a("v_cmp_eq_u32 vcc, 0, v0")
        a("s_nop 1")
        for ch in range(2):
            q = 2 + ch
            L = 68 + 6 * ch
            P3, P2 = 20 + 8 * ch, 24 + 8 * ch
            a(f"v_cndmask_b32 v{L-1}, v{L-1}, 0, vcc")
            for d in range(4):
                a(f"v_alignbit_b32 v{P3+d}, v{L+3-d}, v{L+3-d}, 16")
                a(f"v_bfi_b32 v{P2+d}, s{S_LO}, v{L+3-d}, v{L+2-d}")
            a(f"v_add_u32 v{36+ch}, {KR(q,0)}, v9")
            k_copies(a, 36 + ch, P3, P2)

    def gate_part():
        nonce_check(a, "a", 52, 56)
        a.c("---- gate")
        gate_compute(a, 80, 88, 100)
        a("s_mov_b32 exec_lo, 0")
        a("s_mov_b32 exec_hi, 0x80000000")
        a(f"buffer_store_dwordx4 v[100:103], v7, s[{R_WS}:{R_WS+3}], 0 offen{SC}")
        a("s_mov_b64 exec, -1")

    a("v_lshlrev_b32 v9, 4, v0")
    a("v_sub_u32 v9, 4076, v9")
    M = OPT["auxmode"]
    if M >= 1:
        ssmk_loads()
    if M == 1:
        gate_loads()
    if M in (0, 2):
        a(f"v_mov_b32 v12, {C_P1}")
        lds_spin(a, "L_aspin", 12, 8, 4, sleep=2)
        stamp(a, 2)
        gate_loads()
        if M == 0:
            ssmk_loads()
    a("s_waitcnt lgkmcnt(0)")
    a(f"s_lshl_b32 s{S_DS}, s{S_RAWDS}, 16")
    a(f"s_and_b32 s{S_DS+1}, s{S_RAWDS}, s{S_HI}")
    a(f"s_lshl_b32 s{S_DM}, s{S_RAWDM}, 16")
    a(f"s_and_b32 s{S_DM+1}, s{S_RAWDM}, s{S_HI}")
    if M == 0:
        gate_part()
        stamp(a, 3)
        ssmk_copies()
    elif M in (1, 2):
        a("s_waitcnt vmcnt(4)")
        stamp(a, 3)
        ssmk_copies()
        gate_part()
    elif M == 3:
        a("s_waitcnt vmcnt(0)")
        stamp(a, 3)
        ssmk_copies()
        a(f"v_mov_b32 v12, {C_SIG}")
        lds_spin(a, "L_aspin", 12, 8, 4, sleep=2)
        gate_loads()
        gate_part()
    else:
        a("s_waitcnt vmcnt(0)")
        stamp(a, 3)
        ssmk_copies()
    stamp(a, 4)
    expansion(a, "a")
    a("s_waitcnt lgkmcnt(0)")
    stamp(a, 9)
    GR = 20
    XR = 36

    def gloads():
        pos = 0
        for gi, g in enumerate(grp):
            n = len(g)
            for h in range(n // 2):
                a(f"buffer_load_dwordx4 {vr(GR+2*pos+4*h,4)}, v{EA[gi][0]}, s[{R_WS}:{R_WS+3}], s{S_T2} offen offset:{16*h}{SC}")
            pos += n

    a(f"s_mov_b32 s{S_T2}, {hex(WS_G)}")
    a("s_barrier")
    stamp(a, 10)
    if OPT["hprio"]:
        a(f"s_setprio {OPT['hprio']}")
    if M == 4:
        gate_loads()
        gate_part()
    gloads()
    pos = 0
    for gi, g in enumerate(grp):
        n = len(g)
        lop = {2: "b32", 4: "b64"}[n]
        for q in range(4):
            if q < 2:
                a(f"ds_read_{lop} {vr(XR+4*q+pos//2,n//2)}, v{EA[gi][1]} offset:{XB(q)+480}")
            else:
                a(f"ds_read_{lop} {vr(XR+4*q+pos//2,n//2)}, v{EA[gi][2]} offset:{XB(q)-XB(2)}")
        pos += n
    assert pos == 8
    PR = 52
    a("s_waitcnt lgkmcnt(0)")
    for r in range(8):
        B = PR + 6 * r
        U, UD, UK = B, B + 2, B + 4
        for ch in range(2):
            ext(a, U + ch, XR + 4 * ch + r // 2, r & 1)
            ext(a, UK + ch, XR + 4 * (2 + ch) + r // 2, r & 1)
        for ch in range(2):
            a(f"v_mul_f32 v{UD+ch}, s{S_DS+ch}, v{U+ch}")
            a(f"v_mul_f32 v{UK+ch}, s{S_DM+ch}, v{UK+ch}")
    a(f"s_mov_b32 s{S_SPIN}, 0")
    a("s_branch L_gchk")
    a.lab("L_gpoll")
    a("s_sleep 4")
    gloads()
    a(f"s_add_u32 s{S_SPIN}, s{S_SPIN}, 1")
    a.lab("L_gchk")
    a("s_waitcnt vmcnt(0)")
    a(f"v_xor_b32 v8, s{S_NON}, v{GR+1}")
    for r in range(1, 8):
        a(f"v_xor_b32 v9, s{S_NON}, v{GR+2*r+1}")
        a("v_or_b32 v8, v8, v9")
    a("v_cmp_ne_u32 vcc, 0, v8")
    a(f"s_cmp_ge_u32 s{S_SPIN}, {hex(SPIN_MAX)}")
    a("s_cbranch_scc1 L_gpoll_done")
    a("s_cmp_eq_u64 vcc, 0")
    a("s_cbranch_scc0 L_gpoll")
    a.lab("L_gpoll_done")
    stamp(a, 11)
    for r in range(8):
        B = PR + 6 * r
        U, UD, UK = B, B + 2, B + 4
        G0, G1 = GR + 2 * r, GR + 2 * r + 1
        a(f"v_and_b32 v{G1}, s{S_HI}, v{G0}")
        a(f"v_lshlrev_b32 v{G0}, 16, v{G0}")
        for ch in range(2):
            a(f"v_mul_f32 v{U+ch}, v{U+ch}, v{G1}")
            a(f"v_mul_f32 v{UD+ch}, v{UD+ch}, v{G0}")
        for ch in range(2):
            a(f"v_fmac_f32 v{UD+ch}, v{UK+ch}, v{U+ch}")
    a(f"v_mov_b32 v5, {C_Y}")
    pos = 0
    for gi, g in enumerate(grp):
        n = len(g)
        a(f"s_mov_b32 s{S_SPIN}, 0")
        a.lab(f"L_yspin{gi}")
        a(f"ds_read_b128 v[104:107], v5 offset:{16*gi}")
        a(f"s_add_u32 s{S_SPIN}, s{S_SPIN}, 1")
        a("s_waitcnt lgkmcnt(0)")
        a("v_min_u32 v104, v104, v105")
        a("v_min3_u32 v104, v104, v106, v107")
        a(f"s_cmp_ge_u32 s{S_SPIN}, {hex(SPIN_MAX*8)}")
        a(f"v_readfirstlane_b32 s{S_T0}, v104")
        a(f"s_cbranch_scc1 L_yspin{gi}_done")
        a(f"s_cmp_lg_u32 s{S_T0}, 0")
        a(f"s_cbranch_scc1 L_yspin{gi}_done")
        a("s_sleep 1")
        a(f"s_branch L_yspin{gi}")
        a.lab(f"L_yspin{gi}_done")
        stamp(a, 12 + gi)
        lop = {2: "b32", 4: "b64"}[n]
        YR = 108
        for q in range(4):
            a(f"ds_read_{lop} {vr(YR+2*q,n//2)}, v{EA[gi][3]} offset:{YSZ*q}")
        a("s_waitcnt lgkmcnt(0)")
        for k in range(n):
            r = pos + k
            B = PR + 6 * r
            CB, P = B, B + 2
            G0 = GR + 2 * r
            YA, YB = 116 + 4 * (k & 1), 118 + 4 * (k & 1)
            for ch in range(2):
                ext(a, YA + ch, YR + 2 * ch + k // 2, k & 1)
                ext(a, YB + ch, YR + 2 * (2 + ch) + k // 2, k & 1)
            for ch in range(2):
                a(f"v_fmac_f32 v{P+ch}, v{YA+ch}, v{G0}")
            for ch in range(2):
                a(f"v_fmac_f32 v{P+ch}, v{YB+ch}, v{CB+ch}")
            a(f"v_cvt_pk_bf16_f32 v{P}, v{P}, v{P+1}")
            a(f"buffer_store_dword v{P}, v{EA[gi][4]}, s[{R_OUT}:{R_OUT+3}], 0 offen offset:{1024*k}")
        pos += n
    stamp_out(a)


def kd(name):
    return f""".section .rodata,"a"
.p2align 6
.amdhsa_kernel {name}
  .amdhsa_next_free_vgpr {NV}
  .amdhsa_next_free_sgpr 102
  .amdhsa_accum_offset {NV}
  .amdhsa_group_segment_fixed_size 0
  .amdhsa_kernarg_size 136
  .amdhsa_user_sgpr_count 2
  .amdhsa_user_sgpr_kernarg_segment_ptr 1
  .amdhsa_system_sgpr_workgroup_id_x 1
  .amdhsa_float_denorm_mode_32 3
.end_amdhsa_kernel
"""


def gen():
    out = [f"; @launch grid=(256,1,1) block=(768,1,1) lds={LDS_TOTAL}\n",
           '.amdgcn_target "amdgcn-amd-amdhsa--gfx950"\n.text\n',
           f".globl {NAME}_kernel\n.p2align 8\n.type {NAME}_kernel,@function\n{NAME}_kernel:\n"]
    a = A()
    prologue(a)
    data_waves(a)
    a.lab("L_kgen")
    kgen_waves(a)
    a.lab("L_aux")
    aux_waves(a)
    a.lab("L_end")
    a("s_endpgm")
    out.append(a.text())
    out.append(kd(NAME + "_kernel"))
    return "".join(out)


if __name__ == "__main__":
    outp = sys.argv[1] if len(sys.argv) > 1 else f"cdna_kernels/{NAME}.s"
    for x in sys.argv[2:]:
        k, v = x.split("=")
        OPT[k] = v if k in ("groups", "plan") else int(v)
    txt = gen()
    open(outp, "w").write(txt)
    print("wrote", outp, len(txt), "bytes; LDS", LDS_TOTAL)
```

```python
import sys, struct

NAME = "gated_mix__ssm_conv_s4d__ssm_conv_h3__prompt"
OPT = dict(stamp=0, groups="0123,4567", pollsleep=2, hprio=2, map=0, dprio=2, wslack=5, fullflag=1, frac=100, auxmode=0, plan="", exp=0, tw=0, nt=0)
NV = 168
VST, VST2 = 167, 166


def f2u(x):
    return struct.unpack("<I", struct.pack("<f", x))[0]


class A:
    def __init__(self):
        self.l = []

    def __call__(self, s):
        self.l.append("    " + s)

    def lab(self, s):
        self.l.append(s + ":")

    def c(self, s):
        self.l.append("    ; " + s)

    def text(self):
        return "\n".join(self.l) + "\n"


def vr(a, n=1):
    assert a + n <= NV, (a, n)
    return f"v{a}" if n == 1 else f"v[{a}:{a+n-1}]"


def sr(a, n=1):
    return f"s{a}" if n == 1 else f"s[{a}:{a+n-1}]"


KSTR = 4160
XSZ = 4576
CONV = 16 + 4 * KSTR + XSZ + 16
def KR(q, s): return q * CONV + 16 + s * KSTR
def XB(q): return q * CONV + 16 + 4 * KSTR
KC = 4 * CONV
KCSZ = 776 * 8
TBL = KC + 2 * KCSZ
TBLSZ = 16 * 288
CNT = TBL + 4 * TBLSZ
YS = CNT + 256
YSZ = 8 * 16 * 40
P1S = YS
P1K, P1V, P1U = P1S + 1024, P1S + 9216, P1S + 17408
LDS_TOTAL = YS + 25600
IDXBIAS = 8 * 0x4280
C_SIG, C_P1, C_KG, C_Y = CNT, CNT + 4, CNT + 16, CNT + 32

WS_KV = 0x200000
WS_G = 0x400000
WS_FLAG = 0x410000
WS_ST = 0x600000
WS_SIZE = 0x800000

P_U, P_LAR, P_AIM, P_CR, P_CI, P_LDT, P_DSK, P_Q = 16, 18, 20, 22, 24, 26, 28, 30
P_K, P_V, P_SHK, P_SSMK, P_SSMD, P_GW, P_OUT, P_DBG = 32, 34, 36, 38, 40, 42, 44, 46
P_WS = 48
S_WV, S_CG, S_TB, S_D0 = 3, 4, 5, 6
S_PCG, S_PTB, S_GB, S_W4 = 7, 98, 99, 100
S_HI, S_LO = 50, 51
S_T0, S_T1, S_T2, S_T3 = 8, 9, 10, 11
R_U, R_K, R_V, R_WS, R_OUT, R_DBG = 52, 56, 60, 64, 68, 72
S_SELLO, S_SELHI, S_4096, S_KV0, S_KV1 = 76, 77, 78, 79, 80
S_DS, S_DM = 82, 84
S_RAWDS, S_RAWDM = 86, 87
S_SC, S_ISC = 89, 90
S_SPIN = 91
S_KC, S_HM = 92, 93
S_PC = 12
S_NON = 14

L2E = 0x3FB8AA3B
L2E_LO = 0x32A57060
LN2 = 0x3F317218
SPIN_MAX = 0x40000
SC = " sc1"


def stamp(a, idx):
    if not OPT["stamp"]:
        return
    a("s_memrealtime s[94:95]")
    a("s_memtime s[96:97]")
    a("s_waitcnt lgkmcnt(0)")
    a(f"v_writelane_b32 v{VST}, s94, {idx}")
    a(f"v_writelane_b32 v{VST}, s96, {32+idx}")


def stamp_out(a):
    if not OPT["stamp"]:
        return
    a("s_waitcnt vmcnt(0)")
    stamp(a, 15)
    a(f"s_lshl_b32 s{S_T0}, s2, 4")
    a(f"s_add_u32 s{S_T0}, s{S_T0}, s{S_WV}")
    a(f"s_lshl_b32 s{S_T0}, s{S_T0}, 8")
    a(f"s_add_u32 s{S_T0}, s{S_T0}, {hex(WS_ST)}")
    a(f"v_lshl_add_u32 v{VST2}, v1, 2, s{S_T0}")
    a(f"buffer_store_dword v{VST}, v{VST2}, s[{R_WS}:{R_WS+3}], 0 offen")


def srd(a, r, p, size):
    a(f"s_mov_b32 s{r}, s{p}")
    a(f"s_and_b32 s{r+1}, s{p+1}, 0xffff")
    a(f"s_mov_b32 s{r+2}, {hex(size)}")
    a(f"s_mov_b32 s{r+3}, 0x20000")


def rnd(a, d, s):
    a(f"v_cvt_pk_bf16_f32 v{d}, 0, v{s}")


def unpack2(a, d, s):
    a(f"v_lshlrev_b32 v{d}, 16, v{s}")
    a(f"v_and_b32 v{d+1}, s{S_HI}, v{s}")


def ext(a, d, reg, hi):
    if hi:
        a(f"v_and_b32 v{d}, s{S_HI}, v{reg}")
    else:
        a(f"v_lshlrev_b32 v{d}, 16, v{reg}")


def cmul_ops(d, x, y):
    assert d not in (x, y) and d % 2 == 0 and x % 2 == 0 and y % 2 == 0
    return [f"v_pk_mul_f32 {vr(d,2)}, {vr(x,2)}, {vr(y,2)} op_sel:[0,0] op_sel_hi:[1,0]",
            f"v_fma_f32 v{d}, -v{x+1}, v{y+1}, v{d}",
            f"v_fmac_f32 v{d+1}, v{x}, v{y+1}"]


def interleave(a, chains):
    chains = [list(c) for c in chains]
    while any(chains):
        for c in chains:
            if c:
                a(c.pop(0))


def groups():
    return [[int(ch) for ch in g] for g in OPT["groups"].split(",")]


def lds_spin(a, lab, vaddr, vtmp, val, sleep=0):
    a(f"s_mov_b32 s{S_SPIN}, 0")
    a.lab(lab)
    a(f"ds_read_b32 v{vtmp}, v{vaddr}")
    a(f"s_add_u32 s{S_SPIN}, s{S_SPIN}, 1")
    a("s_waitcnt lgkmcnt(0)")
    a(f"v_readfirstlane_b32 s{S_T0}, v{vtmp}")
    a(f"s_cmp_ge_u32 s{S_SPIN}, {hex(SPIN_MAX*8)}")
    a(f"s_cbranch_scc1 {lab}_done")
    a(f"s_cmp_ge_u32 s{S_T0}, {val}")
    a(f"s_cbranch_scc1 {lab}_done")
    if sleep:
        a(f"s_sleep {sleep}")
    a(f"s_branch {lab}")
    a.lab(lab + "_done")


def nonce_check(a, tag, vn, vzero):
    a(f"s_mov_b32 s{S_SPIN}, 0")
    a(f"s_branch L_nchk_{tag}")
    a.lab(f"L_npoll_{tag}")
    a(f"buffer_load_dwordx2 {vr(vn,2)}, v{vzero}, s[{R_DBG}:{R_DBG+3}], 0 offen{SC}")
    a(f"s_add_u32 s{S_SPIN}, s{S_SPIN}, 1")
    a.lab(f"L_nchk_{tag}")
    a("s_waitcnt vmcnt(0)")
    a(f"v_readfirstlane_b32 s{S_NON}, v{vn}")
    a(f"v_readfirstlane_b32 s{S_NON+1}, v{vn+1}")
    a(f"s_cmp_ge_u32 s{S_SPIN}, {hex(SPIN_MAX)}")
    a(f"s_cbranch_scc1 L_npoll_done_{tag}")
    a(f"s_cmp_eq_u32 s{S_NON}, 0")
    a(f"s_cbranch_scc1 L_npoll_{tag}")
    a.lab(f"L_npoll_done_{tag}")


def k_copies(a, vaddr, P3, P2):
    a(f"ds_write_b128 v{vaddr}, {vr(P3,4)} offset:{3*KSTR+4}")
    a(f"ds_write_b128 v{vaddr}, {vr(P2,4)} offset:{2*KSTR+4}")
    a(f"ds_write2_b32 v{vaddr}, v{P2}, v{P2+1} offset0:0 offset1:1")
    a(f"ds_write2_b32 v{vaddr}, v{P2+2}, v{P2+3} offset0:2 offset1:3")
    a(f"v_add_u32 v{vaddr}, {KSTR}, v{vaddr}")
    a(f"ds_write2_b32 v{vaddr}, v{P3}, v{P3+1} offset0:0 offset1:1")
    a(f"ds_write2_b32 v{vaddr}, v{P3+2}, v{P3+3} offset0:2 offset1:3")


def prologue(a):
    if OPT["stamp"]:
        a("s_memrealtime s[88:89]")
    a("s_cmp_ge_u32 s2, 256")
    a("s_cbranch_scc1 L_end")
    a("s_load_dwordx16 s[16:31], s[0:1], 0")
    a("s_load_dwordx16 s[32:47], s[0:1], 64")
    a("s_load_dwordx2 s[48:49], s[0:1], 128")
    a(f"s_getpc_b64 s[{S_PC}:{S_PC+1}]")
    a.lab("L_pc0")
    a("v_lshlrev_b32 v2, 5, v0")
    a("v_min_u32 v2, L_end-L_pc0, v2")
    a(f"global_load_dword v165, v2, s[{S_PC}:{S_PC+1}]")
    a("v_lshrrev_b32 v1, 6, v0")
    a(f"s_and_b32 s{S_CG}, s2, 7")
    a(f"v_readfirstlane_b32 s{S_WV}, v1")
    a("v_and_b32 v1, 63, v0")
    a("v_and_b32 v0, 0xff, v0")
    a(f"s_lshr_b32 s{S_TB}, s2, 3")
    a(f"s_lshl_b32 s{S_D0}, s{S_CG}, 6")
    a(f"s_lshl_b32 s{S_T0}, s{S_TB}, 1")
    a(f"s_add_u32 s{S_D0}, s{S_D0}, s{S_T0}")
    a(f"s_mov_b32 s{S_HI}, 0xffff0000")
    a(f"s_mov_b32 s{S_LO}, 0xffff")
    a(f"s_and_b32 s{S_W4}, s{S_WV}, 3")
    if OPT["map"] == 0:
        a(f"s_mov_b32 s{S_PCG}, s{S_CG}")
        a(f"s_mov_b32 s{S_PTB}, s{S_TB}")
    else:
        a(f"s_and_b32 s{S_PCG}, s{S_TB}, 7")
        a(f"s_lshr_b32 s{S_T0}, s2, 6")
        a(f"s_lshl_b32 s{S_T0}, s{S_T0}, 3")
        a(f"s_add_u32 s{S_PTB}, s{S_T0}, s{S_CG}")
    a(f"s_lshl_b32 s{S_GB}, s{S_PTB}, 3")
    a(f"s_add_u32 s{S_GB}, s{S_GB}, s{S_PCG}")
    if OPT["stamp"]:
        a(f"v_mov_b32 v{VST}, 0")
        stamp(a, 5)
        a(f"v_writelane_b32 v{VST}, s88, 0")
    a(f"s_cmp_ge_u32 s{S_WV}, 8")
    a("s_cbranch_scc1 L_aux")
    a(f"s_cmp_ge_u32 s{S_WV}, 4")
    a("s_cbranch_scc1 L_kgen")


def data_waves(a):
    a.c("==== data waves")
    if OPT["dprio"]:
        a(f"s_setprio {OPT['dprio']}")
    a("v_and_b32 v57, 7, v1")
    a("v_lshrrev_b32 v7, 3, v1")
    a(f"v_xor_b32 v9, s{S_WV}, v57")
    a(f"s_lshl_b32 s{S_T0}, s{S_PTB}, 16")
    a(f"s_lshl_b32 s{S_T1}, s{S_PCG}, 7")
    a(f"s_add_u32 s{S_T0}, s{S_T0}, s{S_T1}")
    a(f"s_lshl_b32 s{S_T1}, s{S_WV}, 13")
    a(f"s_add_u32 s{S_T0}, s{S_T0}, s{S_T1}")
    a(f"v_lshl_add_u32 v8, v7, 10, s{S_T0}")
    a("v_lshl_add_u32 v8, v9, 4, v8")
    a("v_xor_b32 v58, 64, v8")
    a("v_subrev_u32 v9, 0x8000, v58")
    a(f"s_lshl_b32 s{S_T0}, s{S_WV}, 3")
    a(f"v_add_u32 v6, s{S_T0}, v7")
    a(f"s_lshl_b32 s{S_T1}, s{S_PCG}, 9")
    a(f"v_lshl_add_u32 v10, v6, 4, s{S_T1}")
    a(f"s_movk_i32 s{S_4096}, 0x1000")
    a(f"s_mov_b32 s{S_KV0}, 0x8000")
    a(f"s_lshl_b32 s{S_T3}, s{S_WV}, 10")
    a(f"s_memrealtime s[{S_NON}:{S_NON+1}]")
    a("s_waitcnt lgkmcnt(0)")
    srd(a, R_K, P_K, 0x200000)
    a(f"s_cmp_lg_u32 s{S_WV}, 3")
    a("s_cbranch_scc1 L_nohalo")
    a(f"s_mov_b32 m0, {P1K-1024}")
    a("s_nop 0")
    a(f"buffer_load_dwordx4 v9, s[{R_K}:{R_K+3}], 0 offen lds")
    a.lab("L_nohalo")
    for base, R, P in ((P1K, R_K, None), (P1V, R_V, P_V), (P1U, R_U, P_U)):
        if P is not None:
            srd(a, R, P, 0x200000)
        a(f"s_add_u32 m0, s{S_T3}, {base}")
        a("s_nop 0")
        NT = " nt" if (OPT["nt"] & 1) and (R != R_U or OPT["nt"] & 4) else ""
        a(f"buffer_load_dwordx4 v8, s[{R}:{R+3}], 0 offen{NT} lds")
        a(f"s_add_u32 m0, s{S_T3}, {base+4096}")
        a("s_nop 0")
        a(f"buffer_load_dwordx4 v58, s[{R}:{R+3}], s{S_KV0} offen{NT} lds")
    a(f"global_load_dwordx4 v[48:51], v10, s[{P_SHK}:{P_SHK+1}]")
    stamp(a, 10)
    srd(a, R_DBG, P_DBG, 256)
    a("v_mov_b32 v56, 0")
    a(f"s_or_b32 s{S_T0}, s{S_WV}, s2")
    a(f"s_cmp_lg_u32 s{S_T0}, 0")
    a("s_cbranch_scc1 L_nonon")
    a(f"s_or_b32 s{S_NON}, s{S_NON}, 1")
    a(f"v_mov_b32 v52, s{S_NON}")
    a(f"v_mov_b32 v53, s{S_NON+1}")
    a("s_mov_b64 exec, 1")
    a(f"buffer_store_dwordx2 v[52:53], v56, s[{R_DBG}:{R_DBG+3}], 0 offen{SC}")
    a("s_mov_b64 exec, -1")
    a.lab("L_nonon")
    srd(a, R_WS, P_WS, WS_SIZE)
    a(f"s_mov_b32 s{S_SELLO}, 0x05040100")
    a(f"s_mov_b32 s{S_SELHI}, 0x07060302")
    a(f"s_mov_b32 s{S_KV0}, {hex(WS_KV)}")
    a(f"s_mov_b32 s{S_KV1}, {hex(WS_KV+4096)}")
    a(f"s_lshl_b32 s{S_T0}, s{S_PCG}, 18")
    a(f"s_lshl_b32 s{S_T1}, s{S_PTB}, 7")
    a(f"s_add_u32 s{S_T0}, s{S_T0}, s{S_T1}")
    a(f"v_lshl_add_u32 v10, v6, 13, s{S_T0}")
    a("v_lshl_add_u32 v10, v57, 4, v10")
    a("v_lshrrev_b32 v12, 2, v6")
    a("v_and_b32 v13, 3, v6")
    a("v_xor_b32 v16, v57, v12")
    a("v_lshlrev_b32 v8, 10, v57")
    a("v_lshl_add_u32 v8, v13, 2, v8")
    a(f"v_add_u32 v8, {P1S}, v8")
    a("v_add_u32 v15, 7, v57")
    a("v_and_b32 v15, 7, v15")
    a("v_xor_b32 v15, v15, v12")
    a("v_lshl_add_u32 v9, v15, 4, v8")
    a("v_lshl_add_u32 v8, v16, 4, v8")
    a(f"s_lshl_b32 s{S_T0}, s{S_D0}, 12")
    a(f"v_lshl_add_u32 v11, v0, 4, s{S_T0}")
    a("v_lshlrev_b32 v14, 4, v0")
    a(f"v_add_u32 v15, {XB(2)+480}, v14")
    a("v_and_b32 v19, 7, v1")
    a(f"s_lshl_b32 s{S_T0}, s{S_CG}, 12")
    a(f"s_lshl_b32 s{S_T1}, s{S_WV}, 10")
    a(f"s_add_u32 s{S_T0}, s{S_T0}, s{S_T1}")
    a(f"s_add_u32 s{S_T0}, s{S_T0}, {hex(WS_FLAG)}")
    a(f"v_lshl_add_u32 v19, v19, 7, s{S_T0}")
    a(f"s_lshl_b32 s{S_T0}, s{S_PCG}, 12")
    a(f"s_lshl_b32 s{S_T1}, s{S_PTB}, 7")
    a(f"s_add_u32 s{S_T0}, s{S_T0}, s{S_T1}")
    a(f"s_add_u32 s{S_T0}, s{S_T0}, {hex(WS_FLAG)}")
    if OPT["fullflag"]:
        a(f"v_lshl_add_u32 v18, v1, 3, s{S_T0}")
    else:
        a(f"v_mov_b32 v18, s{S_T0}")
    conv_setup(a)
    a(f"v_mov_b32 v16, {C_SIG}")
    a("v_mov_b32 v17, 1")
    a("s_barrier")
    stamp(a, 1)
    a("s_waitcnt vmcnt(0)")
    a("s_mov_b64 exec, 1")
    a("ds_add_u32 v16, v17 offset:4")
    a("s_mov_b64 exec, -1")
    a(f"buffer_load_dwordx2 v[52:53], v56, s[{R_DBG}:{R_DBG+3}], 0 offen{SC}")
    SP = 60
    a(f"v_lshlrev_b32 v{SP+0}, 16, v48")
    a(f"v_lshlrev_b32 v{SP+1}, 16, v50")
    a(f"v_and_b32 v{SP+2}, s{S_HI}, v48")
    a(f"v_and_b32 v{SP+3}, s{S_HI}, v50")
    a(f"v_lshlrev_b32 v{SP+4}, 16, v49")
    a(f"v_lshlrev_b32 v{SP+5}, 16, v51")
    a(f"v_and_b32 v{SP+6}, s{S_HI}, v49")
    a(f"v_and_b32 v{SP+7}, s{S_HI}, v51")
    a(f"v_mov_b32 v12, {C_P1}")
    lds_spin(a, "L_p1spin", 12, 13, 4)
    stamp(a, 2)
    for j in range(8):
        a(f"ds_read_b32 v{39+j}, v8 offset:{P1U-P1S+j*128}")
    for j in range(3):
        a(f"ds_read_b32 v{20+j}, v9 offset:{(5+j)*128}")
    for base, off in ((23, P1K), (31, P1V)):
        for j in range(8):
            a(f"ds_read_b32 v{base+j}, v8 offset:{off-P1S+j*128}")
    a("s_waitcnt lgkmcnt(15)")
    O2 = 130
    for ch, sel in ((0, S_SELLO), (1, S_SELHI)):
        for j in range(4):
            a(f"v_perm_b32 v{O2+4*ch+j}, v{39+2*j+1}, v{39+2*j}, s{sel}")
        so = "0" if ch == 0 else f"s{S_4096}"
        a(f"buffer_store_dwordx4 {vr(O2+4*ch,4)}, v10, s[{R_WS}:{R_WS+3}], {so} offen{SC}")
    KP = 68
    a("s_waitcnt lgkmcnt(8)")
    for i in range(11):
        unpack2(a, KP + 2 * i, 20 + i)
    ACC = 90
    T = 106
    for r in range(8):
        a(f"v_pk_mul_f32 {vr(ACC+2*r,2)}, {vr(KP+2*r,2)}, {vr(SP+6,2)}")
    for j in (1, 2, 3):
        for r in range(8):
            a(f"v_pk_fma_f32 {vr(ACC+2*r,2)}, {vr(KP+2*(r+j),2)}, {vr(SP+6-2*j,2)}, {vr(ACC+2*r,2)}")
    a("s_waitcnt lgkmcnt(0)")
    for r in range(8):
        unpack2(a, T + 2 * r, 31 + r)
    for r in range(8):
        a(f"v_pk_mul_f32 {vr(ACC+2*r,2)}, {vr(ACC+2*r,2)}, {vr(T+2*r,2)}")
    O = 122
    for ch in range(2):
        for j in range(4):
            a(f"v_cvt_pk_bf16_f32 v{O+4*ch+j}, v{ACC+2*(2*j)+ch}, v{ACC+2*(2*j+1)+ch}")
        so = S_KV0 if ch == 0 else S_KV1
        a(f"buffer_store_dwordx4 {vr(O+4*ch,4)}, v10, s[{R_WS}:{R_WS+3}], s{so} offen{SC}")
    stamp(a, 3)
    nonce_check(a, "d", 52, 56)
    stamp(a, 4)
    a.c("---- signal")
    a("s_mov_b64 exec, 1")
    a("ds_add_rtn_u32 v13, v16, v17")
    a("s_waitcnt lgkmcnt(0)")
    a(f"v_readfirstlane_b32 s{S_T1}, v13")
    a(f"s_cmp_lg_u32 s{S_T1}, 3")
    a("s_cbranch_scc1 L_nosig")
    if OPT["fullflag"]:
        a("s_mov_b64 exec, 0xffff")
    a(f"buffer_store_dwordx2 v[52:53], v18, s[{R_WS}:{R_WS+3}], 0 offen{SC}")
    a.lab("L_nosig")
    a("s_mov_b64 exec, -1")
    a.c("---- wait for this wave's 8 producers")
    a(f"s_mov_b32 s{S_SPIN}, 0")
    a.lab("L_poll")
    a(f"buffer_load_dwordx2 v[40:41], v19, s[{R_WS}:{R_WS+3}], 0 offen{SC}")
    a(f"s_add_u32 s{S_SPIN}, s{S_SPIN}, 1")
    a("s_waitcnt vmcnt(0)")
    a(f"v_cmp_ne_u64 vcc, s[{S_NON}:{S_NON+1}], v[40:41]")
    a(f"s_cmp_ge_u32 s{S_SPIN}, {hex(SPIN_MAX)}")
    a("s_cbranch_scc1 L_poll_done")
    a("s_cmp_eq_u64 vcc, 0")
    a("s_cbranch_scc1 L_poll_done")
    a(f"s_sleep {OPT['pollsleep']}")
    a("s_branch L_poll")
    a.lab("L_poll_done")
    stamp(a, 6)
    a.c("---- phase 2 loads")
    sofs = ["0", f"s{S_4096}", f"s{S_KV0}", f"s{S_KV1}"]
    for q in range(4):
        a(f"buffer_load_dwordx4 {vr(20+4*q,4)}, v11, s[{R_WS}:{R_WS+3}], {sofs[q]} offen{SC}")
    for q in range(4):
        a(f"s_waitcnt vmcnt({3-q})")
        if q < 2:
            a(f"ds_write_b128 v14, {vr(20+4*q,4)} offset:{XB(q)+480}")
        else:
            a(f"ds_write_b128 v15, {vr(20+4*q,4)} offset:{XB(q)-XB(2)}")
    a("s_waitcnt lgkmcnt(0)")
    stamp(a, 7)
    if OPT["dprio"]:
        a("s_setprio 0")
    a("s_barrier")
    stamp(a, 8)
    if OPT["exp"]:
        a(f"s_cmp_lt_u32 s{S_WV}, 2")
        a("s_cbranch_scc1 L_convA")
    conv_main(a)
    if OPT["stamp"]:
        stamp(a, 9)
        stamp_out(a)
    a("s_endpgm")
    if OPT["exp"]:
        a.lab("L_convA")
        conv_main(a, OPT["exp"])
        if OPT["stamp"]:
            stamp(a, 9)
            stamp_out(a)
        a("s_endpgm")


def conv_setup(a):
    a.c("conv address setup, q = wave")
    a(f"s_mul_i32 s{S_T0}, s{S_WV}, {CONV}")
    a("v_and_b32 v12, 15, v1")
    a("v_lshrrev_b32 v13, 4, v1")
    a("v_and_b32 v16, 3, v12")
    a("v_lshrrev_b32 v17, 2, v12")
    a(f"v_mul_u32_u24 v2, {KSTR}, v16")
    a("v_lshl_add_u32 v2, v13, 4, v2")
    a("v_lshlrev_b32 v17, 3, v17")
    a("v_sub_u32 v2, v2, v17")
    a(f"s_add_u32 s{S_T1}, s{S_T0}, {KR(0,0)+24}")
    a(f"v_add_u32 v2, s{S_T1}, v2")
    a("v_lshlrev_b32 v3, 4, v13")
    a("v_lshl_add_u32 v3, v12, 5, v3")
    a(f"s_add_u32 s{S_T1}, s{S_T0}, {XB(0)}")
    a(f"v_add_u32 v3, s{S_T1}, v3")
    a("v_mul_u32_u24 v4, 40, v12")
    a("v_lshl_add_u32 v4, v13, 3, v4")
    a(f"s_mul_i32 s{S_T1}, s{S_WV}, {YSZ}")
    a(f"s_add_u32 s{S_T1}, s{S_T1}, {YS}")
    a(f"v_add_u32 v4, s{S_T1}, v4")
    a(f"s_lshl_b32 s{S_T1}, s{S_WV}, 2")
    a(f"s_add_u32 s{S_T1}, s{S_T1}, {C_Y}")
    a(f"v_mov_b32 v5, s{S_T1}")


def conv_main(a, emax=99):
    ACC = 6
    BUF = [38, 102]
    grp = groups()
    steps = []
    if OPT["plan"]:
        for part in OPT["plan"].split(","):
            tl, rr = part.split(":")
            tl = [int(c) for c in tl]
            r0, r1 = [int(x) for x in rr.split("-")]
            per = 2 if max(tl) <= 3 else 1
            for r in range(r0, r1 + 1, per):
                steps.append((tl, list(range(r, r + per))))
    else:
        for g in grp:
            per = 2 if max(g) <= 3 else 1
            for r0 in range(0, 8, per):
                steps.append((g, list(range(r0, r0 + per))))
    last = {}
    cov = {t: set() for t in range(8)}
    for si, (tl, rs) in enumerate(steps):
        for t in tl:
            assert not (cov[t] & set(rs))
            cov[t] |= set(rs)
        for gi, g in enumerate(grp):
            if gi not in last and all(len(cov[t]) == 8 for t in g):
                last[gi] = si
    assert len(last) == len(grp)

    def step_plan(si):
        g, rs = steps[si]
        nfr = max(g) + 1
        b = BUF[si & 1]
        loads, mf = [], []
        for k, r in enumerate(rs):
            fb = b + 16 * k if len(rs) > 1 else b
            gb = b + 32 + (16 * k if len(rs) > 1 else 0)
            pairs = [(e1, tau - e1, tau) for tau in g for e1 in range(tau + 1) if e1 < emax]
            pairs.sort(key=lambda p: (max(p[0], p[1]), p[2]))
            for i in range(nfr):
                if any(p[1] == i for p in pairs):
                    loads.append((("G", k, i), f"ds_read_b128 {vr(gb+4*i,4)}, v3 offset:{512*i+64*r}"))
                if i >= emax:
                    continue
                loads.append((("F", k, i, 0), f"ds_read_b64 {vr(fb+4*i,2)}, v2 offset:{512*(7-i)+64*r}"))
                loads.append((("F", k, i), f"ds_read_b64 {vr(fb+4*i+2,2)}, v2 offset:{512*(7-i)+64*r+8}"))
            for (e1, c1, tau) in pairs:
                mf.append((tau, ("F", k, e1), ("G", k, c1), fb + 4 * e1, gb + 4 * c1))
        return loads, mf

    plans = [step_plan(si) for si in range(len(steps))]
    seq = [0]
    done = [0]
    when = {}

    def lds(s, key=None):
        a(s)
        if key is not None:
            when[key] = seq[0]
        seq[0] += 1

    def need(idx):
        if idx < done[0]:
            return
        n = min(seq[0] - idx - 1, OPT["wslack"] if seq[0] > 30 else 15)
        a(f"s_waitcnt lgkmcnt({n})")
        a("s_nop 0")
        done[0] = seq[0] - n

    a(".p2align 3")
    for key, s in plans[0][0]:
        lds(s, (0,) + key)
    started = set()
    mark = [0]
    pending = []
    for si in range(len(steps)):
        loads, mf = plans[si]
        nl = list(plans[si + 1][0]) if si + 1 < len(steps) else []
        nm = len(mf)
        slots = max(1, nm * OPT["frac"] // 100)
        ntot = len(nl)
        for i, (tau, fk, gk, fr, gr) in enumerate(mf):
            need(max(when[(si,) + fk], when[(si,) + gk]))
            c = vr(ACC + 4 * tau, 4) if tau in started else "0"
            started.add(tau)
            a(f"v_mfma_f32_16x16x32_bf16 {vr(ACC+4*tau,4)}, {vr(fr,4)}, {vr(gr,4)}, {c}")
            if pending and len(a.l) - mark[0] >= 9:
                for _ in range(2):
                    if pending:
                        op = pending.pop(0)
                        if op.startswith("ds_"):
                            lds(op)
                        else:
                            a(op)
            want = min(ntot, -(-ntot * (i + 1) // slots))
            while ntot - len(nl) < want:
                key, s = nl.pop(0)
                lds(s, (si + 1,) + key)
        assert not nl
        for gi in [g_ for g_, l_ in last.items() if l_ == si]:
            assert not pending
            mark[0] = len(a.l)
            for tau in grp[gi]:
                c = ACC + 4 * tau
                pending.append(f"v_cvt_pk_bf16_f32 v{c}, v{c}, v{c+1}")
                pending.append(f"v_cvt_pk_bf16_f32 v{c+1}, v{c+2}, v{c+3}")
                pending.append(f"ds_write_b64 v4, {vr(c,2)} offset:{640*tau}")
            pending.append(f"ds_write_b32 v5, v5 offset:{16*gi}")
    a("s_nop 7")
    for op in pending:
        a(op)


XA = 154


def expansion_addr(a, g):
    a.c("expansion addresses")
    a(f"s_lshr_b32 s{S_KC}, s{S_W4}, 1")
    a(f"s_and_b32 s{S_HM}, s{S_W4}, 1")
    a(f"s_lshl_b32 s{S_T0}, s{S_HM}, 7")
    a(f"s_add_u32 s{S_T0}, s{S_T0}, {64*g}")
    a(f"v_add_u32 v12, s{S_T0}, v1")
    a(f"s_mul_i32 s{S_T1}, s{S_KC}, {KCSZ}")
    a(f"s_add_u32 s{S_T1}, s{S_T1}, {KC}")
    a(f"s_sub_u32 s{S_T3}, s{S_T1}, {IDXBIAS}")
    a(f"s_mul_i32 s{S_T2}, s{S_KC}, {CONV}")
    a(f"s_add_u32 s{S_T2}, s{S_T2}, {KR(0,0)-4}")
    a("v_lshlrev_b32 v11, 3, v12")
    a("v_sub_u32 v11, 2047, v11")
    a("v_cvt_f32_u32 v8, v11")
    if g == 1:
        a("v_cmp_gt_u32 vcc, 0x100, v11")
        a(f"v_lshl_add_u32 v10, v11, 3, s{S_T1}")
    for k in range(9):
        d = XA + k
        if k == 0:
            a(f"v_cvt_pk_bf16_f32 v{d}, 0, v8")
        else:
            lit = {1: "-1.0", 2: "-2.0", 4: "-4.0"}.get(k, hex(f2u(-float(k))))
            a(f"v_add_f32 v9, {lit}, v8")
            a(f"v_cvt_pk_bf16_f32 v{d}, 0, v9")
        a(f"v_lshrrev_b32 v{d}, 13, v{d}")
        a(f"v_add_u32 v{d}, s{S_T3}, v{d}")
        if g == 1:
            a(f"v_subrev_u32 v9, {8*k}, v10")
            a(f"v_cndmask_b32 v{d}, v{d}, v9, vcc")
    a(f"v_lshl_add_u32 v163, v12, 4, s{S_T2}")
    if g == 1:
        a("v_cmp_eq_u32 vcc, 0xff, v12")
        a(f"s_add_u32 s{S_T0}, s{S_T1}, {768*8}")
        a(f"v_mov_b32 v9, s{S_T0}")
        a(f"v_cndmask_b32 v{XA+8}, v{XA+8}, v9, vcc")
    a(f"s_lshl_b32 s{S_T0}, s{S_KC}, 2")
    a(f"s_add_u32 s{S_T0}, s{S_T0}, {C_KG}")
    a(f"v_mov_b32 v164, s{S_T0}")


def expansion(a, tag):
    lds_spin(a, f"L_kspin_{tag}", 164, 8, 2, sleep=(1 if tag == "a" else 0))
    stamp(a, 8)
    a.c("expansion")
    B = 100
    for k in range(9):
        a(f"ds_read_b64 {vr(B+2*k,2)}, v{XA+k}")
    a("s_waitcnt lgkmcnt(0)")
    for k in range(9):
        a(f"v_add_f32 v{B+2*k}, v{B+2*k}, v{B+2*k+1}")
    P3, P2 = 120, 124
    for j in range(4):
        b = B + 4 * j
        a(f"v_cvt_pk_bf16_f32 v{P3+j}, v{b}, v{b+2}")
        a(f"v_cvt_pk_bf16_f32 v{P2+j}, v{b+2}, v{b+4}")
    k_copies(a, 163, P3, P2)


def kgen_waves(a):
    a.c("==== K generation waves")
    a(f"s_lshr_b32 s{S_KC}, s{S_W4}, 1")
    a(f"s_and_b32 s{S_HM}, s{S_W4}, 1")
    a(f"s_add_u32 s{S_T1}, s{S_D0}, s{S_KC}")
    a(f"s_lshl_b32 s{S_T3}, s{S_T1}, 1")
    a(f"v_mov_b32 v8, s{S_T3}")
    a(f"s_lshl_b32 s{S_T1}, s{S_T1}, 8")
    a(f"s_lshl_b32 s{S_T2}, s{S_HM}, 7")
    a(f"s_add_u32 s{S_T1}, s{S_T1}, s{S_T2}")
    a(f"v_lshl_add_u32 v2, v1, 1, s{S_T1}")
    a("s_waitcnt lgkmcnt(0)")
    a(f"global_load_ushort v7, v8, s[{P_LDT}:{P_LDT+1}]")
    a(f"global_load_ushort v3, v2, s[{P_LAR}:{P_LAR+1}]" + (" nt" if OPT["nt"] & 16 else ""))
    a(f"global_load_ushort v4, v2, s[{P_AIM}:{P_AIM+1}]" + (" nt" if OPT["nt"] & 16 else ""))
    a(f"global_load_ushort v5, v2, s[{P_CR}:{P_CR+1}]" + (" nt" if OPT["nt"] & 16 else ""))
    a(f"global_load_ushort v6, v2, s[{P_CI}:{P_CI+1}]" + (" nt" if OPT["nt"] & 16 else ""))
    if OPT["stamp"]:
        srd(a, R_WS, P_WS, WS_SIZE)
    expansion_addr(a, 0)
    TBW, TBR, KA0, KA1, KA2 = 16, 17, 18, 19, 49
    a(f"s_mul_i32 s{S_T0}, s{S_W4}, {TBLSZ}")
    a(f"s_add_u32 s{S_T0}, s{S_T0}, {TBL}")
    a(f"v_lshl_add_u32 v{TBW}, v1, 2, s{S_T0}")
    a("v_and_b32 v13, 15, v1")
    a("v_lshrrev_b32 v8, 4, v1")
    a(f"v_mul_u32_u24 v{TBR}, 288, v13")
    a(f"v_lshl_add_u32 v{TBR}, v8, 4, v{TBR}")
    a(f"v_add_u32 v{TBR}, s{S_T0}, v{TBR}")
    a(f"s_lshl_b32 s{S_T0}, s{S_HM}, 2")
    a(f"s_add_u32 s{S_T1}, s{S_T1}, s{S_T0}")
    a("v_lshrrev_b32 v9, 1, v8")
    a("v_and_b32 v10, 1, v8")
    a(f"v_lshlrev_b32 v{KA0}, 7, v9")
    a(f"v_lshl_add_u32 v{KA0}, v10, 2, v{KA0}")
    a(f"v_lshl_add_u32 v{KA0}, v13, 3, v{KA0}")
    a(f"v_lshl_add_u32 v{KA0}, v{KA0}, 3, s{S_T1}")
    a("v_lshlrev_b32 v11, 1, v10")
    a("v_lshl_add_u32 v11, v13, 2, v11")
    a("v_add_u32 v11, 0x100, v11")
    a("v_lshlrev_b32 v12, 5, v10")
    a("v_lshl_add_u32 v12, v13, 1, v12")
    a("v_cmp_eq_u32 vcc, 0, v9")
    a("v_add_u32 v12, 0x180, v12")
    a(f"v_lshl_add_u32 v{KA2}, v8, 6, v13")
    a(f"v_cndmask_b32 v{KA1}, v12, v11, vcc")
    a(f"v_lshl_add_u32 v{KA1}, v{KA1}, 3, s{S_T1}")
    a(f"v_add_u32 v{KA2}, 0x200, v{KA2}")
    a(f"v_lshl_add_u32 v{KA2}, v{KA2}, 3, s{S_T1}")
    a("s_barrier")
    stamp(a, 2)
    a.c("parameters")
    a("s_waitcnt vmcnt(0)")
    stamp(a, 4)
    a("v_lshlrev_b32 v8, 16, v7")
    a("v_lshlrev_b32 v9, 16, v3")
    a(f"s_mov_b32 s{S_T1}, {hex(L2E)}")
    a(f"s_mov_b32 s{S_T2}, {hex(L2E_LO)}")
    for x, p, e in ((8, 10, 12), (9, 11, 13)):
        a(f"v_mul_f32 v{p}, s{S_T1}, v{x}")
        a(f"v_fma_f32 v{e}, v{x}, s{S_T1}, -v{p}")
        a(f"v_fma_f32 v{e}, v{x}, s{S_T2}, v{e}")
        a(f"v_exp_f32 v{p}, v{p}")
        a(f"v_mul_f32 v{e}, {hex(LN2)}, v{e}")
    a("v_lshlrev_b32 v4, 16, v4")
    for x, p, e in ((8, 10, 12), (9, 11, 13)):
        a(f"v_fma_f32 v{p}, v{p}, v{e}, v{p}")
        rnd(a, p, p)
    a("v_mul_f32 v11, v11, v10")
    a(f"v_mul_f32 v11, {hex(L2E | 0x80000000)}, v11")
    a("v_mul_f32 v4, v4, v10")
    a("v_mul_f32 v12, 0.15915494, v4")
    a("v_add_f32 v10, v10, v10")
    a("v_lshlrev_b32 v5, 16, v5")
    a("v_lshlrev_b32 v6, 16, v6")
    a("v_mul_f32 v14, v5, v10")
    a("v_mul_f32 v15, v6, v10")
    a("v_max_f32 v13, |v14|, |v15|")
    E = lambda j: 20 + 2 * j
    tmp = {0: (50, 51), 3: (52, 53), 7: (54, 55)}
    dpps = [f"v_max_u32_dpp v13, v13, v13 {d} bank_mask:0xf" for d in
            ("quad_perm:[1,0,3,2] row_mask:0xf", "quad_perm:[2,3,0,1] row_mask:0xf", "row_half_mirror row_mask:0xf",
             "row_mirror row_mask:0xf", "row_bcast:15 row_mask:0xa", "row_bcast:31 row_mask:0xc")]
    anc = []
    for j, (m, f) in tmp.items():
        if j == 0:
            anc += [f"v_exp_f32 v{m}, v11", f"v_fract_f32 v{f}, v12"]
        else:
            anc += [f"v_mul_f32 v{m}, {hex(f2u(2.0**j))}, v11", f"v_mul_f32 v{f}, {hex(f2u(2.0**j))}, v12",
                    f"v_exp_f32 v{m}, v{m}", f"v_fract_f32 v{f}, v{f}"]
    for j, (m, f) in tmp.items():
        anc += [f"v_cos_f32 v{E(j)}, v{f}", f"v_sin_f32 v{E(j)+1}, v{f}"]
    a.c("anchors")
    k = 0
    for d in dpps:
        a(anc[k]); a(anc[k + 1]); k += 2
        a(d)
    for o in anc[k:]:
        a(o)
    a(f"v_readlane_b32 s{S_T0}, v13, 63")
    for j, (m, f) in tmp.items():
        a(f"v_mul_f32 v{E(j)}, v{E(j)}, v{m}")
        a(f"v_mul_f32 v{E(j)+1}, v{E(j)+1}, v{m}")
    a(f"s_lshr_b32 s{S_T0}, s{S_T0}, 23")
    a(f"s_max_u32 s{S_T0}, s{S_T0}, 16")
    a(f"s_sub_u32 s{S_SC}, 264, s{S_T0}")
    a(f"s_lshl_b32 s{S_SC}, s{S_SC}, 23")
    a(f"s_sub_u32 s{S_ISC}, s{S_T0}, 10")
    a(f"s_lshl_b32 s{S_ISC}, s{S_ISC}, 23")
    interleave(a, [sum([cmul_ops(E(j), E(j - 1), E(j - 1)) for j in js], []) for js in ((4, 5, 6), (8, 9, 10, 11), (1, 2))])
    a.c("Y tile")
    tcount = [0]

    def put_ops(row, x, neg):
        t = 44 + (tcount[0] % 4)
        tcount[0] += 1
        return [f"v_cvt_pk_f16_f32 v{t}, v{x}, {'-' if neg else ''}v{x+1}",
                f"ds_write_b32 v{TBW}, v{t} offset:{288*row}"]

    def run_items(items):
        for i in range(0, len(items), 2):
            ch = []
            for (d, x, y, row, neg) in items[i:i + 2]:
                ops = [] if x is None else cmul_ops(d, x, y)
                if row is not None:
                    ops += put_ops(row, d, neg)
                ch.append(ops)
            interleave(a, ch)

    CT = 98
    Y = {1: E(3), 2: E(4), 4: E(5), 8: E(6), 3: 56, 5: 58, 6: 60, 7: 62}
    a("v_mov_b32 v48, 0x3c00")
    a(f"ds_write_b32 v{TBW}, v48")
    items = [(Y[3], Y[2], Y[1], 3, True), (Y[1], None, None, 1, True),
             (Y[5], Y[4], Y[1], 5, True), (Y[2], None, None, 2, True),
             (Y[6], Y[4], Y[2], 6, True), (Y[4], None, None, 4, True),
             (Y[7], Y[4], Y[3], 7, True), (Y[8], None, None, 8, True)]
    for b in range(9, 16):
        items.append((CT + 2 * (b % 4), Y[8], Y[b - 8], b, True))
    run_items(items)
    YF = 106
    for s in range(4):
        a(f"ds_read_b128 {vr(YF+4*s,4)}, v{TBR} offset:{64*s}")
    a.c("Z, W")
    Z = {1: E(0), 2: E(1), 4: E(2), 3: 56, 5: 58, 6: 60, 7: 62}
    W = {h: 64 + 2 * h for h in range(17)}
    a(f"v_mul_f32 v{W[0]}, s{S_SC}, v14")
    a(f"v_mul_f32 v{W[0]+1}, s{S_SC}, v15")
    run_items([(Z[3], Z[2], Z[1], None, 0), (W[1], W[0], E(7), None, 0),
               (Z[5], Z[4], Z[1], None, 0), (Z[6], Z[4], Z[2], None, 0),
               (Z[7], Z[4], Z[3], None, 0), (W[2], W[0], E(8), None, 0)])
    stamp(a, 6)
    XFT = [122, 138, 20]
    ACC = 36

    def rd(t):
        for s in range(4):
            a(f"ds_read_b128 {vr(XFT[t]+4*s,4)}, v{TBR} offset:{64*s}")

    def mm(t):
        for s in range(4):
            c = "0" if s == 0 else vr(ACC + 4 * t, 4)
            a(f"v_mfma_f32_16x16x32_f16 {vr(ACC+4*t,4)}, {vr(XFT[t]+4*s,4)}, {vr(YF+4*s,4)}, {c}")

    a.c("X tile 0")
    items = [(W[0], None, None, 0, False), (W[1], None, None, 8, False)]
    k = 0
    for r in range(1, 8):
        for h in (0, 1):
            items.append((CT + 2 * (k % 4), W[h], Z[r], 8 * h + r, False)); k += 1
    run_items(items)
    rd(0)
    run_items([(W[3], W[1], E(8), None, 0)] + [(W[h], W[h - 4], E(9), None, 0) for h in (4, 5, 6)] + [(W[7], W[3], E(9), None, 0)])
    a.c("X tile 1")
    items = []
    for G in range(4):
        for r in range(4):
            if G < 2:
                h = 2 + (r >> 1); zr = 2 * (2 * G + (r & 1))
            else:
                h = 4 + 2 * (r >> 1) + (G - 2); zr = 4 * (r & 1)
            if zr == 0:
                items.append((W[h], None, None, 4 * G + r, False))
            else:
                items.append((CT + 2 * (k % 4), W[h], Z[zr], 4 * G + r, False)); k += 1
    run_items(items)
    rd(1)
    a.c("X tile 2")
    run_items([(W[h], W[h - 8], E(10), h - 8, False) for h in range(8, 16)] + [(W[16], W[0], E(11), 8, False)])
    rd(2)
    a("s_waitcnt lgkmcnt(4)")
    mm(0)
    mm(1)
    a("s_waitcnt lgkmcnt(0)")
    mm(2)
    a("v_mov_b32 v8, 1")
    a("s_nop 2")
    for t in (0, 1):
        for r in range(4):
            a(f"v_mul_f32 v{ACC+4*t+r}, s{S_ISC}, v{ACC+4*t+r}")
    for t, offs, ad in ((0, (0, 8, 16, 24), KA0), (1, (0, 8, 512, 520), KA1)):
        for r in range(4):
            a(f"ds_write_b32 v{ad}, v{ACC+4*t+r} offset:{offs[r]}")
    for r in range(4):
        a(f"v_mul_f32 v{ACC+8+r}, s{S_ISC}, v{ACC+8+r}")
    for r in range(4):
        a(f"ds_write_b32 v{KA2}, v{ACC+8+r} offset:{128*r}")
    a("s_mov_b64 exec, 1")
    a("ds_add_u32 v164, v8")
    a("s_mov_b64 exec, -1")
    stamp(a, 7)
    expansion(a, "k")
    a("s_waitcnt lgkmcnt(0)")
    stamp(a, 9)
    a("s_barrier")
    stamp_out(a)
    a("s_endpgm")


def gate_compute(a, XR, WR, T):
    Wp = T
    X0 = T + 8
    for j in range(4):
        unpack2(a, Wp + 2 * j, WR + j)
    for row in range(2):
        X = X0 + 8 * row
        for j in range(4):
            unpack2(a, X + 2 * j, XR + 4 * row + j)
    for row in range(2):
        X = X0 + 8 * row
        for j in range(4):
            a(f"v_pk_mul_f32 {vr(X+2*j,2)}, {vr(X+2*j,2)}, {vr(Wp+2*j,2)}")
    for row in range(2):
        X = X0 + 8 * row
        for j in range(8):
            rnd(a, X + j, X + j)
    for row in range(2):
        X = X0 + 8 * row
        a(f"v_pk_add_f32 {vr(X,2)}, {vr(X,2)}, {vr(X+2,2)}")
        a(f"v_pk_add_f32 {vr(X+4,2)}, {vr(X+4,2)}, {vr(X+6,2)}")
    for row in range(2):
        X = X0 + 8 * row
        a(f"v_pk_add_f32 {vr(X,2)}, {vr(X,2)}, {vr(X+4,2)}")
    A0, A1 = X0, X0 + 8
    a(f"v_add_f32 v{A0}, v{A0}, v{A0+1}")
    a(f"v_add_f32 v{A1}, v{A1}, v{A1+1}")
    a("s_nop 0")
    for d in ("quad_perm:[1,0,3,2]", "quad_perm:[2,3,0,1]", "row_half_mirror", "row_mirror",
              "row_bcast:15 row_mask:0xa", "row_bcast:31 row_mask:0xc"):
        m = "" if "row_mask" in d else " row_mask:0xf"
        a(f"v_add_f32_dpp v{A0}, v{A0}, v{A0} {d}{m} bank_mask:0xf")
        a(f"v_add_f32_dpp v{A1}, v{A1}, v{A1} {d}{m} bank_mask:0xf")
        a("s_nop 0")
    for x in (A0, A1):
        rnd(a, x, x)
    for x in (A0, A1):
        a(f"v_mul_f32 v{x}, {hex(L2E | 0x80000000)}, v{x}")
    for x in (A0, A1):
        a(f"v_exp_f32 v{x}, v{x}")
    a("s_nop 0")
    for x in (A0, A1):
        a(f"v_add_f32 v{x}, 1.0, v{x}")
    for x in (A0, A1):
        a(f"v_rcp_f32 v{x}, v{x}")
    a("s_nop 0")
    for x in (A0, A1):
        rnd(a, x, x)
    for x in (A0, A1):
        a(f"v_sub_f32 v{x+1}, 1.0, v{x}")
    a(f"v_cvt_pk_bf16_f32 v{T}, v{A0}, v{A0+1}")
    a(f"v_mov_b32 v{T+1}, s{S_NON}")
    a(f"v_cvt_pk_bf16_f32 v{T+2}, v{A1}, v{A1+1}")
    a(f"v_mov_b32 v{T+3}, s{S_NON}")


def aux_waves(a):
    grp = groups()
    a.c("==== aux waves; v0 = thread index 0..255")
    a.c("zero init of LDS pads")
    for i in range(4):
        a(f"v_mov_b32 v{8+i}, 0")
    a("v_lshrrev_b32 v12, 5, v0")
    a(f"v_mul_u32_u24 v12, {CONV}, v12")
    a("v_and_b32 v13, 31, v0")
    a("v_min_u32 v13, 29, v13")
    a("v_lshl_add_u32 v12, v13, 4, v12")
    a(f"v_add_u32 v12, {XB(0)}, v12")
    a("v_bfe_u32 v13, v0, 4, 2")
    a(f"v_mul_u32_u24 v13, {CONV}, v13")
    a("v_bfe_u32 v14, v0, 2, 2")
    a(f"v_mul_u32_u24 v14, {KSTR}, v14")
    a("v_and_b32 v15, 3, v0")
    a("v_min_u32 v15, 2, v15")
    a("v_lshl_add_u32 v14, v15, 4, v14")
    a("v_add_u32 v13, v13, v14")
    a(f"v_add_u32 v13, {KR(0,0)+4080}, v13")
    a("v_cmp_gt_u32 vcc, 0x80, v0")
    a("v_and_b32 v14, 15, v0")
    a("v_lshlrev_b32 v14, 4, v14")
    a("v_cndmask_b32 v12, v13, v12, vcc")
    a(f"v_add_u32 v14, {CNT}, v14")
    a("v_cmp_gt_u32 vcc, 0xc0, v0")
    a("v_and_b32 v15, 1, v0")
    a(f"v_mul_u32_u24 v15, {KCSZ}, v15")
    a("v_cndmask_b32 v12, v14, v12, vcc")
    a(f"v_add_u32 v15, {KC+768*8}, v15")
    a("v_cmp_gt_u32 vcc, 0xd0, v0")
    a("s_nop 1")
    a("v_cndmask_b32 v12, v15, v12, vcc")
    a("ds_write_b128 v12, v[8:11]")
    a("s_waitcnt lgkmcnt(0)")
    a("s_barrier")
    stamp(a, 1)
    srd(a, R_WS, P_WS, WS_SIZE)
    srd(a, R_DBG, P_DBG, 256)
    srd(a, R_OUT, P_OUT, 0x200000)
    expansion_addr(a, 1)
    a(f"s_lshl_b32 s{S_T0}, s{S_D0}, 12")
    a(f"v_lshl_add_u32 v2, v0, 4, s{S_T0}")
    a("v_add_u32 v3, 0x1000, v2")
    a("v_subrev_u32 v4, 4, v2")
    a(f"v_max_i32 v4, s{S_T0}, v4")
    a(f"s_lshl_b32 s{S_T1}, s{S_GB}, 13")
    a(f"s_lshl_b32 s{S_T2}, s{S_W4}, 11")
    a(f"s_add_u32 s{S_T1}, s{S_T1}, s{S_T2}")
    a("v_lshlrev_b32 v6, 4, v1")
    a(f"v_add_u32 v5, s{S_T1}, v6")
    a(f"s_lshl_b32 s{S_T0}, s{S_W4}, 4")
    a(f"s_lshl_b32 s{S_T1}, s{S_GB}, 6")
    a(f"s_add_u32 s{S_T0}, s{S_T0}, s{S_T1}")
    a(f"s_add_u32 s{S_T0}, s{S_T0}, {hex(WS_G)}")
    a(f"v_mov_b32 v7, s{S_T0}")
    a("v_mov_b32 v56, 0")
    a(f"s_lshl_b32 s{S_T3}, s{S_D0}, 1")
    EA = {}
    for gi, g in enumerate(grp):
        n = len(g); R0 = 256 * g[0]
        sh = {2: 1, 4: 2}[n]
        GO, XA1, XA2, YA_, OO = 140 + gi, 143 + gi, 146 + gi, 149 + gi, 13 + gi
        if gi == 2:
            YA_ = 152
        EA[gi] = (GO, XA1, XA2, YA_, OO)
        a(f"v_lshlrev_b32 v8, {sh}, v0")
        a(f"v_add_u32 v8, {R0}, v8")
        a(f"v_lshlrev_b32 v{GO}, 3, v8")
        a(f"v_lshlrev_b32 v{XA1}, 1, v8")
        a(f"v_add_u32 v{XA2}, {XB(2)+480}, v{XA1}")
        a("v_lshrrev_b32 v9, 4, v8")
        a(f"v_lshl_add_u32 v9, v9, 3, v{XA1}")
        a(f"v_add_u32 v{YA_}, {YS}, v9")
        a(f"v_lshl_add_u32 v{OO}, v8, 10, s{S_T3}")
    if OPT["tw"]:
        a(f"s_cmp_lg_u32 s{S_W4}, 0")
        a("s_cbranch_scc1 L_notw")
        a("s_mov_b64 exec, 1")
        a(f"s_lshl_b32 s{S_T0}, s{S_PCG}, 18")
        a(f"s_lshl_b32 s{S_T1}, s{S_PTB}, 7")
        a(f"s_add_u32 s{S_T0}, s{S_T0}, s{S_T1}")
        a(f"v_mov_b32 v8, s{S_T0}")
        a(f"s_mov_b32 s{S_T2}, {hex(WS_KV)}")
        a(f"buffer_load_dword v60, v8, s[{R_WS}:{R_WS+3}], 0 offen nt")
        a(f"buffer_load_dword v61, v8, s[{R_WS}:{R_WS+3}], s{S_T2} offen nt")
        a(f"s_lshl_b32 s{S_T0}, s{S_PCG}, 12")
        a(f"s_add_u32 s{S_T0}, s{S_T0}, s{S_T1}")
        a(f"s_add_u32 s{S_T0}, s{S_T0}, {hex(WS_FLAG)}")
        a(f"v_mov_b32 v8, s{S_T0}")
        a(f"buffer_load_dword v62, v8, s[{R_WS}:{R_WS+3}], 0 offen nt")
        a(f"s_lshl_b32 s{S_T0}, s2, 13")
        a(f"v_mov_b32 v8, s{S_T0}")
        a(f"buffer_load_dword v63, v8, s[{R_OUT}:{R_OUT+3}], 0 offen nt")
        a(f"global_load_dword v64, v2, s[{P_SSMK}:{P_SSMK+1}]")
        a(f"global_load_dword v65, v6, s[{P_GW}:{P_GW+1}]")
        a("s_mov_b64 exec, -1")
        a.lab("L_notw")
    a(f"s_load_dword s{S_RAWDS}, s[{P_DSK}:{P_DSK+1}], s{S_T3}")
    a(f"s_load_dword s{S_RAWDM}, s[{P_SSMD}:{P_SSMD+1}], s{S_T3}")
    def ssmk_loads():
        NT = " nt" if OPT["nt"] & 2 else ""
        a(f"global_load_dwordx4 v[68:71], v2, s[{P_SSMK}:{P_SSMK+1}]{NT}")
        a(f"global_load_dwordx4 v[74:77], v3, s[{P_SSMK}:{P_SSMK+1}]{NT}")
        a(f"global_load_dword v67, v4, s[{P_SSMK}:{P_SSMK+1}]{NT}")
        a(f"global_load_dword v73, v3, s[{P_SSMK}:{P_SSMK+1}] offset:-4{NT}")

    def gate_loads():
        NT = " nt" if OPT["nt"] & 8 else ""
        a(f"global_load_dwordx4 v[80:83], v5, s[{P_U}:{P_U+1}]{NT}")
        a(f"global_load_dwordx4 v[84:87], v5, s[{P_U}:{P_U+1}] offset:1024{NT}")
        a(f"global_load_dwordx4 v[88:91], v6, s[{P_GW}:{P_GW+1}]")
        a(f"buffer_load_dwordx2 v[52:53], v56, s[{R_DBG}:{R_DBG+3}], 0 offen{SC}")

    def ssmk_copies():
        a.c("---- ssm_k -> LDS (reversed, 4 copies)")
        a("v_cmp_eq_u32 vcc, 0, v0")
        a("s_nop 1")
        for ch in range(2):
            q = 2 + ch
            L = 68 + 6 * ch
            P3, P2 = 20 + 8 * ch, 24 + 8 * ch
            a(f"v_cndmask_b32 v{L-1}, v{L-1}, 0, vcc")
            for d in range(4):
                a(f"v_alignbit_b32 v{P3+d}, v{L+3-d}, v{L+3-d}, 16")
                a(f"v_bfi_b32 v{P2+d}, s{S_LO}, v{L+3-d}, v{L+2-d}")
            a(f"v_add_u32 v{36+ch}, {KR(q,0)}, v9")
            k_copies(a, 36 + ch, P3, P2)

    def gate_part():
        nonce_check(a, "a", 52, 56)
        a.c("---- gate")
        gate_compute(a, 80, 88, 100)
        a("s_mov_b32 exec_lo, 0")
        a("s_mov_b32 exec_hi, 0x80000000")
        a(f"buffer_store_dwordx4 v[100:103], v7, s[{R_WS}:{R_WS+3}], 0 offen{SC}")
        a("s_mov_b64 exec, -1")

    a("v_lshlrev_b32 v9, 4, v0")
    a("v_sub_u32 v9, 4076, v9")
    M = OPT["auxmode"]
    if M in (1, 2, 3, 4):
        ssmk_loads()
    if M == 1:
        gate_loads()
    if M in (0, 2, 5, 6):
        a(f"v_mov_b32 v12, {C_P1 if M in (0, 2) else C_SIG}")
        lds_spin(a, "L_aspin", 12, 8, 4 if M != 6 else 1, sleep=2)
        stamp(a, 2)
        gate_loads()
        if M != 2:
            ssmk_loads()
    a("s_waitcnt lgkmcnt(0)")
    a(f"s_lshl_b32 s{S_DS}, s{S_RAWDS}, 16")
    a(f"s_and_b32 s{S_DS+1}, s{S_RAWDS}, s{S_HI}")
    a(f"s_lshl_b32 s{S_DM}, s{S_RAWDM}, 16")
    a(f"s_and_b32 s{S_DM+1}, s{S_RAWDM}, s{S_HI}")
    if M in (0, 5, 6):
        gate_part()
        stamp(a, 3)
        ssmk_copies()
    elif M in (1, 2):
        a("s_waitcnt vmcnt(4)")
        stamp(a, 3)
        ssmk_copies()
        gate_part()
    elif M == 3:
        a("s_waitcnt vmcnt(0)")
        stamp(a, 3)
        ssmk_copies()
        a(f"v_mov_b32 v12, {C_SIG}")
        lds_spin(a, "L_aspin", 12, 8, 4, sleep=2)
        gate_loads()
        gate_part()
    else:
        a("s_waitcnt vmcnt(0)")
        stamp(a, 3)
        ssmk_copies()
    stamp(a, 4)
    expansion(a, "a")
    a("s_waitcnt lgkmcnt(0)")
    stamp(a, 9)
    GR = 20
    XR = 36

    def gloads():
        pos = 0
        for gi, g in enumerate(grp):
            n = len(g)
            for h in range(n // 2):
                a(f"buffer_load_dwordx4 {vr(GR+2*pos+4*h,4)}, v{EA[gi][0]}, s[{R_WS}:{R_WS+3}], s{S_T2} offen offset:{16*h}{SC}")
            pos += n

    a(f"s_mov_b32 s{S_T2}, {hex(WS_G)}")
    a("s_barrier")
    stamp(a, 10)
    if OPT["hprio"]:
        a(f"s_setprio {OPT['hprio']}")
    if M == 4:
        gate_loads()
        gate_part()
    gloads()
    pos = 0
    for gi, g in enumerate(grp):
        n = len(g)
        lop = {2: "b32", 4: "b64"}[n]
        for q in range(4):
            if q < 2:
                a(f"ds_read_{lop} {vr(XR+4*q+pos//2,n//2)}, v{EA[gi][1]} offset:{XB(q)+480}")
            else:
                a(f"ds_read_{lop} {vr(XR+4*q+pos//2,n//2)}, v{EA[gi][2]} offset:{XB(q)-XB(2)}")
        pos += n
    assert pos == 8
    PR = 52
    a("s_waitcnt lgkmcnt(0)")
    for r in range(8):
        B = PR + 6 * r
        U, UD, UK = B, B + 2, B + 4
        for ch in range(2):
            ext(a, U + ch, XR + 4 * ch + r // 2, r & 1)
            ext(a, UK + ch, XR + 4 * (2 + ch) + r // 2, r & 1)
        for ch in range(2):
            a(f"v_mul_f32 v{UD+ch}, s{S_DS+ch}, v{U+ch}")
            a(f"v_mul_f32 v{UK+ch}, s{S_DM+ch}, v{UK+ch}")
    a(f"s_mov_b32 s{S_SPIN}, 0")
    a("s_branch L_gchk")
    a.lab("L_gpoll")
    a("s_sleep 4")
    gloads()
    a(f"s_add_u32 s{S_SPIN}, s{S_SPIN}, 1")
    a.lab("L_gchk")
    a("s_waitcnt vmcnt(0)")
    a(f"v_xor_b32 v8, s{S_NON}, v{GR+1}")
    for r in range(1, 8):
        a(f"v_xor_b32 v9, s{S_NON}, v{GR+2*r+1}")
        a("v_or_b32 v8, v8, v9")
    a("v_cmp_ne_u32 vcc, 0, v8")
    a(f"s_cmp_ge_u32 s{S_SPIN}, {hex(SPIN_MAX)}")
    a("s_cbranch_scc1 L_gpoll_done")
    a("s_cmp_eq_u64 vcc, 0")
    a("s_cbranch_scc0 L_gpoll")
    a.lab("L_gpoll_done")
    stamp(a, 11)
    for r in range(8):
        B = PR + 6 * r
        U, UD, UK = B, B + 2, B + 4
        G0, G1 = GR + 2 * r, GR + 2 * r + 1
        a(f"v_and_b32 v{G1}, s{S_HI}, v{G0}")
        a(f"v_lshlrev_b32 v{G0}, 16, v{G0}")
        for ch in range(2):
            a(f"v_mul_f32 v{U+ch}, v{U+ch}, v{G1}")
            a(f"v_mul_f32 v{UD+ch}, v{UD+ch}, v{G0}")
        for ch in range(2):
            a(f"v_fmac_f32 v{UD+ch}, v{UK+ch}, v{U+ch}")
    a(f"v_mov_b32 v5, {C_Y}")
    pos = 0
    for gi, g in enumerate(grp):
        n = len(g)
        a(f"s_mov_b32 s{S_SPIN}, 0")
        a.lab(f"L_yspin{gi}")
        a(f"ds_read_b128 v[104:107], v5 offset:{16*gi}")
        a(f"s_add_u32 s{S_SPIN}, s{S_SPIN}, 1")
        a("s_waitcnt lgkmcnt(0)")
        a("v_min_u32 v104, v104, v105")
        a("v_min3_u32 v104, v104, v106, v107")
        a(f"s_cmp_ge_u32 s{S_SPIN}, {hex(SPIN_MAX*8)}")
        a(f"v_readfirstlane_b32 s{S_T0}, v104")
        a(f"s_cbranch_scc1 L_yspin{gi}_done")
        a(f"s_cmp_lg_u32 s{S_T0}, 0")
        a(f"s_cbranch_scc1 L_yspin{gi}_done")
        a("s_sleep 1")
        a(f"s_branch L_yspin{gi}")
        a.lab(f"L_yspin{gi}_done")
        stamp(a, 12 + gi)
        lop = {2: "b32", 4: "b64"}[n]
        YR = 108
        for q in range(4):
            a(f"ds_read_{lop} {vr(YR+2*q,n//2)}, v{EA[gi][3]} offset:{YSZ*q}")
        a("s_waitcnt lgkmcnt(0)")
        for k in range(n):
            r = pos + k
            B = PR + 6 * r
            CB, P = B, B + 2
            G0 = GR + 2 * r
            YA, YB = 116 + 4 * (k & 1), 118 + 4 * (k & 1)
            for ch in range(2):
                ext(a, YA + ch, YR + 2 * ch + k // 2, k & 1)
                ext(a, YB + ch, YR + 2 * (2 + ch) + k // 2, k & 1)
            for ch in range(2):
                a(f"v_fmac_f32 v{P+ch}, v{YA+ch}, v{G0}")
            for ch in range(2):
                a(f"v_fmac_f32 v{P+ch}, v{YB+ch}, v{CB+ch}")
            a(f"v_cvt_pk_bf16_f32 v{P}, v{P}, v{P+1}")
            a(f"buffer_store_dword v{P}, v{EA[gi][4]}, s[{R_OUT}:{R_OUT+3}], 0 offen offset:{1024*k}")
        pos += n
    stamp_out(a)


def kd(name):
    return f""".section .rodata,"a"
.p2align 6
.amdhsa_kernel {name}
  .amdhsa_next_free_vgpr {NV}
  .amdhsa_next_free_sgpr 102
  .amdhsa_accum_offset {NV}
  .amdhsa_group_segment_fixed_size 0
  .amdhsa_kernarg_size 136
  .amdhsa_user_sgpr_count 2
  .amdhsa_user_sgpr_kernarg_segment_ptr 1
  .amdhsa_system_sgpr_workgroup_id_x 1
  .amdhsa_float_denorm_mode_32 3
.end_amdhsa_kernel
"""


def gen():
    out = [f"; @launch grid=(256,1,1) block=(768,1,1) lds={LDS_TOTAL}\n",
           '.amdgcn_target "amdgcn-amd-amdhsa--gfx950"\n.text\n',
           f".globl {NAME}_kernel\n.p2align 8\n.type {NAME}_kernel,@function\n{NAME}_kernel:\n"]
    a = A()
    prologue(a)
    data_waves(a)
    a.lab("L_kgen")
    kgen_waves(a)
    a.lab("L_aux")
    aux_waves(a)
    a.lab("L_end")
    a("s_endpgm")
    out.append(a.text())
    out.append(kd(NAME + "_kernel"))
    return "".join(out)


if __name__ == "__main__":
    outp = sys.argv[1] if len(sys.argv) > 1 else f"cdna_kernels/{NAME}.s"
    for x in sys.argv[2:]:
        k, v = x.split("=")
        OPT[k] = v if k in ("groups", "plan") else int(v)
    txt = gen()
    open(outp, "w").write(txt)
    print("wrote", outp, len(txt), "bytes; LDS", LDS_TOTAL)
```

```python
import sys, struct

NAME = "gated_mix__ssm_conv_s4d__ssm_conv_h3__prompt"
OPT = dict(stamp=0, groups="0123,4567", pollsleep=2, hprio=2, map=0, dprio=2, wslack=5, fullflag=1, frac=100, auxmode=0, plan="", exp=0, tw=0, nt=0, fwarm=0, pdelay=0, cprio=0, nonop=0, ysleep=1, sched=0, order="", lead=10, boost=110, pre=9)
NV = 168
VST, VST2 = 167, 166


def f2u(x):
    return struct.unpack("<I", struct.pack("<f", x))[0]


class A:
    def __init__(self):
        self.l = []

    def __call__(self, s):
        self.l.append("    " + s)

    def lab(self, s):
        self.l.append(s + ":")

    def c(self, s):
        self.l.append("    ; " + s)

    def text(self):
        return "\n".join(self.l) + "\n"


def vr(a, n=1):
    assert a + n <= NV, (a, n)
    return f"v{a}" if n == 1 else f"v[{a}:{a+n-1}]"


def sr(a, n=1):
    return f"s{a}" if n == 1 else f"s[{a}:{a+n-1}]"


KSTR = 4160
XSTR = 4640
CONV = 16 + 4 * KSTR + 2 * XSTR
assert CONV % 16 == 0
def KR(q, s): return q * CONV + 16 + s * KSTR
def XB(q): return q * CONV + 16 + 4 * KSTR
XD = XSTR + 448
KC = 4 * CONV
KCSZ = 776 * 8
TBL = KC + 2 * KCSZ
TBLSZ = 16 * 288
CNT = TBL + 4 * TBLSZ
YS = CNT + 256
YSZ = 8 * 576
P1S = YS - 640
P1K, P1V, P1U = P1S + 1024, P1S + 9216, P1S + 17408
LDS_TOTAL = P1S + 25600
assert LDS_TOTAL <= 163840, LDS_TOTAL
IDXBIAS = 8 * 0x4280
C_SIG, C_P1, C_KG, C_Y = CNT, CNT + 4, CNT + 16, CNT + 32

WS_KV = 0x200000
WS_G = 0x400000
WS_FLAG = 0x410000
WS_ST = 0x600000
WS_SIZE = 0x800000

P_U, P_LAR, P_AIM, P_CR, P_CI, P_LDT, P_DSK, P_Q = 16, 18, 20, 22, 24, 26, 28, 30
P_K, P_V, P_SHK, P_SSMK, P_SSMD, P_GW, P_OUT, P_DBG = 32, 34, 36, 38, 40, 42, 44, 46
P_WS = 48
S_WV, S_CG, S_TB, S_D0 = 3, 4, 5, 6
S_PCG, S_PTB, S_GB, S_W4 = 7, 98, 99, 100
S_HI, S_LO = 50, 51
S_T0, S_T1, S_T2, S_T3 = 8, 9, 10, 11
R_U, R_K, R_V, R_WS, R_OUT, R_DBG = 52, 56, 60, 64, 68, 72
S_SELLO, S_SELHI, S_4096, S_KV0, S_KV1 = 76, 77, 78, 79, 80
S_DS, S_DM = 82, 84
S_RAWDS, S_RAWDM = 86, 87
S_SC, S_ISC = 89, 90
S_SPIN = 91
S_KC, S_HM = 92, 93
S_PC = 12
S_NON = 14

L2E = 0x3FB8AA3B
L2E_LO = 0x32A57060
LN2 = 0x3F317218
SPIN_MAX = 0x40000
SC = " sc1"


def stamp(a, idx):
    if not OPT["stamp"]:
        return
    a("s_memrealtime s[94:95]")
    a("s_memtime s[96:97]")
    a("s_waitcnt lgkmcnt(0)")
    a(f"v_writelane_b32 v{VST}, s94, {idx}")
    a(f"v_writelane_b32 v{VST}, s96, {32+idx}")


def stamp_out(a):
    if not OPT["stamp"]:
        return
    a("s_waitcnt vmcnt(0)")
    stamp(a, 15)
    a(f"s_lshl_b32 s{S_T0}, s2, 4")
    a(f"s_add_u32 s{S_T0}, s{S_T0}, s{S_WV}")
    a(f"s_lshl_b32 s{S_T0}, s{S_T0}, 8")
    a(f"s_add_u32 s{S_T0}, s{S_T0}, {hex(WS_ST)}")
    a(f"v_lshl_add_u32 v{VST2}, v1, 2, s{S_T0}")
    a(f"buffer_store_dword v{VST}, v{VST2}, s[{R_WS}:{R_WS+3}], 0 offen")


def srd(a, r, p, size):
    a(f"s_mov_b32 s{r}, s{p}")
    a(f"s_and_b32 s{r+1}, s{p+1}, 0xffff")
    a(f"s_mov_b32 s{r+2}, {hex(size)}")
    a(f"s_mov_b32 s{r+3}, 0x20000")


def rnd(a, d, s):
    a(f"v_cvt_pk_bf16_f32 v{d}, 0, v{s}")


def unpack2(a, d, s):
    a(f"v_lshlrev_b32 v{d}, 16, v{s}")
    a(f"v_and_b32 v{d+1}, s{S_HI}, v{s}")


def ext(a, d, reg, hi):
    if hi:
        a(f"v_and_b32 v{d}, s{S_HI}, v{reg}")
    else:
        a(f"v_lshlrev_b32 v{d}, 16, v{reg}")


def cmul_ops(d, x, y):
    assert d not in (x, y) and d % 2 == 0 and x % 2 == 0 and y % 2 == 0
    return [f"v_pk_mul_f32 {vr(d,2)}, {vr(x,2)}, {vr(y,2)} op_sel:[0,0] op_sel_hi:[1,0]",
            f"v_fma_f32 v{d}, -v{x+1}, v{y+1}, v{d}",
            f"v_fmac_f32 v{d+1}, v{x}, v{y+1}"]


def interleave(a, chains):
    chains = [list(c) for c in chains]
    while any(chains):
        for c in chains:
            if c:
                a(c.pop(0))


def groups():
    return [[int(ch) for ch in g] for g in OPT["groups"].split(",")]


def lds_spin(a, lab, vaddr, vtmp, val, sleep=0):
    a(f"s_mov_b32 s{S_SPIN}, 0")
    a.lab(lab)
    a(f"ds_read_b32 v{vtmp}, v{vaddr}")
    a(f"s_add_u32 s{S_SPIN}, s{S_SPIN}, 1")
    a("s_waitcnt lgkmcnt(0)")
    a(f"v_readfirstlane_b32 s{S_T0}, v{vtmp}")
    a(f"s_cmp_ge_u32 s{S_SPIN}, {hex(SPIN_MAX*8)}")
    a(f"s_cbranch_scc1 {lab}_done")
    a(f"s_cmp_ge_u32 s{S_T0}, {val}")
    a(f"s_cbranch_scc1 {lab}_done")
    if sleep:
        a(f"s_sleep {sleep}")
    a(f"s_branch {lab}")
    a.lab(lab + "_done")


def nonce_check(a, tag, vn, vzero):
    a(f"s_mov_b32 s{S_SPIN}, 0")
    a(f"s_branch L_nchk_{tag}")
    a.lab(f"L_npoll_{tag}")
    a(f"buffer_load_dwordx2 {vr(vn,2)}, v{vzero}, s[{R_DBG}:{R_DBG+3}], 0 offen{SC}")
    a(f"s_add_u32 s{S_SPIN}, s{S_SPIN}, 1")
    a.lab(f"L_nchk_{tag}")
    a("s_waitcnt vmcnt(0)")
    a(f"v_readfirstlane_b32 s{S_NON}, v{vn}")
    a(f"v_readfirstlane_b32 s{S_NON+1}, v{vn+1}")
    a(f"s_cmp_ge_u32 s{S_SPIN}, {hex(SPIN_MAX)}")
    a(f"s_cbranch_scc1 L_npoll_done_{tag}")
    a(f"s_cmp_eq_u32 s{S_NON}, 0")
    a(f"s_cbranch_scc1 L_npoll_{tag}")
    a.lab(f"L_npoll_done_{tag}")


def k_copies(a, vaddr, P3, P2):
    a(f"ds_write_b128 v{vaddr}, {vr(P3,4)} offset:{3*KSTR+4}")
    a(f"ds_write_b128 v{vaddr}, {vr(P2,4)} offset:{2*KSTR+4}")
    a(f"ds_write2_b32 v{vaddr}, v{P2}, v{P2+1} offset0:0 offset1:1")
    a(f"ds_write2_b32 v{vaddr}, v{P2+2}, v{P2+3} offset0:2 offset1:3")
    a(f"v_add_u32 v{vaddr}, {KSTR}, v{vaddr}")
    a(f"ds_write2_b32 v{vaddr}, v{P3}, v{P3+1} offset0:0 offset1:1")
    a(f"ds_write2_b32 v{vaddr}, v{P3+2}, v{P3+3} offset0:2 offset1:3")


def prologue(a):
    if OPT["stamp"]:
        a("s_memrealtime s[88:89]")
    a("s_cmp_ge_u32 s2, 256")
    a("s_cbranch_scc1 L_end")
    a("s_load_dwordx16 s[16:31], s[0:1], 0")
    a("s_load_dwordx16 s[32:47], s[0:1], 64")
    a("s_load_dwordx2 s[48:49], s[0:1], 128")
    a(f"s_getpc_b64 s[{S_PC}:{S_PC+1}]")
    a.lab("L_pc0")
    a("v_lshlrev_b32 v2, 5, v0")
    a("v_min_u32 v2, L_end-L_pc0, v2")
    a(f"global_load_dword v165, v2, s[{S_PC}:{S_PC+1}]")
    a("v_lshrrev_b32 v1, 6, v0")
    a(f"s_and_b32 s{S_CG}, s2, 7")
    a(f"v_readfirstlane_b32 s{S_WV}, v1")
    a("v_and_b32 v1, 63, v0")
    a("v_and_b32 v0, 0xff, v0")
    a(f"s_lshr_b32 s{S_TB}, s2, 3")
    a(f"s_lshl_b32 s{S_D0}, s{S_CG}, 6")
    a(f"s_lshl_b32 s{S_T0}, s{S_TB}, 1")
    a(f"s_add_u32 s{S_D0}, s{S_D0}, s{S_T0}")
    a(f"s_mov_b32 s{S_HI}, 0xffff0000")
    a(f"s_mov_b32 s{S_LO}, 0xffff")
    a(f"s_and_b32 s{S_W4}, s{S_WV}, 3")
    if OPT["map"] == 0:
        a(f"s_mov_b32 s{S_PCG}, s{S_CG}")
        a(f"s_mov_b32 s{S_PTB}, s{S_TB}")
    else:
        a(f"s_and_b32 s{S_PCG}, s{S_TB}, 7")
        a(f"s_lshr_b32 s{S_T0}, s2, 6")
        a(f"s_lshl_b32 s{S_T0}, s{S_T0}, 3")
        a(f"s_add_u32 s{S_PTB}, s{S_T0}, s{S_CG}")
    a(f"s_lshl_b32 s{S_GB}, s{S_PTB}, 3")
    a(f"s_add_u32 s{S_GB}, s{S_GB}, s{S_PCG}")
    if OPT["stamp"]:
        a(f"v_mov_b32 v{VST}, 0")
        stamp(a, 5)
        a(f"v_writelane_b32 v{VST}, s88, 0")
    a(f"s_cmp_ge_u32 s{S_WV}, 8")
    a("s_cbranch_scc1 L_aux")
    a(f"s_cmp_ge_u32 s{S_WV}, 4")
    a("s_cbranch_scc1 L_kgen")


def data_waves(a):
    a.c("==== data waves")
    if OPT["dprio"]:
        a(f"s_setprio {OPT['dprio']}")
    a("v_and_b32 v57, 7, v1")
    a("v_lshrrev_b32 v7, 3, v1")
    a(f"v_xor_b32 v9, s{S_WV}, v57")
    a(f"s_lshl_b32 s{S_T0}, s{S_PTB}, 16")
    a(f"s_lshl_b32 s{S_T1}, s{S_PCG}, 7")
    a(f"s_add_u32 s{S_T0}, s{S_T0}, s{S_T1}")
    a(f"s_lshl_b32 s{S_T1}, s{S_WV}, 13")
    a(f"s_add_u32 s{S_T0}, s{S_T0}, s{S_T1}")
    a(f"v_lshl_add_u32 v8, v7, 10, s{S_T0}")
    a("v_lshl_add_u32 v8, v9, 4, v8")
    a("v_xor_b32 v58, 64, v8")
    a("v_subrev_u32 v9, 0x8000, v58")
    a(f"s_lshl_b32 s{S_T0}, s{S_WV}, 3")
    a(f"v_add_u32 v6, s{S_T0}, v7")
    a(f"s_lshl_b32 s{S_T1}, s{S_PCG}, 9")
    a(f"v_lshl_add_u32 v10, v6, 4, s{S_T1}")
    a(f"s_movk_i32 s{S_4096}, 0x1000")
    a(f"s_mov_b32 s{S_KV0}, 0x8000")
    a(f"s_lshl_b32 s{S_T3}, s{S_WV}, 10")
    a(f"s_memrealtime s[{S_NON}:{S_NON+1}]")
    a("s_waitcnt lgkmcnt(0)")
    srd(a, R_K, P_K, 0x200000)
    a(f"s_cmp_lg_u32 s{S_WV}, 3")
    a("s_cbranch_scc1 L_nohalo")
    a(f"s_mov_b32 m0, {P1K-1024}")
    a("s_mov_b32 exec_lo, 0")
    a("s_mov_b32 exec_hi, 0xffffff00")
    a(f"buffer_load_dwordx4 v9, s[{R_K}:{R_K+3}], 0 offen lds")
    a("s_mov_b64 exec, -1")
    a.lab("L_nohalo")
    for base, R, P in ((P1K, R_K, None), (P1V, R_V, P_V), (P1U, R_U, P_U)):
        if P is not None:
            srd(a, R, P, 0x200000)
        a(f"s_add_u32 m0, s{S_T3}, {base}")
        a("s_nop 0")
        NT = " nt" if (OPT["nt"] & 1) and (R != R_U or OPT["nt"] & 4) else ""
        a(f"buffer_load_dwordx4 v8, s[{R}:{R+3}], 0 offen{NT} lds")
        a(f"s_add_u32 m0, s{S_T3}, {base+4096}")
        a("s_nop 0")
        a(f"buffer_load_dwordx4 v58, s[{R}:{R+3}], s{S_KV0} offen{NT} lds")
    a(f"global_load_dwordx4 v[48:51], v10, s[{P_SHK}:{P_SHK+1}]")
    stamp(a, 10)
    srd(a, R_DBG, P_DBG, 256)
    a("v_mov_b32 v56, 0")
    a(f"s_or_b32 s{S_T0}, s{S_WV}, s2")
    a(f"s_cmp_lg_u32 s{S_T0}, 0")
    a("s_cbranch_scc1 L_nonon")
    a(f"s_or_b32 s{S_NON}, s{S_NON}, 1")
    a(f"v_mov_b32 v52, s{S_NON}")
    a(f"v_mov_b32 v53, s{S_NON+1}")
    a("s_mov_b64 exec, 1")
    a(f"buffer_store_dwordx2 v[52:53], v56, s[{R_DBG}:{R_DBG+3}], 0 offen{SC}")
    a("s_mov_b64 exec, -1")
    a.lab("L_nonon")
    srd(a, R_WS, P_WS, WS_SIZE)
    a(f"s_mov_b32 s{S_SELLO}, 0x05040100")
    a(f"s_mov_b32 s{S_SELHI}, 0x07060302")
    a(f"s_mov_b32 s{S_KV0}, {hex(WS_KV)}")
    a(f"s_mov_b32 s{S_KV1}, {hex(WS_KV+4096)}")
    a(f"s_lshl_b32 s{S_T0}, s{S_PCG}, 18")
    a(f"s_lshl_b32 s{S_T1}, s{S_PTB}, 7")
    a(f"s_add_u32 s{S_T0}, s{S_T0}, s{S_T1}")
    a(f"v_lshl_add_u32 v10, v6, 13, s{S_T0}")
    a("v_lshl_add_u32 v10, v57, 4, v10")
    a("v_lshrrev_b32 v12, 2, v6")
    a("v_and_b32 v13, 3, v6")
    a("v_xor_b32 v16, v57, v12")
    a("v_lshlrev_b32 v8, 10, v57")
    a("v_lshl_add_u32 v8, v13, 2, v8")
    a(f"v_add_u32 v8, {P1S}, v8")
    a("v_add_u32 v15, 7, v57")
    a("v_and_b32 v15, 7, v15")
    a("v_xor_b32 v15, v15, v12")
    a("v_lshl_add_u32 v9, v15, 4, v8")
    a("v_lshl_add_u32 v8, v16, 4, v8")
    a(f"s_lshl_b32 s{S_T0}, s{S_D0}, 12")
    a(f"v_lshl_add_u32 v11, v0, 4, s{S_T0}")
    a("v_lshlrev_b32 v14, 4, v0")
    a(f"v_add_u32 v15, {2*CONV}, v14")
    a("v_and_b32 v19, 7, v1")
    a(f"s_lshl_b32 s{S_T0}, s{S_CG}, 12")
    a(f"s_lshl_b32 s{S_T1}, s{S_WV}, 10")
    a(f"s_add_u32 s{S_T0}, s{S_T0}, s{S_T1}")
    a(f"s_add_u32 s{S_T0}, s{S_T0}, {hex(WS_FLAG)}")
    a(f"v_lshl_add_u32 v19, v19, 7, s{S_T0}")
    a(f"s_lshl_b32 s{S_T0}, s{S_PCG}, 12")
    a(f"s_lshl_b32 s{S_T1}, s{S_PTB}, 7")
    a(f"s_add_u32 s{S_T0}, s{S_T0}, s{S_T1}")
    a(f"s_add_u32 s{S_T0}, s{S_T0}, {hex(WS_FLAG)}")
    if OPT["fullflag"]:
        a(f"v_lshl_add_u32 v18, v1, 3, s{S_T0}")
    else:
        a(f"v_mov_b32 v18, s{S_T0}")
    if OPT["fwarm"]:
        a(f"s_cmp_lg_u32 s{S_WV}, 1")
        a("s_cbranch_scc1 L_nofw")
        a("v_mov_b32 v44, 0")
        a("v_mov_b32 v45, 0")
        a("s_mov_b64 exec, 0xffff")
        a(f"buffer_store_dwordx2 v[44:45], v18, s[{R_WS}:{R_WS+3}], 0 offen{SC}")
        a("s_mov_b64 exec, -1")
        a.lab("L_nofw")
    conv_setup(a)
    a(f"v_mov_b32 v16, {C_SIG}")
    a("v_mov_b32 v17, 1")
    a("s_barrier")
    stamp(a, 1)
    a("s_waitcnt vmcnt(0)")
    a("s_mov_b64 exec, 1")
    a("ds_add_u32 v16, v17 offset:4")
    a("s_mov_b64 exec, -1")
    a(f"buffer_load_dwordx2 v[52:53], v56, s[{R_DBG}:{R_DBG+3}], 0 offen{SC}")
    SP = 60
    a(f"v_lshlrev_b32 v{SP+0}, 16, v48")
    a(f"v_lshlrev_b32 v{SP+1}, 16, v50")
    a(f"v_and_b32 v{SP+2}, s{S_HI}, v48")
    a(f"v_and_b32 v{SP+3}, s{S_HI}, v50")
    a(f"v_lshlrev_b32 v{SP+4}, 16, v49")
    a(f"v_lshlrev_b32 v{SP+5}, 16, v51")
    a(f"v_and_b32 v{SP+6}, s{S_HI}, v49")
    a(f"v_and_b32 v{SP+7}, s{S_HI}, v51")
    a(f"v_mov_b32 v12, {C_P1}")
    lds_spin(a, "L_p1spin", 12, 13, 4)
    stamp(a, 2)
    for j in range(8):
        a(f"ds_read_b32 v{39+j}, v8 offset:{P1U-P1S+j*128}")
    for j in range(3):
        a(f"ds_read_b32 v{20+j}, v9 offset:{(5+j)*128}")
    for base, off in ((23, P1K), (31, P1V)):
        for j in range(8):
            a(f"ds_read_b32 v{base+j}, v8 offset:{off-P1S+j*128}")
    a("s_waitcnt lgkmcnt(15)")
    O2 = 130
    for ch, sel in ((0, S_SELLO), (1, S_SELHI)):
        for j in range(4):
            a(f"v_perm_b32 v{O2+4*ch+j}, v{39+2*j+1}, v{39+2*j}, s{sel}")
        so = "0" if ch == 0 else f"s{S_4096}"
        a(f"buffer_store_dwordx4 {vr(O2+4*ch,4)}, v10, s[{R_WS}:{R_WS+3}], {so} offen{SC}")
    KP = 68
    a("s_waitcnt lgkmcnt(8)")
    for i in range(11):
        unpack2(a, KP + 2 * i, 20 + i)
    ACC = 90
    T = 106
    for r in range(8):
        a(f"v_pk_mul_f32 {vr(ACC+2*r,2)}, {vr(KP+2*r,2)}, {vr(SP+6,2)}")
    for j in (1, 2, 3):
        for r in range(8):
            a(f"v_pk_fma_f32 {vr(ACC+2*r,2)}, {vr(KP+2*(r+j),2)}, {vr(SP+6-2*j,2)}, {vr(ACC+2*r,2)}")
    a("s_waitcnt lgkmcnt(0)")
    for r in range(8):
        unpack2(a, T + 2 * r, 31 + r)
    for r in range(8):
        a(f"v_pk_mul_f32 {vr(ACC+2*r,2)}, {vr(ACC+2*r,2)}, {vr(T+2*r,2)}")
    O = 122
    for ch in range(2):
        for j in range(4):
            a(f"v_cvt_pk_bf16_f32 v{O+4*ch+j}, v{ACC+2*(2*j)+ch}, v{ACC+2*(2*j+1)+ch}")
        so = S_KV0 if ch == 0 else S_KV1
        a(f"buffer_store_dwordx4 {vr(O+4*ch,4)}, v10, s[{R_WS}:{R_WS+3}], s{so} offen{SC}")
    stamp(a, 3)
    nonce_check(a, "d", 52, 56)
    stamp(a, 4)
    a.c("---- signal")
    a("s_mov_b64 exec, 1")
    a("ds_add_rtn_u32 v13, v16, v17")
    a("s_waitcnt lgkmcnt(0)")
    a(f"v_readfirstlane_b32 s{S_T1}, v13")
    a(f"s_cmp_lg_u32 s{S_T1}, 3")
    a("s_cbranch_scc1 L_nosig")
    if OPT["fullflag"]:
        a("s_mov_b64 exec, 0xffff")
    a(f"buffer_store_dwordx2 v[52:53], v18, s[{R_WS}:{R_WS+3}], 0 offen{SC}")
    a.lab("L_nosig")
    a("s_mov_b64 exec, -1")
    a.c("---- wait for this wave's 8 producers")
    if OPT["pdelay"]:
        a(f"s_sleep {OPT['pdelay']}")
    a(f"s_mov_b32 s{S_SPIN}, 0")
    a.lab("L_poll")
    a(f"buffer_load_dwordx2 v[40:41], v19, s[{R_WS}:{R_WS+3}], 0 offen{SC}")
    a(f"s_add_u32 s{S_SPIN}, s{S_SPIN}, 1")
    a("s_waitcnt vmcnt(0)")
    a(f"v_cmp_ne_u64 vcc, s[{S_NON}:{S_NON+1}], v[40:41]")
    a(f"s_cmp_ge_u32 s{S_SPIN}, {hex(SPIN_MAX)}")
    a("s_cbranch_scc1 L_poll_done")
    a("s_cmp_eq_u64 vcc, 0")
    a("s_cbranch_scc1 L_poll_done")
    a(f"s_sleep {OPT['pollsleep']}")
    a("s_branch L_poll")
    a.lab("L_poll_done")
    stamp(a, 6)
    a.c("---- phase 2 loads")
    sofs = ["0", f"s{S_4096}", f"s{S_KV0}", f"s{S_KV1}"]
    for q in range(4):
        a(f"buffer_load_dwordx4 {vr(20+4*q,4)}, v11, s[{R_WS}:{R_WS+3}], {sofs[q]} offen{SC}")
    for q in range(4):
        a(f"s_waitcnt vmcnt({3-q})")
        ad = "v14" if q < 2 else "v15"
        a(f"ds_write_b128 {ad}, {vr(20+4*q,4)} offset:{XB(q&1)+XD}")
        a(f"ds_write_b64 {ad}, {vr(20+4*q,2)} offset:{XB(q&1)+456}")
        a(f"ds_write_b64 {ad}, {vr(22+4*q,2)} offset:{XB(q&1)+464}")
    a("s_waitcnt lgkmcnt(0)")
    stamp(a, 7)
    if OPT["dprio"]:
        a(f"s_setprio {OPT['cprio']}")
    a("s_barrier")
    stamp(a, 8)
    if OPT["exp"]:
        a(f"s_cmp_lt_u32 s{S_WV}, 2")
        a("s_cbranch_scc1 L_convA")
    conv_main(a)
    if OPT["stamp"]:
        stamp(a, 9)
        stamp_out(a)
    a("s_endpgm")
    if OPT["exp"]:
        a.lab("L_convA")
        conv_main(a, OPT["exp"])
        if OPT["stamp"]:
            stamp(a, 9)
            stamp_out(a)
        a("s_endpgm")


def conv_setup(a):
    a.c("conv address setup, q = wave")
    a(f"s_mul_i32 s{S_T0}, s{S_WV}, {CONV}")
    a("v_and_b32 v12, 15, v1")
    a("v_lshrrev_b32 v13, 4, v1")
    a("v_and_b32 v16, 3, v12")
    a("v_lshrrev_b32 v17, 2, v12")
    a(f"v_mul_u32_u24 v2, {KSTR}, v16")
    a("v_lshl_add_u32 v2, v13, 4, v2")
    a("v_lshlrev_b32 v17, 4, v17")
    a("v_sub_u32 v2, v2, v17")
    a(f"s_add_u32 s{S_T1}, s{S_T0}, {KR(0,0)+48}")
    a(f"v_add_u32 v2, s{S_T1}, v2")
    a("v_and_b32 v16, 1, v12")
    a("v_lshrrev_b32 v17, 1, v12")
    a(f"v_mul_u32_u24 v3, {XSTR}, v16")
    a("v_lshl_add_u32 v3, v13, 4, v3")
    a("v_lshl_add_u32 v3, v17, 6, v3")
    a(f"s_add_u32 s{S_T1}, s{S_T0}, {XB(0)}")
    a(f"v_add_u32 v3, s{S_T1}, v3")
    a("v_mul_u32_u24 v4, 72, v17")
    a("v_lshl_add_u32 v4, v13, 4, v4")
    a("v_lshl_add_u32 v4, v16, 3, v4")
    a(f"s_mul_i32 s{S_T1}, s{S_WV}, {YSZ}")
    a(f"s_add_u32 s{S_T1}, s{S_T1}, {YS}")
    a(f"v_add_u32 v4, s{S_T1}, v4")
    a(f"s_lshl_b32 s{S_T1}, s{S_WV}, 2")
    a(f"s_add_u32 s{S_T1}, s{S_T1}, {C_Y}")
    a(f"v_mov_b32 v5, s{S_T1}")


def conv_main2(a):
    ACC = 6
    SLOTS = [38 + 4 * i for i in range(32)]
    grp = groups()
    steps = []
    for part in OPT["order"].split(","):
        tl, rr = part.split(":")
        for r in rr:
            steps.append(([int(c) for c in tl], int(r)))
    cov = {t: set() for t in range(8)}
    mf = []
    gdone = {}
    for si, (tl, r) in enumerate(steps):
        pairs = [(e1, tau - e1, tau) for tau in tl for e1 in range(tau + 1)]
        pairs.sort(key=lambda p: (max(p[0], p[1]), p[2]))
        for (e1, c1, tau) in pairs:
            mf.append((tau, ("F", si, r, e1), ("G", si, r, c1)))
        for t in tl:
            assert r not in cov[t]
            cov[t].add(r)
        for gi, g in enumerate(grp):
            if gi not in gdone.values() and all(len(cov[t]) == 8 for t in g):
                gdone[len(mf) - 1] = gi
    assert len(mf) == 288 and len(gdone) == len(grp)
    first, last = {}, {}
    for i, (tau, fk, gk) in enumerate(mf):
        for k in (fk, gk):
            first.setdefault(k, i)
            last[k] = i
    frs = sorted(first, key=lambda k: (first[k], k[0] == "F"))
    ninstr = len(frs)
    rate = ninstr / 288.0 * OPT["boost"] / 100.0
    free = list(SLOTS)
    reg = {}
    seq = [0]; done = [0]; when = {}

    def lds(sx, key=None):
        a(sx)
        if key is not None:
            when[key] = seq[0]
        seq[0] += 1

    def need(idx):
        if idx < done[0]:
            return
        n = min(seq[0] - idx - 1, OPT["wslack"] if seq[0] > 30 else 15)
        a(f"s_waitcnt lgkmcnt({n})")
        if not OPT["nonop"]:
            a("s_nop 0")
        done[0] = seq[0] - n

    def issue(k):
        rg = free.pop(0)
        reg[k] = rg
        _, si, r, i = k
        if k[0] == "G":
            lds(f"ds_read_b128 {vr(rg,4)}, v3 offset:{512*i+64*r}", k)
            return 1
        lds(f"ds_read_b128 {vr(rg,4)}, v2 offset:{512*(7-i)+64*r}", k)
        return 1

    a(".p2align 3")
    nxt = 0
    for _ in range(OPT["pre"]):
        issue(frs[nxt]); nxt += 1
    started = set(); pending = []; mark = [0]
    credit = 0.0
    for i, (tau, fk, gk) in enumerate(mf):
        while nxt < len(frs) and first[frs[nxt]] <= i:
            issue(frs[nxt]); nxt += 1
        need(max(when[fk], when[gk]))
        c = vr(ACC + 4 * tau, 4) if tau in started else "0"
        started.add(tau)
        a(f"v_mfma_f32_16x16x32_bf16 {vr(ACC+4*tau,4)}, {vr(reg[fk],4)}, {vr(reg[gk],4)}, {c}")
        for k in (fk, gk):
            if last[k] == i:
                free.append(reg[k])
        if pending and len(a.l) - mark[0] >= 9:
            for _ in range(2):
                if pending:
                    op = pending.pop(0)
                    if op.startswith("ds_"):
                        lds(op)
                    else:
                        a(op)
        credit = min(credit + rate, 3.0)
        while nxt < len(frs) and free and (credit >= 1.0 or first[frs[nxt]] - i <= OPT["lead"]):
            credit -= issue(frs[nxt]); nxt += 1
        if i in gdone:
            gi = gdone[i]
            assert not pending
            mark[0] = len(a.l)
            for tau2 in grp[gi]:
                c = ACC + 4 * tau2
                pending.append(f"v_cvt_pk_bf16_f32 v{c}, v{c}, v{c+1}")
                pending.append(f"v_cvt_pk_bf16_f32 v{c+1}, v{c+2}, v{c+3}")
                pending.append(f"ds_write_b64 v4, {vr(c,2)} offset:{576*tau2}")
            pending.append(f"ds_write_b32 v5, v5 offset:{16*gi}")
    a("s_nop 7")
    for op in pending:
        a(op)


def conv_main(a, emax=99):
    if OPT["sched"]:
        return conv_main2(a)
    ACC = 6
    BUF = [38, 102]
    grp = groups()
    steps = []
    if OPT["plan"]:
        for part in OPT["plan"].split(","):
            tl, rr = part.split(":")
            tl = [int(c) for c in tl]
            r0, r1 = [int(x) for x in rr.split("-")]
            per = 2 if max(tl) <= 3 else 1
            for r in range(r0, r1 + 1, per):
                steps.append((tl, list(range(r, r + per))))
    else:
        for g in grp:
            per = 2 if max(g) <= 3 else 1
            for r0 in range(0, 8, per):
                steps.append((g, list(range(r0, r0 + per))))
    last = {}
    cov = {t: set() for t in range(8)}
    for si, (tl, rs) in enumerate(steps):
        for t in tl:
            assert not (cov[t] & set(rs))
            cov[t] |= set(rs)
        for gi, g in enumerate(grp):
            if gi not in last and all(len(cov[t]) == 8 for t in g):
                last[gi] = si
    assert len(last) == len(grp)

    def step_plan(si):
        g, rs = steps[si]
        nfr = max(g) + 1
        b = BUF[si & 1]
        loads, mf = [], []
        for k, r in enumerate(rs):
            fb = b + 16 * k if len(rs) > 1 else b
            gb = b + 32 + (16 * k if len(rs) > 1 else 0)
            pairs = [(e1, tau - e1, tau) for tau in g for e1 in range(tau + 1) if e1 < emax]
            pairs.sort(key=lambda p: (max(p[0], p[1]), p[2]))
            for i in range(nfr):
                if any(p[1] == i for p in pairs):
                    loads.append((("G", k, i), f"ds_read_b128 {vr(gb+4*i,4)}, v3 offset:{512*i+64*r}"))
                if i >= emax:
                    continue
                loads.append((("F", k, i), f"ds_read_b128 {vr(fb+4*i,4)}, v2 offset:{512*(7-i)+64*r}"))
            for (e1, c1, tau) in pairs:
                mf.append((tau, ("F", k, e1), ("G", k, c1), fb + 4 * e1, gb + 4 * c1))
        return loads, mf

    plans = [step_plan(si) for si in range(len(steps))]
    seq = [0]
    done = [0]
    when = {}

    def lds(s, key=None):
        a(s)
        if key is not None:
            when[key] = seq[0]
        seq[0] += 1

    def need(idx):
        if idx < done[0]:
            return
        n = min(seq[0] - idx - 1, OPT["wslack"] if seq[0] > 30 else 15)
        a(f"s_waitcnt lgkmcnt({n})")
        if not OPT["nonop"]:
            a("s_nop 0")
        done[0] = seq[0] - n

    a(".p2align 3")
    for key, s in plans[0][0]:
        lds(s, (0,) + key)
    started = set()
    mark = [0]
    pending = []
    for si in range(len(steps)):
        loads, mf = plans[si]
        nl = list(plans[si + 1][0]) if si + 1 < len(steps) else []
        nm = len(mf)
        slots = max(1, nm * OPT["frac"] // 100)
        ntot = len(nl)
        for i, (tau, fk, gk, fr, gr) in enumerate(mf):
            need(max(when[(si,) + fk], when[(si,) + gk]))
            c = vr(ACC + 4 * tau, 4) if tau in started else "0"
            started.add(tau)
            a(f"v_mfma_f32_16x16x32_bf16 {vr(ACC+4*tau,4)}, {vr(fr,4)}, {vr(gr,4)}, {c}")
            if pending and len(a.l) - mark[0] >= 9:
                for _ in range(2):
                    if pending:
                        op = pending.pop(0)
                        if op.startswith("ds_"):
                            lds(op)
                        else:
                            a(op)
            want = min(ntot, -(-ntot * (i + 1) // slots))
            while ntot - len(nl) < want:
                key, s = nl.pop(0)
                lds(s, (si + 1,) + key)
        assert not nl
        for gi in [g_ for g_, l_ in last.items() if l_ == si]:
            assert not pending
            mark[0] = len(a.l)
            for tau in grp[gi]:
                c = ACC + 4 * tau
                pending.append(f"v_cvt_pk_bf16_f32 v{c}, v{c}, v{c+1}")
                pending.append(f"v_cvt_pk_bf16_f32 v{c+1}, v{c+2}, v{c+3}")
                pending.append(f"ds_write_b64 v4, {vr(c,2)} offset:{576*tau}")
            pending.append(f"ds_write_b32 v5, v5 offset:{16*gi}")
    a("s_nop 7")
    for op in pending:
        a(op)


XA = 154


def expansion_addr(a, g):
    a.c("expansion addresses")
    a(f"s_lshr_b32 s{S_KC}, s{S_W4}, 1")
    a(f"s_and_b32 s{S_HM}, s{S_W4}, 1")
    a(f"s_lshl_b32 s{S_T0}, s{S_HM}, 7")
    a(f"s_add_u32 s{S_T0}, s{S_T0}, {64*g}")
    a(f"v_add_u32 v12, s{S_T0}, v1")
    a(f"s_mul_i32 s{S_T1}, s{S_KC}, {KCSZ}")
    a(f"s_add_u32 s{S_T1}, s{S_T1}, {KC}")
    a(f"s_sub_u32 s{S_T3}, s{S_T1}, {IDXBIAS}")
    a(f"s_mul_i32 s{S_T2}, s{S_KC}, {CONV}")
    a(f"s_add_u32 s{S_T2}, s{S_T2}, {KR(0,0)-4}")
    a("v_lshlrev_b32 v11, 3, v12")
    a("v_sub_u32 v11, 2047, v11")
    a("v_cvt_f32_u32 v8, v11")
    if g == 1:
        a("v_cmp_gt_u32 vcc, 0x100, v11")
        a(f"v_lshl_add_u32 v10, v11, 3, s{S_T1}")
    for k in range(9):
        d = XA + k
        if k == 0:
            a(f"v_cvt_pk_bf16_f32 v{d}, 0, v8")
        else:
            lit = {1: "-1.0", 2: "-2.0", 4: "-4.0"}.get(k, hex(f2u(-float(k))))
            a(f"v_add_f32 v9, {lit}, v8")
            a(f"v_cvt_pk_bf16_f32 v{d}, 0, v9")
        a(f"v_lshrrev_b32 v{d}, 13, v{d}")
        a(f"v_add_u32 v{d}, s{S_T3}, v{d}")
        if g == 1:
            a(f"v_subrev_u32 v9, {8*k}, v10")
            a(f"v_cndmask_b32 v{d}, v{d}, v9, vcc")
    a(f"v_lshl_add_u32 v163, v12, 4, s{S_T2}")
    if g == 1:
        a("v_cmp_eq_u32 vcc, 0xff, v12")
        a(f"s_add_u32 s{S_T0}, s{S_T1}, {768*8}")
        a(f"v_mov_b32 v9, s{S_T0}")
        a(f"v_cndmask_b32 v{XA+8}, v{XA+8}, v9, vcc")
    a(f"s_lshl_b32 s{S_T0}, s{S_KC}, 2")
    a(f"s_add_u32 s{S_T0}, s{S_T0}, {C_KG}")
    a(f"v_mov_b32 v164, s{S_T0}")


def expansion(a, tag):
    lds_spin(a, f"L_kspin_{tag}", 164, 8, 2, sleep=(1 if tag == "a" else 0))
    stamp(a, 8)
    a.c("expansion")
    B = 100
    for k in range(9):
        a(f"ds_read_b64 {vr(B+2*k,2)}, v{XA+k}")
    a("s_waitcnt lgkmcnt(0)")
    for k in range(9):
        a(f"v_add_f32 v{B+2*k}, v{B+2*k}, v{B+2*k+1}")
    P3, P2 = 120, 124
    for j in range(4):
        b = B + 4 * j
        a(f"v_cvt_pk_bf16_f32 v{P3+j}, v{b}, v{b+2}")
        a(f"v_cvt_pk_bf16_f32 v{P2+j}, v{b+2}, v{b+4}")
    k_copies(a, 163, P3, P2)


def kgen_waves(a):
    a.c("==== K generation waves")
    a(f"s_lshr_b32 s{S_KC}, s{S_W4}, 1")
    a(f"s_and_b32 s{S_HM}, s{S_W4}, 1")
    a(f"s_add_u32 s{S_T1}, s{S_D0}, s{S_KC}")
    a(f"s_lshl_b32 s{S_T3}, s{S_T1}, 1")
    a(f"v_mov_b32 v8, s{S_T3}")
    a(f"s_lshl_b32 s{S_T1}, s{S_T1}, 8")
    a(f"s_lshl_b32 s{S_T2}, s{S_HM}, 7")
    a(f"s_add_u32 s{S_T1}, s{S_T1}, s{S_T2}")
    a(f"v_lshl_add_u32 v2, v1, 1, s{S_T1}")
    a("s_waitcnt lgkmcnt(0)")
    a(f"global_load_ushort v7, v8, s[{P_LDT}:{P_LDT+1}]")
    a(f"global_load_ushort v3, v2, s[{P_LAR}:{P_LAR+1}]" + (" nt" if OPT["nt"] & 16 else ""))
    a(f"global_load_ushort v4, v2, s[{P_AIM}:{P_AIM+1}]" + (" nt" if OPT["nt"] & 16 else ""))
    a(f"global_load_ushort v5, v2, s[{P_CR}:{P_CR+1}]" + (" nt" if OPT["nt"] & 16 else ""))
    a(f"global_load_ushort v6, v2, s[{P_CI}:{P_CI+1}]" + (" nt" if OPT["nt"] & 16 else ""))
    if OPT["stamp"]:
        srd(a, R_WS, P_WS, WS_SIZE)
    expansion_addr(a, 0)
    TBW, TBR, KA0, KA1, KA2 = 16, 17, 18, 19, 49
    a(f"s_mul_i32 s{S_T0}, s{S_W4}, {TBLSZ}")
    a(f"s_add_u32 s{S_T0}, s{S_T0}, {TBL}")
    a(f"v_lshl_add_u32 v{TBW}, v1, 2, s{S_T0}")
    a("v_and_b32 v13, 15, v1")
    a("v_lshrrev_b32 v8, 4, v1")
    a(f"v_mul_u32_u24 v{TBR}, 288, v13")
    a(f"v_lshl_add_u32 v{TBR}, v8, 4, v{TBR}")
    a(f"v_add_u32 v{TBR}, s{S_T0}, v{TBR}")
    a(f"s_lshl_b32 s{S_T0}, s{S_HM}, 2")
    a(f"s_add_u32 s{S_T1}, s{S_T1}, s{S_T0}")
    a("v_lshrrev_b32 v9, 1, v8")
    a("v_and_b32 v10, 1, v8")
    a(f"v_lshlrev_b32 v{KA0}, 7, v9")
    a(f"v_lshl_add_u32 v{KA0}, v10, 2, v{KA0}")
    a(f"v_lshl_add_u32 v{KA0}, v13, 3, v{KA0}")
    a(f"v_lshl_add_u32 v{KA0}, v{KA0}, 3, s{S_T1}")
    a("v_lshlrev_b32 v11, 1, v10")
    a("v_lshl_add_u32 v11, v13, 2, v11")
    a("v_add_u32 v11, 0x100, v11")
    a("v_lshlrev_b32 v12, 5, v10")
    a("v_lshl_add_u32 v12, v13, 1, v12")
    a("v_cmp_eq_u32 vcc, 0, v9")
    a("v_add_u32 v12, 0x180, v12")
    a(f"v_lshl_add_u32 v{KA2}, v8, 6, v13")
    a(f"v_cndmask_b32 v{KA1}, v12, v11, vcc")
    a(f"v_lshl_add_u32 v{KA1}, v{KA1}, 3, s{S_T1}")
    a(f"v_add_u32 v{KA2}, 0x200, v{KA2}")
    a(f"v_lshl_add_u32 v{KA2}, v{KA2}, 3, s{S_T1}")
    a("s_barrier")
    stamp(a, 2)
    a.c("parameters")
    a("s_waitcnt vmcnt(0)")
    stamp(a, 4)
    a("v_lshlrev_b32 v8, 16, v7")
    a("v_lshlrev_b32 v9, 16, v3")
    a(f"s_mov_b32 s{S_T1}, {hex(L2E)}")
    a(f"s_mov_b32 s{S_T2}, {hex(L2E_LO)}")
    for x, p, e in ((8, 10, 12), (9, 11, 13)):
        a(f"v_mul_f32 v{p}, s{S_T1}, v{x}")
        a(f"v_fma_f32 v{e}, v{x}, s{S_T1}, -v{p}")
        a(f"v_fma_f32 v{e}, v{x}, s{S_T2}, v{e}")
        a(f"v_exp_f32 v{p}, v{p}")
        a(f"v_mul_f32 v{e}, {hex(LN2)}, v{e}")
    a("v_lshlrev_b32 v4, 16, v4")
    for x, p, e in ((8, 10, 12), (9, 11, 13)):
        a(f"v_fma_f32 v{p}, v{p}, v{e}, v{p}")
        rnd(a, p, p)
    a("v_mul_f32 v11, v11, v10")
    a(f"v_mul_f32 v11, {hex(L2E | 0x80000000)}, v11")
    a("v_mul_f32 v4, v4, v10")
    a("v_mul_f32 v12, 0.15915494, v4")
    a("v_add_f32 v10, v10, v10")
    a("v_lshlrev_b32 v5, 16, v5")
    a("v_lshlrev_b32 v6, 16, v6")
    a("v_mul_f32 v14, v5, v10")
    a("v_mul_f32 v15, v6, v10")
    a("v_max_f32 v13, |v14|, |v15|")
    E = lambda j: 20 + 2 * j
    tmp = {0: (50, 51), 3: (52, 53), 7: (54, 55)}
    dpps = [f"v_max_u32_dpp v13, v13, v13 {d} bank_mask:0xf" for d in
            ("quad_perm:[1,0,3,2] row_mask:0xf", "quad_perm:[2,3,0,1] row_mask:0xf", "row_half_mirror row_mask:0xf",
             "row_mirror row_mask:0xf", "row_bcast:15 row_mask:0xa", "row_bcast:31 row_mask:0xc")]
    anc = []
    for j, (m, f) in tmp.items():
        if j == 0:
            anc += [f"v_exp_f32 v{m}, v11", f"v_fract_f32 v{f}, v12"]
        else:
            anc += [f"v_mul_f32 v{m}, {hex(f2u(2.0**j))}, v11", f"v_mul_f32 v{f}, {hex(f2u(2.0**j))}, v12",
                    f"v_exp_f32 v{m}, v{m}", f"v_fract_f32 v{f}, v{f}"]
    for j, (m, f) in tmp.items():
        anc += [f"v_cos_f32 v{E(j)}, v{f}", f"v_sin_f32 v{E(j)+1}, v{f}"]
    a.c("anchors")
    k = 0
    for d in dpps:
        a(anc[k]); a(anc[k + 1]); k += 2
        a(d)
    for o in anc[k:]:
        a(o)
    a(f"v_readlane_b32 s{S_T0}, v13, 63")
    for j, (m, f) in tmp.items():
        a(f"v_mul_f32 v{E(j)}, v{E(j)}, v{m}")
        a(f"v_mul_f32 v{E(j)+1}, v{E(j)+1}, v{m}")
    a(f"s_lshr_b32 s{S_T0}, s{S_T0}, 23")
    a(f"s_max_u32 s{S_T0}, s{S_T0}, 16")
    a(f"s_sub_u32 s{S_SC}, 264, s{S_T0}")
    a(f"s_lshl_b32 s{S_SC}, s{S_SC}, 23")
    a(f"s_sub_u32 s{S_ISC}, s{S_T0}, 10")
    a(f"s_lshl_b32 s{S_ISC}, s{S_ISC}, 23")
    interleave(a, [sum([cmul_ops(E(j), E(j - 1), E(j - 1)) for j in js], []) for js in ((4, 5, 6), (8, 9, 10, 11), (1, 2))])
    a.c("Y tile")
    tcount = [0]

    def put_ops(row, x, neg):
        t = 44 + (tcount[0] % 4)
        tcount[0] += 1
        return [f"v_cvt_pk_f16_f32 v{t}, v{x}, {'-' if neg else ''}v{x+1}",
                f"ds_write_b32 v{TBW}, v{t} offset:{288*row}"]

    def run_items(items):
        for i in range(0, len(items), 2):
            ch = []
            for (d, x, y, row, neg) in items[i:i + 2]:
                ops = [] if x is None else cmul_ops(d, x, y)
                if row is not None:
                    ops += put_ops(row, d, neg)
                ch.append(ops)
            interleave(a, ch)

    CT = 98
    Y = {1: E(3), 2: E(4), 4: E(5), 8: E(6), 3: 56, 5: 58, 6: 60, 7: 62}
    a("v_mov_b32 v48, 0x3c00")
    a(f"ds_write_b32 v{TBW}, v48")
    items = [(Y[3], Y[2], Y[1], 3, True), (Y[1], None, None, 1, True),
             (Y[5], Y[4], Y[1], 5, True), (Y[2], None, None, 2, True),
             (Y[6], Y[4], Y[2], 6, True), (Y[4], None, None, 4, True),
             (Y[7], Y[4], Y[3], 7, True), (Y[8], None, None, 8, True)]
    for b in range(9, 16):
        items.append((CT + 2 * (b % 4), Y[8], Y[b - 8], b, True))
    run_items(items)
    YF = 106
    for s in range(4):
        a(f"ds_read_b128 {vr(YF+4*s,4)}, v{TBR} offset:{64*s}")
    a.c("Z, W")
    Z = {1: E(0), 2: E(1), 4: E(2), 3: 56, 5: 58, 6: 60, 7: 62}
    W = {h: 64 + 2 * h for h in range(17)}
    a(f"v_mul_f32 v{W[0]}, s{S_SC}, v14")
    a(f"v_mul_f32 v{W[0]+1}, s{S_SC}, v15")
    run_items([(Z[3], Z[2], Z[1], None, 0), (W[1], W[0], E(7), None, 0),
               (Z[5], Z[4], Z[1], None, 0), (Z[6], Z[4], Z[2], None, 0),
               (Z[7], Z[4], Z[3], None, 0), (W[2], W[0], E(8), None, 0)])
    stamp(a, 6)
    XFT = [122, 138, 20]
    ACC = 36

    def rd(t):
        for s in range(4):
            a(f"ds_read_b128 {vr(XFT[t]+4*s,4)}, v{TBR} offset:{64*s}")

    def mm(t):
        for s in range(4):
            c = "0" if s == 0 else vr(ACC + 4 * t, 4)
            a(f"v_mfma_f32_16x16x32_f16 {vr(ACC+4*t,4)}, {vr(XFT[t]+4*s,4)}, {vr(YF+4*s,4)}, {c}")

    a.c("X tile 0")
    items = [(W[0], None, None, 0, False), (W[1], None, None, 8, False)]
    k = 0
    for r in range(1, 8):
        for h in (0, 1):
            items.append((CT + 2 * (k % 4), W[h], Z[r], 8 * h + r, False)); k += 1
    run_items(items)
    rd(0)
    run_items([(W[3], W[1], E(8), None, 0)] + [(W[h], W[h - 4], E(9), None, 0) for h in (4, 5, 6)] + [(W[7], W[3], E(9), None, 0)])
    a.c("X tile 1")
    items = []
    for G in range(4):
        for r in range(4):
            if G < 2:
                h = 2 + (r >> 1); zr = 2 * (2 * G + (r & 1))
            else:
                h = 4 + 2 * (r >> 1) + (G - 2); zr = 4 * (r & 1)
            if zr == 0:
                items.append((W[h], None, None, 4 * G + r, False))
            else:
                items.append((CT + 2 * (k % 4), W[h], Z[zr], 4 * G + r, False)); k += 1
    run_items(items)
    rd(1)
    a.c("X tile 2")
    run_items([(W[h], W[h - 8], E(10), h - 8, False) for h in range(8, 16)] + [(W[16], W[0], E(11), 8, False)])
    rd(2)
    a("s_waitcnt lgkmcnt(4)")
    mm(0)
    mm(1)
    a("s_waitcnt lgkmcnt(0)")
    mm(2)
    a("v_mov_b32 v8, 1")
    a("s_nop 2")
    for t in (0, 1):
        for r in range(4):
            a(f"v_mul_f32 v{ACC+4*t+r}, s{S_ISC}, v{ACC+4*t+r}")
    for t, offs, ad in ((0, (0, 8, 16, 24), KA0), (1, (0, 8, 512, 520), KA1)):
        for r in range(4):
            a(f"ds_write_b32 v{ad}, v{ACC+4*t+r} offset:{offs[r]}")
    for r in range(4):
        a(f"v_mul_f32 v{ACC+8+r}, s{S_ISC}, v{ACC+8+r}")
    for r in range(4):
        a(f"ds_write_b32 v{KA2}, v{ACC+8+r} offset:{128*r}")
    a("s_mov_b64 exec, 1")
    a("ds_add_u32 v164, v8")
    a("s_mov_b64 exec, -1")
    stamp(a, 7)
    expansion(a, "k")
    a("s_waitcnt lgkmcnt(0)")
    stamp(a, 9)
    a("s_barrier")
    stamp_out(a)
    a("s_endpgm")


def gate_compute(a, XR, WR, T):
    Wp = T
    X0 = T + 8
    for j in range(4):
        unpack2(a, Wp + 2 * j, WR + j)
    for row in range(2):
        X = X0 + 8 * row
        for j in range(4):
            unpack2(a, X + 2 * j, XR + 4 * row + j)
    for row in range(2):
        X = X0 + 8 * row
        for j in range(4):
            a(f"v_pk_mul_f32 {vr(X+2*j,2)}, {vr(X+2*j,2)}, {vr(Wp+2*j,2)}")
    for row in range(2):
        X = X0 + 8 * row
        for j in range(8):
            rnd(a, X + j, X + j)
    for row in range(2):
        X = X0 + 8 * row
        a(f"v_pk_add_f32 {vr(X,2)}, {vr(X,2)}, {vr(X+2,2)}")
        a(f"v_pk_add_f32 {vr(X+4,2)}, {vr(X+4,2)}, {vr(X+6,2)}")
    for row in range(2):
        X = X0 + 8 * row
        a(f"v_pk_add_f32 {vr(X,2)}, {vr(X,2)}, {vr(X+4,2)}")
    A0, A1 = X0, X0 + 8
    a(f"v_add_f32 v{A0}, v{A0}, v{A0+1}")
    a(f"v_add_f32 v{A1}, v{A1}, v{A1+1}")
    a("s_nop 0")
    for d in ("quad_perm:[1,0,3,2]", "quad_perm:[2,3,0,1]", "row_half_mirror", "row_mirror",
              "row_bcast:15 row_mask:0xa", "row_bcast:31 row_mask:0xc"):
        m = "" if "row_mask" in d else " row_mask:0xf"
        a(f"v_add_f32_dpp v{A0}, v{A0}, v{A0} {d}{m} bank_mask:0xf")
        a(f"v_add_f32_dpp v{A1}, v{A1}, v{A1} {d}{m} bank_mask:0xf")
        a("s_nop 0")
    for x in (A0, A1):
        rnd(a, x, x)
    for x in (A0, A1):
        a(f"v_mul_f32 v{x}, {hex(L2E | 0x80000000)}, v{x}")
    for x in (A0, A1):
        a(f"v_exp_f32 v{x}, v{x}")
    a("s_nop 0")
    for x in (A0, A1):
        a(f"v_add_f32 v{x}, 1.0, v{x}")
    for x in (A0, A1):
        a(f"v_rcp_f32 v{x}, v{x}")
    a("s_nop 0")
    for x in (A0, A1):
        rnd(a, x, x)
    for x in (A0, A1):
        a(f"v_sub_f32 v{x+1}, 1.0, v{x}")
    a(f"v_cvt_pk_bf16_f32 v{T}, v{A0}, v{A0+1}")
    a(f"v_mov_b32 v{T+1}, s{S_NON}")
    a(f"v_cvt_pk_bf16_f32 v{T+2}, v{A1}, v{A1+1}")
    a(f"v_mov_b32 v{T+3}, s{S_NON}")


def aux_waves(a):
    grp = groups()
    a.c("==== aux waves; v0 = thread index 0..255")
    a.c("zero init of LDS pads")
    for i in range(4):
        a(f"v_mov_b32 v{8+i}, 0")
    a("v_lshrrev_b32 v12, 6, v0")
    a(f"v_mul_u32_u24 v12, {CONV}, v12")
    a("v_bfe_u32 v14, v0, 5, 1")
    a(f"v_mul_u32_u24 v14, {XSTR}, v14")
    a("v_and_b32 v13, 31, v0")
    a("v_min_u32 v13, 28, v13")
    a("v_lshl_add_u32 v12, v13, 4, v12")
    a("v_add_u32 v12, v12, v14")
    a(f"ds_write_b128 v12, v[8:11] offset:{XB(0)}")
    a("v_bfe_u32 v13, v0, 4, 2")
    a(f"v_mul_u32_u24 v13, {CONV}, v13")
    a("v_bfe_u32 v14, v0, 2, 2")
    a(f"v_mul_u32_u24 v14, {KSTR}, v14")
    a("v_and_b32 v15, 3, v0")
    a("v_lshl_add_u32 v14, v15, 4, v14")
    a("v_add_u32 v13, v13, v14")
    a(f"v_add_u32 v13, {KR(0,0)+4080}, v13")
    a("v_cmp_gt_u32 vcc, 64, v0")
    a("v_and_b32 v14, 15, v0")
    a("v_lshlrev_b32 v14, 4, v14")
    a(f"v_add_u32 v14, {CNT}, v14")
    a("v_cndmask_b32 v12, v14, v13, vcc")
    a("v_cmp_gt_u32 vcc, 0x80, v0")
    a("v_and_b32 v15, 1, v0")
    a(f"v_mul_u32_u24 v15, {KCSZ}, v15")
    a(f"v_add_u32 v15, {KC+768*8}, v15")
    a("v_cndmask_b32 v12, v15, v12, vcc")
    a("ds_write_b128 v12, v[8:11]")
    a("s_waitcnt lgkmcnt(0)")
    a("s_barrier")
    stamp(a, 1)
    srd(a, R_WS, P_WS, WS_SIZE)
    srd(a, R_DBG, P_DBG, 256)
    srd(a, R_OUT, P_OUT, 0x200000)
    expansion_addr(a, 1)
    a(f"s_lshl_b32 s{S_T0}, s{S_D0}, 12")
    a(f"v_lshl_add_u32 v2, v0, 4, s{S_T0}")
    a("v_add_u32 v3, 0x1000, v2")
    a("v_subrev_u32 v4, 4, v2")
    a(f"v_max_i32 v4, s{S_T0}, v4")
    a(f"s_lshl_b32 s{S_T1}, s{S_GB}, 13")
    a(f"s_lshl_b32 s{S_T2}, s{S_W4}, 11")
    a(f"s_add_u32 s{S_T1}, s{S_T1}, s{S_T2}")
    a("v_lshlrev_b32 v6, 4, v1")
    a(f"v_add_u32 v5, s{S_T1}, v6")
    a(f"s_lshl_b32 s{S_T0}, s{S_W4}, 4")
    a(f"s_lshl_b32 s{S_T1}, s{S_GB}, 6")
    a(f"s_add_u32 s{S_T0}, s{S_T0}, s{S_T1}")
    a(f"s_add_u32 s{S_T0}, s{S_T0}, {hex(WS_G)}")
    a(f"v_mov_b32 v7, s{S_T0}")
    a("v_mov_b32 v56, 0")
    a(f"s_lshl_b32 s{S_T3}, s{S_D0}, 1")
    EA = {}
    for gi, g in enumerate(grp):
        n = len(g); R0 = 256 * g[0]
        sh = {1: 0, 2: 1, 4: 2}[n]
        GO, XA1, XA2, YA_, OO = 128 + gi, 133 + gi, 138 + gi, 143 + gi, 148 + gi
        EA[gi] = (GO, XA1, XA2, YA_, OO)
        a(f"v_lshlrev_b32 v8, {sh}, v0")
        a(f"v_add_u32 v8, {R0}, v8")
        a(f"v_lshlrev_b32 v{GO}, 3, v8")
        a(f"v_lshlrev_b32 v{XA1}, 1, v8")
        a(f"v_add_u32 v{XA2}, {2*CONV}, v{XA1}")
        a("v_lshrrev_b32 v9, 5, v8")
        a(f"v_lshl_add_u32 v9, v9, 3, v{XA1}")
        a(f"v_add_u32 v{YA_}, {YS}, v9")
        a(f"v_lshl_add_u32 v{OO}, v8, 10, s{S_T3}")
    if OPT["tw"]:
        a(f"s_cmp_lg_u32 s{S_W4}, 0")
        a("s_cbranch_scc1 L_notw")
        a("s_mov_b64 exec, 1")
        a(f"s_lshl_b32 s{S_T0}, s{S_PCG}, 18")
        a(f"s_lshl_b32 s{S_T1}, s{S_PTB}, 7")
        a(f"s_add_u32 s{S_T0}, s{S_T0}, s{S_T1}")
        a(f"v_mov_b32 v8, s{S_T0}")
        a(f"s_mov_b32 s{S_T2}, {hex(WS_KV)}")
        a(f"buffer_load_dword v60, v8, s[{R_WS}:{R_WS+3}], 0 offen nt")
        a(f"buffer_load_dword v61, v8, s[{R_WS}:{R_WS+3}], s{S_T2} offen nt")
        a(f"s_lshl_b32 s{S_T0}, s{S_PCG}, 12")
        a(f"s_add_u32 s{S_T0}, s{S_T0}, s{S_T1}")
        a(f"s_add_u32 s{S_T0}, s{S_T0}, {hex(WS_FLAG)}")
        a(f"v_mov_b32 v8, s{S_T0}")
        a(f"buffer_load_dword v62, v8, s[{R_WS}:{R_WS+3}], 0 offen nt")
        a(f"s_lshl_b32 s{S_T0}, s2, 13")
        a(f"v_mov_b32 v8, s{S_T0}")
        a(f"buffer_load_dword v63, v8, s[{R_OUT}:{R_OUT+3}], 0 offen nt")
        a(f"global_load_dword v64, v2, s[{P_SSMK}:{P_SSMK+1}]")
        a(f"global_load_dword v65, v6, s[{P_GW}:{P_GW+1}]")
        a("s_mov_b64 exec, -1")
        a.lab("L_notw")
    a(f"s_load_dword s{S_RAWDS}, s[{P_DSK}:{P_DSK+1}], s{S_T3}")
    a(f"s_load_dword s{S_RAWDM}, s[{P_SSMD}:{P_SSMD+1}], s{S_T3}")
    def ssmk_loads():
        NT = " nt" if OPT["nt"] & 2 else ""
        a(f"global_load_dwordx4 v[68:71], v2, s[{P_SSMK}:{P_SSMK+1}]{NT}")
        a(f"global_load_dwordx4 v[74:77], v3, s[{P_SSMK}:{P_SSMK+1}]{NT}")
        a(f"global_load_dword v67, v4, s[{P_SSMK}:{P_SSMK+1}]{NT}")
        a(f"global_load_dword v73, v3, s[{P_SSMK}:{P_SSMK+1}] offset:-4{NT}")

    def gate_loads():
        NT = " nt" if OPT["nt"] & 8 else ""
        a(f"global_load_dwordx4 v[80:83], v5, s[{P_U}:{P_U+1}]{NT}")
        a(f"global_load_dwordx4 v[84:87], v5, s[{P_U}:{P_U+1}] offset:1024{NT}")
        a(f"global_load_dwordx4 v[88:91], v6, s[{P_GW}:{P_GW+1}]")
        a(f"buffer_load_dwordx2 v[52:53], v56, s[{R_DBG}:{R_DBG+3}], 0 offen{SC}")

    def ssmk_copies():
        a.c("---- ssm_k -> LDS (reversed, 4 copies)")
        a("v_cmp_eq_u32 vcc, 0, v0")
        a("s_nop 1")
        for ch in range(2):
            q = 2 + ch
            L = 68 + 6 * ch
            P3, P2 = 20 + 8 * ch, 24 + 8 * ch
            a(f"v_cndmask_b32 v{L-1}, v{L-1}, 0, vcc")
            for d in range(4):
                a(f"v_alignbit_b32 v{P3+d}, v{L+3-d}, v{L+3-d}, 16")
                a(f"v_bfi_b32 v{P2+d}, s{S_LO}, v{L+3-d}, v{L+2-d}")
            a(f"v_add_u32 v{36+ch}, {KR(q,0)}, v9")
            k_copies(a, 36 + ch, P3, P2)

    def gate_part():
        nonce_check(a, "a", 52, 56)
        a.c("---- gate")
        gate_compute(a, 80, 88, 100)
        a("s_mov_b32 exec_lo, 0")
        a("s_mov_b32 exec_hi, 0x80000000")
        a(f"buffer_store_dwordx4 v[100:103], v7, s[{R_WS}:{R_WS+3}], 0 offen{SC}")
        a("s_mov_b64 exec, -1")

    a("v_lshlrev_b32 v9, 4, v0")
    a("v_sub_u32 v9, 4076, v9")
    M = OPT["auxmode"]
    if M in (1, 2, 3, 4):
        ssmk_loads()
    if M == 1:
        gate_loads()
    if M in (0, 2, 5, 6):
        a(f"v_mov_b32 v12, {C_P1 if M in (0, 2) else C_SIG}")
        lds_spin(a, "L_aspin", 12, 8, 4 if M != 6 else 1, sleep=2)
        stamp(a, 2)
        gate_loads()
        if M != 2:
            ssmk_loads()
    a("s_waitcnt lgkmcnt(0)")
    a(f"s_lshl_b32 s{S_DS}, s{S_RAWDS}, 16")
    a(f"s_and_b32 s{S_DS+1}, s{S_RAWDS}, s{S_HI}")
    a(f"s_lshl_b32 s{S_DM}, s{S_RAWDM}, 16")
    a(f"s_and_b32 s{S_DM+1}, s{S_RAWDM}, s{S_HI}")
    if M in (0, 5, 6):
        gate_part()
        stamp(a, 3)
        ssmk_copies()
    elif M in (1, 2):
        a("s_waitcnt vmcnt(4)")
        stamp(a, 3)
        ssmk_copies()
        gate_part()
    elif M == 3:
        a("s_waitcnt vmcnt(0)")
        stamp(a, 3)
        ssmk_copies()
        a(f"v_mov_b32 v12, {C_SIG}")
        lds_spin(a, "L_aspin", 12, 8, 4, sleep=2)
        gate_loads()
        gate_part()
    else:
        a("s_waitcnt vmcnt(0)")
        stamp(a, 3)
        ssmk_copies()
    stamp(a, 4)
    expansion(a, "a")
    a("s_waitcnt lgkmcnt(0)")
    stamp(a, 9)
    GR = 20
    XR = 36

    def gloads():
        pos = 0
        for gi, g in enumerate(grp):
            n = len(g)
            for h in range(n // 2):
                a(f"buffer_load_dwordx4 {vr(GR+2*pos+4*h,4)}, v{EA[gi][0]}, s[{R_WS}:{R_WS+3}], s{S_T2} offen offset:{16*h}{SC}")
            if n == 1:
                a(f"buffer_load_dwordx2 {vr(GR+2*pos,2)}, v{EA[gi][0]}, s[{R_WS}:{R_WS+3}], s{S_T2} offen{SC}")
            pos += n

    a(f"s_mov_b32 s{S_T2}, {hex(WS_G)}")
    a("s_barrier")
    stamp(a, 10)
    if OPT["hprio"]:
        a(f"s_setprio {OPT['hprio']}")
    if M == 4:
        gate_loads()
        gate_part()
    gloads()
    pos = 0
    for gi, g in enumerate(grp):
        n = len(g)
        lop = {1: "u16_d16_hi" if pos & 1 else "u16_d16", 2: "b32", 4: "b64"}[n]
        for q in range(4):
            a(f"ds_read_{lop} {vr(XR+4*q+pos//2,max(1,n//2))}, v{EA[gi][1 if q < 2 else 2]} offset:{XB(q&1)+XD}")
        pos += n
    assert pos == 8
    PR = 52
    a("s_waitcnt lgkmcnt(0)")
    for r in range(8):
        B = PR + 6 * r
        U, UD, UK = B, B + 2, B + 4
        for ch in range(2):
            ext(a, U + ch, XR + 4 * ch + r // 2, r & 1)
            ext(a, UK + ch, XR + 4 * (2 + ch) + r // 2, r & 1)
        for ch in range(2):
            a(f"v_mul_f32 v{UD+ch}, s{S_DS+ch}, v{U+ch}")
            a(f"v_mul_f32 v{UK+ch}, s{S_DM+ch}, v{UK+ch}")
    a(f"s_mov_b32 s{S_SPIN}, 0")
    a("s_branch L_gchk")
    a.lab("L_gpoll")
    a("s_sleep 4")
    gloads()
    a(f"s_add_u32 s{S_SPIN}, s{S_SPIN}, 1")
    a.lab("L_gchk")
    a("s_waitcnt vmcnt(0)")
    a(f"v_xor_b32 v8, s{S_NON}, v{GR+1}")
    for r in range(1, 8):
        a(f"v_xor_b32 v9, s{S_NON}, v{GR+2*r+1}")
        a("v_or_b32 v8, v8, v9")
    a("v_cmp_ne_u32 vcc, 0, v8")
    a(f"s_cmp_ge_u32 s{S_SPIN}, {hex(SPIN_MAX)}")
    a("s_cbranch_scc1 L_gpoll_done")
    a("s_cmp_eq_u64 vcc, 0")
    a("s_cbranch_scc0 L_gpoll")
    a.lab("L_gpoll_done")
    stamp(a, 11)
    for r in range(8):
        B = PR + 6 * r
        U, UD, UK = B, B + 2, B + 4
        G0, G1 = GR + 2 * r, GR + 2 * r + 1
        a(f"v_and_b32 v{G1}, s{S_HI}, v{G0}")
        a(f"v_lshlrev_b32 v{G0}, 16, v{G0}")
        for ch in range(2):
            a(f"v_mul_f32 v{U+ch}, v{U+ch}, v{G1}")
            a(f"v_mul_f32 v{UD+ch}, v{UD+ch}, v{G0}")
        for ch in range(2):
            a(f"v_fmac_f32 v{UD+ch}, v{UK+ch}, v{U+ch}")
    a(f"v_mov_b32 v5, {C_Y}")
    pos = 0
    for gi, g in enumerate(grp):
        n = len(g)
        a(f"s_mov_b32 s{S_SPIN}, 0")
        a.lab(f"L_yspin{gi}")
        a(f"ds_read_b128 v[104:107], v5 offset:{16*gi}")
        a(f"s_add_u32 s{S_SPIN}, s{S_SPIN}, 1")
        a("s_waitcnt lgkmcnt(0)")
        a("v_min_u32 v104, v104, v105")
        a("v_min3_u32 v104, v104, v106, v107")
        a(f"s_cmp_ge_u32 s{S_SPIN}, {hex(SPIN_MAX*8)}")
        a(f"v_readfirstlane_b32 s{S_T0}, v104")
        a(f"s_cbranch_scc1 L_yspin{gi}_done")
        a(f"s_cmp_lg_u32 s{S_T0}, 0")
        a(f"s_cbranch_scc1 L_yspin{gi}_done")
        a(f"s_sleep {OPT['ysleep']}")
        a(f"s_branch L_yspin{gi}")
        a.lab(f"L_yspin{gi}_done")
        stamp(a, min(12 + gi, 14))
        lop = {1: "u16", 2: "b32", 4: "b64"}[n]
        YR = 108
        for q in range(4):
            a(f"ds_read_{lop} {vr(YR+2*q,max(1,n//2))}, v{EA[gi][3]} offset:{YSZ*q}")
        a("s_waitcnt lgkmcnt(0)")
        for k in range(n):
            r = pos + k
            B = PR + 6 * r
            CB, P = B, B + 2
            G0 = GR + 2 * r
            YA, YB = 116 + 4 * (k & 1), 118 + 4 * (k & 1)
            for ch in range(2):
                ext(a, YA + ch, YR + 2 * ch + k // 2, k & 1)
                ext(a, YB + ch, YR + 2 * (2 + ch) + k // 2, k & 1)
            for ch in range(2):
                a(f"v_fmac_f32 v{P+ch}, v{YA+ch}, v{G0}")
            for ch in range(2):
                a(f"v_fmac_f32 v{P+ch}, v{YB+ch}, v{CB+ch}")
            a(f"v_cvt_pk_bf16_f32 v{P}, v{P}, v{P+1}")
            a(f"buffer_store_dword v{P}, v{EA[gi][4]}, s[{R_OUT}:{R_OUT+3}], 0 offen offset:{1024*k}")
        pos += n
    stamp_out(a)


def kd(name):
    return f""".section .rodata,"a"
.p2align 6
.amdhsa_kernel {name}
  .amdhsa_next_free_vgpr {NV}
  .amdhsa_next_free_sgpr 102
  .amdhsa_accum_offset {NV}
  .amdhsa_group_segment_fixed_size 0
  .amdhsa_kernarg_size 136
  .amdhsa_user_sgpr_count 2
  .amdhsa_user_sgpr_kernarg_segment_ptr 1
  .amdhsa_system_sgpr_workgroup_id_x 1
  .amdhsa_float_denorm_mode_32 3
.end_amdhsa_kernel
"""


def gen():
    out = [f"; @launch grid=(256,1,1) block=(768,1,1) lds={LDS_TOTAL}\n",
           '.amdgcn_target "amdgcn-amd-amdhsa--gfx950"\n.text\n',
           f".globl {NAME}_kernel\n.p2align 8\n.type {NAME}_kernel,@function\n{NAME}_kernel:\n"]
    a = A()
    prologue(a)
    data_waves(a)
    a.lab("L_kgen")
    kgen_waves(a)
    a.lab("L_aux")
    aux_waves(a)
    a.lab("L_end")
    a("s_endpgm")
    out.append(a.text())
    out.append(kd(NAME + "_kernel"))
    return "".join(out)


if __name__ == "__main__":
    outp = sys.argv[1] if len(sys.argv) > 1 else f"cdna_kernels/{NAME}.s"
    for x in sys.argv[2:]:
        k, v = x.split("=")
        OPT[k] = v if k in ("groups", "plan", "order") else int(v)
    txt = gen()
    open(outp, "w").write(txt)
    print("wrote", outp, len(txt), "bytes; LDS", LDS_TOTAL)
```

```python
import sys, struct

NAME = "gated_mix__ssm_conv_s4d__ssm_conv_h3__prompt"
OPT = dict(stamp=0, groups="0123,4567", pollsleep=2, hprio=2, map=0, dprio=2, wslack=5, fullflag=1, frac=100, auxmode=0, plan="", exp=0, tw=0, nt=0, fwarm=0, pdelay=0, cprio=0, nonop=0, ysleep=1, sched=0, order="", lead=10, boost=110, pre=9, gearly=0)
NV = 168
VST, VST2 = 167, 166


def f2u(x):
    return struct.unpack("<I", struct.pack("<f", x))[0]


class A:
    def __init__(self):
        self.l = []

    def __call__(self, s):
        self.l.append("    " + s)

    def lab(self, s):
        self.l.append(s + ":")

    def c(self, s):
        self.l.append("    ; " + s)

    def text(self):
        return "\n".join(self.l) + "\n"


def vr(a, n=1):
    assert a + n <= NV, (a, n)
    return f"v{a}" if n == 1 else f"v[{a}:{a+n-1}]"


def sr(a, n=1):
    return f"s{a}" if n == 1 else f"s[{a}:{a+n-1}]"


KSTR = 4160
XSTR = 4640
CONV = 16 + 4 * KSTR + 2 * XSTR
assert CONV % 16 == 0
def KR(q, s): return q * CONV + 16 + s * KSTR
def XB(q): return q * CONV + 16 + 4 * KSTR
XD = XSTR + 448
KC = 4 * CONV
KCSZ = 776 * 8
TBL = KC + 2 * KCSZ
TBLSZ = 16 * 288
CNT = TBL + 4 * TBLSZ
YS = CNT + 256
YSZ = 8 * 576
P1S = YS - 640
P1K, P1V, P1U = P1S + 1024, P1S + 9216, P1S + 17408
LDS_TOTAL = P1S + 25600
assert LDS_TOTAL <= 163840, LDS_TOTAL
IDXBIAS = 8 * 0x4280
C_SIG, C_P1, C_KG, C_Y = CNT, CNT + 4, CNT + 16, CNT + 32

WS_KV = 0x200000
WS_G = 0x400000
WS_FLAG = 0x410000
WS_ST = 0x600000
WS_SIZE = 0x800000

P_U, P_LAR, P_AIM, P_CR, P_CI, P_LDT, P_DSK, P_Q = 16, 18, 20, 22, 24, 26, 28, 30
P_K, P_V, P_SHK, P_SSMK, P_SSMD, P_GW, P_OUT, P_DBG = 32, 34, 36, 38, 40, 42, 44, 46
P_WS = 48
S_WV, S_CG, S_TB, S_D0 = 3, 4, 5, 6
S_PCG, S_PTB, S_GB, S_W4 = 7, 98, 99, 100
S_HI, S_LO = 50, 51
S_T0, S_T1, S_T2, S_T3 = 8, 9, 10, 11
R_U, R_K, R_V, R_WS, R_OUT, R_DBG = 52, 56, 60, 64, 68, 72
S_SELLO, S_SELHI, S_4096, S_KV0, S_KV1 = 76, 77, 78, 79, 80
S_DS, S_DM = 82, 84
S_RAWDS, S_RAWDM = 86, 87
S_SC, S_ISC = 89, 90
S_SPIN = 91
S_KC, S_HM = 92, 93
S_PC = 12
S_NON = 14

L2E = 0x3FB8AA3B
L2E_LO = 0x32A57060
LN2 = 0x3F317218
SPIN_MAX = 0x40000
SC = " sc1"


def stamp(a, idx):
    if not OPT["stamp"]:
        return
    a("s_memrealtime s[94:95]")
    a("s_memtime s[96:97]")
    a("s_waitcnt lgkmcnt(0)")
    a(f"v_writelane_b32 v{VST}, s94, {idx}")
    a(f"v_writelane_b32 v{VST}, s96, {32+idx}")


def stamp_out(a):
    if not OPT["stamp"]:
        return
    a("s_waitcnt vmcnt(0)")
    stamp(a, 15)
    a(f"s_lshl_b32 s{S_T0}, s2, 4")
    a(f"s_add_u32 s{S_T0}, s{S_T0}, s{S_WV}")
    a(f"s_lshl_b32 s{S_T0}, s{S_T0}, 8")
    a(f"s_add_u32 s{S_T0}, s{S_T0}, {hex(WS_ST)}")
    a(f"v_lshl_add_u32 v{VST2}, v1, 2, s{S_T0}")
    a(f"buffer_store_dword v{VST}, v{VST2}, s[{R_WS}:{R_WS+3}], 0 offen")


def srd(a, r, p, size):
    a(f"s_mov_b32 s{r}, s{p}")
    a(f"s_and_b32 s{r+1}, s{p+1}, 0xffff")
    a(f"s_mov_b32 s{r+2}, {hex(size)}")
    a(f"s_mov_b32 s{r+3}, 0x20000")


def rnd(a, d, s):
    a(f"v_cvt_pk_bf16_f32 v{d}, 0, v{s}")


def unpack2(a, d, s):
    a(f"v_lshlrev_b32 v{d}, 16, v{s}")
    a(f"v_and_b32 v{d+1}, s{S_HI}, v{s}")


def ext(a, d, reg, hi):
    if hi:
        a(f"v_and_b32 v{d}, s{S_HI}, v{reg}")
    else:
        a(f"v_lshlrev_b32 v{d}, 16, v{reg}")


def cmul_ops(d, x, y):
    assert d not in (x, y) and d % 2 == 0 and x % 2 == 0 and y % 2 == 0
    return [f"v_pk_mul_f32 {vr(d,2)}, {vr(x,2)}, {vr(y,2)} op_sel:[0,0] op_sel_hi:[1,0]",
            f"v_fma_f32 v{d}, -v{x+1}, v{y+1}, v{d}",
            f"v_fmac_f32 v{d+1}, v{x}, v{y+1}"]


def interleave(a, chains):
    chains = [list(c) for c in chains]
    while any(chains):
        for c in chains:
            if c:
                a(c.pop(0))


def groups():
    return [[int(ch) for ch in g] for g in OPT["groups"].split(",")]


def lds_spin(a, lab, vaddr, vtmp, val, sleep=0):
    a(f"s_mov_b32 s{S_SPIN}, 0")
    a.lab(lab)
    a(f"ds_read_b32 v{vtmp}, v{vaddr}")
    a(f"s_add_u32 s{S_SPIN}, s{S_SPIN}, 1")
    a("s_waitcnt lgkmcnt(0)")
    a(f"v_readfirstlane_b32 s{S_T0}, v{vtmp}")
    a(f"s_cmp_ge_u32 s{S_SPIN}, {hex(SPIN_MAX*8)}")
    a(f"s_cbranch_scc1 {lab}_done")
    a(f"s_cmp_ge_u32 s{S_T0}, {val}")
    a(f"s_cbranch_scc1 {lab}_done")
    if sleep:
        a(f"s_sleep {sleep}")
    a(f"s_branch {lab}")
    a.lab(lab + "_done")


def nonce_check(a, tag, vn, vzero):
    a(f"s_mov_b32 s{S_SPIN}, 0")
    a(f"s_branch L_nchk_{tag}")
    a.lab(f"L_npoll_{tag}")
    a(f"buffer_load_dwordx2 {vr(vn,2)}, v{vzero}, s[{R_DBG}:{R_DBG+3}], 0 offen{SC}")
    a(f"s_add_u32 s{S_SPIN}, s{S_SPIN}, 1")
    a.lab(f"L_nchk_{tag}")
    a("s_waitcnt vmcnt(0)")
    a(f"v_readfirstlane_b32 s{S_NON}, v{vn}")
    a(f"v_readfirstlane_b32 s{S_NON+1}, v{vn+1}")
    a(f"s_cmp_ge_u32 s{S_SPIN}, {hex(SPIN_MAX)}")
    a(f"s_cbranch_scc1 L_npoll_done_{tag}")
    a(f"s_cmp_eq_u32 s{S_NON}, 0")
    a(f"s_cbranch_scc1 L_npoll_{tag}")
    a.lab(f"L_npoll_done_{tag}")


def k_copies(a, vaddr, P3, P2):
    a(f"ds_write_b128 v{vaddr}, {vr(P3,4)} offset:{3*KSTR+4}")
    a(f"ds_write_b128 v{vaddr}, {vr(P2,4)} offset:{2*KSTR+4}")
    a(f"ds_write2_b32 v{vaddr}, v{P2}, v{P2+1} offset0:0 offset1:1")
    a(f"ds_write2_b32 v{vaddr}, v{P2+2}, v{P2+3} offset0:2 offset1:3")
    a(f"v_add_u32 v{vaddr}, {KSTR}, v{vaddr}")
    a(f"ds_write2_b32 v{vaddr}, v{P3}, v{P3+1} offset0:0 offset1:1")
    a(f"ds_write2_b32 v{vaddr}, v{P3+2}, v{P3+3} offset0:2 offset1:3")


def prologue(a):
    if OPT["stamp"]:
        a("s_memrealtime s[88:89]")
    a("s_cmp_ge_u32 s2, 256")
    a("s_cbranch_scc1 L_end")
    a("s_load_dwordx16 s[16:31], s[0:1], 0")
    a("s_load_dwordx16 s[32:47], s[0:1], 64")
    a("s_load_dwordx2 s[48:49], s[0:1], 128")
    a(f"s_getpc_b64 s[{S_PC}:{S_PC+1}]")
    a.lab("L_pc0")
    a("v_lshlrev_b32 v2, 5, v0")
    a("v_min_u32 v2, L_end-L_pc0, v2")
    a(f"global_load_dword v165, v2, s[{S_PC}:{S_PC+1}]")
    a("v_lshrrev_b32 v1, 6, v0")
    a(f"s_and_b32 s{S_CG}, s2, 7")
    a(f"v_readfirstlane_b32 s{S_WV}, v1")
    a("v_and_b32 v1, 63, v0")
    a("v_and_b32 v0, 0xff, v0")
    a(f"s_lshr_b32 s{S_TB}, s2, 3")
    a(f"s_lshl_b32 s{S_D0}, s{S_CG}, 6")
    a(f"s_lshl_b32 s{S_T0}, s{S_TB}, 1")
    a(f"s_add_u32 s{S_D0}, s{S_D0}, s{S_T0}")
    a(f"s_mov_b32 s{S_HI}, 0xffff0000")
    a(f"s_mov_b32 s{S_LO}, 0xffff")
    a(f"s_and_b32 s{S_W4}, s{S_WV}, 3")
    if OPT["map"] == 0:
        a(f"s_mov_b32 s{S_PCG}, s{S_CG}")
        a(f"s_mov_b32 s{S_PTB}, s{S_TB}")
    else:
        a(f"s_and_b32 s{S_PCG}, s{S_TB}, 7")
        a(f"s_lshr_b32 s{S_T0}, s2, 6")
        a(f"s_lshl_b32 s{S_T0}, s{S_T0}, 3")
        a(f"s_add_u32 s{S_PTB}, s{S_T0}, s{S_CG}")
    a(f"s_lshl_b32 s{S_GB}, s{S_PTB}, 3")
    a(f"s_add_u32 s{S_GB}, s{S_GB}, s{S_PCG}")
    if OPT["stamp"]:
        a(f"v_mov_b32 v{VST}, 0")
        stamp(a, 5)
        a(f"v_writelane_b32 v{VST}, s88, 0")
    a(f"s_cmp_ge_u32 s{S_WV}, 8")
    a("s_cbranch_scc1 L_aux")
    a(f"s_cmp_ge_u32 s{S_WV}, 4")
    a("s_cbranch_scc1 L_kgen")


def data_waves(a):
    a.c("==== data waves")
    if OPT["dprio"]:
        a(f"s_setprio {OPT['dprio']}")
    a("v_and_b32 v57, 7, v1")
    a("v_lshrrev_b32 v7, 3, v1")
    a(f"v_xor_b32 v9, s{S_WV}, v57")
    a(f"s_lshl_b32 s{S_T0}, s{S_PTB}, 16")
    a(f"s_lshl_b32 s{S_T1}, s{S_PCG}, 7")
    a(f"s_add_u32 s{S_T0}, s{S_T0}, s{S_T1}")
    a(f"s_lshl_b32 s{S_T1}, s{S_WV}, 13")
    a(f"s_add_u32 s{S_T0}, s{S_T0}, s{S_T1}")
    a(f"v_lshl_add_u32 v8, v7, 10, s{S_T0}")
    a("v_lshl_add_u32 v8, v9, 4, v8")
    a("v_xor_b32 v58, 64, v8")
    a("v_subrev_u32 v9, 0x8000, v58")
    a(f"s_lshl_b32 s{S_T0}, s{S_WV}, 3")
    a(f"v_add_u32 v6, s{S_T0}, v7")
    a(f"s_lshl_b32 s{S_T1}, s{S_PCG}, 9")
    a(f"v_lshl_add_u32 v10, v6, 4, s{S_T1}")
    a(f"s_movk_i32 s{S_4096}, 0x1000")
    a(f"s_mov_b32 s{S_KV0}, 0x8000")
    a(f"s_lshl_b32 s{S_T3}, s{S_WV}, 10")
    a(f"s_memrealtime s[{S_NON}:{S_NON+1}]")
    a("s_waitcnt lgkmcnt(0)")
    srd(a, R_K, P_K, 0x200000)
    a(f"s_cmp_lg_u32 s{S_WV}, 3")
    a("s_cbranch_scc1 L_nohalo")
    a(f"s_mov_b32 m0, {P1K-1024}")
    a("s_mov_b32 exec_lo, 0")
    a("s_mov_b32 exec_hi, 0xffffff00")
    a(f"buffer_load_dwordx4 v9, s[{R_K}:{R_K+3}], 0 offen lds")
    a("s_mov_b64 exec, -1")
    a.lab("L_nohalo")
    for base, R, P in ((P1K, R_K, None), (P1V, R_V, P_V), (P1U, R_U, P_U)):
        if P is not None:
            srd(a, R, P, 0x200000)
        a(f"s_add_u32 m0, s{S_T3}, {base}")
        a("s_nop 0")
        NT = " nt" if (OPT["nt"] & 1) and (R != R_U or OPT["nt"] & 4) else ""
        a(f"buffer_load_dwordx4 v8, s[{R}:{R+3}], 0 offen{NT} lds")
        a(f"s_add_u32 m0, s{S_T3}, {base+4096}")
        a("s_nop 0")
        a(f"buffer_load_dwordx4 v58, s[{R}:{R+3}], s{S_KV0} offen{NT} lds")
    a(f"global_load_dwordx4 v[48:51], v10, s[{P_SHK}:{P_SHK+1}]")
    stamp(a, 10)
    srd(a, R_DBG, P_DBG, 256)
    a("v_mov_b32 v56, 0")
    a(f"s_or_b32 s{S_T0}, s{S_WV}, s2")
    a(f"s_cmp_lg_u32 s{S_T0}, 0")
    a("s_cbranch_scc1 L_nonon")
    a(f"s_or_b32 s{S_NON}, s{S_NON}, 1")
    a(f"v_mov_b32 v52, s{S_NON}")
    a(f"v_mov_b32 v53, s{S_NON+1}")
    a("s_mov_b64 exec, 1")
    a(f"buffer_store_dwordx2 v[52:53], v56, s[{R_DBG}:{R_DBG+3}], 0 offen{SC}")
    a("s_mov_b64 exec, -1")
    a.lab("L_nonon")
    srd(a, R_WS, P_WS, WS_SIZE)
    a(f"s_mov_b32 s{S_SELLO}, 0x05040100")
    a(f"s_mov_b32 s{S_SELHI}, 0x07060302")
    a(f"s_mov_b32 s{S_KV0}, {hex(WS_KV)}")
    a(f"s_mov_b32 s{S_KV1}, {hex(WS_KV+4096)}")
    a(f"s_lshl_b32 s{S_T0}, s{S_PCG}, 18")
    a(f"s_lshl_b32 s{S_T1}, s{S_PTB}, 7")
    a(f"s_add_u32 s{S_T0}, s{S_T0}, s{S_T1}")
    a(f"v_lshl_add_u32 v10, v6, 13, s{S_T0}")
    a("v_lshl_add_u32 v10, v57, 4, v10")
    a("v_lshrrev_b32 v12, 2, v6")
    a("v_and_b32 v13, 3, v6")
    a("v_xor_b32 v16, v57, v12")
    a("v_lshlrev_b32 v8, 10, v57")
    a("v_lshl_add_u32 v8, v13, 2, v8")
    a(f"v_add_u32 v8, {P1S}, v8")
    a("v_add_u32 v15, 7, v57")
    a("v_and_b32 v15, 7, v15")
    a("v_xor_b32 v15, v15, v12")
    a("v_lshl_add_u32 v9, v15, 4, v8")
    a("v_lshl_add_u32 v8, v16, 4, v8")
    a(f"s_lshl_b32 s{S_T0}, s{S_D0}, 12")
    a(f"v_lshl_add_u32 v11, v0, 4, s{S_T0}")
    a("v_lshlrev_b32 v14, 4, v0")
    a(f"v_add_u32 v15, {2*CONV}, v14")
    a("v_and_b32 v19, 7, v1")
    a(f"s_lshl_b32 s{S_T0}, s{S_CG}, 12")
    a(f"s_lshl_b32 s{S_T1}, s{S_WV}, 10")
    a(f"s_add_u32 s{S_T0}, s{S_T0}, s{S_T1}")
    a(f"s_add_u32 s{S_T0}, s{S_T0}, {hex(WS_FLAG)}")
    a(f"v_lshl_add_u32 v19, v19, 7, s{S_T0}")
    a(f"s_lshl_b32 s{S_T0}, s{S_PCG}, 12")
    a(f"s_lshl_b32 s{S_T1}, s{S_PTB}, 7")
    a(f"s_add_u32 s{S_T0}, s{S_T0}, s{S_T1}")
    a(f"s_add_u32 s{S_T0}, s{S_T0}, {hex(WS_FLAG)}")
    if OPT["fullflag"]:
        a(f"v_lshl_add_u32 v18, v1, 3, s{S_T0}")
    else:
        a(f"v_mov_b32 v18, s{S_T0}")
    if OPT["fwarm"]:
        a(f"s_cmp_lg_u32 s{S_WV}, 1")
        a("s_cbranch_scc1 L_nofw")
        a("v_mov_b32 v44, 0")
        a("v_mov_b32 v45, 0")
        a("s_mov_b64 exec, 0xffff")
        a(f"buffer_store_dwordx2 v[44:45], v18, s[{R_WS}:{R_WS+3}], 0 offen{SC}")
        a("s_mov_b64 exec, -1")
        a.lab("L_nofw")
    conv_setup(a)
    a(f"v_mov_b32 v16, {C_SIG}")
    a("v_mov_b32 v17, 1")
    a("s_barrier")
    stamp(a, 1)
    a("s_waitcnt vmcnt(0)")
    a("s_mov_b64 exec, 1")
    a("ds_add_u32 v16, v17 offset:4")
    a("s_mov_b64 exec, -1")
    a(f"buffer_load_dwordx2 v[52:53], v56, s[{R_DBG}:{R_DBG+3}], 0 offen{SC}")
    SP = 60
    a(f"v_lshlrev_b32 v{SP+0}, 16, v48")
    a(f"v_lshlrev_b32 v{SP+1}, 16, v50")
    a(f"v_and_b32 v{SP+2}, s{S_HI}, v48")
    a(f"v_and_b32 v{SP+3}, s{S_HI}, v50")
    a(f"v_lshlrev_b32 v{SP+4}, 16, v49")
    a(f"v_lshlrev_b32 v{SP+5}, 16, v51")
    a(f"v_and_b32 v{SP+6}, s{S_HI}, v49")
    a(f"v_and_b32 v{SP+7}, s{S_HI}, v51")
    a(f"v_mov_b32 v12, {C_P1}")
    lds_spin(a, "L_p1spin", 12, 13, 4)
    stamp(a, 2)
    for j in range(8):
        a(f"ds_read_b32 v{39+j}, v8 offset:{P1U-P1S+j*128}")
    for j in range(3):
        a(f"ds_read_b32 v{20+j}, v9 offset:{(5+j)*128}")
    for base, off in ((23, P1K), (31, P1V)):
        for j in range(8):
            a(f"ds_read_b32 v{base+j}, v8 offset:{off-P1S+j*128}")
    a("s_waitcnt lgkmcnt(15)")
    O2 = 130
    for ch, sel in ((0, S_SELLO), (1, S_SELHI)):
        for j in range(4):
            a(f"v_perm_b32 v{O2+4*ch+j}, v{39+2*j+1}, v{39+2*j}, s{sel}")
        so = "0" if ch == 0 else f"s{S_4096}"
        a(f"buffer_store_dwordx4 {vr(O2+4*ch,4)}, v10, s[{R_WS}:{R_WS+3}], {so} offen{SC}")
    KP = 68
    a("s_waitcnt lgkmcnt(8)")
    for i in range(11):
        unpack2(a, KP + 2 * i, 20 + i)
    ACC = 90
    T = 106
    for r in range(8):
        a(f"v_pk_mul_f32 {vr(ACC+2*r,2)}, {vr(KP+2*r,2)}, {vr(SP+6,2)}")
    for j in (1, 2, 3):
        for r in range(8):
            a(f"v_pk_fma_f32 {vr(ACC+2*r,2)}, {vr(KP+2*(r+j),2)}, {vr(SP+6-2*j,2)}, {vr(ACC+2*r,2)}")
    a("s_waitcnt lgkmcnt(0)")
    for r in range(8):
        unpack2(a, T + 2 * r, 31 + r)
    for r in range(8):
        a(f"v_pk_mul_f32 {vr(ACC+2*r,2)}, {vr(ACC+2*r,2)}, {vr(T+2*r,2)}")
    O = 122
    for ch in range(2):
        for j in range(4):
            a(f"v_cvt_pk_bf16_f32 v{O+4*ch+j}, v{ACC+2*(2*j)+ch}, v{ACC+2*(2*j+1)+ch}")
        so = S_KV0 if ch == 0 else S_KV1
        a(f"buffer_store_dwordx4 {vr(O+4*ch,4)}, v10, s[{R_WS}:{R_WS+3}], s{so} offen{SC}")
    stamp(a, 3)
    nonce_check(a, "d", 52, 56)
    stamp(a, 4)
    a.c("---- signal")
    a("s_mov_b64 exec, 1")
    a("ds_add_rtn_u32 v13, v16, v17")
    a("s_waitcnt lgkmcnt(0)")
    a(f"v_readfirstlane_b32 s{S_T1}, v13")
    a(f"s_cmp_lg_u32 s{S_T1}, 3")
    a("s_cbranch_scc1 L_nosig")
    if OPT["fullflag"]:
        a("s_mov_b64 exec, 0xffff")
    a(f"buffer_store_dwordx2 v[52:53], v18, s[{R_WS}:{R_WS+3}], 0 offen{SC}")
    a.lab("L_nosig")
    a("s_mov_b64 exec, -1")
    a.c("---- wait for this wave's 8 producers")
    if OPT["pdelay"]:
        a(f"s_sleep {OPT['pdelay']}")
    a(f"s_mov_b32 s{S_SPIN}, 0")
    a.lab("L_poll")
    a(f"buffer_load_dwordx2 v[40:41], v19, s[{R_WS}:{R_WS+3}], 0 offen{SC}")
    a(f"s_add_u32 s{S_SPIN}, s{S_SPIN}, 1")
    a("s_waitcnt vmcnt(0)")
    a(f"v_cmp_ne_u64 vcc, s[{S_NON}:{S_NON+1}], v[40:41]")
    a(f"s_cmp_ge_u32 s{S_SPIN}, {hex(SPIN_MAX)}")
    a("s_cbranch_scc1 L_poll_done")
    a("s_cmp_eq_u64 vcc, 0")
    a("s_cbranch_scc1 L_poll_done")
    if OPT["pollsleep"]:
        a(f"s_sleep {OPT['pollsleep']}")
    a("s_branch L_poll")
    a.lab("L_poll_done")
    stamp(a, 6)
    a.c("---- phase 2 loads")
    sofs = ["0", f"s{S_4096}", f"s{S_KV0}", f"s{S_KV1}"]
    for q in range(4):
        a(f"buffer_load_dwordx4 {vr(20+4*q,4)}, v11, s[{R_WS}:{R_WS+3}], {sofs[q]} offen{SC}")
    for q in range(4):
        a(f"s_waitcnt vmcnt({3-q})")
        ad = "v14" if q < 2 else "v15"
        a(f"ds_write_b128 {ad}, {vr(20+4*q,4)} offset:{XB(q&1)+XD}")
        a(f"ds_write_b64 {ad}, {vr(20+4*q,2)} offset:{XB(q&1)+456}")
        a(f"ds_write_b64 {ad}, {vr(22+4*q,2)} offset:{XB(q&1)+464}")
    a("s_waitcnt lgkmcnt(0)")
    stamp(a, 7)
    if OPT["dprio"]:
        a(f"s_setprio {OPT['cprio']}")
    a("s_barrier")
    stamp(a, 8)
    if OPT["exp"]:
        a(f"s_cmp_lt_u32 s{S_WV}, 2")
        a("s_cbranch_scc1 L_convA")
    conv_main(a)
    if OPT["stamp"]:
        stamp(a, 9)
        stamp_out(a)
    a("s_endpgm")
    if OPT["exp"]:
        a.lab("L_convA")
        conv_main(a, OPT["exp"])
        if OPT["stamp"]:
            stamp(a, 9)
            stamp_out(a)
        a("s_endpgm")


def conv_setup(a):
    a.c("conv address setup, q = wave")
    a(f"s_mul_i32 s{S_T0}, s{S_WV}, {CONV}")
    a("v_and_b32 v12, 15, v1")
    a("v_lshrrev_b32 v13, 4, v1")
    a("v_and_b32 v16, 3, v12")
    a("v_lshrrev_b32 v17, 2, v12")
    a(f"v_mul_u32_u24 v2, {KSTR}, v16")
    a("v_lshl_add_u32 v2, v13, 4, v2")
    a("v_lshlrev_b32 v17, 4, v17")
    a("v_sub_u32 v2, v2, v17")
    a(f"s_add_u32 s{S_T1}, s{S_T0}, {KR(0,0)+48}")
    a(f"v_add_u32 v2, s{S_T1}, v2")
    a("v_and_b32 v16, 1, v12")
    a("v_lshrrev_b32 v17, 1, v12")
    a(f"v_mul_u32_u24 v3, {XSTR}, v16")
    a("v_lshl_add_u32 v3, v13, 4, v3")
    a("v_lshl_add_u32 v3, v17, 6, v3")
    a(f"s_add_u32 s{S_T1}, s{S_T0}, {XB(0)}")
    a(f"v_add_u32 v3, s{S_T1}, v3")
    a("v_mul_u32_u24 v4, 72, v17")
    a("v_lshl_add_u32 v4, v13, 4, v4")
    a("v_lshl_add_u32 v4, v16, 3, v4")
    a(f"s_mul_i32 s{S_T1}, s{S_WV}, {YSZ}")
    a(f"s_add_u32 s{S_T1}, s{S_T1}, {YS}")
    a(f"v_add_u32 v4, s{S_T1}, v4")
    a(f"s_lshl_b32 s{S_T1}, s{S_WV}, 2")
    a(f"s_add_u32 s{S_T1}, s{S_T1}, {C_Y}")
    a(f"v_mov_b32 v5, s{S_T1}")


def conv_main2(a):
    ACC = 6
    SLOTS = [38 + 4 * i for i in range(32)]
    grp = groups()
    steps = []
    for part in OPT["order"].split(","):
        tl, rr = part.split(":")
        for r in rr:
            steps.append(([int(c) for c in tl], int(r)))
    cov = {t: set() for t in range(8)}
    mf = []
    gdone = {}
    for si, (tl, r) in enumerate(steps):
        pairs = [(e1, tau - e1, tau) for tau in tl for e1 in range(tau + 1)]
        pairs.sort(key=lambda p: (max(p[0], p[1]), p[2]))
        for (e1, c1, tau) in pairs:
            mf.append((tau, ("F", si, r, e1), ("G", si, r, c1)))
        for t in tl:
            assert r not in cov[t]
            cov[t].add(r)
        for gi, g in enumerate(grp):
            if gi not in gdone.values() and all(len(cov[t]) == 8 for t in g):
                gdone[len(mf) - 1] = gi
    assert len(mf) == 288 and len(gdone) == len(grp)
    first, last = {}, {}
    for i, (tau, fk, gk) in enumerate(mf):
        for k in (fk, gk):
            first.setdefault(k, i)
            last[k] = i
    frs = sorted(first, key=lambda k: (first[k], k[0] == "F"))
    ninstr = len(frs)
    rate = ninstr / 288.0 * OPT["boost"] / 100.0
    free = list(SLOTS)
    reg = {}
    seq = [0]; done = [0]; when = {}

    def lds(sx, key=None):
        a(sx)
        if key is not None:
            when[key] = seq[0]
        seq[0] += 1

    def need(idx):
        if idx < done[0]:
            return
        n = min(seq[0] - idx - 1, OPT["wslack"] if seq[0] > 30 else 15)
        a(f"s_waitcnt lgkmcnt({n})")
        if not OPT["nonop"]:
            a("s_nop 0")
        done[0] = seq[0] - n

    def issue(k):
        rg = free.pop(0)
        reg[k] = rg
        _, si, r, i = k
        if k[0] == "G":
            lds(f"ds_read_b128 {vr(rg,4)}, v3 offset:{512*i+64*r}", k)
            return 1
        lds(f"ds_read_b128 {vr(rg,4)}, v2 offset:{512*(7-i)+64*r}", k)
        return 1

    a(".p2align 3")
    nxt = 0
    for _ in range(OPT["pre"]):
        issue(frs[nxt]); nxt += 1
    started = set(); pending = []; mark = [0]
    credit = 0.0
    for i, (tau, fk, gk) in enumerate(mf):
        while nxt < len(frs) and first[frs[nxt]] <= i:
            issue(frs[nxt]); nxt += 1
        need(max(when[fk], when[gk]))
        c = vr(ACC + 4 * tau, 4) if tau in started else "0"
        started.add(tau)
        a(f"v_mfma_f32_16x16x32_bf16 {vr(ACC+4*tau,4)}, {vr(reg[fk],4)}, {vr(reg[gk],4)}, {c}")
        for k in (fk, gk):
            if last[k] == i:
                free.append(reg[k])
        if pending and len(a.l) - mark[0] >= 9:
            for _ in range(2):
                if pending:
                    op = pending.pop(0)
                    if op.startswith("ds_"):
                        lds(op)
                    else:
                        a(op)
        credit = min(credit + rate, 3.0)
        while nxt < len(frs) and free and (credit >= 1.0 or first[frs[nxt]] - i <= OPT["lead"]):
            credit -= issue(frs[nxt]); nxt += 1
        if i in gdone:
            gi = gdone[i]
            assert not pending
            mark[0] = len(a.l)
            for tau2 in grp[gi]:
                c = ACC + 4 * tau2
                pending.append(f"v_cvt_pk_bf16_f32 v{c}, v{c}, v{c+1}")
                pending.append(f"v_cvt_pk_bf16_f32 v{c+1}, v{c+2}, v{c+3}")
                pending.append(f"ds_write_b64 v4, {vr(c,2)} offset:{576*tau2}")
            pending.append(f"ds_write_b32 v5, v5 offset:{16*gi}")
    a("s_nop 7")
    for op in pending:
        a(op)


def conv_main(a, emax=99):
    if OPT["sched"]:
        return conv_main2(a)
    ACC = 6
    BUF = [38, 102]
    grp = groups()
    steps = []
    if OPT["plan"]:
        for part in OPT["plan"].split(","):
            tl, rr = part.split(":")
            tl = [int(c) for c in tl]
            r0, r1 = [int(x) for x in rr.split("-")]
            per = 2 if max(tl) <= 3 else 1
            for r in range(r0, r1 + 1, per):
                steps.append((tl, list(range(r, r + per))))
    else:
        for g in grp:
            per = 2 if max(g) <= 3 else 1
            for r0 in range(0, 8, per):
                steps.append((g, list(range(r0, r0 + per))))
    last = {}
    cov = {t: set() for t in range(8)}
    for si, (tl, rs) in enumerate(steps):
        for t in tl:
            assert not (cov[t] & set(rs))
            cov[t] |= set(rs)
        for gi, g in enumerate(grp):
            if gi not in last and all(len(cov[t]) == 8 for t in g):
                last[gi] = si
    assert len(last) == len(grp)

    def step_plan(si):
        g, rs = steps[si]
        nfr = max(g) + 1
        b = BUF[si & 1]
        loads, mf = [], []
        for k, r in enumerate(rs):
            fb = b + 16 * k if len(rs) > 1 else b
            gb = b + 32 + (16 * k if len(rs) > 1 else 0)
            pairs = [(e1, tau - e1, tau) for tau in g for e1 in range(tau + 1) if e1 < emax]
            pairs.sort(key=lambda p: (max(p[0], p[1]), p[2]))
            for i in range(nfr):
                if any(p[1] == i for p in pairs):
                    loads.append((("G", k, i), f"ds_read_b128 {vr(gb+4*i,4)}, v3 offset:{512*i+64*r}"))
                if i >= emax:
                    continue
                loads.append((("F", k, i), f"ds_read_b128 {vr(fb+4*i,4)}, v2 offset:{512*(7-i)+64*r}"))
            for (e1, c1, tau) in pairs:
                mf.append((tau, ("F", k, e1), ("G", k, c1), fb + 4 * e1, gb + 4 * c1))
        return loads, mf

    plans = [step_plan(si) for si in range(len(steps))]
    seq = [0]
    done = [0]
    when = {}

    def lds(s, key=None):
        a(s)
        if key is not None:
            when[key] = seq[0]
        seq[0] += 1

    def need(idx):
        if idx < done[0]:
            return
        n = min(seq[0] - idx - 1, OPT["wslack"] if seq[0] > 30 else 15)
        a(f"s_waitcnt lgkmcnt({n})")
        if not OPT["nonop"]:
            a("s_nop 0")
        done[0] = seq[0] - n

    a(".p2align 3")
    for key, s in plans[0][0]:
        lds(s, (0,) + key)
    started = set()
    mark = [0]
    pending = []
    for si in range(len(steps)):
        loads, mf = plans[si]
        nl = list(plans[si + 1][0]) if si + 1 < len(steps) else []
        nm = len(mf)
        slots = max(1, nm * OPT["frac"] // 100)
        ntot = len(nl)
        for i, (tau, fk, gk, fr, gr) in enumerate(mf):
            need(max(when[(si,) + fk], when[(si,) + gk]))
            c = vr(ACC + 4 * tau, 4) if tau in started else "0"
            started.add(tau)
            a(f"v_mfma_f32_16x16x32_bf16 {vr(ACC+4*tau,4)}, {vr(fr,4)}, {vr(gr,4)}, {c}")
            if pending and len(a.l) - mark[0] >= 9:
                for _ in range(2):
                    if pending:
                        op = pending.pop(0)
                        if op.startswith("ds_"):
                            lds(op)
                        else:
                            a(op)
            want = min(ntot, -(-ntot * (i + 1) // slots))
            while ntot - len(nl) < want:
                key, s = nl.pop(0)
                lds(s, (si + 1,) + key)
        assert not nl
        for gi in [g_ for g_, l_ in last.items() if l_ == si]:
            assert not pending
            mark[0] = len(a.l)
            for tau in grp[gi]:
                c = ACC + 4 * tau
                pending.append(f"v_cvt_pk_bf16_f32 v{c}, v{c}, v{c+1}")
                pending.append(f"v_cvt_pk_bf16_f32 v{c+1}, v{c+2}, v{c+3}")
                pending.append(f"ds_write_b64 v4, {vr(c,2)} offset:{576*tau}")
            pending.append(f"ds_write_b32 v5, v5 offset:{16*gi}")
    a("s_nop 7")
    for op in pending:
        a(op)


XA = 154


def expansion_addr(a, g):
    a.c("expansion addresses")
    a(f"s_lshr_b32 s{S_KC}, s{S_W4}, 1")
    a(f"s_and_b32 s{S_HM}, s{S_W4}, 1")
    a(f"s_lshl_b32 s{S_T0}, s{S_HM}, 7")
    a(f"s_add_u32 s{S_T0}, s{S_T0}, {64*g}")
    a(f"v_add_u32 v12, s{S_T0}, v1")
    a(f"s_mul_i32 s{S_T1}, s{S_KC}, {KCSZ}")
    a(f"s_add_u32 s{S_T1}, s{S_T1}, {KC}")
    a(f"s_sub_u32 s{S_T3}, s{S_T1}, {IDXBIAS}")
    a(f"s_mul_i32 s{S_T2}, s{S_KC}, {CONV}")
    a(f"s_add_u32 s{S_T2}, s{S_T2}, {KR(0,0)-4}")
    a("v_lshlrev_b32 v11, 3, v12")
    a("v_sub_u32 v11, 2047, v11")
    a("v_cvt_f32_u32 v8, v11")
    if g == 1:
        a("v_cmp_gt_u32 vcc, 0x100, v11")
        a(f"v_lshl_add_u32 v10, v11, 3, s{S_T1}")
    for k in range(9):
        d = XA + k
        if k == 0:
            a(f"v_cvt_pk_bf16_f32 v{d}, 0, v8")
        else:
            lit = {1: "-1.0", 2: "-2.0", 4: "-4.0"}.get(k, hex(f2u(-float(k))))
            a(f"v_add_f32 v9, {lit}, v8")
            a(f"v_cvt_pk_bf16_f32 v{d}, 0, v9")
        a(f"v_lshrrev_b32 v{d}, 13, v{d}")
        a(f"v_add_u32 v{d}, s{S_T3}, v{d}")
        if g == 1:
            a(f"v_subrev_u32 v9, {8*k}, v10")
            a(f"v_cndmask_b32 v{d}, v{d}, v9, vcc")
    a(f"v_lshl_add_u32 v163, v12, 4, s{S_T2}")
    if g == 1:
        a("v_cmp_eq_u32 vcc, 0xff, v12")
        a(f"s_add_u32 s{S_T0}, s{S_T1}, {768*8}")
        a(f"v_mov_b32 v9, s{S_T0}")
        a(f"v_cndmask_b32 v{XA+8}, v{XA+8}, v9, vcc")
    a(f"s_lshl_b32 s{S_T0}, s{S_KC}, 2")
    a(f"s_add_u32 s{S_T0}, s{S_T0}, {C_KG}")
    a(f"v_mov_b32 v164, s{S_T0}")


def expansion(a, tag):
    lds_spin(a, f"L_kspin_{tag}", 164, 8, 2, sleep=(1 if tag == "a" else 0))
    stamp(a, 8)
    a.c("expansion")
    B = 100
    for k in range(9):
        a(f"ds_read_b64 {vr(B+2*k,2)}, v{XA+k}")
    a("s_waitcnt lgkmcnt(0)")
    for k in range(9):
        a(f"v_add_f32 v{B+2*k}, v{B+2*k}, v{B+2*k+1}")
    P3, P2 = 120, 124
    for j in range(4):
        b = B + 4 * j
        a(f"v_cvt_pk_bf16_f32 v{P3+j}, v{b}, v{b+2}")
        a(f"v_cvt_pk_bf16_f32 v{P2+j}, v{b+2}, v{b+4}")
    k_copies(a, 163, P3, P2)


def kgen_waves(a):
    a.c("==== K generation waves")
    a(f"s_lshr_b32 s{S_KC}, s{S_W4}, 1")
    a(f"s_and_b32 s{S_HM}, s{S_W4}, 1")
    a(f"s_add_u32 s{S_T1}, s{S_D0}, s{S_KC}")
    a(f"s_lshl_b32 s{S_T3}, s{S_T1}, 1")
    a(f"v_mov_b32 v8, s{S_T3}")
    a(f"s_lshl_b32 s{S_T1}, s{S_T1}, 8")
    a(f"s_lshl_b32 s{S_T2}, s{S_HM}, 7")
    a(f"s_add_u32 s{S_T1}, s{S_T1}, s{S_T2}")
    a(f"v_lshl_add_u32 v2, v1, 1, s{S_T1}")
    a("s_waitcnt lgkmcnt(0)")
    a(f"global_load_ushort v7, v8, s[{P_LDT}:{P_LDT+1}]")
    a(f"global_load_ushort v3, v2, s[{P_LAR}:{P_LAR+1}]" + (" nt" if OPT["nt"] & 16 else ""))
    a(f"global_load_ushort v4, v2, s[{P_AIM}:{P_AIM+1}]" + (" nt" if OPT["nt"] & 16 else ""))
    a(f"global_load_ushort v5, v2, s[{P_CR}:{P_CR+1}]" + (" nt" if OPT["nt"] & 16 else ""))
    a(f"global_load_ushort v6, v2, s[{P_CI}:{P_CI+1}]" + (" nt" if OPT["nt"] & 16 else ""))
    if OPT["stamp"]:
        srd(a, R_WS, P_WS, WS_SIZE)
    expansion_addr(a, 0)
    TBW, TBR, KA0, KA1, KA2 = 16, 17, 18, 19, 49
    a(f"s_mul_i32 s{S_T0}, s{S_W4}, {TBLSZ}")
    a(f"s_add_u32 s{S_T0}, s{S_T0}, {TBL}")
    a(f"v_lshl_add_u32 v{TBW}, v1, 2, s{S_T0}")
    a("v_and_b32 v13, 15, v1")
    a("v_lshrrev_b32 v8, 4, v1")
    a(f"v_mul_u32_u24 v{TBR}, 288, v13")
    a(f"v_lshl_add_u32 v{TBR}, v8, 4, v{TBR}")
    a(f"v_add_u32 v{TBR}, s{S_T0}, v{TBR}")
    a(f"s_lshl_b32 s{S_T0}, s{S_HM}, 2")
    a(f"s_add_u32 s{S_T1}, s{S_T1}, s{S_T0}")
    a("v_lshrrev_b32 v9, 1, v8")
    a("v_and_b32 v10, 1, v8")
    a(f"v_lshlrev_b32 v{KA0}, 7, v9")
    a(f"v_lshl_add_u32 v{KA0}, v10, 2, v{KA0}")
    a(f"v_lshl_add_u32 v{KA0}, v13, 3, v{KA0}")
    a(f"v_lshl_add_u32 v{KA0}, v{KA0}, 3, s{S_T1}")
    a("v_lshlrev_b32 v11, 1, v10")
    a("v_lshl_add_u32 v11, v13, 2, v11")
    a("v_add_u32 v11, 0x100, v11")
    a("v_lshlrev_b32 v12, 5, v10")
    a("v_lshl_add_u32 v12, v13, 1, v12")
    a("v_cmp_eq_u32 vcc, 0, v9")
    a("v_add_u32 v12, 0x180, v12")
    a(f"v_lshl_add_u32 v{KA2}, v8, 6, v13")
    a(f"v_cndmask_b32 v{KA1}, v12, v11, vcc")
    a(f"v_lshl_add_u32 v{KA1}, v{KA1}, 3, s{S_T1}")
    a(f"v_add_u32 v{KA2}, 0x200, v{KA2}")
    a(f"v_lshl_add_u32 v{KA2}, v{KA2}, 3, s{S_T1}")
    a("s_barrier")
    stamp(a, 2)
    a.c("parameters")
    a("s_waitcnt vmcnt(0)")
    stamp(a, 4)
    a("v_lshlrev_b32 v8, 16, v7")
    a("v_lshlrev_b32 v9, 16, v3")
    a(f"s_mov_b32 s{S_T1}, {hex(L2E)}")
    a(f"s_mov_b32 s{S_T2}, {hex(L2E_LO)}")
    for x, p, e in ((8, 10, 12), (9, 11, 13)):
        a(f"v_mul_f32 v{p}, s{S_T1}, v{x}")
        a(f"v_fma_f32 v{e}, v{x}, s{S_T1}, -v{p}")
        a(f"v_fma_f32 v{e}, v{x}, s{S_T2}, v{e}")
        a(f"v_exp_f32 v{p}, v{p}")
        a(f"v_mul_f32 v{e}, {hex(LN2)}, v{e}")
    a("v_lshlrev_b32 v4, 16, v4")
    for x, p, e in ((8, 10, 12), (9, 11, 13)):
        a(f"v_fma_f32 v{p}, v{p}, v{e}, v{p}")
        rnd(a, p, p)
    a("v_mul_f32 v11, v11, v10")
    a(f"v_mul_f32 v11, {hex(L2E | 0x80000000)}, v11")
    a("v_mul_f32 v4, v4, v10")
    a("v_mul_f32 v12, 0.15915494, v4")
    a("v_add_f32 v10, v10, v10")
    a("v_lshlrev_b32 v5, 16, v5")
    a("v_lshlrev_b32 v6, 16, v6")
    a("v_mul_f32 v14, v5, v10")
    a("v_mul_f32 v15, v6, v10")
    a("v_max_f32 v13, |v14|, |v15|")
    E = lambda j: 20 + 2 * j
    tmp = {0: (50, 51), 3: (52, 53), 7: (54, 55)}
    dpps = [f"v_max_u32_dpp v13, v13, v13 {d} bank_mask:0xf" for d in
            ("quad_perm:[1,0,3,2] row_mask:0xf", "quad_perm:[2,3,0,1] row_mask:0xf", "row_half_mirror row_mask:0xf",
             "row_mirror row_mask:0xf", "row_bcast:15 row_mask:0xa", "row_bcast:31 row_mask:0xc")]
    anc = []
    for j, (m, f) in tmp.items():
        if j == 0:
            anc += [f"v_exp_f32 v{m}, v11", f"v_fract_f32 v{f}, v12"]
        else:
            anc += [f"v_mul_f32 v{m}, {hex(f2u(2.0**j))}, v11", f"v_mul_f32 v{f}, {hex(f2u(2.0**j))}, v12",
                    f"v_exp_f32 v{m}, v{m}", f"v_fract_f32 v{f}, v{f}"]
    for j, (m, f) in tmp.items():
        anc += [f"v_cos_f32 v{E(j)}, v{f}", f"v_sin_f32 v{E(j)+1}, v{f}"]
    a.c("anchors")
    k = 0
    for d in dpps:
        a(anc[k]); a(anc[k + 1]); k += 2
        a(d)
    for o in anc[k:]:
        a(o)
    a(f"v_readlane_b32 s{S_T0}, v13, 63")
    for j, (m, f) in tmp.items():
        a(f"v_mul_f32 v{E(j)}, v{E(j)}, v{m}")
        a(f"v_mul_f32 v{E(j)+1}, v{E(j)+1}, v{m}")
    a(f"s_lshr_b32 s{S_T0}, s{S_T0}, 23")
    a(f"s_max_u32 s{S_T0}, s{S_T0}, 16")
    a(f"s_sub_u32 s{S_SC}, 264, s{S_T0}")
    a(f"s_lshl_b32 s{S_SC}, s{S_SC}, 23")
    a(f"s_sub_u32 s{S_ISC}, s{S_T0}, 10")
    a(f"s_lshl_b32 s{S_ISC}, s{S_ISC}, 23")
    interleave(a, [sum([cmul_ops(E(j), E(j - 1), E(j - 1)) for j in js], []) for js in ((4, 5, 6), (8, 9, 10, 11), (1, 2))])
    a.c("Y tile")
    tcount = [0]

    def put_ops(row, x, neg):
        t = 44 + (tcount[0] % 4)
        tcount[0] += 1
        return [f"v_cvt_pk_f16_f32 v{t}, v{x}, {'-' if neg else ''}v{x+1}",
                f"ds_write_b32 v{TBW}, v{t} offset:{288*row}"]

    def run_items(items):
        for i in range(0, len(items), 2):
            ch = []
            for (d, x, y, row, neg) in items[i:i + 2]:
                ops = [] if x is None else cmul_ops(d, x, y)
                if row is not None:
                    ops += put_ops(row, d, neg)
                ch.append(ops)
            interleave(a, ch)

    CT = 98
    Y = {1: E(3), 2: E(4), 4: E(5), 8: E(6), 3: 56, 5: 58, 6: 60, 7: 62}
    a("v_mov_b32 v48, 0x3c00")
    a(f"ds_write_b32 v{TBW}, v48")
    items = [(Y[3], Y[2], Y[1], 3, True), (Y[1], None, None, 1, True),
             (Y[5], Y[4], Y[1], 5, True), (Y[2], None, None, 2, True),
             (Y[6], Y[4], Y[2], 6, True), (Y[4], None, None, 4, True),
             (Y[7], Y[4], Y[3], 7, True), (Y[8], None, None, 8, True)]
    for b in range(9, 16):
        items.append((CT + 2 * (b % 4), Y[8], Y[b - 8], b, True))
    run_items(items)
    YF = 106
    for s in range(4):
        a(f"ds_read_b128 {vr(YF+4*s,4)}, v{TBR} offset:{64*s}")
    a.c("Z, W")
    Z = {1: E(0), 2: E(1), 4: E(2), 3: 56, 5: 58, 6: 60, 7: 62}
    W = {h: 64 + 2 * h for h in range(17)}
    a(f"v_mul_f32 v{W[0]}, s{S_SC}, v14")
    a(f"v_mul_f32 v{W[0]+1}, s{S_SC}, v15")
    run_items([(Z[3], Z[2], Z[1], None, 0), (W[1], W[0], E(7), None, 0),
               (Z[5], Z[4], Z[1], None, 0), (Z[6], Z[4], Z[2], None, 0),
               (Z[7], Z[4], Z[3], None, 0), (W[2], W[0], E(8), None, 0)])
    stamp(a, 6)
    XFT = [122, 138, 20]
    ACC = 36

    def rd(t):
        for s in range(4):
            a(f"ds_read_b128 {vr(XFT[t]+4*s,4)}, v{TBR} offset:{64*s}")

    def mm(t):
        for s in range(4):
            c = "0" if s == 0 else vr(ACC + 4 * t, 4)
            a(f"v_mfma_f32_16x16x32_f16 {vr(ACC+4*t,4)}, {vr(XFT[t]+4*s,4)}, {vr(YF+4*s,4)}, {c}")

    a.c("X tile 0")
    items = [(W[0], None, None, 0, False), (W[1], None, None, 8, False)]
    k = 0
    for r in range(1, 8):
        for h in (0, 1):
            items.append((CT + 2 * (k % 4), W[h], Z[r], 8 * h + r, False)); k += 1
    run_items(items)
    rd(0)
    run_items([(W[3], W[1], E(8), None, 0)] + [(W[h], W[h - 4], E(9), None, 0) for h in (4, 5, 6)] + [(W[7], W[3], E(9), None, 0)])
    a.c("X tile 1")
    items = []
    for G in range(4):
        for r in range(4):
            if G < 2:
                h = 2 + (r >> 1); zr = 2 * (2 * G + (r & 1))
            else:
                h = 4 + 2 * (r >> 1) + (G - 2); zr = 4 * (r & 1)
            if zr == 0:
                items.append((W[h], None, None, 4 * G + r, False))
            else:
                items.append((CT + 2 * (k % 4), W[h], Z[zr], 4 * G + r, False)); k += 1
    run_items(items)
    rd(1)
    a.c("X tile 2")
    run_items([(W[h], W[h - 8], E(10), h - 8, False) for h in range(8, 16)] + [(W[16], W[0], E(11), 8, False)])
    rd(2)
    a("s_waitcnt lgkmcnt(4)")
    mm(0)
    mm(1)
    a("s_waitcnt lgkmcnt(0)")
    mm(2)
    a("v_mov_b32 v8, 1")
    a("s_nop 2")
    for t in (0, 1):
        for r in range(4):
            a(f"v_mul_f32 v{ACC+4*t+r}, s{S_ISC}, v{ACC+4*t+r}")
    for t, offs, ad in ((0, (0, 8, 16, 24), KA0), (1, (0, 8, 512, 520), KA1)):
        for r in range(4):
            a(f"ds_write_b32 v{ad}, v{ACC+4*t+r} offset:{offs[r]}")
    for r in range(4):
        a(f"v_mul_f32 v{ACC+8+r}, s{S_ISC}, v{ACC+8+r}")
    for r in range(4):
        a(f"ds_write_b32 v{KA2}, v{ACC+8+r} offset:{128*r}")
    a("s_mov_b64 exec, 1")
    a("ds_add_u32 v164, v8")
    a("s_mov_b64 exec, -1")
    stamp(a, 7)
    expansion(a, "k")
    a("s_waitcnt lgkmcnt(0)")
    stamp(a, 9)
    a("s_barrier")
    stamp_out(a)
    a("s_endpgm")


def gate_compute(a, XR, WR, T):
    Wp = T
    X0 = T + 8
    for j in range(4):
        unpack2(a, Wp + 2 * j, WR + j)
    for row in range(2):
        X = X0 + 8 * row
        for j in range(4):
            unpack2(a, X + 2 * j, XR + 4 * row + j)
    for row in range(2):
        X = X0 + 8 * row
        for j in range(4):
            a(f"v_pk_mul_f32 {vr(X+2*j,2)}, {vr(X+2*j,2)}, {vr(Wp+2*j,2)}")
    for row in range(2):
        X = X0 + 8 * row
        for j in range(8):
            rnd(a, X + j, X + j)
    for row in range(2):
        X = X0 + 8 * row
        a(f"v_pk_add_f32 {vr(X,2)}, {vr(X,2)}, {vr(X+2,2)}")
        a(f"v_pk_add_f32 {vr(X+4,2)}, {vr(X+4,2)}, {vr(X+6,2)}")
    for row in range(2):
        X = X0 + 8 * row
        a(f"v_pk_add_f32 {vr(X,2)}, {vr(X,2)}, {vr(X+4,2)}")
    A0, A1 = X0, X0 + 8
    a(f"v_add_f32 v{A0}, v{A0}, v{A0+1}")
    a(f"v_add_f32 v{A1}, v{A1}, v{A1+1}")
    a("s_nop 0")
    for d in ("quad_perm:[1,0,3,2]", "quad_perm:[2,3,0,1]", "row_half_mirror", "row_mirror",
              "row_bcast:15 row_mask:0xa", "row_bcast:31 row_mask:0xc"):
        m = "" if "row_mask" in d else " row_mask:0xf"
        a(f"v_add_f32_dpp v{A0}, v{A0}, v{A0} {d}{m} bank_mask:0xf")
        a(f"v_add_f32_dpp v{A1}, v{A1}, v{A1} {d}{m} bank_mask:0xf")
        a("s_nop 0")
    for x in (A0, A1):
        rnd(a, x, x)
    for x in (A0, A1):
        a(f"v_mul_f32 v{x}, {hex(L2E | 0x80000000)}, v{x}")
    for x in (A0, A1):
        a(f"v_exp_f32 v{x}, v{x}")
    a("s_nop 0")
    for x in (A0, A1):
        a(f"v_add_f32 v{x}, 1.0, v{x}")
    for x in (A0, A1):
        a(f"v_rcp_f32 v{x}, v{x}")
    a("s_nop 0")
    for x in (A0, A1):
        rnd(a, x, x)
    for x in (A0, A1):
        a(f"v_sub_f32 v{x+1}, 1.0, v{x}")
    a(f"v_cvt_pk_bf16_f32 v{T}, v{A0}, v{A0+1}")
    a(f"v_mov_b32 v{T+1}, s{S_NON}")
    a(f"v_cvt_pk_bf16_f32 v{T+2}, v{A1}, v{A1+1}")
    a(f"v_mov_b32 v{T+3}, s{S_NON}")


def aux_waves(a):
    grp = groups()
    a.c("==== aux waves; v0 = thread index 0..255")
    a.c("zero init of LDS pads")
    for i in range(4):
        a(f"v_mov_b32 v{8+i}, 0")
    a("v_lshrrev_b32 v12, 6, v0")
    a(f"v_mul_u32_u24 v12, {CONV}, v12")
    a("v_bfe_u32 v14, v0, 5, 1")
    a(f"v_mul_u32_u24 v14, {XSTR}, v14")
    a("v_and_b32 v13, 31, v0")
    a("v_min_u32 v13, 28, v13")
    a("v_lshl_add_u32 v12, v13, 4, v12")
    a("v_add_u32 v12, v12, v14")
    a(f"ds_write_b128 v12, v[8:11] offset:{XB(0)}")
    a("v_bfe_u32 v13, v0, 4, 2")
    a(f"v_mul_u32_u24 v13, {CONV}, v13")
    a("v_bfe_u32 v14, v0, 2, 2")
    a(f"v_mul_u32_u24 v14, {KSTR}, v14")
    a("v_and_b32 v15, 3, v0")
    a("v_lshl_add_u32 v14, v15, 4, v14")
    a("v_add_u32 v13, v13, v14")
    a(f"v_add_u32 v13, {KR(0,0)+4080}, v13")
    a("v_cmp_gt_u32 vcc, 64, v0")
    a("v_and_b32 v14, 15, v0")
    a("v_lshlrev_b32 v14, 4, v14")
    a(f"v_add_u32 v14, {CNT}, v14")
    a("v_cndmask_b32 v12, v14, v13, vcc")
    a("v_cmp_gt_u32 vcc, 0x80, v0")
    a("v_and_b32 v15, 1, v0")
    a(f"v_mul_u32_u24 v15, {KCSZ}, v15")
    a(f"v_add_u32 v15, {KC+768*8}, v15")
    a("v_cndmask_b32 v12, v15, v12, vcc")
    a("ds_write_b128 v12, v[8:11]")
    a("s_waitcnt lgkmcnt(0)")
    a("s_barrier")
    stamp(a, 1)
    srd(a, R_WS, P_WS, WS_SIZE)
    srd(a, R_DBG, P_DBG, 256)
    srd(a, R_OUT, P_OUT, 0x200000)
    expansion_addr(a, 1)
    a(f"s_lshl_b32 s{S_T0}, s{S_D0}, 12")
    a(f"v_lshl_add_u32 v2, v0, 4, s{S_T0}")
    a("v_add_u32 v3, 0x1000, v2")
    a("v_subrev_u32 v4, 4, v2")
    a(f"v_max_i32 v4, s{S_T0}, v4")
    a(f"s_lshl_b32 s{S_T1}, s{S_GB}, 13")
    a(f"s_lshl_b32 s{S_T2}, s{S_W4}, 11")
    a(f"s_add_u32 s{S_T1}, s{S_T1}, s{S_T2}")
    a("v_lshlrev_b32 v6, 4, v1")
    a(f"v_add_u32 v5, s{S_T1}, v6")
    a(f"s_lshl_b32 s{S_T0}, s{S_W4}, 4")
    a(f"s_lshl_b32 s{S_T1}, s{S_GB}, 6")
    a(f"s_add_u32 s{S_T0}, s{S_T0}, s{S_T1}")
    a(f"s_add_u32 s{S_T0}, s{S_T0}, {hex(WS_G)}")
    a(f"v_mov_b32 v7, s{S_T0}")
    a("v_mov_b32 v56, 0")
    a(f"s_lshl_b32 s{S_T3}, s{S_D0}, 1")
    EA = {}
    for gi, g in enumerate(grp):
        n = len(g); R0 = 256 * g[0]
        sh = {1: 0, 2: 1, 4: 2}[n]
        GO, XA1, XA2, YA_, OO = 128 + gi, 133 + gi, 138 + gi, 143 + gi, 148 + gi
        EA[gi] = (GO, XA1, XA2, YA_, OO)
        a(f"v_lshlrev_b32 v8, {sh}, v0")
        a(f"v_add_u32 v8, {R0}, v8")
        a(f"v_lshlrev_b32 v{GO}, 3, v8")
        a(f"v_lshlrev_b32 v{XA1}, 1, v8")
        a(f"v_add_u32 v{XA2}, {2*CONV}, v{XA1}")
        a("v_lshrrev_b32 v9, 5, v8")
        a(f"v_lshl_add_u32 v9, v9, 3, v{XA1}")
        a(f"v_add_u32 v{YA_}, {YS}, v9")
        a(f"v_lshl_add_u32 v{OO}, v8, 10, s{S_T3}")
    if OPT["tw"]:
        a(f"s_cmp_lg_u32 s{S_W4}, 0")
        a("s_cbranch_scc1 L_notw")
        a("s_mov_b64 exec, 1")
        a(f"s_lshl_b32 s{S_T0}, s{S_PCG}, 18")
        a(f"s_lshl_b32 s{S_T1}, s{S_PTB}, 7")
        a(f"s_add_u32 s{S_T0}, s{S_T0}, s{S_T1}")
        a(f"v_mov_b32 v8, s{S_T0}")
        a(f"s_mov_b32 s{S_T2}, {hex(WS_KV)}")
        a(f"buffer_load_dword v60, v8, s[{R_WS}:{R_WS+3}], 0 offen nt")
        a(f"buffer_load_dword v61, v8, s[{R_WS}:{R_WS+3}], s{S_T2} offen nt")
        a(f"s_lshl_b32 s{S_T0}, s{S_PCG}, 12")
        a(f"s_add_u32 s{S_T0}, s{S_T0}, s{S_T1}")
        a(f"s_add_u32 s{S_T0}, s{S_T0}, {hex(WS_FLAG)}")
        a(f"v_mov_b32 v8, s{S_T0}")
        a(f"buffer_load_dword v62, v8, s[{R_WS}:{R_WS+3}], 0 offen nt")
        a(f"s_lshl_b32 s{S_T0}, s2, 13")
        a(f"v_mov_b32 v8, s{S_T0}")
        a(f"buffer_load_dword v63, v8, s[{R_OUT}:{R_OUT+3}], 0 offen nt")
        a(f"global_load_dword v64, v2, s[{P_SSMK}:{P_SSMK+1}]")
        a(f"global_load_dword v65, v6, s[{P_GW}:{P_GW+1}]")
        a("s_mov_b64 exec, -1")
        a.lab("L_notw")
    a(f"s_load_dword s{S_RAWDS}, s[{P_DSK}:{P_DSK+1}], s{S_T3}")
    a(f"s_load_dword s{S_RAWDM}, s[{P_SSMD}:{P_SSMD+1}], s{S_T3}")
    def ssmk_loads():
        NT = " nt" if OPT["nt"] & 2 else ""
        a(f"global_load_dwordx4 v[68:71], v2, s[{P_SSMK}:{P_SSMK+1}]{NT}")
        a(f"global_load_dwordx4 v[74:77], v3, s[{P_SSMK}:{P_SSMK+1}]{NT}")
        a(f"global_load_dword v67, v4, s[{P_SSMK}:{P_SSMK+1}]{NT}")
        a(f"global_load_dword v73, v3, s[{P_SSMK}:{P_SSMK+1}] offset:-4{NT}")

    def gate_loads():
        NT = " nt" if OPT["nt"] & 8 else ""
        a(f"global_load_dwordx4 v[80:83], v5, s[{P_U}:{P_U+1}]{NT}")
        a(f"global_load_dwordx4 v[84:87], v5, s[{P_U}:{P_U+1}] offset:1024{NT}")
        a(f"global_load_dwordx4 v[88:91], v6, s[{P_GW}:{P_GW+1}]")
        a(f"buffer_load_dwordx2 v[52:53], v56, s[{R_DBG}:{R_DBG+3}], 0 offen{SC}")

    def ssmk_copies():
        a.c("---- ssm_k -> LDS (reversed, 4 copies)")
        a("v_cmp_eq_u32 vcc, 0, v0")
        a("s_nop 1")
        for ch in range(2):
            q = 2 + ch
            L = 68 + 6 * ch
            P3, P2 = 20 + 8 * ch, 24 + 8 * ch
            a(f"v_cndmask_b32 v{L-1}, v{L-1}, 0, vcc")
            for d in range(4):
                a(f"v_alignbit_b32 v{P3+d}, v{L+3-d}, v{L+3-d}, 16")
                a(f"v_bfi_b32 v{P2+d}, s{S_LO}, v{L+3-d}, v{L+2-d}")
            a(f"v_add_u32 v{36+ch}, {KR(q,0)}, v9")
            k_copies(a, 36 + ch, P3, P2)

    def gate_part():
        nonce_check(a, "a", 52, 56)
        a.c("---- gate")
        gate_compute(a, 80, 88, 100)
        a("s_mov_b32 exec_lo, 0")
        a("s_mov_b32 exec_hi, 0x80000000")
        a(f"buffer_store_dwordx4 v[100:103], v7, s[{R_WS}:{R_WS+3}], 0 offen{SC}")
        a("s_mov_b64 exec, -1")

    a("v_lshlrev_b32 v9, 4, v0")
    a("v_sub_u32 v9, 4076, v9")
    M = OPT["auxmode"]
    if M in (1, 2, 3, 4):
        ssmk_loads()
    if M == 1:
        gate_loads()
    if M in (0, 2, 5, 6):
        a(f"v_mov_b32 v12, {C_P1 if M in (0, 2) else C_SIG}")
        lds_spin(a, "L_aspin", 12, 8, 4 if M != 6 else 1, sleep=2)
        stamp(a, 2)
        gate_loads()
        if M != 2:
            ssmk_loads()
    a("s_waitcnt lgkmcnt(0)")
    a(f"s_lshl_b32 s{S_DS}, s{S_RAWDS}, 16")
    a(f"s_and_b32 s{S_DS+1}, s{S_RAWDS}, s{S_HI}")
    a(f"s_lshl_b32 s{S_DM}, s{S_RAWDM}, 16")
    a(f"s_and_b32 s{S_DM+1}, s{S_RAWDM}, s{S_HI}")
    if M in (0, 5, 6):
        gate_part()
        stamp(a, 3)
        ssmk_copies()
    elif M in (1, 2):
        a("s_waitcnt vmcnt(4)")
        stamp(a, 3)
        ssmk_copies()
        gate_part()
    elif M == 3:
        a("s_waitcnt vmcnt(0)")
        stamp(a, 3)
        ssmk_copies()
        a(f"v_mov_b32 v12, {C_SIG}")
        lds_spin(a, "L_aspin", 12, 8, 4, sleep=2)
        gate_loads()
        gate_part()
    else:
        a("s_waitcnt vmcnt(0)")
        stamp(a, 3)
        ssmk_copies()
    stamp(a, 4)
    expansion(a, "a")
    a("s_waitcnt lgkmcnt(0)")
    stamp(a, 9)
    GR = 20
    XR = 36

    def gloads():
        pos = 0
        for gi, g in enumerate(grp):
            n = len(g)
            for h in range(n // 2):
                a(f"buffer_load_dwordx4 {vr(GR+2*pos+4*h,4)}, v{EA[gi][0]}, s[{R_WS}:{R_WS+3}], s{S_T2} offen offset:{16*h}{SC}")
            if n == 1:
                a(f"buffer_load_dwordx2 {vr(GR+2*pos,2)}, v{EA[gi][0]}, s[{R_WS}:{R_WS+3}], s{S_T2} offen{SC}")
            pos += n

    a(f"s_mov_b32 s{S_T2}, {hex(WS_G)}")
    if OPT["gearly"]:
        gloads()
    a("s_barrier")
    stamp(a, 10)
    if OPT["hprio"]:
        a(f"s_setprio {OPT['hprio']}")
    if M == 4:
        gate_loads()
        gate_part()
    if not OPT["gearly"]:
        gloads()
    pos = 0
    for gi, g in enumerate(grp):
        n = len(g)
        lop = {1: "u16_d16_hi" if pos & 1 else "u16_d16", 2: "b32", 4: "b64"}[n]
        for q in range(4):
            a(f"ds_read_{lop} {vr(XR+4*q+pos//2,max(1,n//2))}, v{EA[gi][1 if q < 2 else 2]} offset:{XB(q&1)+XD}")
        pos += n
    assert pos == 8
    PR = 52
    a("s_waitcnt lgkmcnt(0)")
    for r in range(8):
        B = PR + 6 * r
        U, UD, UK = B, B + 2, B + 4
        for ch in range(2):
            ext(a, U + ch, XR + 4 * ch + r // 2, r & 1)
            ext(a, UK + ch, XR + 4 * (2 + ch) + r // 2, r & 1)
        for ch in range(2):
            a(f"v_mul_f32 v{UD+ch}, s{S_DS+ch}, v{U+ch}")
            a(f"v_mul_f32 v{UK+ch}, s{S_DM+ch}, v{UK+ch}")
    a(f"s_mov_b32 s{S_SPIN}, 0")
    a("s_branch L_gchk")
    a.lab("L_gpoll")
    a("s_sleep 4")
    gloads()
    a(f"s_add_u32 s{S_SPIN}, s{S_SPIN}, 1")
    a.lab("L_gchk")
    a("s_waitcnt vmcnt(0)")
    a(f"v_xor_b32 v8, s{S_NON}, v{GR+1}")
    for r in range(1, 8):
        a(f"v_xor_b32 v9, s{S_NON}, v{GR+2*r+1}")
        a("v_or_b32 v8, v8, v9")
    a("v_cmp_ne_u32 vcc, 0, v8")
    a(f"s_cmp_ge_u32 s{S_SPIN}, {hex(SPIN_MAX)}")
    a("s_cbranch_scc1 L_gpoll_done")
    a("s_cmp_eq_u64 vcc, 0")
    a("s_cbranch_scc0 L_gpoll")
    a.lab("L_gpoll_done")
    stamp(a, 11)
    for r in range(8):
        B = PR + 6 * r
        U, UD, UK = B, B + 2, B + 4
        G0, G1 = GR + 2 * r, GR + 2 * r + 1
        a(f"v_and_b32 v{G1}, s{S_HI}, v{G0}")
        a(f"v_lshlrev_b32 v{G0}, 16, v{G0}")
        for ch in range(2):
            a(f"v_mul_f32 v{U+ch}, v{U+ch}, v{G1}")
            a(f"v_mul_f32 v{UD+ch}, v{UD+ch}, v{G0}")
        for ch in range(2):
            a(f"v_fmac_f32 v{UD+ch}, v{UK+ch}, v{U+ch}")
    a(f"v_mov_b32 v5, {C_Y}")
    pos = 0
    for gi, g in enumerate(grp):
        n = len(g)
        a(f"s_mov_b32 s{S_SPIN}, 0")
        a.lab(f"L_yspin{gi}")
        a(f"ds_read_b128 v[104:107], v5 offset:{16*gi}")
        a(f"s_add_u32 s{S_SPIN}, s{S_SPIN}, 1")
        a("s_waitcnt lgkmcnt(0)")
        a("v_min_u32 v104, v104, v105")
        a("v_min3_u32 v104, v104, v106, v107")
        a(f"s_cmp_ge_u32 s{S_SPIN}, {hex(SPIN_MAX*8)}")
        a(f"v_readfirstlane_b32 s{S_T0}, v104")
        a(f"s_cbranch_scc1 L_yspin{gi}_done")
        a(f"s_cmp_lg_u32 s{S_T0}, 0")
        a(f"s_cbranch_scc1 L_yspin{gi}_done")
        a(f"s_sleep {OPT['ysleep']}")
        a(f"s_branch L_yspin{gi}")
        a.lab(f"L_yspin{gi}_done")
        stamp(a, min(12 + gi, 14))
        lop = {1: "u16", 2: "b32", 4: "b64"}[n]
        YR = 108
        for q in range(4):
            a(f"ds_read_{lop} {vr(YR+2*q,max(1,n//2))}, v{EA[gi][3]} offset:{YSZ*q}")
        a("s_waitcnt lgkmcnt(0)")
        for k in range(n):
            r = pos + k
            B = PR + 6 * r
            CB, P = B, B + 2
            G0 = GR + 2 * r
            YA, YB = 116 + 4 * (k & 1), 118 + 4 * (k & 1)
            for ch in range(2):
                ext(a, YA + ch, YR + 2 * ch + k // 2, k & 1)
                ext(a, YB + ch, YR + 2 * (2 + ch) + k // 2, k & 1)
            for ch in range(2):
                a(f"v_fmac_f32 v{P+ch}, v{YA+ch}, v{G0}")
            for ch in range(2):
                a(f"v_fmac_f32 v{P+ch}, v{YB+ch}, v{CB+ch}")
            a(f"v_cvt_pk_bf16_f32 v{P}, v{P}, v{P+1}")
            a(f"buffer_store_dword v{P}, v{EA[gi][4]}, s[{R_OUT}:{R_OUT+3}], 0 offen offset:{1024*k}")
        pos += n
    stamp_out(a)


def kd(name):
    return f""".section .rodata,"a"
.p2align 6
.amdhsa_kernel {name}
  .amdhsa_next_free_vgpr {NV}
  .amdhsa_next_free_sgpr 102
  .amdhsa_accum_offset {NV}
  .amdhsa_group_segment_fixed_size 0
  .amdhsa_kernarg_size 136
  .amdhsa_user_sgpr_count 2
  .amdhsa_user_sgpr_kernarg_segment_ptr 1
  .amdhsa_system_sgpr_workgroup_id_x 1
  .amdhsa_float_denorm_mode_32 3
.end_amdhsa_kernel
"""


def gen():
    out = [f"; @launch grid=(256,1,1) block=(768,1,1) lds={LDS_TOTAL}\n",
           """; One workgroup per channel pair, 12 waves in three roles:
""",
           '.amdgcn_target "amdgcn-amd-amdhsa--gfx950"\n.text\n',
           f".globl {NAME}_kernel\n.p2align 8\n.type {NAME}_kernel,@function\n{NAME}_kernel:\n"]
    a = A()
    prologue(a)
    data_waves(a)
    a.lab("L_kgen")
    kgen_waves(a)
    a.lab("L_aux")
    aux_waves(a)
    a.lab("L_end")
    a("s_endpgm")
    out.append(a.text())
    out.append(kd(NAME + "_kernel"))
    return "".join(out)


if __name__ == "__main__":
    outp = sys.argv[1] if len(sys.argv) > 1 else f"cdna_kernels/{NAME}.s"
    for x in sys.argv[2:]:
        k, v = x.split("=")
        OPT[k] = v if k in ("groups", "plan", "order") else int(v)
    txt = gen()
    open(outp, "w").write(txt)
    print("wrote", outp, len(txt), "bytes; LDS", LDS_TOTAL)
```

```python
import sys, struct

NAME = "gated_mix__ssm_conv_s4d__ssm_conv_h3__prompt"
OPT = dict(stamp=0, groups="0123,4567", pollsleep=2, hprio=2, map=0, dprio=2, wslack=5, fullflag=1, frac=100, auxmode=0, plan="", exp=0, tw=0, nt=0, fwarm=0, pdelay=0, cprio=0, nonop=0, ysleep=1, sched=0, order="", lead=10, boost=110, pre=9, gearly=0, amp=0)
NV = 168
VST, VST2 = 167, 166


def f2u(x):
    return struct.unpack("<I", struct.pack("<f", x))[0]


class A:
    def __init__(self):
        self.l = []

    def __call__(self, s):
        self.l.append("    " + s)

    def lab(self, s):
        self.l.append(s + ":")

    def c(self, s):
        self.l.append("    ; " + s)

    def text(self):
        return "\n".join(self.l) + "\n"


def vr(a, n=1):
    assert a + n <= NV, (a, n)
    return f"v{a}" if n == 1 else f"v[{a}:{a+n-1}]"


def sr(a, n=1):
    return f"s{a}" if n == 1 else f"s[{a}:{a+n-1}]"


KSTR = 4160
XSTR = 4640
CONV = 16 + 4 * KSTR + 2 * XSTR
assert CONV % 16 == 0
def KR(q, s): return q * CONV + 16 + s * KSTR
def XB(q): return q * CONV + 16 + 4 * KSTR
XD = XSTR + 448
KC = 4 * CONV
KCSZ = 776 * 8
TBL = KC + 2 * KCSZ
TBLSZ = 16 * 288
CNT = TBL + 4 * TBLSZ
YS = CNT + 256
YSZ = 8 * 576
P1S = YS - 640
P1K, P1V, P1U = P1S + 1024, P1S + 9216, P1S + 17408
LDS_TOTAL = P1S + 25600
assert LDS_TOTAL <= 163840, LDS_TOTAL
IDXBIAS = 8 * 0x4280
C_SIG, C_P1, C_KG, C_Y = CNT, CNT + 4, CNT + 16, CNT + 32

WS_KV = 0x200000
WS_G = 0x400000
WS_FLAG = 0x410000
WS_ST = 0x600000
WS_SIZE = 0x800000

P_U, P_LAR, P_AIM, P_CR, P_CI, P_LDT, P_DSK, P_Q = 16, 18, 20, 22, 24, 26, 28, 30
P_K, P_V, P_SHK, P_SSMK, P_SSMD, P_GW, P_OUT, P_DBG = 32, 34, 36, 38, 40, 42, 44, 46
P_WS = 48
S_WV, S_CG, S_TB, S_D0 = 3, 4, 5, 6
S_PCG, S_PTB, S_GB, S_W4 = 7, 98, 99, 100
S_HI, S_LO = 50, 51
S_T0, S_T1, S_T2, S_T3 = 8, 9, 10, 11
R_U, R_K, R_V, R_WS, R_OUT, R_DBG = 52, 56, 60, 64, 68, 72
S_SELLO, S_SELHI, S_4096, S_KV0, S_KV1 = 76, 77, 78, 79, 80
S_DS, S_DM = 82, 84
S_RAWDS, S_RAWDM = 86, 87
S_SC, S_ISC = 89, 90
S_SPIN = 91
S_KC, S_HM = 92, 93
S_PC = 12
S_NON = 14

L2E = 0x3FB8AA3B
L2E_LO = 0x32A57060
LN2 = 0x3F317218
SPIN_MAX = 0x40000
SC = " sc1"


AROLE = ["d"]


def stamp(a, idx):
    if OPT["amp"] and AROLE[0] == "d" and idx == OPT["amp"]:
        a("s_memrealtime s[94:95]")
        a("s_waitcnt lgkmcnt(0)")
        return
    if not OPT["stamp"]:
        return
    a("s_memrealtime s[94:95]")
    a("s_memtime s[96:97]")
    a("s_waitcnt lgkmcnt(0)")
    a(f"v_writelane_b32 v{VST}, s94, {idx}")
    a(f"v_writelane_b32 v{VST}, s96, {32+idx}")


def stamp_out(a):
    if not OPT["stamp"]:
        return
    a("s_waitcnt vmcnt(0)")
    stamp(a, 15)
    a(f"s_lshl_b32 s{S_T0}, s2, 4")
    a(f"s_add_u32 s{S_T0}, s{S_T0}, s{S_WV}")
    a(f"s_lshl_b32 s{S_T0}, s{S_T0}, 8")
    a(f"s_add_u32 s{S_T0}, s{S_T0}, {hex(WS_ST)}")
    a(f"v_lshl_add_u32 v{VST2}, v1, 2, s{S_T0}")
    a(f"buffer_store_dword v{VST}, v{VST2}, s[{R_WS}:{R_WS+3}], 0 offen")


def srd(a, r, p, size):
    a(f"s_mov_b32 s{r}, s{p}")
    a(f"s_and_b32 s{r+1}, s{p+1}, 0xffff")
    a(f"s_mov_b32 s{r+2}, {hex(size)}")
    a(f"s_mov_b32 s{r+3}, 0x20000")


def rnd(a, d, s):
    a(f"v_cvt_pk_bf16_f32 v{d}, 0, v{s}")


def unpack2(a, d, s):
    a(f"v_lshlrev_b32 v{d}, 16, v{s}")
    a(f"v_and_b32 v{d+1}, s{S_HI}, v{s}")


def ext(a, d, reg, hi):
    if hi:
        a(f"v_and_b32 v{d}, s{S_HI}, v{reg}")
    else:
        a(f"v_lshlrev_b32 v{d}, 16, v{reg}")


def cmul_ops(d, x, y):
    assert d not in (x, y) and d % 2 == 0 and x % 2 == 0 and y % 2 == 0
    return [f"v_pk_mul_f32 {vr(d,2)}, {vr(x,2)}, {vr(y,2)} op_sel:[0,0] op_sel_hi:[1,0]",
            f"v_fma_f32 v{d}, -v{x+1}, v{y+1}, v{d}",
            f"v_fmac_f32 v{d+1}, v{x}, v{y+1}"]


def interleave(a, chains):
    chains = [list(c) for c in chains]
    while any(chains):
        for c in chains:
            if c:
                a(c.pop(0))


def groups():
    return [[int(ch) for ch in g] for g in OPT["groups"].split(",")]


def lds_spin(a, lab, vaddr, vtmp, val, sleep=0):
    a(f"s_mov_b32 s{S_SPIN}, 0")
    a.lab(lab)
    a(f"ds_read_b32 v{vtmp}, v{vaddr}")
    a(f"s_add_u32 s{S_SPIN}, s{S_SPIN}, 1")
    a("s_waitcnt lgkmcnt(0)")
    a(f"v_readfirstlane_b32 s{S_T0}, v{vtmp}")
    a(f"s_cmp_ge_u32 s{S_SPIN}, {hex(SPIN_MAX*8)}")
    a(f"s_cbranch_scc1 {lab}_done")
    a(f"s_cmp_ge_u32 s{S_T0}, {val}")
    a(f"s_cbranch_scc1 {lab}_done")
    if sleep:
        a(f"s_sleep {sleep}")
    a(f"s_branch {lab}")
    a.lab(lab + "_done")


def nonce_check(a, tag, vn, vzero):
    a(f"s_mov_b32 s{S_SPIN}, 0")
    a(f"s_branch L_nchk_{tag}")
    a.lab(f"L_npoll_{tag}")
    a(f"buffer_load_dwordx2 {vr(vn,2)}, v{vzero}, s[{R_DBG}:{R_DBG+3}], 0 offen{SC}")
    a(f"s_add_u32 s{S_SPIN}, s{S_SPIN}, 1")
    a.lab(f"L_nchk_{tag}")
    a("s_waitcnt vmcnt(0)")
    a(f"v_readfirstlane_b32 s{S_NON}, v{vn}")
    a(f"v_readfirstlane_b32 s{S_NON+1}, v{vn+1}")
    a(f"s_cmp_ge_u32 s{S_SPIN}, {hex(SPIN_MAX)}")
    a(f"s_cbranch_scc1 L_npoll_done_{tag}")
    a(f"s_cmp_eq_u32 s{S_NON}, 0")
    a(f"s_cbranch_scc1 L_npoll_{tag}")
    a.lab(f"L_npoll_done_{tag}")


def k_copies(a, vaddr, P3, P2):
    a(f"ds_write_b128 v{vaddr}, {vr(P3,4)} offset:{3*KSTR+4}")
    a(f"ds_write_b128 v{vaddr}, {vr(P2,4)} offset:{2*KSTR+4}")
    a(f"ds_write2_b32 v{vaddr}, v{P2}, v{P2+1} offset0:0 offset1:1")
    a(f"ds_write2_b32 v{vaddr}, v{P2+2}, v{P2+3} offset0:2 offset1:3")
    a(f"v_add_u32 v{vaddr}, {KSTR}, v{vaddr}")
    a(f"ds_write2_b32 v{vaddr}, v{P3}, v{P3+1} offset0:0 offset1:1")
    a(f"ds_write2_b32 v{vaddr}, v{P3+2}, v{P3+3} offset0:2 offset1:3")


def prologue(a):
    if OPT["stamp"] or OPT["amp"]:
        a("s_memrealtime s[96:97]")
    a("s_cmp_ge_u32 s2, 256")
    a("s_cbranch_scc1 L_end")
    a("s_load_dwordx16 s[16:31], s[0:1], 0")
    a("s_load_dwordx16 s[32:47], s[0:1], 64")
    a("s_load_dwordx2 s[48:49], s[0:1], 128")
    a(f"s_getpc_b64 s[{S_PC}:{S_PC+1}]")
    a.lab("L_pc0")
    a("v_lshlrev_b32 v2, 5, v0")
    a("v_min_u32 v2, L_end-L_pc0, v2")
    a(f"global_load_dword v165, v2, s[{S_PC}:{S_PC+1}]")
    a("v_lshrrev_b32 v1, 6, v0")
    a(f"s_and_b32 s{S_CG}, s2, 7")
    a(f"v_readfirstlane_b32 s{S_WV}, v1")
    a("v_and_b32 v1, 63, v0")
    a("v_and_b32 v0, 0xff, v0")
    a(f"s_lshr_b32 s{S_TB}, s2, 3")
    a(f"s_lshl_b32 s{S_D0}, s{S_CG}, 6")
    a(f"s_lshl_b32 s{S_T0}, s{S_TB}, 1")
    a(f"s_add_u32 s{S_D0}, s{S_D0}, s{S_T0}")
    a(f"s_mov_b32 s{S_HI}, 0xffff0000")
    a(f"s_mov_b32 s{S_LO}, 0xffff")
    a(f"s_and_b32 s{S_W4}, s{S_WV}, 3")
    if OPT["map"] == 0:
        a(f"s_mov_b32 s{S_PCG}, s{S_CG}")
        a(f"s_mov_b32 s{S_PTB}, s{S_TB}")
    else:
        a(f"s_and_b32 s{S_PCG}, s{S_TB}, 7")
        a(f"s_lshr_b32 s{S_T0}, s2, 6")
        a(f"s_lshl_b32 s{S_T0}, s{S_T0}, 3")
        a(f"s_add_u32 s{S_PTB}, s{S_T0}, s{S_CG}")
    a(f"s_lshl_b32 s{S_GB}, s{S_PTB}, 3")
    a(f"s_add_u32 s{S_GB}, s{S_GB}, s{S_PCG}")
    if OPT["stamp"]:
        a(f"v_mov_b32 v{VST}, 0")
        stamp(a, 5)
        a(f"v_writelane_b32 v{VST}, s88, 0")
    a(f"s_cmp_ge_u32 s{S_WV}, 8")
    a("s_cbranch_scc1 L_aux")
    a(f"s_cmp_ge_u32 s{S_WV}, 4")
    a("s_cbranch_scc1 L_kgen")


def data_waves(a):
    a.c("==== data waves")
    if OPT["dprio"]:
        a(f"s_setprio {OPT['dprio']}")
    a("v_and_b32 v57, 7, v1")
    a("v_lshrrev_b32 v7, 3, v1")
    a(f"v_xor_b32 v9, s{S_WV}, v57")
    a(f"s_lshl_b32 s{S_T0}, s{S_PTB}, 16")
    a(f"s_lshl_b32 s{S_T1}, s{S_PCG}, 7")
    a(f"s_add_u32 s{S_T0}, s{S_T0}, s{S_T1}")
    a(f"s_lshl_b32 s{S_T1}, s{S_WV}, 13")
    a(f"s_add_u32 s{S_T0}, s{S_T0}, s{S_T1}")
    a(f"v_lshl_add_u32 v8, v7, 10, s{S_T0}")
    a("v_lshl_add_u32 v8, v9, 4, v8")
    a("v_xor_b32 v58, 64, v8")
    a("v_subrev_u32 v9, 0x8000, v58")
    a(f"s_lshl_b32 s{S_T0}, s{S_WV}, 3")
    a(f"v_add_u32 v6, s{S_T0}, v7")
    a(f"s_lshl_b32 s{S_T1}, s{S_PCG}, 9")
    a(f"v_lshl_add_u32 v10, v6, 4, s{S_T1}")
    a(f"s_movk_i32 s{S_4096}, 0x1000")
    a(f"s_mov_b32 s{S_KV0}, 0x8000")
    a(f"s_lshl_b32 s{S_T3}, s{S_WV}, 10")
    a(f"s_memrealtime s[{S_NON}:{S_NON+1}]")
    a("s_waitcnt lgkmcnt(0)")
    srd(a, R_K, P_K, 0x200000)
    a(f"s_cmp_lg_u32 s{S_WV}, 3")
    a("s_cbranch_scc1 L_nohalo")
    a(f"s_mov_b32 m0, {P1K-1024}")
    a("s_mov_b32 exec_lo, 0")
    a("s_mov_b32 exec_hi, 0xffffff00")
    a(f"buffer_load_dwordx4 v9, s[{R_K}:{R_K+3}], 0 offen lds")
    a("s_mov_b64 exec, -1")
    a.lab("L_nohalo")
    for base, R, P in ((P1K, R_K, None), (P1V, R_V, P_V), (P1U, R_U, P_U)):
        if P is not None:
            srd(a, R, P, 0x200000)
        a(f"s_add_u32 m0, s{S_T3}, {base}")
        a("s_nop 0")
        NT = " nt" if (OPT["nt"] & 1) and (R != R_U or OPT["nt"] & 4) else ""
        a(f"buffer_load_dwordx4 v8, s[{R}:{R+3}], 0 offen{NT} lds")
        a(f"s_add_u32 m0, s{S_T3}, {base+4096}")
        a("s_nop 0")
        a(f"buffer_load_dwordx4 v58, s[{R}:{R+3}], s{S_KV0} offen{NT} lds")
    a(f"global_load_dwordx4 v[48:51], v10, s[{P_SHK}:{P_SHK+1}]")
    stamp(a, 10)
    srd(a, R_DBG, P_DBG, 256)
    a("v_mov_b32 v56, 0")
    a(f"s_or_b32 s{S_T0}, s{S_WV}, s2")
    a(f"s_cmp_lg_u32 s{S_T0}, 0")
    a("s_cbranch_scc1 L_nonon")
    a(f"s_or_b32 s{S_NON}, s{S_NON}, 1")
    a(f"v_mov_b32 v52, s{S_NON}")
    a(f"v_mov_b32 v53, s{S_NON+1}")
    a("s_mov_b64 exec, 1")
    a(f"buffer_store_dwordx2 v[52:53], v56, s[{R_DBG}:{R_DBG+3}], 0 offen{SC}")
    a("s_mov_b64 exec, -1")
    a.lab("L_nonon")
    srd(a, R_WS, P_WS, WS_SIZE)
    a(f"s_mov_b32 s{S_SELLO}, 0x05040100")
    a(f"s_mov_b32 s{S_SELHI}, 0x07060302")
    a(f"s_mov_b32 s{S_KV0}, {hex(WS_KV)}")
    a(f"s_mov_b32 s{S_KV1}, {hex(WS_KV+4096)}")
    a(f"s_lshl_b32 s{S_T0}, s{S_PCG}, 18")
    a(f"s_lshl_b32 s{S_T1}, s{S_PTB}, 7")
    a(f"s_add_u32 s{S_T0}, s{S_T0}, s{S_T1}")
    a(f"v_lshl_add_u32 v10, v6, 13, s{S_T0}")
    a("v_lshl_add_u32 v10, v57, 4, v10")
    a("v_lshrrev_b32 v12, 2, v6")
    a("v_and_b32 v13, 3, v6")
    a("v_xor_b32 v16, v57, v12")
    a("v_lshlrev_b32 v8, 10, v57")
    a("v_lshl_add_u32 v8, v13, 2, v8")
    a(f"v_add_u32 v8, {P1S}, v8")
    a("v_add_u32 v15, 7, v57")
    a("v_and_b32 v15, 7, v15")
    a("v_xor_b32 v15, v15, v12")
    a("v_lshl_add_u32 v9, v15, 4, v8")
    a("v_lshl_add_u32 v8, v16, 4, v8")
    a(f"s_lshl_b32 s{S_T0}, s{S_D0}, 12")
    a(f"v_lshl_add_u32 v11, v0, 4, s{S_T0}")
    a("v_lshlrev_b32 v14, 4, v0")
    a(f"v_add_u32 v15, {2*CONV}, v14")
    a("v_and_b32 v19, 7, v1")
    a(f"s_lshl_b32 s{S_T0}, s{S_CG}, 12")
    a(f"s_lshl_b32 s{S_T1}, s{S_WV}, 10")
    a(f"s_add_u32 s{S_T0}, s{S_T0}, s{S_T1}")
    a(f"s_add_u32 s{S_T0}, s{S_T0}, {hex(WS_FLAG)}")
    a(f"v_lshl_add_u32 v19, v19, 7, s{S_T0}")
    a(f"s_lshl_b32 s{S_T0}, s{S_PCG}, 12")
    a(f"s_lshl_b32 s{S_T1}, s{S_PTB}, 7")
    a(f"s_add_u32 s{S_T0}, s{S_T0}, s{S_T1}")
    a(f"s_add_u32 s{S_T0}, s{S_T0}, {hex(WS_FLAG)}")
    if OPT["fullflag"]:
        a(f"v_lshl_add_u32 v18, v1, 3, s{S_T0}")
    else:
        a(f"v_mov_b32 v18, s{S_T0}")
    if OPT["fwarm"]:
        a(f"s_cmp_lg_u32 s{S_WV}, 1")
        a("s_cbranch_scc1 L_nofw")
        a("v_mov_b32 v44, 0")
        a("v_mov_b32 v45, 0")
        a("s_mov_b64 exec, 0xffff")
        a(f"buffer_store_dwordx2 v[44:45], v18, s[{R_WS}:{R_WS+3}], 0 offen{SC}")
        a("s_mov_b64 exec, -1")
        a.lab("L_nofw")
    conv_setup(a)
    a(f"v_mov_b32 v16, {C_SIG}")
    a("v_mov_b32 v17, 1")
    a("s_barrier")
    stamp(a, 1)
    a("s_waitcnt vmcnt(0)")
    a("s_mov_b64 exec, 1")
    a("ds_add_u32 v16, v17 offset:4")
    a("s_mov_b64 exec, -1")
    a(f"buffer_load_dwordx2 v[52:53], v56, s[{R_DBG}:{R_DBG+3}], 0 offen{SC}")
    SP = 60
    a(f"v_lshlrev_b32 v{SP+0}, 16, v48")
    a(f"v_lshlrev_b32 v{SP+1}, 16, v50")
    a(f"v_and_b32 v{SP+2}, s{S_HI}, v48")
    a(f"v_and_b32 v{SP+3}, s{S_HI}, v50")
    a(f"v_lshlrev_b32 v{SP+4}, 16, v49")
    a(f"v_lshlrev_b32 v{SP+5}, 16, v51")
    a(f"v_and_b32 v{SP+6}, s{S_HI}, v49")
    a(f"v_and_b32 v{SP+7}, s{S_HI}, v51")
    a(f"v_mov_b32 v12, {C_P1}")
    lds_spin(a, "L_p1spin", 12, 13, 4)
    stamp(a, 2)
    for j in range(8):
        a(f"ds_read_b32 v{39+j}, v8 offset:{P1U-P1S+j*128}")
    for j in range(3):
        a(f"ds_read_b32 v{20+j}, v9 offset:{(5+j)*128}")
    for base, off in ((23, P1K), (31, P1V)):
        for j in range(8):
            a(f"ds_read_b32 v{base+j}, v8 offset:{off-P1S+j*128}")
    a("s_waitcnt lgkmcnt(15)")
    O2 = 130
    for ch, sel in ((0, S_SELLO), (1, S_SELHI)):
        for j in range(4):
            a(f"v_perm_b32 v{O2+4*ch+j}, v{39+2*j+1}, v{39+2*j}, s{sel}")
        so = "0" if ch == 0 else f"s{S_4096}"
        a(f"buffer_store_dwordx4 {vr(O2+4*ch,4)}, v10, s[{R_WS}:{R_WS+3}], {so} offen{SC}")
    KP = 68
    a("s_waitcnt lgkmcnt(8)")
    for i in range(11):
        unpack2(a, KP + 2 * i, 20 + i)
    ACC = 90
    T = 106
    for r in range(8):
        a(f"v_pk_mul_f32 {vr(ACC+2*r,2)}, {vr(KP+2*r,2)}, {vr(SP+6,2)}")
    for j in (1, 2, 3):
        for r in range(8):
            a(f"v_pk_fma_f32 {vr(ACC+2*r,2)}, {vr(KP+2*(r+j),2)}, {vr(SP+6-2*j,2)}, {vr(ACC+2*r,2)}")
    a("s_waitcnt lgkmcnt(0)")
    for r in range(8):
        unpack2(a, T + 2 * r, 31 + r)
    for r in range(8):
        a(f"v_pk_mul_f32 {vr(ACC+2*r,2)}, {vr(ACC+2*r,2)}, {vr(T+2*r,2)}")
    O = 122
    for ch in range(2):
        for j in range(4):
            a(f"v_cvt_pk_bf16_f32 v{O+4*ch+j}, v{ACC+2*(2*j)+ch}, v{ACC+2*(2*j+1)+ch}")
        so = S_KV0 if ch == 0 else S_KV1
        a(f"buffer_store_dwordx4 {vr(O+4*ch,4)}, v10, s[{R_WS}:{R_WS+3}], s{so} offen{SC}")
    stamp(a, 3)
    nonce_check(a, "d", 52, 56)
    stamp(a, 4)
    a.c("---- signal")
    a("s_mov_b64 exec, 1")
    a("ds_add_rtn_u32 v13, v16, v17")
    a("s_waitcnt lgkmcnt(0)")
    a(f"v_readfirstlane_b32 s{S_T1}, v13")
    a(f"s_cmp_lg_u32 s{S_T1}, 3")
    a("s_cbranch_scc1 L_nosig")
    if OPT["fullflag"]:
        a("s_mov_b64 exec, 0xffff")
    a(f"buffer_store_dwordx2 v[52:53], v18, s[{R_WS}:{R_WS+3}], 0 offen{SC}")
    a.lab("L_nosig")
    a("s_mov_b64 exec, -1")
    a.c("---- wait for this wave's 8 producers")
    if OPT["pdelay"]:
        a(f"s_sleep {OPT['pdelay']}")
    a(f"s_mov_b32 s{S_SPIN}, 0")
    a.lab("L_poll")
    a(f"buffer_load_dwordx2 v[40:41], v19, s[{R_WS}:{R_WS+3}], 0 offen{SC}")
    a(f"s_add_u32 s{S_SPIN}, s{S_SPIN}, 1")
    a("s_waitcnt vmcnt(0)")
    a(f"v_cmp_ne_u64 vcc, s[{S_NON}:{S_NON+1}], v[40:41]")
    a(f"s_cmp_ge_u32 s{S_SPIN}, {hex(SPIN_MAX)}")
    a("s_cbranch_scc1 L_poll_done")
    a("s_cmp_eq_u64 vcc, 0")
    a("s_cbranch_scc1 L_poll_done")
    if OPT["pollsleep"]:
        a(f"s_sleep {OPT['pollsleep']}")
    a("s_branch L_poll")
    a.lab("L_poll_done")
    stamp(a, 6)
    a.c("---- phase 2 loads")
    sofs = ["0", f"s{S_4096}", f"s{S_KV0}", f"s{S_KV1}"]
    for q in range(4):
        a(f"buffer_load_dwordx4 {vr(20+4*q,4)}, v11, s[{R_WS}:{R_WS+3}], {sofs[q]} offen{SC}")
    for q in range(4):
        a(f"s_waitcnt vmcnt({3-q})")
        ad = "v14" if q < 2 else "v15"
        a(f"ds_write_b128 {ad}, {vr(20+4*q,4)} offset:{XB(q&1)+XD}")
        a(f"ds_write_b64 {ad}, {vr(20+4*q,2)} offset:{XB(q&1)+456}")
        a(f"ds_write_b64 {ad}, {vr(22+4*q,2)} offset:{XB(q&1)+464}")
    a("s_waitcnt lgkmcnt(0)")
    stamp(a, 7)
    if OPT["dprio"]:
        a(f"s_setprio {OPT['cprio']}")
    a("s_barrier")
    stamp(a, 8)
    if OPT["exp"]:
        a(f"s_cmp_lt_u32 s{S_WV}, 2")
        a("s_cbranch_scc1 L_convA")
    conv_main(a)
    if OPT["amp"]:
        stamp(a, 9)
        a(f"s_cmp_lg_u32 s2, 77")
        a("s_cbranch_scc1 L_noamp")
        a("s_sub_u32 s94, s94, s96")
        a("s_mul_i32 s94, s94, 10")
        a("s_memrealtime s[8:9]")
        a("s_waitcnt lgkmcnt(0)")
        a("s_add_u32 s94, s94, s8")
        a.lab("L_ampspin")
        a("s_memrealtime s[8:9]")
        a("s_waitcnt lgkmcnt(0)")
        a("s_sub_u32 s10, s8, s94")
        a("s_cmp_lt_i32 s10, 0")
        a("s_cbranch_scc1 L_ampspin")
        a.lab("L_noamp")
    if OPT["stamp"]:
        stamp(a, 9)
        stamp_out(a)
    a("s_endpgm")
    if OPT["exp"]:
        a.lab("L_convA")
        conv_main(a, OPT["exp"])
        if OPT["stamp"]:
            stamp(a, 9)
            stamp_out(a)
        a("s_endpgm")


def conv_setup(a):
    a.c("conv address setup, q = wave")
    a(f"s_mul_i32 s{S_T0}, s{S_WV}, {CONV}")
    a("v_and_b32 v12, 15, v1")
    a("v_lshrrev_b32 v13, 4, v1")
    a("v_and_b32 v16, 3, v12")
    a("v_lshrrev_b32 v17, 2, v12")
    a(f"v_mul_u32_u24 v2, {KSTR}, v16")
    a("v_lshl_add_u32 v2, v13, 4, v2")
    a("v_lshlrev_b32 v17, 4, v17")
    a("v_sub_u32 v2, v2, v17")
    a(f"s_add_u32 s{S_T1}, s{S_T0}, {KR(0,0)+48}")
    a(f"v_add_u32 v2, s{S_T1}, v2")
    a("v_and_b32 v16, 1, v12")
    a("v_lshrrev_b32 v17, 1, v12")
    a(f"v_mul_u32_u24 v3, {XSTR}, v16")
    a("v_lshl_add_u32 v3, v13, 4, v3")
    a("v_lshl_add_u32 v3, v17, 6, v3")
    a(f"s_add_u32 s{S_T1}, s{S_T0}, {XB(0)}")
    a(f"v_add_u32 v3, s{S_T1}, v3")
    a("v_mul_u32_u24 v4, 72, v17")
    a("v_lshl_add_u32 v4, v13, 4, v4")
    a("v_lshl_add_u32 v4, v16, 3, v4")
    a(f"s_mul_i32 s{S_T1}, s{S_WV}, {YSZ}")
    a(f"s_add_u32 s{S_T1}, s{S_T1}, {YS}")
    a(f"v_add_u32 v4, s{S_T1}, v4")
    a(f"s_lshl_b32 s{S_T1}, s{S_WV}, 2")
    a(f"s_add_u32 s{S_T1}, s{S_T1}, {C_Y}")
    a(f"v_mov_b32 v5, s{S_T1}")


def conv_main2(a):
    ACC = 6
    SLOTS = [38 + 4 * i for i in range(32)]
    grp = groups()
    steps = []
    for part in OPT["order"].split(","):
        tl, rr = part.split(":")
        for r in rr:
            steps.append(([int(c) for c in tl], int(r)))
    cov = {t: set() for t in range(8)}
    mf = []
    gdone = {}
    for si, (tl, r) in enumerate(steps):
        pairs = [(e1, tau - e1, tau) for tau in tl for e1 in range(tau + 1)]
        pairs.sort(key=lambda p: (max(p[0], p[1]), p[2]))
        for (e1, c1, tau) in pairs:
            mf.append((tau, ("F", si, r, e1), ("G", si, r, c1)))
        for t in tl:
            assert r not in cov[t]
            cov[t].add(r)
        for gi, g in enumerate(grp):
            if gi not in gdone.values() and all(len(cov[t]) == 8 for t in g):
                gdone[len(mf) - 1] = gi
    assert len(mf) == 288 and len(gdone) == len(grp)
    first, last = {}, {}
    for i, (tau, fk, gk) in enumerate(mf):
        for k in (fk, gk):
            first.setdefault(k, i)
            last[k] = i
    frs = sorted(first, key=lambda k: (first[k], k[0] == "F"))
    ninstr = len(frs)
    rate = ninstr / 288.0 * OPT["boost"] / 100.0
    free = list(SLOTS)
    reg = {}
    seq = [0]; done = [0]; when = {}

    def lds(sx, key=None):
        a(sx)
        if key is not None:
            when[key] = seq[0]
        seq[0] += 1

    def need(idx):
        if idx < done[0]:
            return
        n = min(seq[0] - idx - 1, OPT["wslack"] if seq[0] > 30 else 15)
        a(f"s_waitcnt lgkmcnt({n})")
        if not OPT["nonop"]:
            a("s_nop 0")
        done[0] = seq[0] - n

    def issue(k):
        rg = free.pop(0)
        reg[k] = rg
        _, si, r, i = k
        if k[0] == "G":
            lds(f"ds_read_b128 {vr(rg,4)}, v3 offset:{512*i+64*r}", k)
            return 1
        lds(f"ds_read_b128 {vr(rg,4)}, v2 offset:{512*(7-i)+64*r}", k)
        return 1

    a(".p2align 3")
    nxt = 0
    for _ in range(OPT["pre"]):
        issue(frs[nxt]); nxt += 1
    started = set(); pending = []; mark = [0]
    credit = 0.0
    for i, (tau, fk, gk) in enumerate(mf):
        while nxt < len(frs) and first[frs[nxt]] <= i:
            issue(frs[nxt]); nxt += 1
        need(max(when[fk], when[gk]))
        c = vr(ACC + 4 * tau, 4) if tau in started else "0"
        started.add(tau)
        a(f"v_mfma_f32_16x16x32_bf16 {vr(ACC+4*tau,4)}, {vr(reg[fk],4)}, {vr(reg[gk],4)}, {c}")
        for k in (fk, gk):
            if last[k] == i:
                free.append(reg[k])
        if pending and len(a.l) - mark[0] >= 9:
            for _ in range(2):
                if pending:
                    op = pending.pop(0)
                    if op.startswith("ds_"):
                        lds(op)
                    else:
                        a(op)
        credit = min(credit + rate, 3.0)
        while nxt < len(frs) and free and (credit >= 1.0 or first[frs[nxt]] - i <= OPT["lead"]):
            credit -= issue(frs[nxt]); nxt += 1
        if i in gdone:
            gi = gdone[i]
            assert not pending
            mark[0] = len(a.l)
            for tau2 in grp[gi]:
                c = ACC + 4 * tau2
                pending.append(f"v_cvt_pk_bf16_f32 v{c}, v{c}, v{c+1}")
                pending.append(f"v_cvt_pk_bf16_f32 v{c+1}, v{c+2}, v{c+3}")
                pending.append(f"ds_write_b64 v4, {vr(c,2)} offset:{576*tau2}")
            pending.append(f"ds_write_b32 v5, v5 offset:{16*gi}")
    a("s_nop 7")
    for op in pending:
        a(op)


def conv_main(a, emax=99):
    if OPT["sched"]:
        return conv_main2(a)
    ACC = 6
    BUF = [38, 102]
    grp = groups()
    steps = []
    if OPT["plan"]:
        for part in OPT["plan"].split(","):
            tl, rr = part.split(":")
            tl = [int(c) for c in tl]
            r0, r1 = [int(x) for x in rr.split("-")]
            per = 2 if max(tl) <= 3 else 1
            for r in range(r0, r1 + 1, per):
                steps.append((tl, list(range(r, r + per))))
    else:
        for g in grp:
            per = 2 if max(g) <= 3 else 1
            for r0 in range(0, 8, per):
                steps.append((g, list(range(r0, r0 + per))))
    last = {}
    cov = {t: set() for t in range(8)}
    for si, (tl, rs) in enumerate(steps):
        for t in tl:
            assert not (cov[t] & set(rs))
            cov[t] |= set(rs)
        for gi, g in enumerate(grp):
            if gi not in last and all(len(cov[t]) == 8 for t in g):
                last[gi] = si
    assert len(last) == len(grp)

    def step_plan(si):
        g, rs = steps[si]
        nfr = max(g) + 1
        b = BUF[si & 1]
        loads, mf = [], []
        for k, r in enumerate(rs):
            fb = b + 16 * k if len(rs) > 1 else b
            gb = b + 32 + (16 * k if len(rs) > 1 else 0)
            pairs = [(e1, tau - e1, tau) for tau in g for e1 in range(tau + 1) if e1 < emax]
            pairs.sort(key=lambda p: (max(p[0], p[1]), p[2]))
            for i in range(nfr):
                if any(p[1] == i for p in pairs):
                    loads.append((("G", k, i), f"ds_read_b128 {vr(gb+4*i,4)}, v3 offset:{512*i+64*r}"))
                if i >= emax:
                    continue
                loads.append((("F", k, i), f"ds_read_b128 {vr(fb+4*i,4)}, v2 offset:{512*(7-i)+64*r}"))
            for (e1, c1, tau) in pairs:
                mf.append((tau, ("F", k, e1), ("G", k, c1), fb + 4 * e1, gb + 4 * c1))
        return loads, mf

    plans = [step_plan(si) for si in range(len(steps))]
    seq = [0]
    done = [0]
    when = {}

    def lds(s, key=None):
        a(s)
        if key is not None:
            when[key] = seq[0]
        seq[0] += 1

    def need(idx):
        if idx < done[0]:
            return
        n = min(seq[0] - idx - 1, OPT["wslack"] if seq[0] > 30 else 15)
        a(f"s_waitcnt lgkmcnt({n})")
        if not OPT["nonop"]:
            a("s_nop 0")
        done[0] = seq[0] - n

    a(".p2align 3")
    for key, s in plans[0][0]:
        lds(s, (0,) + key)
    started = set()
    mark = [0]
    pending = []
    for si in range(len(steps)):
        loads, mf = plans[si]
        nl = list(plans[si + 1][0]) if si + 1 < len(steps) else []
        nm = len(mf)
        slots = max(1, nm * OPT["frac"] // 100)
        ntot = len(nl)
        for i, (tau, fk, gk, fr, gr) in enumerate(mf):
            need(max(when[(si,) + fk], when[(si,) + gk]))
            c = vr(ACC + 4 * tau, 4) if tau in started else "0"
            started.add(tau)
            a(f"v_mfma_f32_16x16x32_bf16 {vr(ACC+4*tau,4)}, {vr(fr,4)}, {vr(gr,4)}, {c}")
            if pending and len(a.l) - mark[0] >= 9:
                for _ in range(2):
                    if pending:
                        op = pending.pop(0)
                        if op.startswith("ds_"):
                            lds(op)
                        else:
                            a(op)
            want = min(ntot, -(-ntot * (i + 1) // slots))
            while ntot - len(nl) < want:
                key, s = nl.pop(0)
                lds(s, (si + 1,) + key)
        assert not nl
        for gi in [g_ for g_, l_ in last.items() if l_ == si]:
            assert not pending
            mark[0] = len(a.l)
            for tau in grp[gi]:
                c = ACC + 4 * tau
                pending.append(f"v_cvt_pk_bf16_f32 v{c}, v{c}, v{c+1}")
                pending.append(f"v_cvt_pk_bf16_f32 v{c+1}, v{c+2}, v{c+3}")
                pending.append(f"ds_write_b64 v4, {vr(c,2)} offset:{576*tau}")
            pending.append(f"ds_write_b32 v5, v5 offset:{16*gi}")
    a("s_nop 7")
    for op in pending:
        a(op)


XA = 154


def expansion_addr(a, g):
    a.c("expansion addresses")
    a(f"s_lshr_b32 s{S_KC}, s{S_W4}, 1")
    a(f"s_and_b32 s{S_HM}, s{S_W4}, 1")
    a(f"s_lshl_b32 s{S_T0}, s{S_HM}, 7")
    a(f"s_add_u32 s{S_T0}, s{S_T0}, {64*g}")
    a(f"v_add_u32 v12, s{S_T0}, v1")
    a(f"s_mul_i32 s{S_T1}, s{S_KC}, {KCSZ}")
    a(f"s_add_u32 s{S_T1}, s{S_T1}, {KC}")
    a(f"s_sub_u32 s{S_T3}, s{S_T1}, {IDXBIAS}")
    a(f"s_mul_i32 s{S_T2}, s{S_KC}, {CONV}")
    a(f"s_add_u32 s{S_T2}, s{S_T2}, {KR(0,0)-4}")
    a("v_lshlrev_b32 v11, 3, v12")
    a("v_sub_u32 v11, 2047, v11")
    a("v_cvt_f32_u32 v8, v11")
    if g == 1:
        a("v_cmp_gt_u32 vcc, 0x100, v11")
        a(f"v_lshl_add_u32 v10, v11, 3, s{S_T1}")
    for k in range(9):
        d = XA + k
        if k == 0:
            a(f"v_cvt_pk_bf16_f32 v{d}, 0, v8")
        else:
            lit = {1: "-1.0", 2: "-2.0", 4: "-4.0"}.get(k, hex(f2u(-float(k))))
            a(f"v_add_f32 v9, {lit}, v8")
            a(f"v_cvt_pk_bf16_f32 v{d}, 0, v9")
        a(f"v_lshrrev_b32 v{d}, 13, v{d}")
        a(f"v_add_u32 v{d}, s{S_T3}, v{d}")
        if g == 1:
            a(f"v_subrev_u32 v9, {8*k}, v10")
            a(f"v_cndmask_b32 v{d}, v{d}, v9, vcc")
    a(f"v_lshl_add_u32 v163, v12, 4, s{S_T2}")
    if g == 1:
        a("v_cmp_eq_u32 vcc, 0xff, v12")
        a(f"s_add_u32 s{S_T0}, s{S_T1}, {768*8}")
        a(f"v_mov_b32 v9, s{S_T0}")
        a(f"v_cndmask_b32 v{XA+8}, v{XA+8}, v9, vcc")
    a(f"s_lshl_b32 s{S_T0}, s{S_KC}, 2")
    a(f"s_add_u32 s{S_T0}, s{S_T0}, {C_KG}")
    a(f"v_mov_b32 v164, s{S_T0}")


def expansion(a, tag):
    lds_spin(a, f"L_kspin_{tag}", 164, 8, 2, sleep=(1 if tag == "a" else 0))
    stamp(a, 8)
    a.c("expansion")
    B = 100
    for k in range(9):
        a(f"ds_read_b64 {vr(B+2*k,2)}, v{XA+k}")
    a("s_waitcnt lgkmcnt(0)")
    for k in range(9):
        a(f"v_add_f32 v{B+2*k}, v{B+2*k}, v{B+2*k+1}")
    P3, P2 = 120, 124
    for j in range(4):
        b = B + 4 * j
        a(f"v_cvt_pk_bf16_f32 v{P3+j}, v{b}, v{b+2}")
        a(f"v_cvt_pk_bf16_f32 v{P2+j}, v{b+2}, v{b+4}")
    k_copies(a, 163, P3, P2)


def kgen_waves(a):
    a.c("==== K generation waves")
    a(f"s_lshr_b32 s{S_KC}, s{S_W4}, 1")
    a(f"s_and_b32 s{S_HM}, s{S_W4}, 1")
    a(f"s_add_u32 s{S_T1}, s{S_D0}, s{S_KC}")
    a(f"s_lshl_b32 s{S_T3}, s{S_T1}, 1")
    a(f"v_mov_b32 v8, s{S_T3}")
    a(f"s_lshl_b32 s{S_T1}, s{S_T1}, 8")
    a(f"s_lshl_b32 s{S_T2}, s{S_HM}, 7")
    a(f"s_add_u32 s{S_T1}, s{S_T1}, s{S_T2}")
    a(f"v_lshl_add_u32 v2, v1, 1, s{S_T1}")
    a("s_waitcnt lgkmcnt(0)")
    a(f"global_load_ushort v7, v8, s[{P_LDT}:{P_LDT+1}]")
    a(f"global_load_ushort v3, v2, s[{P_LAR}:{P_LAR+1}]" + (" nt" if OPT["nt"] & 16 else ""))
    a(f"global_load_ushort v4, v2, s[{P_AIM}:{P_AIM+1}]" + (" nt" if OPT["nt"] & 16 else ""))
    a(f"global_load_ushort v5, v2, s[{P_CR}:{P_CR+1}]" + (" nt" if OPT["nt"] & 16 else ""))
    a(f"global_load_ushort v6, v2, s[{P_CI}:{P_CI+1}]" + (" nt" if OPT["nt"] & 16 else ""))
    if OPT["stamp"]:
        srd(a, R_WS, P_WS, WS_SIZE)
    expansion_addr(a, 0)
    TBW, TBR, KA0, KA1, KA2 = 16, 17, 18, 19, 49
    a(f"s_mul_i32 s{S_T0}, s{S_W4}, {TBLSZ}")
    a(f"s_add_u32 s{S_T0}, s{S_T0}, {TBL}")
    a(f"v_lshl_add_u32 v{TBW}, v1, 2, s{S_T0}")
    a("v_and_b32 v13, 15, v1")
    a("v_lshrrev_b32 v8, 4, v1")
    a(f"v_mul_u32_u24 v{TBR}, 288, v13")
    a(f"v_lshl_add_u32 v{TBR}, v8, 4, v{TBR}")
    a(f"v_add_u32 v{TBR}, s{S_T0}, v{TBR}")
    a(f"s_lshl_b32 s{S_T0}, s{S_HM}, 2")
    a(f"s_add_u32 s{S_T1}, s{S_T1}, s{S_T0}")
    a("v_lshrrev_b32 v9, 1, v8")
    a("v_and_b32 v10, 1, v8")
    a(f"v_lshlrev_b32 v{KA0}, 7, v9")
    a(f"v_lshl_add_u32 v{KA0}, v10, 2, v{KA0}")
    a(f"v_lshl_add_u32 v{KA0}, v13, 3, v{KA0}")
    a(f"v_lshl_add_u32 v{KA0}, v{KA0}, 3, s{S_T1}")
    a("v_lshlrev_b32 v11, 1, v10")
    a("v_lshl_add_u32 v11, v13, 2, v11")
    a("v_add_u32 v11, 0x100, v11")
    a("v_lshlrev_b32 v12, 5, v10")
    a("v_lshl_add_u32 v12, v13, 1, v12")
    a("v_cmp_eq_u32 vcc, 0, v9")
    a("v_add_u32 v12, 0x180, v12")
    a(f"v_lshl_add_u32 v{KA2}, v8, 6, v13")
    a(f"v_cndmask_b32 v{KA1}, v12, v11, vcc")
    a(f"v_lshl_add_u32 v{KA1}, v{KA1}, 3, s{S_T1}")
    a(f"v_add_u32 v{KA2}, 0x200, v{KA2}")
    a(f"v_lshl_add_u32 v{KA2}, v{KA2}, 3, s{S_T1}")
    a("s_barrier")
    stamp(a, 2)
    a.c("parameters")
    a("s_waitcnt vmcnt(0)")
    stamp(a, 4)
    a("v_lshlrev_b32 v8, 16, v7")
    a("v_lshlrev_b32 v9, 16, v3")
    a(f"s_mov_b32 s{S_T1}, {hex(L2E)}")
    a(f"s_mov_b32 s{S_T2}, {hex(L2E_LO)}")
    for x, p, e in ((8, 10, 12), (9, 11, 13)):
        a(f"v_mul_f32 v{p}, s{S_T1}, v{x}")
        a(f"v_fma_f32 v{e}, v{x}, s{S_T1}, -v{p}")
        a(f"v_fma_f32 v{e}, v{x}, s{S_T2}, v{e}")
        a(f"v_exp_f32 v{p}, v{p}")
        a(f"v_mul_f32 v{e}, {hex(LN2)}, v{e}")
    a("v_lshlrev_b32 v4, 16, v4")
    for x, p, e in ((8, 10, 12), (9, 11, 13)):
        a(f"v_fma_f32 v{p}, v{p}, v{e}, v{p}")
        rnd(a, p, p)
    a("v_mul_f32 v11, v11, v10")
    a(f"v_mul_f32 v11, {hex(L2E | 0x80000000)}, v11")
    a("v_mul_f32 v4, v4, v10")
    a("v_mul_f32 v12, 0.15915494, v4")
    a("v_add_f32 v10, v10, v10")
    a("v_lshlrev_b32 v5, 16, v5")
    a("v_lshlrev_b32 v6, 16, v6")
    a("v_mul_f32 v14, v5, v10")
    a("v_mul_f32 v15, v6, v10")
    a("v_max_f32 v13, |v14|, |v15|")
    E = lambda j: 20 + 2 * j
    tmp = {0: (50, 51), 3: (52, 53), 7: (54, 55)}
    dpps = [f"v_max_u32_dpp v13, v13, v13 {d} bank_mask:0xf" for d in
            ("quad_perm:[1,0,3,2] row_mask:0xf", "quad_perm:[2,3,0,1] row_mask:0xf", "row_half_mirror row_mask:0xf",
             "row_mirror row_mask:0xf", "row_bcast:15 row_mask:0xa", "row_bcast:31 row_mask:0xc")]
    anc = []
    for j, (m, f) in tmp.items():
        if j == 0:
            anc += [f"v_exp_f32 v{m}, v11", f"v_fract_f32 v{f}, v12"]
        else:
            anc += [f"v_mul_f32 v{m}, {hex(f2u(2.0**j))}, v11", f"v_mul_f32 v{f}, {hex(f2u(2.0**j))}, v12",
                    f"v_exp_f32 v{m}, v{m}", f"v_fract_f32 v{f}, v{f}"]
    for j, (m, f) in tmp.items():
        anc += [f"v_cos_f32 v{E(j)}, v{f}", f"v_sin_f32 v{E(j)+1}, v{f}"]
    a.c("anchors")
    k = 0
    for d in dpps:
        a(anc[k]); a(anc[k + 1]); k += 2
        a(d)
    for o in anc[k:]:
        a(o)
    a(f"v_readlane_b32 s{S_T0}, v13, 63")
    for j, (m, f) in tmp.items():
        a(f"v_mul_f32 v{E(j)}, v{E(j)}, v{m}")
        a(f"v_mul_f32 v{E(j)+1}, v{E(j)+1}, v{m}")
    a(f"s_lshr_b32 s{S_T0}, s{S_T0}, 23")
    a(f"s_max_u32 s{S_T0}, s{S_T0}, 16")
    a(f"s_sub_u32 s{S_SC}, 264, s{S_T0}")
    a(f"s_lshl_b32 s{S_SC}, s{S_SC}, 23")
    a(f"s_sub_u32 s{S_ISC}, s{S_T0}, 10")
    a(f"s_lshl_b32 s{S_ISC}, s{S_ISC}, 23")
    interleave(a, [sum([cmul_ops(E(j), E(j - 1), E(j - 1)) for j in js], []) for js in ((4, 5, 6), (8, 9, 10, 11), (1, 2))])
    a.c("Y tile")
    tcount = [0]

    def put_ops(row, x, neg):
        t = 44 + (tcount[0] % 4)
        tcount[0] += 1
        return [f"v_cvt_pk_f16_f32 v{t}, v{x}, {'-' if neg else ''}v{x+1}",
                f"ds_write_b32 v{TBW}, v{t} offset:{288*row}"]

    def run_items(items):
        for i in range(0, len(items), 2):
            ch = []
            for (d, x, y, row, neg) in items[i:i + 2]:
                ops = [] if x is None else cmul_ops(d, x, y)
                if row is not None:
                    ops += put_ops(row, d, neg)
                ch.append(ops)
            interleave(a, ch)

    CT = 98
    Y = {1: E(3), 2: E(4), 4: E(5), 8: E(6), 3: 56, 5: 58, 6: 60, 7: 62}
    a("v_mov_b32 v48, 0x3c00")
    a(f"ds_write_b32 v{TBW}, v48")
    items = [(Y[3], Y[2], Y[1], 3, True), (Y[1], None, None, 1, True),
             (Y[5], Y[4], Y[1], 5, True), (Y[2], None, None, 2, True),
             (Y[6], Y[4], Y[2], 6, True), (Y[4], None, None, 4, True),
             (Y[7], Y[4], Y[3], 7, True), (Y[8], None, None, 8, True)]
    for b in range(9, 16):
        items.append((CT + 2 * (b % 4), Y[8], Y[b - 8], b, True))
    run_items(items)
    YF = 106
    for s in range(4):
        a(f"ds_read_b128 {vr(YF+4*s,4)}, v{TBR} offset:{64*s}")
    a.c("Z, W")
    Z = {1: E(0), 2: E(1), 4: E(2), 3: 56, 5: 58, 6: 60, 7: 62}
    W = {h: 64 + 2 * h for h in range(17)}
    a(f"v_mul_f32 v{W[0]}, s{S_SC}, v14")
    a(f"v_mul_f32 v{W[0]+1}, s{S_SC}, v15")
    run_items([(Z[3], Z[2], Z[1], None, 0), (W[1], W[0], E(7), None, 0),
               (Z[5], Z[4], Z[1], None, 0), (Z[6], Z[4], Z[2], None, 0),
               (Z[7], Z[4], Z[3], None, 0), (W[2], W[0], E(8), None, 0)])
    stamp(a, 6)
    XFT = [122, 138, 20]
    ACC = 36

    def rd(t):
        for s in range(4):
            a(f"ds_read_b128 {vr(XFT[t]+4*s,4)}, v{TBR} offset:{64*s}")

    def mm(t):
        for s in range(4):
            c = "0" if s == 0 else vr(ACC + 4 * t, 4)
            a(f"v_mfma_f32_16x16x32_f16 {vr(ACC+4*t,4)}, {vr(XFT[t]+4*s,4)}, {vr(YF+4*s,4)}, {c}")

    a.c("X tile 0")
    items = [(W[0], None, None, 0, False), (W[1], None, None, 8, False)]
    k = 0
    for r in range(1, 8):
        for h in (0, 1):
            items.append((CT + 2 * (k % 4), W[h], Z[r], 8 * h + r, False)); k += 1
    run_items(items)
    rd(0)
    run_items([(W[3], W[1], E(8), None, 0)] + [(W[h], W[h - 4], E(9), None, 0) for h in (4, 5, 6)] + [(W[7], W[3], E(9), None, 0)])
    a.c("X tile 1")
    items = []
    for G in range(4):
        for r in range(4):
            if G < 2:
                h = 2 + (r >> 1); zr = 2 * (2 * G + (r & 1))
            else:
                h = 4 + 2 * (r >> 1) + (G - 2); zr = 4 * (r & 1)
            if zr == 0:
                items.append((W[h], None, None, 4 * G + r, False))
            else:
                items.append((CT + 2 * (k % 4), W[h], Z[zr], 4 * G + r, False)); k += 1
    run_items(items)
    rd(1)
    a.c("X tile 2")
    run_items([(W[h], W[h - 8], E(10), h - 8, False) for h in range(8, 16)] + [(W[16], W[0], E(11), 8, False)])
    rd(2)
    a("s_waitcnt lgkmcnt(4)")
    mm(0)
    mm(1)
    a("s_waitcnt lgkmcnt(0)")
    mm(2)
    a("v_mov_b32 v8, 1")
    a("s_nop 2")
    for t in (0, 1):
        for r in range(4):
            a(f"v_mul_f32 v{ACC+4*t+r}, s{S_ISC}, v{ACC+4*t+r}")
    for t, offs, ad in ((0, (0, 8, 16, 24), KA0), (1, (0, 8, 512, 520), KA1)):
        for r in range(4):
            a(f"ds_write_b32 v{ad}, v{ACC+4*t+r} offset:{offs[r]}")
    for r in range(4):
        a(f"v_mul_f32 v{ACC+8+r}, s{S_ISC}, v{ACC+8+r}")
    for r in range(4):
        a(f"ds_write_b32 v{KA2}, v{ACC+8+r} offset:{128*r}")
    a("s_mov_b64 exec, 1")
    a("ds_add_u32 v164, v8")
    a("s_mov_b64 exec, -1")
    stamp(a, 7)
    expansion(a, "k")
    a("s_waitcnt lgkmcnt(0)")
    stamp(a, 9)
    a("s_barrier")
    stamp_out(a)
    a("s_endpgm")


def gate_compute(a, XR, WR, T):
    Wp = T
    X0 = T + 8
    for j in range(4):
        unpack2(a, Wp + 2 * j, WR + j)
    for row in range(2):
        X = X0 + 8 * row
        for j in range(4):
            unpack2(a, X + 2 * j, XR + 4 * row + j)
    for row in range(2):
        X = X0 + 8 * row
        for j in range(4):
            a(f"v_pk_mul_f32 {vr(X+2*j,2)}, {vr(X+2*j,2)}, {vr(Wp+2*j,2)}")
    for row in range(2):
        X = X0 + 8 * row
        for j in range(8):
            rnd(a, X + j, X + j)
    for row in range(2):
        X = X0 + 8 * row
        a(f"v_pk_add_f32 {vr(X,2)}, {vr(X,2)}, {vr(X+2,2)}")
        a(f"v_pk_add_f32 {vr(X+4,2)}, {vr(X+4,2)}, {vr(X+6,2)}")
    for row in range(2):
        X = X0 + 8 * row
        a(f"v_pk_add_f32 {vr(X,2)}, {vr(X,2)}, {vr(X+4,2)}")
    A0, A1 = X0, X0 + 8
    a(f"v_add_f32 v{A0}, v{A0}, v{A0+1}")
    a(f"v_add_f32 v{A1}, v{A1}, v{A1+1}")
    a("s_nop 0")
    for d in ("quad_perm:[1,0,3,2]", "quad_perm:[2,3,0,1]", "row_half_mirror", "row_mirror",
              "row_bcast:15 row_mask:0xa", "row_bcast:31 row_mask:0xc"):
        m = "" if "row_mask" in d else " row_mask:0xf"
        a(f"v_add_f32_dpp v{A0}, v{A0}, v{A0} {d}{m} bank_mask:0xf")
        a(f"v_add_f32_dpp v{A1}, v{A1}, v{A1} {d}{m} bank_mask:0xf")
        a("s_nop 0")
    for x in (A0, A1):
        rnd(a, x, x)
    for x in (A0, A1):
        a(f"v_mul_f32 v{x}, {hex(L2E | 0x80000000)}, v{x}")
    for x in (A0, A1):
        a(f"v_exp_f32 v{x}, v{x}")
    a("s_nop 0")
    for x in (A0, A1):
        a(f"v_add_f32 v{x}, 1.0, v{x}")
    for x in (A0, A1):
        a(f"v_rcp_f32 v{x}, v{x}")
    a("s_nop 0")
    for x in (A0, A1):
        rnd(a, x, x)
    for x in (A0, A1):
        a(f"v_sub_f32 v{x+1}, 1.0, v{x}")
    a(f"v_cvt_pk_bf16_f32 v{T}, v{A0}, v{A0+1}")
    a(f"v_mov_b32 v{T+1}, s{S_NON}")
    a(f"v_cvt_pk_bf16_f32 v{T+2}, v{A1}, v{A1+1}")
    a(f"v_mov_b32 v{T+3}, s{S_NON}")


def aux_waves(a):
    grp = groups()
    a.c("==== aux waves; v0 = thread index 0..255")
    a.c("zero init of LDS pads")
    for i in range(4):
        a(f"v_mov_b32 v{8+i}, 0")
    a("v_lshrrev_b32 v12, 6, v0")
    a(f"v_mul_u32_u24 v12, {CONV}, v12")
    a("v_bfe_u32 v14, v0, 5, 1")
    a(f"v_mul_u32_u24 v14, {XSTR}, v14")
    a("v_and_b32 v13, 31, v0")
    a("v_min_u32 v13, 28, v13")
    a("v_lshl_add_u32 v12, v13, 4, v12")
    a("v_add_u32 v12, v12, v14")
    a(f"ds_write_b128 v12, v[8:11] offset:{XB(0)}")
    a("v_bfe_u32 v13, v0, 4, 2")
    a(f"v_mul_u32_u24 v13, {CONV}, v13")
    a("v_bfe_u32 v14, v0, 2, 2")
    a(f"v_mul_u32_u24 v14, {KSTR}, v14")
    a("v_and_b32 v15, 3, v0")
    a("v_lshl_add_u32 v14, v15, 4, v14")
    a("v_add_u32 v13, v13, v14")
    a(f"v_add_u32 v13, {KR(0,0)+4080}, v13")
    a("v_cmp_gt_u32 vcc, 64, v0")
    a("v_and_b32 v14, 15, v0")
    a("v_lshlrev_b32 v14, 4, v14")
    a(f"v_add_u32 v14, {CNT}, v14")
    a("v_cndmask_b32 v12, v14, v13, vcc")
    a("v_cmp_gt_u32 vcc, 0x80, v0")
    a("v_and_b32 v15, 1, v0")
    a(f"v_mul_u32_u24 v15, {KCSZ}, v15")
    a(f"v_add_u32 v15, {KC+768*8}, v15")
    a("v_cndmask_b32 v12, v15, v12, vcc")
    a("ds_write_b128 v12, v[8:11]")
    a("s_waitcnt lgkmcnt(0)")
    a("s_barrier")
    stamp(a, 1)
    srd(a, R_WS, P_WS, WS_SIZE)
    srd(a, R_DBG, P_DBG, 256)
    srd(a, R_OUT, P_OUT, 0x200000)
    expansion_addr(a, 1)
    a(f"s_lshl_b32 s{S_T0}, s{S_D0}, 12")
    a(f"v_lshl_add_u32 v2, v0, 4, s{S_T0}")
    a("v_add_u32 v3, 0x1000, v2")
    a("v_subrev_u32 v4, 4, v2")
    a(f"v_max_i32 v4, s{S_T0}, v4")
    a(f"s_lshl_b32 s{S_T1}, s{S_GB}, 13")
    a(f"s_lshl_b32 s{S_T2}, s{S_W4}, 11")
    a(f"s_add_u32 s{S_T1}, s{S_T1}, s{S_T2}")
    a("v_lshlrev_b32 v6, 4, v1")
    a(f"v_add_u32 v5, s{S_T1}, v6")
    a(f"s_lshl_b32 s{S_T0}, s{S_W4}, 4")
    a(f"s_lshl_b32 s{S_T1}, s{S_GB}, 6")
    a(f"s_add_u32 s{S_T0}, s{S_T0}, s{S_T1}")
    a(f"s_add_u32 s{S_T0}, s{S_T0}, {hex(WS_G)}")
    a(f"v_mov_b32 v7, s{S_T0}")
    a("v_mov_b32 v56, 0")
    a(f"s_lshl_b32 s{S_T3}, s{S_D0}, 1")
    EA = {}
    for gi, g in enumerate(grp):
        n = len(g); R0 = 256 * g[0]
        sh = {1: 0, 2: 1, 4: 2}[n]
        GO, XA1, XA2, YA_, OO = 128 + gi, 133 + gi, 138 + gi, 143 + gi, 148 + gi
        EA[gi] = (GO, XA1, XA2, YA_, OO)
        a(f"v_lshlrev_b32 v8, {sh}, v0")
        a(f"v_add_u32 v8, {R0}, v8")
        a(f"v_lshlrev_b32 v{GO}, 3, v8")
        a(f"v_lshlrev_b32 v{XA1}, 1, v8")
        a(f"v_add_u32 v{XA2}, {2*CONV}, v{XA1}")
        a("v_lshrrev_b32 v9, 5, v8")
        a(f"v_lshl_add_u32 v9, v9, 3, v{XA1}")
        a(f"v_add_u32 v{YA_}, {YS}, v9")
        a(f"v_lshl_add_u32 v{OO}, v8, 10, s{S_T3}")
    if OPT["tw"]:
        a(f"s_cmp_lg_u32 s{S_W4}, 0")
        a("s_cbranch_scc1 L_notw")
        a("s_mov_b64 exec, 1")
        a(f"s_lshl_b32 s{S_T0}, s{S_PCG}, 18")
        a(f"s_lshl_b32 s{S_T1}, s{S_PTB}, 7")
        a(f"s_add_u32 s{S_T0}, s{S_T0}, s{S_T1}")
        a(f"v_mov_b32 v8, s{S_T0}")
        a(f"s_mov_b32 s{S_T2}, {hex(WS_KV)}")
        a(f"buffer_load_dword v60, v8, s[{R_WS}:{R_WS+3}], 0 offen nt")
        a(f"buffer_load_dword v61, v8, s[{R_WS}:{R_WS+3}], s{S_T2} offen nt")
        a(f"s_lshl_b32 s{S_T0}, s{S_PCG}, 12")
        a(f"s_add_u32 s{S_T0}, s{S_T0}, s{S_T1}")
        a(f"s_add_u32 s{S_T0}, s{S_T0}, {hex(WS_FLAG)}")
        a(f"v_mov_b32 v8, s{S_T0}")
        a(f"buffer_load_dword v62, v8, s[{R_WS}:{R_WS+3}], 0 offen nt")
        a(f"s_lshl_b32 s{S_T0}, s2, 13")
        a(f"v_mov_b32 v8, s{S_T0}")
        a(f"buffer_load_dword v63, v8, s[{R_OUT}:{R_OUT+3}], 0 offen nt")
        a(f"global_load_dword v64, v2, s[{P_SSMK}:{P_SSMK+1}]")
        a(f"global_load_dword v65, v6, s[{P_GW}:{P_GW+1}]")
        a("s_mov_b64 exec, -1")
        a.lab("L_notw")
    a(f"s_load_dword s{S_RAWDS}, s[{P_DSK}:{P_DSK+1}], s{S_T3}")
    a(f"s_load_dword s{S_RAWDM}, s[{P_SSMD}:{P_SSMD+1}], s{S_T3}")
    def ssmk_loads():
        NT = " nt" if OPT["nt"] & 2 else ""
        a(f"global_load_dwordx4 v[68:71], v2, s[{P_SSMK}:{P_SSMK+1}]{NT}")
        a(f"global_load_dwordx4 v[74:77], v3, s[{P_SSMK}:{P_SSMK+1}]{NT}")
        a(f"global_load_dword v67, v4, s[{P_SSMK}:{P_SSMK+1}]{NT}")
        a(f"global_load_dword v73, v3, s[{P_SSMK}:{P_SSMK+1}] offset:-4{NT}")

    def gate_loads():
        NT = " nt" if OPT["nt"] & 8 else ""
        a(f"global_load_dwordx4 v[80:83], v5, s[{P_U}:{P_U+1}]{NT}")
        a(f"global_load_dwordx4 v[84:87], v5, s[{P_U}:{P_U+1}] offset:1024{NT}")
        a(f"global_load_dwordx4 v[88:91], v6, s[{P_GW}:{P_GW+1}]")
        a(f"buffer_load_dwordx2 v[52:53], v56, s[{R_DBG}:{R_DBG+3}], 0 offen{SC}")

    def ssmk_copies():
        a.c("---- ssm_k -> LDS (reversed, 4 copies)")
        a("v_cmp_eq_u32 vcc, 0, v0")
        a("s_nop 1")
        for ch in range(2):
            q = 2 + ch
            L = 68 + 6 * ch
            P3, P2 = 20 + 8 * ch, 24 + 8 * ch
            a(f"v_cndmask_b32 v{L-1}, v{L-1}, 0, vcc")
            for d in range(4):
                a(f"v_alignbit_b32 v{P3+d}, v{L+3-d}, v{L+3-d}, 16")
                a(f"v_bfi_b32 v{P2+d}, s{S_LO}, v{L+3-d}, v{L+2-d}")
            a(f"v_add_u32 v{36+ch}, {KR(q,0)}, v9")
            k_copies(a, 36 + ch, P3, P2)

    def gate_part():
        nonce_check(a, "a", 52, 56)
        a.c("---- gate")
        gate_compute(a, 80, 88, 100)
        a("s_mov_b32 exec_lo, 0")
        a("s_mov_b32 exec_hi, 0x80000000")
        a(f"buffer_store_dwordx4 v[100:103], v7, s[{R_WS}:{R_WS+3}], 0 offen{SC}")
        a("s_mov_b64 exec, -1")

    a("v_lshlrev_b32 v9, 4, v0")
    a("v_sub_u32 v9, 4076, v9")
    M = OPT["auxmode"]
    if M in (1, 2, 3, 4):
        ssmk_loads()
    if M == 1:
        gate_loads()
    if M in (0, 2, 5, 6):
        a(f"v_mov_b32 v12, {C_P1 if M in (0, 2) else C_SIG}")
        lds_spin(a, "L_aspin", 12, 8, 4 if M != 6 else 1, sleep=2)
        stamp(a, 2)
        gate_loads()
        if M != 2:
            ssmk_loads()
    a("s_waitcnt lgkmcnt(0)")
    a(f"s_lshl_b32 s{S_DS}, s{S_RAWDS}, 16")
    a(f"s_and_b32 s{S_DS+1}, s{S_RAWDS}, s{S_HI}")
    a(f"s_lshl_b32 s{S_DM}, s{S_RAWDM}, 16")
    a(f"s_and_b32 s{S_DM+1}, s{S_RAWDM}, s{S_HI}")
    if M in (0, 5, 6):
        gate_part()
        stamp(a, 3)
        ssmk_copies()
    elif M in (1, 2):
        a("s_waitcnt vmcnt(4)")
        stamp(a, 3)
        ssmk_copies()
        gate_part()
    elif M == 3:
        a("s_waitcnt vmcnt(0)")
        stamp(a, 3)
        ssmk_copies()
        a(f"v_mov_b32 v12, {C_SIG}")
        lds_spin(a, "L_aspin", 12, 8, 4, sleep=2)
        gate_loads()
        gate_part()
    else:
        a("s_waitcnt vmcnt(0)")
        stamp(a, 3)
        ssmk_copies()
    stamp(a, 4)
    expansion(a, "a")
    a("s_waitcnt lgkmcnt(0)")
    stamp(a, 9)
    GR = 20
    XR = 36

    def gloads():
        pos = 0
        for gi, g in enumerate(grp):
            n = len(g)
            for h in range(n // 2):
                a(f"buffer_load_dwordx4 {vr(GR+2*pos+4*h,4)}, v{EA[gi][0]}, s[{R_WS}:{R_WS+3}], s{S_T2} offen offset:{16*h}{SC}")
            if n == 1:
                a(f"buffer_load_dwordx2 {vr(GR+2*pos,2)}, v{EA[gi][0]}, s[{R_WS}:{R_WS+3}], s{S_T2} offen{SC}")
            pos += n

    a(f"s_mov_b32 s{S_T2}, {hex(WS_G)}")
    if OPT["gearly"]:
        gloads()
    a("s_barrier")
    stamp(a, 10)
    if OPT["hprio"]:
        a(f"s_setprio {OPT['hprio']}")
    if M == 4:
        gate_loads()
        gate_part()
    if not OPT["gearly"]:
        gloads()
    pos = 0
    for gi, g in enumerate(grp):
        n = len(g)
        lop = {1: "u16_d16_hi" if pos & 1 else "u16_d16", 2: "b32", 4: "b64"}[n]
        for q in range(4):
            a(f"ds_read_{lop} {vr(XR+4*q+pos//2,max(1,n//2))}, v{EA[gi][1 if q < 2 else 2]} offset:{XB(q&1)+XD}")
        pos += n
    assert pos == 8
    PR = 52
    a("s_waitcnt lgkmcnt(0)")
    for r in range(8):
        B = PR + 6 * r
        U, UD, UK = B, B + 2, B + 4
        for ch in range(2):
            ext(a, U + ch, XR + 4 * ch + r // 2, r & 1)
            ext(a, UK + ch, XR + 4 * (2 + ch) + r // 2, r & 1)
        for ch in range(2):
            a(f"v_mul_f32 v{UD+ch}, s{S_DS+ch}, v{U+ch}")
            a(f"v_mul_f32 v{UK+ch}, s{S_DM+ch}, v{UK+ch}")
    a(f"s_mov_b32 s{S_SPIN}, 0")
    a("s_branch L_gchk")
    a.lab("L_gpoll")
    a("s_sleep 4")
    gloads()
    a(f"s_add_u32 s{S_SPIN}, s{S_SPIN}, 1")
    a.lab("L_gchk")
    a("s_waitcnt vmcnt(0)")
    a(f"v_xor_b32 v8, s{S_NON}, v{GR+1}")
    for r in range(1, 8):
        a(f"v_xor_b32 v9, s{S_NON}, v{GR+2*r+1}")
        a("v_or_b32 v8, v8, v9")
    a("v_cmp_ne_u32 vcc, 0, v8")
    a(f"s_cmp_ge_u32 s{S_SPIN}, {hex(SPIN_MAX)}")
    a("s_cbranch_scc1 L_gpoll_done")
    a("s_cmp_eq_u64 vcc, 0")
    a("s_cbranch_scc0 L_gpoll")
    a.lab("L_gpoll_done")
    stamp(a, 11)
    for r in range(8):
        B = PR + 6 * r
        U, UD, UK = B, B + 2, B + 4
        G0, G1 = GR + 2 * r, GR + 2 * r + 1
        a(f"v_and_b32 v{G1}, s{S_HI}, v{G0}")
        a(f"v_lshlrev_b32 v{G0}, 16, v{G0}")
        for ch in range(2):
            a(f"v_mul_f32 v{U+ch}, v{U+ch}, v{G1}")
            a(f"v_mul_f32 v{UD+ch}, v{UD+ch}, v{G0}")
        for ch in range(2):
            a(f"v_fmac_f32 v{UD+ch}, v{UK+ch}, v{U+ch}")
    a(f"v_mov_b32 v5, {C_Y}")
    pos = 0
    for gi, g in enumerate(grp):
        n = len(g)
        a(f"s_mov_b32 s{S_SPIN}, 0")
        a.lab(f"L_yspin{gi}")
        a(f"ds_read_b128 v[104:107], v5 offset:{16*gi}")
        a(f"s_add_u32 s{S_SPIN}, s{S_SPIN}, 1")
        a("s_waitcnt lgkmcnt(0)")
        a("v_min_u32 v104, v104, v105")
        a("v_min3_u32 v104, v104, v106, v107")
        a(f"s_cmp_ge_u32 s{S_SPIN}, {hex(SPIN_MAX*8)}")
        a(f"v_readfirstlane_b32 s{S_T0}, v104")
        a(f"s_cbranch_scc1 L_yspin{gi}_done")
        a(f"s_cmp_lg_u32 s{S_T0}, 0")
        a(f"s_cbranch_scc1 L_yspin{gi}_done")
        a(f"s_sleep {OPT['ysleep']}")
        a(f"s_branch L_yspin{gi}")
        a.lab(f"L_yspin{gi}_done")
        stamp(a, min(12 + gi, 14))
        lop = {1: "u16", 2: "b32", 4: "b64"}[n]
        YR = 108
        for q in range(4):
            a(f"ds_read_{lop} {vr(YR+2*q,max(1,n//2))}, v{EA[gi][3]} offset:{YSZ*q}")
        a("s_waitcnt lgkmcnt(0)")
        for k in range(n):
            r = pos + k
            B = PR + 6 * r
            CB, P = B, B + 2
            G0 = GR + 2 * r
            YA, YB = 116 + 4 * (k & 1), 118 + 4 * (k & 1)
            for ch in range(2):
                ext(a, YA + ch, YR + 2 * ch + k // 2, k & 1)
                ext(a, YB + ch, YR + 2 * (2 + ch) + k // 2, k & 1)
            for ch in range(2):
                a(f"v_fmac_f32 v{P+ch}, v{YA+ch}, v{G0}")
            for ch in range(2):
                a(f"v_fmac_f32 v{P+ch}, v{YB+ch}, v{CB+ch}")
            a(f"v_cvt_pk_bf16_f32 v{P}, v{P}, v{P+1}")
            a(f"buffer_store_dword v{P}, v{EA[gi][4]}, s[{R_OUT}:{R_OUT+3}], 0 offen offset:{1024*k}")
        pos += n
    stamp_out(a)


def kd(name):
    return f""".section .rodata,"a"
.p2align 6
.amdhsa_kernel {name}
  .amdhsa_next_free_vgpr {NV}
  .amdhsa_next_free_sgpr 102
  .amdhsa_accum_offset {NV}
  .amdhsa_group_segment_fixed_size 0
  .amdhsa_kernarg_size 136
  .amdhsa_user_sgpr_count 2
  .amdhsa_user_sgpr_kernarg_segment_ptr 1
  .amdhsa_system_sgpr_workgroup_id_x 1
  .amdhsa_float_denorm_mode_32 3
.end_amdhsa_kernel
"""


def gen():
    out = [f"; @launch grid=(256,1,1) block=(768,1,1) lds={LDS_TOTAL}\n",
           """; One workgroup per channel pair, 12 waves in three roles:
""",
           '.amdgcn_target "amdgcn-amd-amdhsa--gfx950"\n.text\n',
           f".globl {NAME}_kernel\n.p2align 8\n.type {NAME}_kernel,@function\n{NAME}_kernel:\n"]
    a = A()
    prologue(a)
    data_waves(a)
    a.lab("L_kgen")
    AROLE[0] = "k"
    kgen_waves(a)
    a.lab("L_aux")
    aux_waves(a)
    a.lab("L_end")
    a("s_endpgm")
    out.append(a.text())
    out.append(kd(NAME + "_kernel"))
    return "".join(out)


if __name__ == "__main__":
    outp = sys.argv[1] if len(sys.argv) > 1 else f"cdna_kernels/{NAME}.s"
    for x in sys.argv[2:]:
        k, v = x.split("=")
        OPT[k] = v if k in ("groups", "plan", "order") else int(v)
    txt = gen()
    open(outp, "w").write(txt)
    print("wrote", outp, len(txt), "bytes; LDS", LDS_TOTAL)
```

```python
import sys, struct

NAME = "gated_mix__ssm_conv_s4d__ssm_conv_h3__prompt"
OPT = dict(stamp=0, groups="0123,4567", pollsleep=2, hprio=2, map=0, dprio=2, wslack=5, fullflag=1, frac=100, auxmode=0, plan="", exp=0, tw=0, nt=0, fwarm=0, pdelay=0, cprio=0, nonop=0, ysleep=1, sched=0, order="", lead=10, boost=110, pre=9, gearly=0, ff=0, ffn=4)
NV = 168
VST, VST2 = 167, 166


def f2u(x):
    return struct.unpack("<I", struct.pack("<f", x))[0]


class A:
    def __init__(self):
        self.l = []

    def __call__(self, s):
        self.l.append("    " + s)

    def lab(self, s):
        self.l.append(s + ":")

    def c(self, s):
        self.l.append("    ; " + s)

    def text(self):
        return "\n".join(self.l) + "\n"


def vr(a, n=1):
    assert a + n <= NV, (a, n)
    return f"v{a}" if n == 1 else f"v[{a}:{a+n-1}]"


def sr(a, n=1):
    return f"s{a}" if n == 1 else f"s[{a}:{a+n-1}]"


KSTR = 4160
XSTR = 4640
CONV = 16 + 4 * KSTR + 2 * XSTR
assert CONV % 16 == 0
def KR(q, s): return q * CONV + 16 + s * KSTR
def XB(q): return q * CONV + 16 + 4 * KSTR
XD = XSTR + 448
KC = 4 * CONV
KCSZ = 776 * 8
TBL = KC + 2 * KCSZ
TBLSZ = 16 * 288
CNT = TBL + 4 * TBLSZ
YS = CNT + 256
YSZ = 8 * 576
P1S = YS - 640
P1K, P1V, P1U = P1S + 1024, P1S + 9216, P1S + 17408
LDS_TOTAL = P1S + 25600
assert LDS_TOTAL <= 163840, LDS_TOTAL
IDXBIAS = 8 * 0x4280
C_SIG, C_P1, C_KG, C_Y = CNT, CNT + 4, CNT + 16, CNT + 32

WS_KV = 0x200000
WS_G = 0x400000
WS_FLAG = 0x410000
WS_ST = 0x600000
WS_SIZE = 0x800000

P_U, P_LAR, P_AIM, P_CR, P_CI, P_LDT, P_DSK, P_Q = 16, 18, 20, 22, 24, 26, 28, 30
P_K, P_V, P_SHK, P_SSMK, P_SSMD, P_GW, P_OUT, P_DBG = 32, 34, 36, 38, 40, 42, 44, 46
P_WS = 48
S_WV, S_CG, S_TB, S_D0 = 3, 4, 5, 6
S_PCG, S_PTB, S_GB, S_W4 = 7, 98, 99, 100
S_HI, S_LO = 50, 51
S_T0, S_T1, S_T2, S_T3 = 8, 9, 10, 11
R_U, R_K, R_V, R_WS, R_OUT, R_DBG = 52, 56, 60, 64, 68, 72
S_SELLO, S_SELHI, S_4096, S_KV0, S_KV1 = 76, 77, 78, 79, 80
S_DS, S_DM = 82, 84
S_RAWDS, S_RAWDM = 86, 87
S_SC, S_ISC = 89, 90
S_SPIN = 91
S_KC, S_HM = 92, 93
S_PC = 12
S_NON = 14

L2E = 0x3FB8AA3B
L2E_LO = 0x32A57060
LN2 = 0x3F317218
SPIN_MAX = 0x40000
SC = " sc1"


def stamp(a, idx):
    if not OPT["stamp"]:
        return
    a("s_memrealtime s[94:95]")
    a("s_memtime s[96:97]")
    a("s_waitcnt lgkmcnt(0)")
    a(f"v_writelane_b32 v{VST}, s94, {idx}")
    a(f"v_writelane_b32 v{VST}, s96, {32+idx}")


def stamp_out(a):
    if not OPT["stamp"]:
        return
    a("s_waitcnt vmcnt(0)")
    stamp(a, 15)
    a(f"s_lshl_b32 s{S_T0}, s2, 4")
    a(f"s_add_u32 s{S_T0}, s{S_T0}, s{S_WV}")
    a(f"s_lshl_b32 s{S_T0}, s{S_T0}, 8")
    a(f"s_add_u32 s{S_T0}, s{S_T0}, {hex(WS_ST)}")
    a(f"v_lshl_add_u32 v{VST2}, v1, 2, s{S_T0}")
    a(f"buffer_store_dword v{VST}, v{VST2}, s[{R_WS}:{R_WS+3}], 0 offen")


def srd(a, r, p, size):
    a(f"s_mov_b32 s{r}, s{p}")
    a(f"s_and_b32 s{r+1}, s{p+1}, 0xffff")
    a(f"s_mov_b32 s{r+2}, {hex(size)}")
    a(f"s_mov_b32 s{r+3}, 0x20000")


def rnd(a, d, s):
    a(f"v_cvt_pk_bf16_f32 v{d}, 0, v{s}")


def unpack2(a, d, s):
    a(f"v_lshlrev_b32 v{d}, 16, v{s}")
    a(f"v_and_b32 v{d+1}, s{S_HI}, v{s}")


def ext(a, d, reg, hi):
    if hi:
        a(f"v_and_b32 v{d}, s{S_HI}, v{reg}")
    else:
        a(f"v_lshlrev_b32 v{d}, 16, v{reg}")


def cmul_ops(d, x, y):
    assert d not in (x, y) and d % 2 == 0 and x % 2 == 0 and y % 2 == 0
    return [f"v_pk_mul_f32 {vr(d,2)}, {vr(x,2)}, {vr(y,2)} op_sel:[0,0] op_sel_hi:[1,0]",
            f"v_fma_f32 v{d}, -v{x+1}, v{y+1}, v{d}",
            f"v_fmac_f32 v{d+1}, v{x}, v{y+1}"]


def interleave(a, chains):
    chains = [list(c) for c in chains]
    while any(chains):
        for c in chains:
            if c:
                a(c.pop(0))


def groups():
    return [[int(ch) for ch in g] for g in OPT["groups"].split(",")]


def lds_spin(a, lab, vaddr, vtmp, val, sleep=0):
    a(f"s_mov_b32 s{S_SPIN}, 0")
    a.lab(lab)
    a(f"ds_read_b32 v{vtmp}, v{vaddr}")
    a(f"s_add_u32 s{S_SPIN}, s{S_SPIN}, 1")
    a("s_waitcnt lgkmcnt(0)")
    a(f"v_readfirstlane_b32 s{S_T0}, v{vtmp}")
    a(f"s_cmp_ge_u32 s{S_SPIN}, {hex(SPIN_MAX*8)}")
    a(f"s_cbranch_scc1 {lab}_done")
    a(f"s_cmp_ge_u32 s{S_T0}, {val}")
    a(f"s_cbranch_scc1 {lab}_done")
    if sleep:
        a(f"s_sleep {sleep}")
    a(f"s_branch {lab}")
    a.lab(lab + "_done")


def nonce_check(a, tag, vn, vzero):
    a(f"s_mov_b32 s{S_SPIN}, 0")
    a(f"s_branch L_nchk_{tag}")
    a.lab(f"L_npoll_{tag}")
    a(f"buffer_load_dwordx2 {vr(vn,2)}, v{vzero}, s[{R_DBG}:{R_DBG+3}], 0 offen{SC}")
    a(f"s_add_u32 s{S_SPIN}, s{S_SPIN}, 1")
    a.lab(f"L_nchk_{tag}")
    a("s_waitcnt vmcnt(0)")
    a(f"v_readfirstlane_b32 s{S_NON}, v{vn}")
    a(f"v_readfirstlane_b32 s{S_NON+1}, v{vn+1}")
    a(f"s_cmp_ge_u32 s{S_SPIN}, {hex(SPIN_MAX)}")
    a(f"s_cbranch_scc1 L_npoll_done_{tag}")
    a(f"s_cmp_eq_u32 s{S_NON}, 0")
    a(f"s_cbranch_scc1 L_npoll_{tag}")
    a.lab(f"L_npoll_done_{tag}")


def k_copies(a, vaddr, P3, P2):
    a(f"ds_write_b128 v{vaddr}, {vr(P3,4)} offset:{3*KSTR+4}")
    a(f"ds_write_b128 v{vaddr}, {vr(P2,4)} offset:{2*KSTR+4}")
    a(f"ds_write2_b32 v{vaddr}, v{P2}, v{P2+1} offset0:0 offset1:1")
    a(f"ds_write2_b32 v{vaddr}, v{P2+2}, v{P2+3} offset0:2 offset1:3")
    a(f"v_add_u32 v{vaddr}, {KSTR}, v{vaddr}")
    a(f"ds_write2_b32 v{vaddr}, v{P3}, v{P3+1} offset0:0 offset1:1")
    a(f"ds_write2_b32 v{vaddr}, v{P3+2}, v{P3+3} offset0:2 offset1:3")


def prologue(a):
    if OPT["stamp"]:
        a("s_memrealtime s[88:89]")
    a("s_cmp_ge_u32 s2, 256")
    a("s_cbranch_scc1 L_end")
    a("s_load_dwordx16 s[16:31], s[0:1], 0")
    a("s_load_dwordx16 s[32:47], s[0:1], 64")
    a("s_load_dwordx2 s[48:49], s[0:1], 128")
    a(f"s_getpc_b64 s[{S_PC}:{S_PC+1}]")
    a.lab("L_pc0")
    a("v_lshlrev_b32 v2, 5, v0")
    a("v_min_u32 v2, L_end-L_pc0, v2")
    a(f"global_load_dword v165, v2, s[{S_PC}:{S_PC+1}]")
    a("v_lshrrev_b32 v1, 6, v0")
    a(f"s_and_b32 s{S_CG}, s2, 7")
    a(f"v_readfirstlane_b32 s{S_WV}, v1")
    a("v_and_b32 v1, 63, v0")
    a("v_and_b32 v0, 0xff, v0")
    a(f"s_lshr_b32 s{S_TB}, s2, 3")
    a(f"s_lshl_b32 s{S_D0}, s{S_CG}, 6")
    a(f"s_lshl_b32 s{S_T0}, s{S_TB}, 1")
    a(f"s_add_u32 s{S_D0}, s{S_D0}, s{S_T0}")
    a(f"s_mov_b32 s{S_HI}, 0xffff0000")
    a(f"s_mov_b32 s{S_LO}, 0xffff")
    a(f"s_and_b32 s{S_W4}, s{S_WV}, 3")
    if OPT["map"] == 0:
        a(f"s_mov_b32 s{S_PCG}, s{S_CG}")
        a(f"s_mov_b32 s{S_PTB}, s{S_TB}")
    else:
        a(f"s_and_b32 s{S_PCG}, s{S_TB}, 7")
        a(f"s_lshr_b32 s{S_T0}, s2, 6")
        a(f"s_lshl_b32 s{S_T0}, s{S_T0}, 3")
        a(f"s_add_u32 s{S_PTB}, s{S_T0}, s{S_CG}")
    a(f"s_lshl_b32 s{S_GB}, s{S_PTB}, 3")
    a(f"s_add_u32 s{S_GB}, s{S_GB}, s{S_PCG}")
    if OPT["stamp"]:
        a(f"v_mov_b32 v{VST}, 0")
        stamp(a, 5)
        a(f"v_writelane_b32 v{VST}, s88, 0")
    a(f"s_cmp_ge_u32 s{S_WV}, 8")
    a("s_cbranch_scc1 L_aux")
    a(f"s_cmp_ge_u32 s{S_WV}, 4")
    a("s_cbranch_scc1 L_kgen")


def data_waves(a):
    a.c("==== data waves")
    if OPT["dprio"]:
        a(f"s_setprio {OPT['dprio']}")
    a("v_and_b32 v57, 7, v1")
    a("v_lshrrev_b32 v7, 3, v1")
    a(f"v_xor_b32 v9, s{S_WV}, v57")
    a(f"s_lshl_b32 s{S_T0}, s{S_PTB}, 16")
    a(f"s_lshl_b32 s{S_T1}, s{S_PCG}, 7")
    a(f"s_add_u32 s{S_T0}, s{S_T0}, s{S_T1}")
    a(f"s_lshl_b32 s{S_T1}, s{S_WV}, 13")
    a(f"s_add_u32 s{S_T0}, s{S_T0}, s{S_T1}")
    a(f"v_lshl_add_u32 v8, v7, 10, s{S_T0}")
    a("v_lshl_add_u32 v8, v9, 4, v8")
    a("v_xor_b32 v58, 64, v8")
    a("v_subrev_u32 v9, 0x8000, v58")
    a(f"s_lshl_b32 s{S_T0}, s{S_WV}, 3")
    a(f"v_add_u32 v6, s{S_T0}, v7")
    a(f"s_lshl_b32 s{S_T1}, s{S_PCG}, 9")
    a(f"v_lshl_add_u32 v10, v6, 4, s{S_T1}")
    a(f"s_movk_i32 s{S_4096}, 0x1000")
    a(f"s_mov_b32 s{S_KV0}, 0x8000")
    a(f"s_lshl_b32 s{S_T3}, s{S_WV}, 10")
    a(f"s_memrealtime s[{S_NON}:{S_NON+1}]")
    if OPT["ff"] == 1:
        a(f"s_lshl_b32 s{S_T0}, s{S_PCG}, 12")
        a(f"s_lshl_b32 s{S_T1}, s{S_PTB}, 7")
        a(f"s_add_u32 s{S_T0}, s{S_T0}, s{S_T1}")
        a(f"s_add_u32 s{S_T0}, s{S_T0}, {hex(WS_FLAG)}")
        a(f"v_mov_b32 v40, s{S_T0}")
    a("s_waitcnt lgkmcnt(0)")
    if OPT["ff"] == 1:
        a(f"s_cmp_lg_u32 s{S_WV}, 0")
        a("s_cbranch_scc1 L_nopt")
        a(f"global_load_dword v41, v40, s[{P_WS}:{P_WS+1}] nt")
        a.lab("L_nopt")
    srd(a, R_K, P_K, 0x200000)
    a(f"s_cmp_lg_u32 s{S_WV}, 3")
    a("s_cbranch_scc1 L_nohalo")
    a(f"s_mov_b32 m0, {P1K-1024}")
    a("s_mov_b32 exec_lo, 0")
    a("s_mov_b32 exec_hi, 0xffffff00")
    a(f"buffer_load_dwordx4 v9, s[{R_K}:{R_K+3}], 0 offen lds")
    a("s_mov_b64 exec, -1")
    a.lab("L_nohalo")
    for base, R, P in ((P1K, R_K, None), (P1V, R_V, P_V), (P1U, R_U, P_U)):
        if P is not None:
            srd(a, R, P, 0x200000)
        a(f"s_add_u32 m0, s{S_T3}, {base}")
        a("s_nop 0")
        NT = " nt" if (OPT["nt"] & 1) and (R != R_U or OPT["nt"] & 4) else ""
        a(f"buffer_load_dwordx4 v8, s[{R}:{R+3}], 0 offen{NT} lds")
        a(f"s_add_u32 m0, s{S_T3}, {base+4096}")
        a("s_nop 0")
        a(f"buffer_load_dwordx4 v58, s[{R}:{R+3}], s{S_KV0} offen{NT} lds")
    a(f"global_load_dwordx4 v[48:51], v10, s[{P_SHK}:{P_SHK+1}]")
    stamp(a, 10)
    srd(a, R_DBG, P_DBG, 256)
    a("v_mov_b32 v56, 0")
    a(f"s_or_b32 s{S_T0}, s{S_WV}, s2")
    a(f"s_cmp_lg_u32 s{S_T0}, 0")
    a("s_cbranch_scc1 L_nonon")
    a(f"s_or_b32 s{S_NON}, s{S_NON}, 1")
    a(f"v_mov_b32 v52, s{S_NON}")
    a(f"v_mov_b32 v53, s{S_NON+1}")
    a("s_mov_b64 exec, 1")
    a(f"buffer_store_dwordx2 v[52:53], v56, s[{R_DBG}:{R_DBG+3}], 0 offen{SC}")
    a("s_mov_b64 exec, -1")
    a.lab("L_nonon")
    srd(a, R_WS, P_WS, WS_SIZE)
    a(f"s_mov_b32 s{S_SELLO}, 0x05040100")
    a(f"s_mov_b32 s{S_SELHI}, 0x07060302")
    a(f"s_mov_b32 s{S_KV0}, {hex(WS_KV)}")
    a(f"s_mov_b32 s{S_KV1}, {hex(WS_KV+4096)}")
    a(f"s_lshl_b32 s{S_T0}, s{S_PCG}, 18")
    a(f"s_lshl_b32 s{S_T1}, s{S_PTB}, 7")
    a(f"s_add_u32 s{S_T0}, s{S_T0}, s{S_T1}")
    a(f"v_lshl_add_u32 v10, v6, 13, s{S_T0}")
    a("v_lshl_add_u32 v10, v57, 4, v10")
    a("v_lshrrev_b32 v12, 2, v6")
    a("v_and_b32 v13, 3, v6")
    a("v_xor_b32 v16, v57, v12")
    a("v_lshlrev_b32 v8, 10, v57")
    a("v_lshl_add_u32 v8, v13, 2, v8")
    a(f"v_add_u32 v8, {P1S}, v8")
    a("v_add_u32 v15, 7, v57")
    a("v_and_b32 v15, 7, v15")
    a("v_xor_b32 v15, v15, v12")
    a("v_lshl_add_u32 v9, v15, 4, v8")
    a("v_lshl_add_u32 v8, v16, 4, v8")
    a(f"s_lshl_b32 s{S_T0}, s{S_D0}, 12")
    a(f"v_lshl_add_u32 v11, v0, 4, s{S_T0}")
    a("v_lshlrev_b32 v14, 4, v0")
    a(f"v_add_u32 v15, {2*CONV}, v14")
    a("v_and_b32 v19, 7, v1")
    a(f"s_lshl_b32 s{S_T0}, s{S_CG}, 12")
    a(f"s_lshl_b32 s{S_T1}, s{S_WV}, 10")
    a(f"s_add_u32 s{S_T0}, s{S_T0}, s{S_T1}")
    a(f"s_add_u32 s{S_T0}, s{S_T0}, {hex(WS_FLAG)}")
    a(f"v_lshl_add_u32 v19, v19, 7, s{S_T0}")
    a(f"s_lshl_b32 s{S_T0}, s{S_PCG}, 12")
    a(f"s_lshl_b32 s{S_T1}, s{S_PTB}, 7")
    a(f"s_add_u32 s{S_T0}, s{S_T0}, s{S_T1}")
    a(f"s_add_u32 s{S_T0}, s{S_T0}, {hex(WS_FLAG)}")
    if OPT["fullflag"]:
        a(f"v_lshl_add_u32 v18, v1, 3, s{S_T0}")
    else:
        a(f"v_mov_b32 v18, s{S_T0}")
    if OPT["fwarm"]:
        a(f"s_cmp_lg_u32 s{S_WV}, 1")
        a("s_cbranch_scc1 L_nofw")
        a("v_mov_b32 v44, 0")
        a("v_mov_b32 v45, 0")
        a("s_mov_b64 exec, 0xffff")
        a(f"buffer_store_dwordx2 v[44:45], v18, s[{R_WS}:{R_WS+3}], 0 offen{SC}")
        a("s_mov_b64 exec, -1")
        a.lab("L_nofw")
    if OPT["ff"]:
        a("v_bfe_u32 v12, v1, 3, 1")
        a("v_lshl_add_u32 v19, v12, 15, v19")
    conv_setup(a)
    a(f"v_mov_b32 v16, {C_SIG}")
    a("v_mov_b32 v17, 1")
    a("s_barrier")
    stamp(a, 1)
    a("s_waitcnt vmcnt(0)")
    a("s_mov_b64 exec, 1")
    a("ds_add_u32 v16, v17 offset:4")
    a("s_mov_b64 exec, -1")
    a(f"buffer_load_dwordx2 v[52:53], v56, s[{R_DBG}:{R_DBG+3}], 0 offen{SC}")
    SP = 60
    a(f"v_lshlrev_b32 v{SP+0}, 16, v48")
    a(f"v_lshlrev_b32 v{SP+1}, 16, v50")
    a(f"v_and_b32 v{SP+2}, s{S_HI}, v48")
    a(f"v_and_b32 v{SP+3}, s{S_HI}, v50")
    a(f"v_lshlrev_b32 v{SP+4}, 16, v49")
    a(f"v_lshlrev_b32 v{SP+5}, 16, v51")
    a(f"v_and_b32 v{SP+6}, s{S_HI}, v49")
    a(f"v_and_b32 v{SP+7}, s{S_HI}, v51")
    a(f"v_mov_b32 v12, {C_P1}")
    lds_spin(a, "L_p1spin", 12, 13, 4)
    stamp(a, 2)
    for j in range(8):
        a(f"ds_read_b32 v{39+j}, v8 offset:{P1U-P1S+j*128}")
    for j in range(3):
        a(f"ds_read_b32 v{20+j}, v9 offset:{(5+j)*128}")
    for base, off in ((23, P1K), (31, P1V)):
        for j in range(8):
            a(f"ds_read_b32 v{base+j}, v8 offset:{off-P1S+j*128}")
    a("s_waitcnt lgkmcnt(15)")
    O2 = 130
    for ch, sel in ((0, S_SELLO), (1, S_SELHI)):
        for j in range(4):
            a(f"v_perm_b32 v{O2+4*ch+j}, v{39+2*j+1}, v{39+2*j}, s{sel}")
        so = "0" if ch == 0 else f"s{S_4096}"
        a(f"buffer_store_dwordx4 {vr(O2+4*ch,4)}, v10, s[{R_WS}:{R_WS+3}], {so} offen{SC}")
    KP = 68
    a("s_waitcnt lgkmcnt(8)")
    for i in range(11):
        unpack2(a, KP + 2 * i, 20 + i)
    ACC = 90
    T = 106
    for r in range(8):
        a(f"v_pk_mul_f32 {vr(ACC+2*r,2)}, {vr(KP+2*r,2)}, {vr(SP+6,2)}")
    for j in (1, 2, 3):
        for r in range(8):
            a(f"v_pk_fma_f32 {vr(ACC+2*r,2)}, {vr(KP+2*(r+j),2)}, {vr(SP+6-2*j,2)}, {vr(ACC+2*r,2)}")
    a("s_waitcnt lgkmcnt(0)")
    for r in range(8):
        unpack2(a, T + 2 * r, 31 + r)
    for r in range(8):
        a(f"v_pk_mul_f32 {vr(ACC+2*r,2)}, {vr(ACC+2*r,2)}, {vr(T+2*r,2)}")
    O = 122
    for ch in range(2):
        for j in range(4):
            a(f"v_cvt_pk_bf16_f32 v{O+4*ch+j}, v{ACC+2*(2*j)+ch}, v{ACC+2*(2*j+1)+ch}")
        so = S_KV0 if ch == 0 else S_KV1
        a(f"buffer_store_dwordx4 {vr(O+4*ch,4)}, v10, s[{R_WS}:{R_WS+3}], s{so} offen{SC}")
    stamp(a, 3)
    nonce_check(a, "d", 52, 56)
    stamp(a, 4)
    a.c("---- signal")
    a("s_mov_b64 exec, 1")
    a("ds_add_rtn_u32 v13, v16, v17")
    a("s_waitcnt lgkmcnt(0)")
    a(f"v_readfirstlane_b32 s{S_T1}, v13")
    a(f"s_cmp_lg_u32 s{S_T1}, 3")
    a("s_cbranch_scc1 L_nosig")
    if OPT["fullflag"]:
        a("s_mov_b64 exec, 0xffff")
    if OPT["ff"]:
        a(f"buffer_store_dwordx2 v[52:53], v18, s[{R_WS}:{R_WS+3}], 0 offen")
    else:
        a(f"buffer_store_dwordx2 v[52:53], v18, s[{R_WS}:{R_WS+3}], 0 offen{SC}")
    a.lab("L_nosig")
    a("s_mov_b64 exec, -1")
    a.c("---- wait for this wave's 8 producers")
    if OPT["pdelay"]:
        a(f"s_sleep {OPT['pdelay']}")
    a(f"s_mov_b32 s{S_SPIN}, 0")
    if OPT["ff"]:
        a("v_mov_b32 v40, 0")
        a.lab("L_poll")
        a("s_mov_b64 exec, 0xff")
        a(f"buffer_load_dwordx2 v[40:41], v19, s[{R_WS}:{R_WS+3}], 0 offen nt")
        a(f"s_cmp_lt_u32 s{S_SPIN}, {OPT['ffn']}")
        a("s_cbranch_scc1 L_noslow")
        a("s_mov_b64 exec, 0xff00")
        a(f"buffer_load_dwordx2 v[40:41], v19, s[{R_WS}:{R_WS+3}], 0 offen{SC}")
        a.lab("L_noslow")
        a("s_mov_b64 exec, -1")
        a(f"s_add_u32 s{S_SPIN}, s{S_SPIN}, 1")
        a("s_waitcnt vmcnt(0)")
        a(f"v_cmp_eq_u64 vcc, s[{S_NON}:{S_NON+1}], v[40:41]")
        a(f"s_cmp_ge_u32 s{S_SPIN}, {hex(SPIN_MAX)}")
        a("s_cbranch_scc1 L_poll_done")
        a(f"s_lshr_b32 s{S_T0}, vcc_lo, 8")
        a(f"s_or_b32 s{S_T0}, s{S_T0}, vcc_lo")
        a(f"s_and_b32 s{S_T0}, s{S_T0}, 0xff")
        a(f"s_cmp_lg_u32 s{S_T0}, 0xff")
        a("s_cbranch_scc1 L_poll")
    else:
        a.lab("L_poll")
        a(f"buffer_load_dwordx2 v[40:41], v19, s[{R_WS}:{R_WS+3}], 0 offen{SC}")
        a(f"s_add_u32 s{S_SPIN}, s{S_SPIN}, 1")
        a("s_waitcnt vmcnt(0)")
        a(f"v_cmp_ne_u64 vcc, s[{S_NON}:{S_NON+1}], v[40:41]")
        a(f"s_cmp_ge_u32 s{S_SPIN}, {hex(SPIN_MAX)}")
        a("s_cbranch_scc1 L_poll_done")
        a("s_cmp_eq_u64 vcc, 0")
        a("s_cbranch_scc1 L_poll_done")
        if OPT["pollsleep"]:
            a(f"s_sleep {OPT['pollsleep']}")
        a("s_branch L_poll")
    a.lab("L_poll_done")
    stamp(a, 6)
    a.c("---- phase 2 loads")
    sofs = ["0", f"s{S_4096}", f"s{S_KV0}", f"s{S_KV1}"]
    for q in range(4):
        a(f"buffer_load_dwordx4 {vr(20+4*q,4)}, v11, s[{R_WS}:{R_WS+3}], {sofs[q]} offen{SC}")
    for q in range(4):
        a(f"s_waitcnt vmcnt({3-q})")
        ad = "v14" if q < 2 else "v15"
        a(f"ds_write_b128 {ad}, {vr(20+4*q,4)} offset:{XB(q&1)+XD}")
        a(f"ds_write_b64 {ad}, {vr(20+4*q,2)} offset:{XB(q&1)+456}")
        a(f"ds_write_b64 {ad}, {vr(22+4*q,2)} offset:{XB(q&1)+464}")
    a("s_waitcnt lgkmcnt(0)")
    stamp(a, 7)
    if OPT["dprio"]:
        a(f"s_setprio {OPT['cprio']}")
    a("s_barrier")
    stamp(a, 8)
    if OPT["exp"]:
        a(f"s_cmp_lt_u32 s{S_WV}, 2")
        a("s_cbranch_scc1 L_convA")
    conv_main(a)
    if OPT["stamp"]:
        stamp(a, 9)
        stamp_out(a)
    a("s_endpgm")
    if OPT["exp"]:
        a.lab("L_convA")
        conv_main(a, OPT["exp"])
        if OPT["stamp"]:
            stamp(a, 9)
            stamp_out(a)
        a("s_endpgm")


def conv_setup(a):
    a.c("conv address setup, q = wave")
    a(f"s_mul_i32 s{S_T0}, s{S_WV}, {CONV}")
    a("v_and_b32 v12, 15, v1")
    a("v_lshrrev_b32 v13, 4, v1")
    a("v_and_b32 v16, 3, v12")
    a("v_lshrrev_b32 v17, 2, v12")
    a(f"v_mul_u32_u24 v2, {KSTR}, v16")
    a("v_lshl_add_u32 v2, v13, 4, v2")
    a("v_lshlrev_b32 v17, 4, v17")
    a("v_sub_u32 v2, v2, v17")
    a(f"s_add_u32 s{S_T1}, s{S_T0}, {KR(0,0)+48}")
    a(f"v_add_u32 v2, s{S_T1}, v2")
    a("v_and_b32 v16, 1, v12")
    a("v_lshrrev_b32 v17, 1, v12")
    a(f"v_mul_u32_u24 v3, {XSTR}, v16")
    a("v_lshl_add_u32 v3, v13, 4, v3")
    a("v_lshl_add_u32 v3, v17, 6, v3")
    a(f"s_add_u32 s{S_T1}, s{S_T0}, {XB(0)}")
    a(f"v_add_u32 v3, s{S_T1}, v3")
    a("v_mul_u32_u24 v4, 72, v17")
    a("v_lshl_add_u32 v4, v13, 4, v4")
    a("v_lshl_add_u32 v4, v16, 3, v4")
    a(f"s_mul_i32 s{S_T1}, s{S_WV}, {YSZ}")
    a(f"s_add_u32 s{S_T1}, s{S_T1}, {YS}")
    a(f"v_add_u32 v4, s{S_T1}, v4")
    a(f"s_lshl_b32 s{S_T1}, s{S_WV}, 2")
    a(f"s_add_u32 s{S_T1}, s{S_T1}, {C_Y}")
    a(f"v_mov_b32 v5, s{S_T1}")


def conv_main2(a):
    ACC = 6
    SLOTS = [38 + 4 * i for i in range(32)]
    grp = groups()
    steps = []
    for part in OPT["order"].split(","):
        tl, rr = part.split(":")
        for r in rr:
            steps.append(([int(c) for c in tl], int(r)))
    cov = {t: set() for t in range(8)}
    mf = []
    gdone = {}
    for si, (tl, r) in enumerate(steps):
        pairs = [(e1, tau - e1, tau) for tau in tl for e1 in range(tau + 1)]
        pairs.sort(key=lambda p: (max(p[0], p[1]), p[2]))
        for (e1, c1, tau) in pairs:
            mf.append((tau, ("F", si, r, e1), ("G", si, r, c1)))
        for t in tl:
            assert r not in cov[t]
            cov[t].add(r)
        for gi, g in enumerate(grp):
            if gi not in gdone.values() and all(len(cov[t]) == 8 for t in g):
                gdone[len(mf) - 1] = gi
    assert len(mf) == 288 and len(gdone) == len(grp)
    first, last = {}, {}
    for i, (tau, fk, gk) in enumerate(mf):
        for k in (fk, gk):
            first.setdefault(k, i)
            last[k] = i
    frs = sorted(first, key=lambda k: (first[k], k[0] == "F"))
    ninstr = len(frs)
    rate = ninstr / 288.0 * OPT["boost"] / 100.0
    free = list(SLOTS)
    reg = {}
    seq = [0]; done = [0]; when = {}

    def lds(sx, key=None):
        a(sx)
        if key is not None:
            when[key] = seq[0]
        seq[0] += 1

    def need(idx):
        if idx < done[0]:
            return
        n = min(seq[0] - idx - 1, OPT["wslack"] if seq[0] > 30 else 15)
        a(f"s_waitcnt lgkmcnt({n})")
        if not OPT["nonop"]:
            a("s_nop 0")
        done[0] = seq[0] - n

    def issue(k):
        rg = free.pop(0)
        reg[k] = rg
        _, si, r, i = k
        if k[0] == "G":
            lds(f"ds_read_b128 {vr(rg,4)}, v3 offset:{512*i+64*r}", k)
            return 1
        lds(f"ds_read_b128 {vr(rg,4)}, v2 offset:{512*(7-i)+64*r}", k)
        return 1

    a(".p2align 3")
    nxt = 0
    for _ in range(OPT["pre"]):
        issue(frs[nxt]); nxt += 1
    started = set(); pending = []; mark = [0]
    credit = 0.0
    for i, (tau, fk, gk) in enumerate(mf):
        while nxt < len(frs) and first[frs[nxt]] <= i:
            issue(frs[nxt]); nxt += 1
        need(max(when[fk], when[gk]))
        c = vr(ACC + 4 * tau, 4) if tau in started else "0"
        started.add(tau)
        a(f"v_mfma_f32_16x16x32_bf16 {vr(ACC+4*tau,4)}, {vr(reg[fk],4)}, {vr(reg[gk],4)}, {c}")
        for k in (fk, gk):
            if last[k] == i:
                free.append(reg[k])
        if pending and len(a.l) - mark[0] >= 9:
            for _ in range(2):
                if pending:
                    op = pending.pop(0)
                    if op.startswith("ds_"):
                        lds(op)
                    else:
                        a(op)
        credit = min(credit + rate, 3.0)
        while nxt < len(frs) and free and (credit >= 1.0 or first[frs[nxt]] - i <= OPT["lead"]):
            credit -= issue(frs[nxt]); nxt += 1
        if i in gdone:
            gi = gdone[i]
            assert not pending
            mark[0] = len(a.l)
            for tau2 in grp[gi]:
                c = ACC + 4 * tau2
                pending.append(f"v_cvt_pk_bf16_f32 v{c}, v{c}, v{c+1}")
                pending.append(f"v_cvt_pk_bf16_f32 v{c+1}, v{c+2}, v{c+3}")
                pending.append(f"ds_write_b64 v4, {vr(c,2)} offset:{576*tau2}")
            pending.append(f"ds_write_b32 v5, v5 offset:{16*gi}")
    a("s_nop 7")
    for op in pending:
        a(op)


def conv_main(a, emax=99):
    if OPT["sched"]:
        return conv_main2(a)
    ACC = 6
    BUF = [38, 102]
    grp = groups()
    steps = []
    if OPT["plan"]:
        for part in OPT["plan"].split(","):
            tl, rr = part.split(":")
            tl = [int(c) for c in tl]
            r0, r1 = [int(x) for x in rr.split("-")]
            per = 2 if max(tl) <= 3 else 1
            for r in range(r0, r1 + 1, per):
                steps.append((tl, list(range(r, r + per))))
    else:
        for g in grp:
            per = 2 if max(g) <= 3 else 1
            for r0 in range(0, 8, per):
                steps.append((g, list(range(r0, r0 + per))))
    last = {}
    cov = {t: set() for t in range(8)}
    for si, (tl, rs) in enumerate(steps):
        for t in tl:
            assert not (cov[t] & set(rs))
            cov[t] |= set(rs)
        for gi, g in enumerate(grp):
            if gi not in last and all(len(cov[t]) == 8 for t in g):
                last[gi] = si
    assert len(last) == len(grp)

    def step_plan(si):
        g, rs = steps[si]
        nfr = max(g) + 1
        b = BUF[si & 1]
        loads, mf = [], []
        for k, r in enumerate(rs):
            fb = b + 16 * k if len(rs) > 1 else b
            gb = b + 32 + (16 * k if len(rs) > 1 else 0)
            pairs = [(e1, tau - e1, tau) for tau in g for e1 in range(tau + 1) if e1 < emax]
            pairs.sort(key=lambda p: (max(p[0], p[1]), p[2]))
            for i in range(nfr):
                if any(p[1] == i for p in pairs):
                    loads.append((("G", k, i), f"ds_read_b128 {vr(gb+4*i,4)}, v3 offset:{512*i+64*r}"))
                if i >= emax:
                    continue
                loads.append((("F", k, i), f"ds_read_b128 {vr(fb+4*i,4)}, v2 offset:{512*(7-i)+64*r}"))
            for (e1, c1, tau) in pairs:
                mf.append((tau, ("F", k, e1), ("G", k, c1), fb + 4 * e1, gb + 4 * c1))
        return loads, mf

    plans = [step_plan(si) for si in range(len(steps))]
    seq = [0]
    done = [0]
    when = {}

    def lds(s, key=None):
        a(s)
        if key is not None:
            when[key] = seq[0]
        seq[0] += 1

    def need(idx):
        if idx < done[0]:
            return
        n = min(seq[0] - idx - 1, OPT["wslack"] if seq[0] > 30 else 15)
        a(f"s_waitcnt lgkmcnt({n})")
        if not OPT["nonop"]:
            a("s_nop 0")
        done[0] = seq[0] - n

    a(".p2align 3")
    for key, s in plans[0][0]:
        lds(s, (0,) + key)
    started = set()
    mark = [0]
    pending = []
    for si in range(len(steps)):
        loads, mf = plans[si]
        nl = list(plans[si + 1][0]) if si + 1 < len(steps) else []
        nm = len(mf)
        slots = max(1, nm * OPT["frac"] // 100)
        ntot = len(nl)
        for i, (tau, fk, gk, fr, gr) in enumerate(mf):
            need(max(when[(si,) + fk], when[(si,) + gk]))
            c = vr(ACC + 4 * tau, 4) if tau in started else "0"
            started.add(tau)
            a(f"v_mfma_f32_16x16x32_bf16 {vr(ACC+4*tau,4)}, {vr(fr,4)}, {vr(gr,4)}, {c}")
            if pending and len(a.l) - mark[0] >= 9:
                for _ in range(2):
                    if pending:
                        op = pending.pop(0)
                        if op.startswith("ds_"):
                            lds(op)
                        else:
                            a(op)
            want = min(ntot, -(-ntot * (i + 1) // slots))
            while ntot - len(nl) < want:
                key, s = nl.pop(0)
                lds(s, (si + 1,) + key)
        assert not nl
        for gi in [g_ for g_, l_ in last.items() if l_ == si]:
            assert not pending
            mark[0] = len(a.l)
            for tau in grp[gi]:
                c = ACC + 4 * tau
                pending.append(f"v_cvt_pk_bf16_f32 v{c}, v{c}, v{c+1}")
                pending.append(f"v_cvt_pk_bf16_f32 v{c+1}, v{c+2}, v{c+3}")
                pending.append(f"ds_write_b64 v4, {vr(c,2)} offset:{576*tau}")
            pending.append(f"ds_write_b32 v5, v5 offset:{16*gi}")
    a("s_nop 7")
    for op in pending:
        a(op)


XA = 154


def expansion_addr(a, g):
    a.c("expansion addresses")
    a(f"s_lshr_b32 s{S_KC}, s{S_W4}, 1")
    a(f"s_and_b32 s{S_HM}, s{S_W4}, 1")
    a(f"s_lshl_b32 s{S_T0}, s{S_HM}, 7")
    a(f"s_add_u32 s{S_T0}, s{S_T0}, {64*g}")
    a(f"v_add_u32 v12, s{S_T0}, v1")
    a(f"s_mul_i32 s{S_T1}, s{S_KC}, {KCSZ}")
    a(f"s_add_u32 s{S_T1}, s{S_T1}, {KC}")
    a(f"s_sub_u32 s{S_T3}, s{S_T1}, {IDXBIAS}")
    a(f"s_mul_i32 s{S_T2}, s{S_KC}, {CONV}")
    a(f"s_add_u32 s{S_T2}, s{S_T2}, {KR(0,0)-4}")
    a("v_lshlrev_b32 v11, 3, v12")
    a("v_sub_u32 v11, 2047, v11")
    a("v_cvt_f32_u32 v8, v11")
    if g == 1:
        a("v_cmp_gt_u32 vcc, 0x100, v11")
        a(f"v_lshl_add_u32 v10, v11, 3, s{S_T1}")
    for k in range(9):
        d = XA + k
        if k == 0:
            a(f"v_cvt_pk_bf16_f32 v{d}, 0, v8")
        else:
            lit = {1: "-1.0", 2: "-2.0", 4: "-4.0"}.get(k, hex(f2u(-float(k))))
            a(f"v_add_f32 v9, {lit}, v8")
            a(f"v_cvt_pk_bf16_f32 v{d}, 0, v9")
        a(f"v_lshrrev_b32 v{d}, 13, v{d}")
        a(f"v_add_u32 v{d}, s{S_T3}, v{d}")
        if g == 1:
            a(f"v_subrev_u32 v9, {8*k}, v10")
            a(f"v_cndmask_b32 v{d}, v{d}, v9, vcc")
    a(f"v_lshl_add_u32 v163, v12, 4, s{S_T2}")
    if g == 1:
        a("v_cmp_eq_u32 vcc, 0xff, v12")
        a(f"s_add_u32 s{S_T0}, s{S_T1}, {768*8}")
        a(f"v_mov_b32 v9, s{S_T0}")
        a(f"v_cndmask_b32 v{XA+8}, v{XA+8}, v9, vcc")
    a(f"s_lshl_b32 s{S_T0}, s{S_KC}, 2")
    a(f"s_add_u32 s{S_T0}, s{S_T0}, {C_KG}")
    a(f"v_mov_b32 v164, s{S_T0}")


def expansion(a, tag):
    lds_spin(a, f"L_kspin_{tag}", 164, 8, 2, sleep=(1 if tag == "a" else 0))
    stamp(a, 8)
    a.c("expansion")
    B = 100
    for k in range(9):
        a(f"ds_read_b64 {vr(B+2*k,2)}, v{XA+k}")
    a("s_waitcnt lgkmcnt(0)")
    for k in range(9):
        a(f"v_add_f32 v{B+2*k}, v{B+2*k}, v{B+2*k+1}")
    P3, P2 = 120, 124
    for j in range(4):
        b = B + 4 * j
        a(f"v_cvt_pk_bf16_f32 v{P3+j}, v{b}, v{b+2}")
        a(f"v_cvt_pk_bf16_f32 v{P2+j}, v{b+2}, v{b+4}")
    k_copies(a, 163, P3, P2)


def kgen_waves(a):
    a.c("==== K generation waves")
    a(f"s_lshr_b32 s{S_KC}, s{S_W4}, 1")
    a(f"s_and_b32 s{S_HM}, s{S_W4}, 1")
    a(f"s_add_u32 s{S_T1}, s{S_D0}, s{S_KC}")
    a(f"s_lshl_b32 s{S_T3}, s{S_T1}, 1")
    a(f"v_mov_b32 v8, s{S_T3}")
    a(f"s_lshl_b32 s{S_T1}, s{S_T1}, 8")
    a(f"s_lshl_b32 s{S_T2}, s{S_HM}, 7")
    a(f"s_add_u32 s{S_T1}, s{S_T1}, s{S_T2}")
    a(f"v_lshl_add_u32 v2, v1, 1, s{S_T1}")
    a("s_waitcnt lgkmcnt(0)")
    a(f"global_load_ushort v7, v8, s[{P_LDT}:{P_LDT+1}]")
    a(f"global_load_ushort v3, v2, s[{P_LAR}:{P_LAR+1}]" + (" nt" if OPT["nt"] & 16 else ""))
    a(f"global_load_ushort v4, v2, s[{P_AIM}:{P_AIM+1}]" + (" nt" if OPT["nt"] & 16 else ""))
    a(f"global_load_ushort v5, v2, s[{P_CR}:{P_CR+1}]" + (" nt" if OPT["nt"] & 16 else ""))
    a(f"global_load_ushort v6, v2, s[{P_CI}:{P_CI+1}]" + (" nt" if OPT["nt"] & 16 else ""))
    if OPT["stamp"]:
        srd(a, R_WS, P_WS, WS_SIZE)
    expansion_addr(a, 0)
    TBW, TBR, KA0, KA1, KA2 = 16, 17, 18, 19, 49
    a(f"s_mul_i32 s{S_T0}, s{S_W4}, {TBLSZ}")
    a(f"s_add_u32 s{S_T0}, s{S_T0}, {TBL}")
    a(f"v_lshl_add_u32 v{TBW}, v1, 2, s{S_T0}")
    a("v_and_b32 v13, 15, v1")
    a("v_lshrrev_b32 v8, 4, v1")
    a(f"v_mul_u32_u24 v{TBR}, 288, v13")
    a(f"v_lshl_add_u32 v{TBR}, v8, 4, v{TBR}")
    a(f"v_add_u32 v{TBR}, s{S_T0}, v{TBR}")
    a(f"s_lshl_b32 s{S_T0}, s{S_HM}, 2")
    a(f"s_add_u32 s{S_T1}, s{S_T1}, s{S_T0}")
    a("v_lshrrev_b32 v9, 1, v8")
    a("v_and_b32 v10, 1, v8")
    a(f"v_lshlrev_b32 v{KA0}, 7, v9")
    a(f"v_lshl_add_u32 v{KA0}, v10, 2, v{KA0}")
    a(f"v_lshl_add_u32 v{KA0}, v13, 3, v{KA0}")
    a(f"v_lshl_add_u32 v{KA0}, v{KA0}, 3, s{S_T1}")
    a("v_lshlrev_b32 v11, 1, v10")
    a("v_lshl_add_u32 v11, v13, 2, v11")
    a("v_add_u32 v11, 0x100, v11")
    a("v_lshlrev_b32 v12, 5, v10")
    a("v_lshl_add_u32 v12, v13, 1, v12")
    a("v_cmp_eq_u32 vcc, 0, v9")
    a("v_add_u32 v12, 0x180, v12")
    a(f"v_lshl_add_u32 v{KA2}, v8, 6, v13")
    a(f"v_cndmask_b32 v{KA1}, v12, v11, vcc")
    a(f"v_lshl_add_u32 v{KA1}, v{KA1}, 3, s{S_T1}")
    a(f"v_add_u32 v{KA2}, 0x200, v{KA2}")
    a(f"v_lshl_add_u32 v{KA2}, v{KA2}, 3, s{S_T1}")
    a("s_barrier")
    stamp(a, 2)
    a.c("parameters")
    a("s_waitcnt vmcnt(0)")
    stamp(a, 4)
    a("v_lshlrev_b32 v8, 16, v7")
    a("v_lshlrev_b32 v9, 16, v3")
    a(f"s_mov_b32 s{S_T1}, {hex(L2E)}")
    a(f"s_mov_b32 s{S_T2}, {hex(L2E_LO)}")
    for x, p, e in ((8, 10, 12), (9, 11, 13)):
        a(f"v_mul_f32 v{p}, s{S_T1}, v{x}")
        a(f"v_fma_f32 v{e}, v{x}, s{S_T1}, -v{p}")
        a(f"v_fma_f32 v{e}, v{x}, s{S_T2}, v{e}")
        a(f"v_exp_f32 v{p}, v{p}")
        a(f"v_mul_f32 v{e}, {hex(LN2)}, v{e}")
    a("v_lshlrev_b32 v4, 16, v4")
    for x, p, e in ((8, 10, 12), (9, 11, 13)):
        a(f"v_fma_f32 v{p}, v{p}, v{e}, v{p}")
        rnd(a, p, p)
    a("v_mul_f32 v11, v11, v10")
    a(f"v_mul_f32 v11, {hex(L2E | 0x80000000)}, v11")
    a("v_mul_f32 v4, v4, v10")
    a("v_mul_f32 v12, 0.15915494, v4")
    a("v_add_f32 v10, v10, v10")
    a("v_lshlrev_b32 v5, 16, v5")
    a("v_lshlrev_b32 v6, 16, v6")
    a("v_mul_f32 v14, v5, v10")
    a("v_mul_f32 v15, v6, v10")
    a("v_max_f32 v13, |v14|, |v15|")
    E = lambda j: 20 + 2 * j
    tmp = {0: (50, 51), 3: (52, 53), 7: (54, 55)}
    dpps = [f"v_max_u32_dpp v13, v13, v13 {d} bank_mask:0xf" for d in
            ("quad_perm:[1,0,3,2] row_mask:0xf", "quad_perm:[2,3,0,1] row_mask:0xf", "row_half_mirror row_mask:0xf",
             "row_mirror row_mask:0xf", "row_bcast:15 row_mask:0xa", "row_bcast:31 row_mask:0xc")]
    anc = []
    for j, (m, f) in tmp.items():
        if j == 0:
            anc += [f"v_exp_f32 v{m}, v11", f"v_fract_f32 v{f}, v12"]
        else:
            anc += [f"v_mul_f32 v{m}, {hex(f2u(2.0**j))}, v11", f"v_mul_f32 v{f}, {hex(f2u(2.0**j))}, v12",
                    f"v_exp_f32 v{m}, v{m}", f"v_fract_f32 v{f}, v{f}"]
    for j, (m, f) in tmp.items():
        anc += [f"v_cos_f32 v{E(j)}, v{f}", f"v_sin_f32 v{E(j)+1}, v{f}"]
    a.c("anchors")
    k = 0
    for d in dpps:
        a(anc[k]); a(anc[k + 1]); k += 2
        a(d)
    for o in anc[k:]:
        a(o)
    a(f"v_readlane_b32 s{S_T0}, v13, 63")
    for j, (m, f) in tmp.items():
        a(f"v_mul_f32 v{E(j)}, v{E(j)}, v{m}")
        a(f"v_mul_f32 v{E(j)+1}, v{E(j)+1}, v{m}")
    a(f"s_lshr_b32 s{S_T0}, s{S_T0}, 23")
    a(f"s_max_u32 s{S_T0}, s{S_T0}, 16")
    a(f"s_sub_u32 s{S_SC}, 264, s{S_T0}")
    a(f"s_lshl_b32 s{S_SC}, s{S_SC}, 23")
    a(f"s_sub_u32 s{S_ISC}, s{S_T0}, 10")
    a(f"s_lshl_b32 s{S_ISC}, s{S_ISC}, 23")
    interleave(a, [sum([cmul_ops(E(j), E(j - 1), E(j - 1)) for j in js], []) for js in ((4, 5, 6), (8, 9, 10, 11), (1, 2))])
    a.c("Y tile")
    tcount = [0]

    def put_ops(row, x, neg):
        t = 44 + (tcount[0] % 4)
        tcount[0] += 1
        return [f"v_cvt_pk_f16_f32 v{t}, v{x}, {'-' if neg else ''}v{x+1}",
                f"ds_write_b32 v{TBW}, v{t} offset:{288*row}"]

    def run_items(items):
        for i in range(0, len(items), 2):
            ch = []
            for (d, x, y, row, neg) in items[i:i + 2]:
                ops = [] if x is None else cmul_ops(d, x, y)
                if row is not None:
                    ops += put_ops(row, d, neg)
                ch.append(ops)
            interleave(a, ch)

    CT = 98
    Y = {1: E(3), 2: E(4), 4: E(5), 8: E(6), 3: 56, 5: 58, 6: 60, 7: 62}
    a("v_mov_b32 v48, 0x3c00")
    a(f"ds_write_b32 v{TBW}, v48")
    items = [(Y[3], Y[2], Y[1], 3, True), (Y[1], None, None, 1, True),
             (Y[5], Y[4], Y[1], 5, True), (Y[2], None, None, 2, True),
             (Y[6], Y[4], Y[2], 6, True), (Y[4], None, None, 4, True),
             (Y[7], Y[4], Y[3], 7, True), (Y[8], None, None, 8, True)]
    for b in range(9, 16):
        items.append((CT + 2 * (b % 4), Y[8], Y[b - 8], b, True))
    run_items(items)
    YF = 106
    for s in range(4):
        a(f"ds_read_b128 {vr(YF+4*s,4)}, v{TBR} offset:{64*s}")
    a.c("Z, W")
    Z = {1: E(0), 2: E(1), 4: E(2), 3: 56, 5: 58, 6: 60, 7: 62}
    W = {h: 64 + 2 * h for h in range(17)}
    a(f"v_mul_f32 v{W[0]}, s{S_SC}, v14")
    a(f"v_mul_f32 v{W[0]+1}, s{S_SC}, v15")
    run_items([(Z[3], Z[2], Z[1], None, 0), (W[1], W[0], E(7), None, 0),
               (Z[5], Z[4], Z[1], None, 0), (Z[6], Z[4], Z[2], None, 0),
               (Z[7], Z[4], Z[3], None, 0), (W[2], W[0], E(8), None, 0)])
    stamp(a, 6)
    XFT = [122, 138, 20]
    ACC = 36

    def rd(t):
        for s in range(4):
            a(f"ds_read_b128 {vr(XFT[t]+4*s,4)}, v{TBR} offset:{64*s}")

    def mm(t):
        for s in range(4):
            c = "0" if s == 0 else vr(ACC + 4 * t, 4)
            a(f"v_mfma_f32_16x16x32_f16 {vr(ACC+4*t,4)}, {vr(XFT[t]+4*s,4)}, {vr(YF+4*s,4)}, {c}")

    a.c("X tile 0")
    items = [(W[0], None, None, 0, False), (W[1], None, None, 8, False)]
    k = 0
    for r in range(1, 8):
        for h in (0, 1):
            items.append((CT + 2 * (k % 4), W[h], Z[r], 8 * h + r, False)); k += 1
    run_items(items)
    rd(0)
    run_items([(W[3], W[1], E(8), None, 0)] + [(W[h], W[h - 4], E(9), None, 0) for h in (4, 5, 6)] + [(W[7], W[3], E(9), None, 0)])
    a.c("X tile 1")
    items = []
    for G in range(4):
        for r in range(4):
            if G < 2:
                h = 2 + (r >> 1); zr = 2 * (2 * G + (r & 1))
            else:
                h = 4 + 2 * (r >> 1) + (G - 2); zr = 4 * (r & 1)
            if zr == 0:
                items.append((W[h], None, None, 4 * G + r, False))
            else:
                items.append((CT + 2 * (k % 4), W[h], Z[zr], 4 * G + r, False)); k += 1
    run_items(items)
    rd(1)
    a.c("X tile 2")
    run_items([(W[h], W[h - 8], E(10), h - 8, False) for h in range(8, 16)] + [(W[16], W[0], E(11), 8, False)])
    rd(2)
    a("s_waitcnt lgkmcnt(4)")
    mm(0)
    mm(1)
    a("s_waitcnt lgkmcnt(0)")
    mm(2)
    a("v_mov_b32 v8, 1")
    a("s_nop 2")
    for t in (0, 1):
        for r in range(4):
            a(f"v_mul_f32 v{ACC+4*t+r}, s{S_ISC}, v{ACC+4*t+r}")
    for t, offs, ad in ((0, (0, 8, 16, 24), KA0), (1, (0, 8, 512, 520), KA1)):
        for r in range(4):
            a(f"ds_write_b32 v{ad}, v{ACC+4*t+r} offset:{offs[r]}")
    for r in range(4):
        a(f"v_mul_f32 v{ACC+8+r}, s{S_ISC}, v{ACC+8+r}")
    for r in range(4):
        a(f"ds_write_b32 v{KA2}, v{ACC+8+r} offset:{128*r}")
    a("s_mov_b64 exec, 1")
    a("ds_add_u32 v164, v8")
    a("s_mov_b64 exec, -1")
    stamp(a, 7)
    expansion(a, "k")
    a("s_waitcnt lgkmcnt(0)")
    stamp(a, 9)
    a("s_barrier")
    stamp_out(a)
    a("s_endpgm")


def gate_compute(a, XR, WR, T):
    Wp = T
    X0 = T + 8
    for j in range(4):
        unpack2(a, Wp + 2 * j, WR + j)
    for row in range(2):
        X = X0 + 8 * row
        for j in range(4):
            unpack2(a, X + 2 * j, XR + 4 * row + j)
    for row in range(2):
        X = X0 + 8 * row
        for j in range(4):
            a(f"v_pk_mul_f32 {vr(X+2*j,2)}, {vr(X+2*j,2)}, {vr(Wp+2*j,2)}")
    for row in range(2):
        X = X0 + 8 * row
        for j in range(8):
            rnd(a, X + j, X + j)
    for row in range(2):
        X = X0 + 8 * row
        a(f"v_pk_add_f32 {vr(X,2)}, {vr(X,2)}, {vr(X+2,2)}")
        a(f"v_pk_add_f32 {vr(X+4,2)}, {vr(X+4,2)}, {vr(X+6,2)}")
    for row in range(2):
        X = X0 + 8 * row
        a(f"v_pk_add_f32 {vr(X,2)}, {vr(X,2)}, {vr(X+4,2)}")
    A0, A1 = X0, X0 + 8
    a(f"v_add_f32 v{A0}, v{A0}, v{A0+1}")
    a(f"v_add_f32 v{A1}, v{A1}, v{A1+1}")
    a("s_nop 0")
    for d in ("quad_perm:[1,0,3,2]", "quad_perm:[2,3,0,1]", "row_half_mirror", "row_mirror",
              "row_bcast:15 row_mask:0xa", "row_bcast:31 row_mask:0xc"):
        m = "" if "row_mask" in d else " row_mask:0xf"
        a(f"v_add_f32_dpp v{A0}, v{A0}, v{A0} {d}{m} bank_mask:0xf")
        a(f"v_add_f32_dpp v{A1}, v{A1}, v{A1} {d}{m} bank_mask:0xf")
        a("s_nop 0")
    for x in (A0, A1):
        rnd(a, x, x)
    for x in (A0, A1):
        a(f"v_mul_f32 v{x}, {hex(L2E | 0x80000000)}, v{x}")
    for x in (A0, A1):
        a(f"v_exp_f32 v{x}, v{x}")
    a("s_nop 0")
    for x in (A0, A1):
        a(f"v_add_f32 v{x}, 1.0, v{x}")
    for x in (A0, A1):
        a(f"v_rcp_f32 v{x}, v{x}")
    a("s_nop 0")
    for x in (A0, A1):
        rnd(a, x, x)
    for x in (A0, A1):
        a(f"v_sub_f32 v{x+1}, 1.0, v{x}")
    a(f"v_cvt_pk_bf16_f32 v{T}, v{A0}, v{A0+1}")
    a(f"v_mov_b32 v{T+1}, s{S_NON}")
    a(f"v_cvt_pk_bf16_f32 v{T+2}, v{A1}, v{A1+1}")
    a(f"v_mov_b32 v{T+3}, s{S_NON}")


def aux_waves(a):
    grp = groups()
    a.c("==== aux waves; v0 = thread index 0..255")
    a.c("zero init of LDS pads")
    for i in range(4):
        a(f"v_mov_b32 v{8+i}, 0")
    a("v_lshrrev_b32 v12, 6, v0")
    a(f"v_mul_u32_u24 v12, {CONV}, v12")
    a("v_bfe_u32 v14, v0, 5, 1")
    a(f"v_mul_u32_u24 v14, {XSTR}, v14")
    a("v_and_b32 v13, 31, v0")
    a("v_min_u32 v13, 28, v13")
    a("v_lshl_add_u32 v12, v13, 4, v12")
    a("v_add_u32 v12, v12, v14")
    a(f"ds_write_b128 v12, v[8:11] offset:{XB(0)}")
    a("v_bfe_u32 v13, v0, 4, 2")
    a(f"v_mul_u32_u24 v13, {CONV}, v13")
    a("v_bfe_u32 v14, v0, 2, 2")
    a(f"v_mul_u32_u24 v14, {KSTR}, v14")
    a("v_and_b32 v15, 3, v0")
    a("v_lshl_add_u32 v14, v15, 4, v14")
    a("v_add_u32 v13, v13, v14")
    a(f"v_add_u32 v13, {KR(0,0)+4080}, v13")
    a("v_cmp_gt_u32 vcc, 64, v0")
    a("v_and_b32 v14, 15, v0")
    a("v_lshlrev_b32 v14, 4, v14")
    a(f"v_add_u32 v14, {CNT}, v14")
    a("v_cndmask_b32 v12, v14, v13, vcc")
    a("v_cmp_gt_u32 vcc, 0x80, v0")
    a("v_and_b32 v15, 1, v0")
    a(f"v_mul_u32_u24 v15, {KCSZ}, v15")
    a(f"v_add_u32 v15, {KC+768*8}, v15")
    a("v_cndmask_b32 v12, v15, v12, vcc")
    a("ds_write_b128 v12, v[8:11]")
    a("s_waitcnt lgkmcnt(0)")
    a("s_barrier")
    stamp(a, 1)
    srd(a, R_WS, P_WS, WS_SIZE)
    srd(a, R_DBG, P_DBG, 256)
    srd(a, R_OUT, P_OUT, 0x200000)
    expansion_addr(a, 1)
    a(f"s_lshl_b32 s{S_T0}, s{S_D0}, 12")
    a(f"v_lshl_add_u32 v2, v0, 4, s{S_T0}")
    a("v_add_u32 v3, 0x1000, v2")
    a("v_subrev_u32 v4, 4, v2")
    a(f"v_max_i32 v4, s{S_T0}, v4")
    a(f"s_lshl_b32 s{S_T1}, s{S_GB}, 13")
    a(f"s_lshl_b32 s{S_T2}, s{S_W4}, 11")
    a(f"s_add_u32 s{S_T1}, s{S_T1}, s{S_T2}")
    a("v_lshlrev_b32 v6, 4, v1")
    a(f"v_add_u32 v5, s{S_T1}, v6")
    a(f"s_lshl_b32 s{S_T0}, s{S_W4}, 4")
    a(f"s_lshl_b32 s{S_T1}, s{S_GB}, 6")
    a(f"s_add_u32 s{S_T0}, s{S_T0}, s{S_T1}")
    a(f"s_add_u32 s{S_T0}, s{S_T0}, {hex(WS_G)}")
    a(f"v_mov_b32 v7, s{S_T0}")
    a("v_mov_b32 v56, 0")
    a(f"s_lshl_b32 s{S_T3}, s{S_D0}, 1")
    EA = {}
    for gi, g in enumerate(grp):
        n = len(g); R0 = 256 * g[0]
        sh = {1: 0, 2: 1, 4: 2}[n]
        GO, XA1, XA2, YA_, OO = 128 + gi, 133 + gi, 138 + gi, 143 + gi, 148 + gi
        EA[gi] = (GO, XA1, XA2, YA_, OO)
        a(f"v_lshlrev_b32 v8, {sh}, v0")
        a(f"v_add_u32 v8, {R0}, v8")
        a(f"v_lshlrev_b32 v{GO}, 3, v8")
        a(f"v_lshlrev_b32 v{XA1}, 1, v8")
        a(f"v_add_u32 v{XA2}, {2*CONV}, v{XA1}")
        a("v_lshrrev_b32 v9, 5, v8")
        a(f"v_lshl_add_u32 v9, v9, 3, v{XA1}")
        a(f"v_add_u32 v{YA_}, {YS}, v9")
        a(f"v_lshl_add_u32 v{OO}, v8, 10, s{S_T3}")
    if OPT["tw"]:
        a(f"s_cmp_lg_u32 s{S_W4}, 0")
        a("s_cbranch_scc1 L_notw")
        a("s_mov_b64 exec, 1")
        a(f"s_lshl_b32 s{S_T0}, s{S_PCG}, 18")
        a(f"s_lshl_b32 s{S_T1}, s{S_PTB}, 7")
        a(f"s_add_u32 s{S_T0}, s{S_T0}, s{S_T1}")
        a(f"v_mov_b32 v8, s{S_T0}")
        a(f"s_mov_b32 s{S_T2}, {hex(WS_KV)}")
        a(f"buffer_load_dword v60, v8, s[{R_WS}:{R_WS+3}], 0 offen nt")
        a(f"buffer_load_dword v61, v8, s[{R_WS}:{R_WS+3}], s{S_T2} offen nt")
        a(f"s_lshl_b32 s{S_T0}, s{S_PCG}, 12")
        a(f"s_add_u32 s{S_T0}, s{S_T0}, s{S_T1}")
        a(f"s_add_u32 s{S_T0}, s{S_T0}, {hex(WS_FLAG)}")
        a(f"v_mov_b32 v8, s{S_T0}")
        a(f"buffer_load_dword v62, v8, s[{R_WS}:{R_WS+3}], 0 offen nt")
        a(f"s_lshl_b32 s{S_T0}, s2, 13")
        a(f"v_mov_b32 v8, s{S_T0}")
        a(f"buffer_load_dword v63, v8, s[{R_OUT}:{R_OUT+3}], 0 offen nt")
        a(f"global_load_dword v64, v2, s[{P_SSMK}:{P_SSMK+1}]")
        a(f"global_load_dword v65, v6, s[{P_GW}:{P_GW+1}]")
        a("s_mov_b64 exec, -1")
        a.lab("L_notw")
    a(f"s_load_dword s{S_RAWDS}, s[{P_DSK}:{P_DSK+1}], s{S_T3}")
    a(f"s_load_dword s{S_RAWDM}, s[{P_SSMD}:{P_SSMD+1}], s{S_T3}")
    def ssmk_loads():
        NT = " nt" if OPT["nt"] & 2 else ""
        a(f"global_load_dwordx4 v[68:71], v2, s[{P_SSMK}:{P_SSMK+1}]{NT}")
        a(f"global_load_dwordx4 v[74:77], v3, s[{P_SSMK}:{P_SSMK+1}]{NT}")
        a(f"global_load_dword v67, v4, s[{P_SSMK}:{P_SSMK+1}]{NT}")
        a(f"global_load_dword v73, v3, s[{P_SSMK}:{P_SSMK+1}] offset:-4{NT}")

    def gate_loads():
        NT = " nt" if OPT["nt"] & 8 else ""
        a(f"global_load_dwordx4 v[80:83], v5, s[{P_U}:{P_U+1}]{NT}")
        a(f"global_load_dwordx4 v[84:87], v5, s[{P_U}:{P_U+1}] offset:1024{NT}")
        a(f"global_load_dwordx4 v[88:91], v6, s[{P_GW}:{P_GW+1}]")
        a(f"buffer_load_dwordx2 v[52:53], v56, s[{R_DBG}:{R_DBG+3}], 0 offen{SC}")

    def ssmk_copies():
        a.c("---- ssm_k -> LDS (reversed, 4 copies)")
        a("v_cmp_eq_u32 vcc, 0, v0")
        a("s_nop 1")
        for ch in range(2):
            q = 2 + ch
            L = 68 + 6 * ch
            P3, P2 = 20 + 8 * ch, 24 + 8 * ch
            a(f"v_cndmask_b32 v{L-1}, v{L-1}, 0, vcc")
            for d in range(4):
                a(f"v_alignbit_b32 v{P3+d}, v{L+3-d}, v{L+3-d}, 16")
                a(f"v_bfi_b32 v{P2+d}, s{S_LO}, v{L+3-d}, v{L+2-d}")
            a(f"v_add_u32 v{36+ch}, {KR(q,0)}, v9")
            k_copies(a, 36 + ch, P3, P2)

    def gate_part():
        nonce_check(a, "a", 52, 56)
        a.c("---- gate")
        gate_compute(a, 80, 88, 100)
        a("s_mov_b32 exec_lo, 0")
        a("s_mov_b32 exec_hi, 0x80000000")
        a(f"buffer_store_dwordx4 v[100:103], v7, s[{R_WS}:{R_WS+3}], 0 offen{SC}")
        a("s_mov_b64 exec, -1")

    a("v_lshlrev_b32 v9, 4, v0")
    a("v_sub_u32 v9, 4076, v9")
    M = OPT["auxmode"]
    if M in (1, 2, 3, 4):
        ssmk_loads()
    if M == 1:
        gate_loads()
    if M in (0, 2, 5, 6):
        a(f"v_mov_b32 v12, {C_P1 if M in (0, 2) else C_SIG}")
        lds_spin(a, "L_aspin", 12, 8, 4 if M != 6 else 1, sleep=2)
        stamp(a, 2)
        gate_loads()
        if M != 2:
            ssmk_loads()
    a("s_waitcnt lgkmcnt(0)")
    a(f"s_lshl_b32 s{S_DS}, s{S_RAWDS}, 16")
    a(f"s_and_b32 s{S_DS+1}, s{S_RAWDS}, s{S_HI}")
    a(f"s_lshl_b32 s{S_DM}, s{S_RAWDM}, 16")
    a(f"s_and_b32 s{S_DM+1}, s{S_RAWDM}, s{S_HI}")
    if M in (0, 5, 6):
        gate_part()
        stamp(a, 3)
        ssmk_copies()
    elif M in (1, 2):
        a("s_waitcnt vmcnt(4)")
        stamp(a, 3)
        ssmk_copies()
        gate_part()
    elif M == 3:
        a("s_waitcnt vmcnt(0)")
        stamp(a, 3)
        ssmk_copies()
        a(f"v_mov_b32 v12, {C_SIG}")
        lds_spin(a, "L_aspin", 12, 8, 4, sleep=2)
        gate_loads()
        gate_part()
    else:
        a("s_waitcnt vmcnt(0)")
        stamp(a, 3)
        ssmk_copies()
    stamp(a, 4)
    if OPT["ff"]:
        a.c("write-through flag (for consumers on other XCDs)")
        a(f"s_cmp_lg_u32 s{S_W4}, 0")
        a("s_cbranch_scc1 L_noslowflag")
        a(f"v_mov_b32 v12, {C_SIG}")
        lds_spin(a, "L_sfspin", 12, 8, 4, sleep=1)
        a(f"s_lshl_b32 s{S_T0}, s{S_PCG}, 12")
        a(f"s_lshl_b32 s{S_T1}, s{S_PTB}, 7")
        a(f"s_add_u32 s{S_T0}, s{S_T0}, s{S_T1}")
        a(f"s_add_u32 s{S_T0}, s{S_T0}, {hex(WS_FLAG+0x8000)}")
        a(f"v_lshl_add_u32 v8, v1, 3, s{S_T0}")
        a("s_mov_b64 exec, 0xffff")
        a(f"buffer_store_dwordx2 v[52:53], v8, s[{R_WS}:{R_WS+3}], 0 offen{SC}")
        a("s_mov_b64 exec, -1")
        a.lab("L_noslowflag")
    expansion(a, "a")
    a("s_waitcnt lgkmcnt(0)")
    stamp(a, 9)
    GR = 20
    XR = 36

    def gloads():
        pos = 0
        for gi, g in enumerate(grp):
            n = len(g)
            for h in range(n // 2):
                a(f"buffer_load_dwordx4 {vr(GR+2*pos+4*h,4)}, v{EA[gi][0]}, s[{R_WS}:{R_WS+3}], s{S_T2} offen offset:{16*h}{SC}")
            if n == 1:
                a(f"buffer_load_dwordx2 {vr(GR+2*pos,2)}, v{EA[gi][0]}, s[{R_WS}:{R_WS+3}], s{S_T2} offen{SC}")
            pos += n

    a(f"s_mov_b32 s{S_T2}, {hex(WS_G)}")
    if OPT["gearly"]:
        gloads()
    a("s_barrier")
    stamp(a, 10)
    if OPT["hprio"]:
        a(f"s_setprio {OPT['hprio']}")
    if M == 4:
        gate_loads()
        gate_part()
    if not OPT["gearly"]:
        gloads()
    pos = 0
    for gi, g in enumerate(grp):
        n = len(g)
        lop = {1: "u16_d16_hi" if pos & 1 else "u16_d16", 2: "b32", 4: "b64"}[n]
        for q in range(4):
            a(f"ds_read_{lop} {vr(XR+4*q+pos//2,max(1,n//2))}, v{EA[gi][1 if q < 2 else 2]} offset:{XB(q&1)+XD}")
        pos += n
    assert pos == 8
    PR = 52
    a("s_waitcnt lgkmcnt(0)")
    for r in range(8):
        B = PR + 6 * r
        U, UD, UK = B, B + 2, B + 4
        for ch in range(2):
            ext(a, U + ch, XR + 4 * ch + r // 2, r & 1)
            ext(a, UK + ch, XR + 4 * (2 + ch) + r // 2, r & 1)
        for ch in range(2):
            a(f"v_mul_f32 v{UD+ch}, s{S_DS+ch}, v{U+ch}")
            a(f"v_mul_f32 v{UK+ch}, s{S_DM+ch}, v{UK+ch}")
    a(f"s_mov_b32 s{S_SPIN}, 0")
    a("s_branch L_gchk")
    a.lab("L_gpoll")
    a("s_sleep 4")
    gloads()
    a(f"s_add_u32 s{S_SPIN}, s{S_SPIN}, 1")
    a.lab("L_gchk")
    a("s_waitcnt vmcnt(0)")
    a(f"v_xor_b32 v8, s{S_NON}, v{GR+1}")
    for r in range(1, 8):
        a(f"v_xor_b32 v9, s{S_NON}, v{GR+2*r+1}")
        a("v_or_b32 v8, v8, v9")
    a("v_cmp_ne_u32 vcc, 0, v8")
    a(f"s_cmp_ge_u32 s{S_SPIN}, {hex(SPIN_MAX)}")
    a("s_cbranch_scc1 L_gpoll_done")
    a("s_cmp_eq_u64 vcc, 0")
    a("s_cbranch_scc0 L_gpoll")
    a.lab("L_gpoll_done")
    stamp(a, 11)
    for r in range(8):
        B = PR + 6 * r
        U, UD, UK = B, B + 2, B + 4
        G0, G1 = GR + 2 * r, GR + 2 * r + 1
        a(f"v_and_b32 v{G1}, s{S_HI}, v{G0}")
        a(f"v_lshlrev_b32 v{G0}, 16, v{G0}")
        for ch in range(2):
            a(f"v_mul_f32 v{U+ch}, v{U+ch}, v{G1}")
            a(f"v_mul_f32 v{UD+ch}, v{UD+ch}, v{G0}")
        for ch in range(2):
            a(f"v_fmac_f32 v{UD+ch}, v{UK+ch}, v{U+ch}")
    a(f"v_mov_b32 v5, {C_Y}")
    pos = 0
    for gi, g in enumerate(grp):
        n = len(g)
        a(f"s_mov_b32 s{S_SPIN}, 0")
        a.lab(f"L_yspin{gi}")
        a(f"ds_read_b128 v[104:107], v5 offset:{16*gi}")
        a(f"s_add_u32 s{S_SPIN}, s{S_SPIN}, 1")
        a("s_waitcnt lgkmcnt(0)")
        a("v_min_u32 v104, v104, v105")
        a("v_min3_u32 v104, v104, v106, v107")
        a(f"s_cmp_ge_u32 s{S_SPIN}, {hex(SPIN_MAX*8)}")
        a(f"v_readfirstlane_b32 s{S_T0}, v104")
        a(f"s_cbranch_scc1 L_yspin{gi}_done")
        a(f"s_cmp_lg_u32 s{S_T0}, 0")
        a(f"s_cbranch_scc1 L_yspin{gi}_done")
        a(f"s_sleep {OPT['ysleep']}")
        a(f"s_branch L_yspin{gi}")
        a.lab(f"L_yspin{gi}_done")
        stamp(a, min(12 + gi, 14))
        lop = {1: "u16", 2: "b32", 4: "b64"}[n]
        YR = 108
        for q in range(4):
            a(f"ds_read_{lop} {vr(YR+2*q,max(1,n//2))}, v{EA[gi][3]} offset:{YSZ*q}")
        a("s_waitcnt lgkmcnt(0)")
        for k in range(n):
            r = pos + k
            B = PR + 6 * r
            CB, P = B, B + 2
            G0 = GR + 2 * r
            YA, YB = 116 + 4 * (k & 1), 118 + 4 * (k & 1)
            for ch in range(2):
                ext(a, YA + ch, YR + 2 * ch + k // 2, k & 1)
                ext(a, YB + ch, YR + 2 * (2 + ch) + k // 2, k & 1)
            for ch in range(2):
                a(f"v_fmac_f32 v{P+ch}, v{YA+ch}, v{G0}")
            for ch in range(2):
                a(f"v_fmac_f32 v{P+ch}, v{YB+ch}, v{CB+ch}")
            a(f"v_cvt_pk_bf16_f32 v{P}, v{P}, v{P+1}")
            a(f"buffer_store_dword v{P}, v{EA[gi][4]}, s[{R_OUT}:{R_OUT+3}], 0 offen offset:{1024*k}")
        pos += n
    stamp_out(a)


def kd(name):
    return f""".section .rodata,"a"
.p2align 6
.amdhsa_kernel {name}
  .amdhsa_next_free_vgpr {NV}
  .amdhsa_next_free_sgpr 102
  .amdhsa_accum_offset {NV}
  .amdhsa_group_segment_fixed_size 0
  .amdhsa_kernarg_size 136
  .amdhsa_user_sgpr_count 2
  .amdhsa_user_sgpr_kernarg_segment_ptr 1
  .amdhsa_system_sgpr_workgroup_id_x 1
  .amdhsa_float_denorm_mode_32 3
.end_amdhsa_kernel
"""


def gen():
    out = [f"; @launch grid=(256,1,1) block=(768,1,1) lds={LDS_TOTAL}\n",
           """; One workgroup per channel pair, 12 waves in three roles:
""",
           '.amdgcn_target "amdgcn-amd-amdhsa--gfx950"\n.text\n',
           f".globl {NAME}_kernel\n.p2align 8\n.type {NAME}_kernel,@function\n{NAME}_kernel:\n"]
    a = A()
    prologue(a)
    data_waves(a)
    a.lab("L_kgen")
    kgen_waves(a)
    a.lab("L_aux")
    aux_waves(a)
    a.lab("L_end")
    a("s_endpgm")
    out.append(a.text())
    out.append(kd(NAME + "_kernel"))
    return "".join(out)


if __name__ == "__main__":
    outp = sys.argv[1] if len(sys.argv) > 1 else f"cdna_kernels/{NAME}.s"
    for x in sys.argv[2:]:
        k, v = x.split("=")
        OPT[k] = v if k in ("groups", "plan", "order") else int(v)
    txt = gen()
    open(outp, "w").write(txt)
    print("wrote", outp, len(txt), "bytes; LDS", LDS_TOTAL)
```

```python
import sys, struct

NAME = "gated_mix__ssm_conv_s4d__ssm_conv_h3__prompt"
OPT = dict(stamp=0, groups="0123,4567", pollsleep=2, hprio=2, map=0, dprio=2, wslack=5, fullflag=1, frac=100, auxmode=0, plan="", exp=0, tw=0, nt=0, fwarm=0, pdelay=0, cprio=0, nonop=0, ysleep=1, sched=0, order="", lead=10, boost=110, pre=9, amp=0, gearly=0, ff=0, ffn=8, kprio=0, asleep=1)
NV = 168
VST, VST2 = 167, 166


def f2u(x):
    return struct.unpack("<I", struct.pack("<f", x))[0]


class A:
    def __init__(self):
        self.l = []

    def __call__(self, s):
        self.l.append("    " + s)

    def lab(self, s):
        self.l.append(s + ":")

    def c(self, s):
        self.l.append("    ; " + s)

    def text(self):
        return "\n".join(self.l) + "\n"


def vr(a, n=1):
    assert a + n <= NV, (a, n)
    return f"v{a}" if n == 1 else f"v[{a}:{a+n-1}]"


def sr(a, n=1):
    return f"s{a}" if n == 1 else f"s[{a}:{a+n-1}]"


KSTR = 4160
XSTR = 4640
CONV = 16 + 4 * KSTR + 2 * XSTR
assert CONV % 16 == 0
def KR(q, s): return q * CONV + 16 + s * KSTR
def XB(q): return q * CONV + 16 + 4 * KSTR
XD = XSTR + 448
KC = 4 * CONV
KCSZ = 776 * 8
TBL = KC + 2 * KCSZ
TBLSZ = 16 * 288
CNT = TBL + 4 * TBLSZ
YS = CNT + 256
YSZ = 8 * 576
P1S = YS - 640
P1K, P1V, P1U = P1S + 1024, P1S + 9216, P1S + 17408
LDS_TOTAL = P1S + 25600
assert LDS_TOTAL <= 163840, LDS_TOTAL
IDXBIAS = 8 * 0x4280
C_SIG, C_P1, C_KG, C_Y = CNT, CNT + 4, CNT + 16, CNT + 32

WS_KV = 0x200000
WS_G = 0x400000
WS_FLAG = 0x410000
WS_ST = 0x600000
WS_SIZE = 0x800000

P_U, P_LAR, P_AIM, P_CR, P_CI, P_LDT, P_DSK, P_Q = 16, 18, 20, 22, 24, 26, 28, 30
P_K, P_V, P_SHK, P_SSMK, P_SSMD, P_GW, P_OUT, P_DBG = 32, 34, 36, 38, 40, 42, 44, 46
P_WS = 48
S_WV, S_CG, S_TB, S_D0 = 3, 4, 5, 6
S_PCG, S_PTB, S_GB, S_W4 = 7, 98, 99, 100
S_HI, S_LO = 50, 51
S_T0, S_T1, S_T2, S_T3 = 8, 9, 10, 11
R_U, R_K, R_V, R_WS, R_OUT, R_DBG = 52, 56, 60, 64, 68, 72
S_SELLO, S_SELHI, S_4096, S_KV0, S_KV1 = 76, 77, 78, 79, 80
S_DS, S_DM = 82, 84
S_RAWDS, S_RAWDM = 86, 87
S_SC, S_ISC = 89, 90
S_SPIN = 91
S_KC, S_HM = 92, 93
S_PC = 12
S_NON = 14

L2E = 0x3FB8AA3B
L2E_LO = 0x32A57060
LN2 = 0x3F317218
SPIN_MAX = 0x40000
SC = " sc1"


AROLE = ["d"]


def stamp(a, idx):
    if OPT["amp"] and AROLE[0] == "d" and idx == OPT["amp"]:
        a("s_memrealtime s[94:95]")
        a("s_waitcnt lgkmcnt(0)")
        return
    if not OPT["stamp"]:
        return
    a("s_memrealtime s[94:95]")
    a("s_memtime s[96:97]")
    a("s_waitcnt lgkmcnt(0)")
    a(f"v_writelane_b32 v{VST}, s94, {idx}")
    a(f"v_writelane_b32 v{VST}, s96, {32+idx}")


def stamp_out(a):
    if not OPT["stamp"]:
        return
    a("s_waitcnt vmcnt(0)")
    stamp(a, 15)
    a(f"s_lshl_b32 s{S_T0}, s2, 4")
    a(f"s_add_u32 s{S_T0}, s{S_T0}, s{S_WV}")
    a(f"s_lshl_b32 s{S_T0}, s{S_T0}, 8")
    a(f"s_add_u32 s{S_T0}, s{S_T0}, {hex(WS_ST)}")
    a(f"v_lshl_add_u32 v{VST2}, v1, 2, s{S_T0}")
    a(f"buffer_store_dword v{VST}, v{VST2}, s[{R_WS}:{R_WS+3}], 0 offen")


def srd(a, r, p, size):
    a(f"s_mov_b32 s{r}, s{p}")
    a(f"s_and_b32 s{r+1}, s{p+1}, 0xffff")
    a(f"s_mov_b32 s{r+2}, {hex(size)}")
    a(f"s_mov_b32 s{r+3}, 0x20000")


def rnd(a, d, s):
    a(f"v_cvt_pk_bf16_f32 v{d}, 0, v{s}")


def unpack2(a, d, s):
    a(f"v_lshlrev_b32 v{d}, 16, v{s}")
    a(f"v_and_b32 v{d+1}, s{S_HI}, v{s}")


def ext(a, d, reg, hi):
    if hi:
        a(f"v_and_b32 v{d}, s{S_HI}, v{reg}")
    else:
        a(f"v_lshlrev_b32 v{d}, 16, v{reg}")


def cmul_ops(d, x, y):
    assert d not in (x, y) and d % 2 == 0 and x % 2 == 0 and y % 2 == 0
    return [f"v_pk_mul_f32 {vr(d,2)}, {vr(x,2)}, {vr(y,2)} op_sel:[0,0] op_sel_hi:[1,0]",
            f"v_fma_f32 v{d}, -v{x+1}, v{y+1}, v{d}",
            f"v_fmac_f32 v{d+1}, v{x}, v{y+1}"]


def interleave(a, chains):
    chains = [list(c) for c in chains]
    while any(chains):
        for c in chains:
            if c:
                a(c.pop(0))


def groups():
    return [[int(ch) for ch in g] for g in OPT["groups"].split(",")]


def lds_spin(a, lab, vaddr, vtmp, val, sleep=0):
    a(f"s_mov_b32 s{S_SPIN}, 0")
    a.lab(lab)
    a(f"ds_read_b32 v{vtmp}, v{vaddr}")
    a(f"s_add_u32 s{S_SPIN}, s{S_SPIN}, 1")
    a("s_waitcnt lgkmcnt(0)")
    a(f"v_readfirstlane_b32 s{S_T0}, v{vtmp}")
    a(f"s_cmp_ge_u32 s{S_SPIN}, {hex(SPIN_MAX*8)}")
    a(f"s_cbranch_scc1 {lab}_done")
    a(f"s_cmp_ge_u32 s{S_T0}, {val}")
    a(f"s_cbranch_scc1 {lab}_done")
    if sleep:
        a(f"s_sleep {sleep}")
    a(f"s_branch {lab}")
    a.lab(lab + "_done")


def nonce_check(a, tag, vn, vzero):
    a(f"s_mov_b32 s{S_SPIN}, 0")
    a(f"s_branch L_nchk_{tag}")
    a.lab(f"L_npoll_{tag}")
    a(f"buffer_load_dwordx2 {vr(vn,2)}, v{vzero}, s[{R_DBG}:{R_DBG+3}], 0 offen{SC}")
    a(f"s_add_u32 s{S_SPIN}, s{S_SPIN}, 1")
    a.lab(f"L_nchk_{tag}")
    a("s_waitcnt vmcnt(0)")
    a(f"v_readfirstlane_b32 s{S_NON}, v{vn}")
    a(f"v_readfirstlane_b32 s{S_NON+1}, v{vn+1}")
    a(f"s_cmp_ge_u32 s{S_SPIN}, {hex(SPIN_MAX)}")
    a(f"s_cbranch_scc1 L_npoll_done_{tag}")
    a(f"s_cmp_eq_u32 s{S_NON}, 0")
    a(f"s_cbranch_scc1 L_npoll_{tag}")
    a.lab(f"L_npoll_done_{tag}")


def k_copies(a, vaddr, P3, P2):
    a(f"ds_write_b128 v{vaddr}, {vr(P3,4)} offset:{3*KSTR+4}")
    a(f"ds_write_b128 v{vaddr}, {vr(P2,4)} offset:{2*KSTR+4}")
    a(f"ds_write2_b32 v{vaddr}, v{P2}, v{P2+1} offset0:0 offset1:1")
    a(f"ds_write2_b32 v{vaddr}, v{P2+2}, v{P2+3} offset0:2 offset1:3")
    a(f"v_add_u32 v{vaddr}, {KSTR}, v{vaddr}")
    a(f"ds_write2_b32 v{vaddr}, v{P3}, v{P3+1} offset0:0 offset1:1")
    a(f"ds_write2_b32 v{vaddr}, v{P3+2}, v{P3+3} offset0:2 offset1:3")


def prologue(a):
    if OPT["stamp"] or OPT["amp"]:
        a("s_memrealtime s[96:97]")
    a("s_cmp_ge_u32 s2, 256")
    a("s_cbranch_scc1 L_end")
    a("s_load_dwordx16 s[16:31], s[0:1], 0")
    a("s_load_dwordx16 s[32:47], s[0:1], 64")
    a("s_load_dwordx2 s[48:49], s[0:1], 128")
    a(f"s_getpc_b64 s[{S_PC}:{S_PC+1}]")
    a.lab("L_pc0")
    a("v_lshlrev_b32 v2, 5, v0")
    a("v_min_u32 v2, L_end-L_pc0, v2")
    a(f"global_load_dword v165, v2, s[{S_PC}:{S_PC+1}]")
    a("v_lshrrev_b32 v1, 6, v0")
    a(f"s_and_b32 s{S_CG}, s2, 7")
    a(f"v_readfirstlane_b32 s{S_WV}, v1")
    a("v_and_b32 v1, 63, v0")
    a("v_and_b32 v0, 0xff, v0")
    a(f"s_lshr_b32 s{S_TB}, s2, 3")
    a(f"s_lshl_b32 s{S_D0}, s{S_CG}, 6")
    a(f"s_lshl_b32 s{S_T0}, s{S_TB}, 1")
    a(f"s_add_u32 s{S_D0}, s{S_D0}, s{S_T0}")
    a(f"s_mov_b32 s{S_HI}, 0xffff0000")
    a(f"s_mov_b32 s{S_LO}, 0xffff")
    a(f"s_and_b32 s{S_W4}, s{S_WV}, 3")
    if OPT["map"] == 0:
        a(f"s_mov_b32 s{S_PCG}, s{S_CG}")
        a(f"s_mov_b32 s{S_PTB}, s{S_TB}")
    else:
        a(f"s_and_b32 s{S_PCG}, s{S_TB}, 7")
        a(f"s_lshr_b32 s{S_T0}, s2, 6")
        a(f"s_lshl_b32 s{S_T0}, s{S_T0}, 3")
        a(f"s_add_u32 s{S_PTB}, s{S_T0}, s{S_CG}")
    a(f"s_lshl_b32 s{S_GB}, s{S_PTB}, 3")
    a(f"s_add_u32 s{S_GB}, s{S_GB}, s{S_PCG}")
    if OPT["stamp"]:
        a(f"v_mov_b32 v{VST}, 0")
        stamp(a, 5)
        a(f"v_writelane_b32 v{VST}, s88, 0")
    a(f"s_cmp_ge_u32 s{S_WV}, 8")
    a("s_cbranch_scc1 L_aux")
    a(f"s_cmp_ge_u32 s{S_WV}, 4")
    a("s_cbranch_scc1 L_kgen")


def data_waves(a):
    a.c("==== data waves")
    if OPT["dprio"]:
        a(f"s_setprio {OPT['dprio']}")
    a("v_and_b32 v57, 7, v1")
    a("v_lshrrev_b32 v7, 3, v1")
    a(f"v_xor_b32 v9, s{S_WV}, v57")
    a(f"s_lshl_b32 s{S_T0}, s{S_PTB}, 16")
    a(f"s_lshl_b32 s{S_T1}, s{S_PCG}, 7")
    a(f"s_add_u32 s{S_T0}, s{S_T0}, s{S_T1}")
    a(f"s_lshl_b32 s{S_T1}, s{S_WV}, 13")
    a(f"s_add_u32 s{S_T0}, s{S_T0}, s{S_T1}")
    a(f"v_lshl_add_u32 v8, v7, 10, s{S_T0}")
    a("v_lshl_add_u32 v8, v9, 4, v8")
    a("v_xor_b32 v58, 64, v8")
    a("v_subrev_u32 v9, 0x8000, v58")
    a(f"s_lshl_b32 s{S_T0}, s{S_WV}, 3")
    a(f"v_add_u32 v6, s{S_T0}, v7")
    a(f"s_lshl_b32 s{S_T1}, s{S_PCG}, 9")
    a(f"v_lshl_add_u32 v10, v6, 4, s{S_T1}")
    a(f"s_movk_i32 s{S_4096}, 0x1000")
    a(f"s_mov_b32 s{S_KV0}, 0x8000")
    a(f"s_lshl_b32 s{S_T3}, s{S_WV}, 10")
    a(f"s_memrealtime s[{S_NON}:{S_NON+1}]")
    if OPT["ff"] == 1:
        a(f"s_lshl_b32 s{S_T0}, s{S_PCG}, 12")
        a(f"s_lshl_b32 s{S_T1}, s{S_PTB}, 7")
        a(f"s_add_u32 s{S_T0}, s{S_T0}, s{S_T1}")
        a(f"s_add_u32 s{S_T0}, s{S_T0}, {hex(WS_FLAG)}")
        a(f"v_mov_b32 v40, s{S_T0}")
    a("s_waitcnt lgkmcnt(0)")
    if OPT["ff"] == 1:
        a(f"s_cmp_lg_u32 s{S_WV}, 0")
        a("s_cbranch_scc1 L_nopt")
        a(f"global_load_dword v41, v40, s[{P_WS}:{P_WS+1}] nt")
        a.lab("L_nopt")
    srd(a, R_K, P_K, 0x200000)
    a(f"s_cmp_lg_u32 s{S_WV}, 3")
    a("s_cbranch_scc1 L_nohalo")
    a(f"s_mov_b32 m0, {P1K-1024}")
    a("s_mov_b32 exec_lo, 0")
    a("s_mov_b32 exec_hi, 0xffffff00")
    a(f"buffer_load_dwordx4 v9, s[{R_K}:{R_K+3}], 0 offen lds")
    a("s_mov_b64 exec, -1")
    a.lab("L_nohalo")
    for base, R, P in ((P1K, R_K, None), (P1V, R_V, P_V), (P1U, R_U, P_U)):
        if P is not None:
            srd(a, R, P, 0x200000)
        a(f"s_add_u32 m0, s{S_T3}, {base}")
        a("s_nop 0")
        NT = " nt" if (OPT["nt"] & 1) and (R != R_U or OPT["nt"] & 4) else ""
        a(f"buffer_load_dwordx4 v8, s[{R}:{R+3}], 0 offen{NT} lds")
        a(f"s_add_u32 m0, s{S_T3}, {base+4096}")
        a("s_nop 0")
        a(f"buffer_load_dwordx4 v58, s[{R}:{R+3}], s{S_KV0} offen{NT} lds")
    a(f"global_load_dwordx4 v[48:51], v10, s[{P_SHK}:{P_SHK+1}]")
    stamp(a, 10)
    srd(a, R_DBG, P_DBG, 256)
    a("v_mov_b32 v56, 0")
    a(f"s_or_b32 s{S_T0}, s{S_WV}, s2")
    a(f"s_cmp_lg_u32 s{S_T0}, 0")
    a("s_cbranch_scc1 L_nonon")
    a(f"s_or_b32 s{S_NON}, s{S_NON}, 1")
    a(f"v_mov_b32 v52, s{S_NON}")
    a(f"v_mov_b32 v53, s{S_NON+1}")
    a("s_mov_b64 exec, 1")
    a(f"buffer_store_dwordx2 v[52:53], v56, s[{R_DBG}:{R_DBG+3}], 0 offen{SC}")
    a("s_mov_b64 exec, -1")
    a.lab("L_nonon")
    srd(a, R_WS, P_WS, WS_SIZE)
    a(f"s_mov_b32 s{S_SELLO}, 0x05040100")
    a(f"s_mov_b32 s{S_SELHI}, 0x07060302")
    a(f"s_mov_b32 s{S_KV0}, {hex(WS_KV)}")
    a(f"s_mov_b32 s{S_KV1}, {hex(WS_KV+4096)}")
    a(f"s_lshl_b32 s{S_T0}, s{S_PCG}, 18")
    a(f"s_lshl_b32 s{S_T1}, s{S_PTB}, 7")
    a(f"s_add_u32 s{S_T0}, s{S_T0}, s{S_T1}")
    a(f"v_lshl_add_u32 v10, v6, 13, s{S_T0}")
    a("v_lshl_add_u32 v10, v57, 4, v10")
    a("v_lshrrev_b32 v12, 2, v6")
    a("v_and_b32 v13, 3, v6")
    a("v_xor_b32 v16, v57, v12")
    a("v_lshlrev_b32 v8, 10, v57")
    a("v_lshl_add_u32 v8, v13, 2, v8")
    a(f"v_add_u32 v8, {P1S}, v8")
    a("v_add_u32 v15, 7, v57")
    a("v_and_b32 v15, 7, v15")
    a("v_xor_b32 v15, v15, v12")
    a("v_lshl_add_u32 v9, v15, 4, v8")
    a("v_lshl_add_u32 v8, v16, 4, v8")
    a(f"s_lshl_b32 s{S_T0}, s{S_D0}, 12")
    a(f"v_lshl_add_u32 v11, v0, 4, s{S_T0}")
    a("v_lshlrev_b32 v14, 4, v0")
    a(f"v_add_u32 v15, {2*CONV}, v14")
    a("v_and_b32 v19, 7, v1")
    a(f"s_lshl_b32 s{S_T0}, s{S_CG}, 12")
    a(f"s_lshl_b32 s{S_T1}, s{S_WV}, 10")
    a(f"s_add_u32 s{S_T0}, s{S_T0}, s{S_T1}")
    a(f"s_add_u32 s{S_T0}, s{S_T0}, {hex(WS_FLAG)}")
    a(f"v_lshl_add_u32 v19, v19, 7, s{S_T0}")
    a(f"s_lshl_b32 s{S_T0}, s{S_PCG}, 12")
    a(f"s_lshl_b32 s{S_T1}, s{S_PTB}, 7")
    a(f"s_add_u32 s{S_T0}, s{S_T0}, s{S_T1}")
    a(f"s_add_u32 s{S_T0}, s{S_T0}, {hex(WS_FLAG)}")
    if OPT["fullflag"]:
        a(f"v_lshl_add_u32 v18, v1, 3, s{S_T0}")
    else:
        a(f"v_mov_b32 v18, s{S_T0}")
    if OPT["fwarm"]:
        a(f"s_cmp_lg_u32 s{S_WV}, 1")
        a("s_cbranch_scc1 L_nofw")
        a("v_mov_b32 v44, 0")
        a("v_mov_b32 v45, 0")
        a("s_mov_b64 exec, 0xffff")
        a(f"buffer_store_dwordx2 v[44:45], v18, s[{R_WS}:{R_WS+3}], 0 offen{SC}")
        a("s_mov_b64 exec, -1")
        a.lab("L_nofw")
    if OPT["ff"]:
        a("v_bfe_u32 v12, v1, 3, 1")
        a("v_lshl_add_u32 v19, v12, 15, v19")
    conv_setup(a)
    a(f"v_mov_b32 v16, {C_SIG}")
    a("v_mov_b32 v17, 1")
    a("s_barrier")
    stamp(a, 1)
    a("s_waitcnt vmcnt(0)")
    a("s_mov_b64 exec, 1")
    a("ds_add_u32 v16, v17 offset:4")
    a("s_mov_b64 exec, -1")
    a(f"buffer_load_dwordx2 v[52:53], v56, s[{R_DBG}:{R_DBG+3}], 0 offen{SC}")
    SP = 60
    a(f"v_lshlrev_b32 v{SP+0}, 16, v48")
    a(f"v_lshlrev_b32 v{SP+1}, 16, v50")
    a(f"v_and_b32 v{SP+2}, s{S_HI}, v48")
    a(f"v_and_b32 v{SP+3}, s{S_HI}, v50")
    a(f"v_lshlrev_b32 v{SP+4}, 16, v49")
    a(f"v_lshlrev_b32 v{SP+5}, 16, v51")
    a(f"v_and_b32 v{SP+6}, s{S_HI}, v49")
    a(f"v_and_b32 v{SP+7}, s{S_HI}, v51")
    a(f"v_mov_b32 v12, {C_P1}")
    lds_spin(a, "L_p1spin", 12, 13, 4)
    stamp(a, 2)
    for j in range(8):
        a(f"ds_read_b32 v{39+j}, v8 offset:{P1U-P1S+j*128}")
    for j in range(3):
        a(f"ds_read_b32 v{20+j}, v9 offset:{(5+j)*128}")
    for base, off in ((23, P1K), (31, P1V)):
        for j in range(8):
            a(f"ds_read_b32 v{base+j}, v8 offset:{off-P1S+j*128}")
    a("s_waitcnt lgkmcnt(15)")
    O2 = 130
    for ch, sel in ((0, S_SELLO), (1, S_SELHI)):
        for j in range(4):
            a(f"v_perm_b32 v{O2+4*ch+j}, v{39+2*j+1}, v{39+2*j}, s{sel}")
        so = "0" if ch == 0 else f"s{S_4096}"
        a(f"buffer_store_dwordx4 {vr(O2+4*ch,4)}, v10, s[{R_WS}:{R_WS+3}], {so} offen{SC}")
    KP = 68
    a("s_waitcnt lgkmcnt(8)")
    for i in range(11):
        unpack2(a, KP + 2 * i, 20 + i)
    ACC = 90
    T = 106
    for r in range(8):
        a(f"v_pk_mul_f32 {vr(ACC+2*r,2)}, {vr(KP+2*r,2)}, {vr(SP+6,2)}")
    for j in (1, 2, 3):
        for r in range(8):
            a(f"v_pk_fma_f32 {vr(ACC+2*r,2)}, {vr(KP+2*(r+j),2)}, {vr(SP+6-2*j,2)}, {vr(ACC+2*r,2)}")
    a("s_waitcnt lgkmcnt(0)")
    for r in range(8):
        unpack2(a, T + 2 * r, 31 + r)
    for r in range(8):
        a(f"v_pk_mul_f32 {vr(ACC+2*r,2)}, {vr(ACC+2*r,2)}, {vr(T+2*r,2)}")
    O = 122
    for ch in range(2):
        for j in range(4):
            a(f"v_cvt_pk_bf16_f32 v{O+4*ch+j}, v{ACC+2*(2*j)+ch}, v{ACC+2*(2*j+1)+ch}")
        so = S_KV0 if ch == 0 else S_KV1
        a(f"buffer_store_dwordx4 {vr(O+4*ch,4)}, v10, s[{R_WS}:{R_WS+3}], s{so} offen{SC}")
    stamp(a, 3)
    nonce_check(a, "d", 52, 56)
    stamp(a, 4)
    a.c("---- signal")
    a("s_mov_b64 exec, 1")
    a("ds_add_rtn_u32 v13, v16, v17")
    a("s_waitcnt lgkmcnt(0)")
    a(f"v_readfirstlane_b32 s{S_T1}, v13")
    a(f"s_cmp_lg_u32 s{S_T1}, 3")
    a("s_cbranch_scc1 L_nosig")
    if OPT["fullflag"]:
        a("s_mov_b64 exec, 0xffff")
    if OPT["ff"]:
        a(f"buffer_store_dwordx2 v[52:53], v18, s[{R_WS}:{R_WS+3}], 0 offen")
    else:
        a(f"buffer_store_dwordx2 v[52:53], v18, s[{R_WS}:{R_WS+3}], 0 offen{SC}")
    a.lab("L_nosig")
    a("s_mov_b64 exec, -1")
    a.c("---- wait for this wave's 8 producers")
    if OPT["pdelay"]:
        a(f"s_sleep {OPT['pdelay']}")
    a(f"s_mov_b32 s{S_SPIN}, 0")
    if OPT["ff"]:
        a("v_mov_b32 v40, 0")
        a.lab("L_poll")
        a("s_mov_b64 exec, 0xff")
        a(f"buffer_load_dwordx2 v[40:41], v19, s[{R_WS}:{R_WS+3}], 0 offen nt")
        a(f"s_cmp_lt_u32 s{S_SPIN}, {OPT['ffn']}")
        a("s_cbranch_scc1 L_noslow")
        a("s_mov_b64 exec, 0xff00")
        a(f"buffer_load_dwordx2 v[40:41], v19, s[{R_WS}:{R_WS+3}], 0 offen{SC}")
        a.lab("L_noslow")
        a("s_mov_b64 exec, -1")
        a(f"s_add_u32 s{S_SPIN}, s{S_SPIN}, 1")
        a("s_waitcnt vmcnt(0)")
        a(f"v_cmp_eq_u64 vcc, s[{S_NON}:{S_NON+1}], v[40:41]")
        a(f"s_cmp_ge_u32 s{S_SPIN}, {hex(SPIN_MAX)}")
        a("s_cbranch_scc1 L_poll_done")
        a(f"s_lshr_b32 s{S_T0}, vcc_lo, 8")
        a(f"s_or_b32 s{S_T0}, s{S_T0}, vcc_lo")
        a(f"s_and_b32 s{S_T0}, s{S_T0}, 0xff")
        a(f"s_cmp_lg_u32 s{S_T0}, 0xff")
        a("s_cbranch_scc1 L_poll")
    else:
        a.lab("L_poll")
        a(f"buffer_load_dwordx2 v[40:41], v19, s[{R_WS}:{R_WS+3}], 0 offen{SC}")
        a(f"s_add_u32 s{S_SPIN}, s{S_SPIN}, 1")
        a("s_waitcnt vmcnt(0)")
        a(f"v_cmp_ne_u64 vcc, s[{S_NON}:{S_NON+1}], v[40:41]")
        a(f"s_cmp_ge_u32 s{S_SPIN}, {hex(SPIN_MAX)}")
        a("s_cbranch_scc1 L_poll_done")
        a("s_cmp_eq_u64 vcc, 0")
        a("s_cbranch_scc1 L_poll_done")
        if OPT["pollsleep"]:
            a(f"s_sleep {OPT['pollsleep']}")
        a("s_branch L_poll")
    a.lab("L_poll_done")
    stamp(a, 6)
    a.c("---- phase 2 loads")
    sofs = ["0", f"s{S_4096}", f"s{S_KV0}", f"s{S_KV1}"]
    for q in range(4):
        a(f"buffer_load_dwordx4 {vr(20+4*q,4)}, v11, s[{R_WS}:{R_WS+3}], {sofs[q]} offen{SC}")
    for q in range(4):
        a(f"s_waitcnt vmcnt({3-q})")
        ad = "v14" if q < 2 else "v15"
        a(f"ds_write_b128 {ad}, {vr(20+4*q,4)} offset:{XB(q&1)+XD}")
        a(f"ds_write_b64 {ad}, {vr(20+4*q,2)} offset:{XB(q&1)+456}")
        a(f"ds_write_b64 {ad}, {vr(22+4*q,2)} offset:{XB(q&1)+464}")
    a("s_waitcnt lgkmcnt(0)")
    stamp(a, 7)
    if OPT["dprio"]:
        a(f"s_setprio {OPT['cprio']}")
    a("s_barrier")
    stamp(a, 8)
    if OPT["exp"]:
        a(f"s_cmp_lt_u32 s{S_WV}, 2")
        a("s_cbranch_scc1 L_convA")
    conv_main(a)
    if OPT["amp"]:
        stamp(a, 9)
        a(f"s_cmp_lg_u32 s2, 77")
        a("s_cbranch_scc1 L_noamp")
        a("s_sub_u32 s94, s94, s96")
        a("s_mul_i32 s94, s94, 10")
        a("s_memrealtime s[8:9]")
        a("s_waitcnt lgkmcnt(0)")
        a("s_add_u32 s94, s94, s8")
        a.lab("L_ampspin")
        a("s_memrealtime s[8:9]")
        a("s_waitcnt lgkmcnt(0)")
        a("s_sub_u32 s10, s8, s94")
        a("s_cmp_lt_i32 s10, 0")
        a("s_cbranch_scc1 L_ampspin")
        a.lab("L_noamp")
    if OPT["stamp"]:
        stamp(a, 9)
        stamp_out(a)
    a("s_endpgm")
    if OPT["exp"]:
        a.lab("L_convA")
        conv_main(a, OPT["exp"])
        if OPT["stamp"]:
            stamp(a, 9)
            stamp_out(a)
        a("s_endpgm")


def conv_setup(a):
    a.c("conv address setup, q = wave")
    a(f"s_mul_i32 s{S_T0}, s{S_WV}, {CONV}")
    a("v_and_b32 v12, 15, v1")
    a("v_lshrrev_b32 v13, 4, v1")
    a("v_and_b32 v16, 3, v12")
    a("v_lshrrev_b32 v17, 2, v12")
    a(f"v_mul_u32_u24 v2, {KSTR}, v16")
    a("v_lshl_add_u32 v2, v13, 4, v2")
    a("v_lshlrev_b32 v17, 4, v17")
    a("v_sub_u32 v2, v2, v17")
    a(f"s_add_u32 s{S_T1}, s{S_T0}, {KR(0,0)+48}")
    a(f"v_add_u32 v2, s{S_T1}, v2")
    a("v_and_b32 v16, 1, v12")
    a("v_lshrrev_b32 v17, 1, v12")
    a(f"v_mul_u32_u24 v3, {XSTR}, v16")
    a("v_lshl_add_u32 v3, v13, 4, v3")
    a("v_lshl_add_u32 v3, v17, 6, v3")
    a(f"s_add_u32 s{S_T1}, s{S_T0}, {XB(0)}")
    a(f"v_add_u32 v3, s{S_T1}, v3")
    a("v_mul_u32_u24 v4, 72, v17")
    a("v_lshl_add_u32 v4, v13, 4, v4")
    a("v_lshl_add_u32 v4, v16, 3, v4")
    a(f"s_mul_i32 s{S_T1}, s{S_WV}, {YSZ}")
    a(f"s_add_u32 s{S_T1}, s{S_T1}, {YS}")
    a(f"v_add_u32 v4, s{S_T1}, v4")
    a(f"s_lshl_b32 s{S_T1}, s{S_WV}, 2")
    a(f"s_add_u32 s{S_T1}, s{S_T1}, {C_Y}")
    a(f"v_mov_b32 v5, s{S_T1}")


def conv_main2(a):
    ACC = 6
    SLOTS = [38 + 4 * i for i in range(32)]
    grp = groups()
    steps = []
    for part in OPT["order"].split(","):
        tl, rr = part.split(":")
        for r in rr:
            steps.append(([int(c) for c in tl], int(r)))
    cov = {t: set() for t in range(8)}
    mf = []
    gdone = {}
    for si, (tl, r) in enumerate(steps):
        pairs = [(e1, tau - e1, tau) for tau in tl for e1 in range(tau + 1)]
        pairs.sort(key=lambda p: (max(p[0], p[1]), p[2]))
        for (e1, c1, tau) in pairs:
            mf.append((tau, ("F", si, r, e1), ("G", si, r, c1)))
        for t in tl:
            assert r not in cov[t]
            cov[t].add(r)
        for gi, g in enumerate(grp):
            if gi not in gdone.values() and all(len(cov[t]) == 8 for t in g):
                gdone[len(mf) - 1] = gi
    assert len(mf) == 288 and len(gdone) == len(grp)
    first, last = {}, {}
    for i, (tau, fk, gk) in enumerate(mf):
        for k in (fk, gk):
            first.setdefault(k, i)
            last[k] = i
    frs = sorted(first, key=lambda k: (first[k], k[0] == "F"))
    ninstr = len(frs)
    rate = ninstr / 288.0 * OPT["boost"] / 100.0
    free = list(SLOTS)
    reg = {}
    seq = [0]; done = [0]; when = {}

    def lds(sx, key=None):
        a(sx)
        if key is not None:
            when[key] = seq[0]
        seq[0] += 1

    def need(idx):
        if idx < done[0]:
            return
        n = min(seq[0] - idx - 1, OPT["wslack"] if seq[0] > 30 else 15)
        a(f"s_waitcnt lgkmcnt({n})")
        if not OPT["nonop"]:
            a("s_nop 0")
        done[0] = seq[0] - n

    def issue(k):
        rg = free.pop(0)
        reg[k] = rg
        _, si, r, i = k
        if k[0] == "G":
            lds(f"ds_read_b128 {vr(rg,4)}, v3 offset:{512*i+64*r}", k)
            return 1
        lds(f"ds_read_b128 {vr(rg,4)}, v2 offset:{512*(7-i)+64*r}", k)
        return 1

    a(".p2align 3")
    nxt = 0
    for _ in range(OPT["pre"]):
        issue(frs[nxt]); nxt += 1
    started = set(); pending = []; mark = [0]
    credit = 0.0
    for i, (tau, fk, gk) in enumerate(mf):
        while nxt < len(frs) and first[frs[nxt]] <= i:
            issue(frs[nxt]); nxt += 1
        need(max(when[fk], when[gk]))
        c = vr(ACC + 4 * tau, 4) if tau in started else "0"
        started.add(tau)
        a(f"v_mfma_f32_16x16x32_bf16 {vr(ACC+4*tau,4)}, {vr(reg[fk],4)}, {vr(reg[gk],4)}, {c}")
        for k in (fk, gk):
            if last[k] == i:
                free.append(reg[k])
        if pending and len(a.l) - mark[0] >= 9:
            for _ in range(2):
                if pending:
                    op = pending.pop(0)
                    if op.startswith("ds_"):
                        lds(op)
                    else:
                        a(op)
        credit = min(credit + rate, 3.0)
        while nxt < len(frs) and free and (credit >= 1.0 or first[frs[nxt]] - i <= OPT["lead"]):
            credit -= issue(frs[nxt]); nxt += 1
        if i in gdone:
            gi = gdone[i]
            assert not pending
            mark[0] = len(a.l)
            for tau2 in grp[gi]:
                c = ACC + 4 * tau2
                pending.append(f"v_cvt_pk_bf16_f32 v{c}, v{c}, v{c+1}")
                pending.append(f"v_cvt_pk_bf16_f32 v{c+1}, v{c+2}, v{c+3}")
                pending.append(f"ds_write_b64 v4, {vr(c,2)} offset:{576*tau2}")
            pending.append(f"ds_write_b32 v5, v5 offset:{16*gi}")
    a("s_nop 7")
    for op in pending:
        a(op)


def conv_main(a, emax=99):
    if OPT["sched"]:
        return conv_main2(a)
    ACC = 6
    BUF = [38, 102]
    grp = groups()
    steps = []
    if OPT["plan"]:
        for part in OPT["plan"].split(","):
            tl, rr = part.split(":")
            tl = [int(c) for c in tl]
            r0, r1 = [int(x) for x in rr.split("-")]
            per = 2 if max(tl) <= 3 else 1
            for r in range(r0, r1 + 1, per):
                steps.append((tl, list(range(r, r + per))))
    else:
        for g in grp:
            per = 2 if max(g) <= 3 else 1
            for r0 in range(0, 8, per):
                steps.append((g, list(range(r0, r0 + per))))
    last = {}
    cov = {t: set() for t in range(8)}
    for si, (tl, rs) in enumerate(steps):
        for t in tl:
            assert not (cov[t] & set(rs))
            cov[t] |= set(rs)
        for gi, g in enumerate(grp):
            if gi not in last and all(len(cov[t]) == 8 for t in g):
                last[gi] = si
    assert len(last) == len(grp)

    def step_plan(si):
        g, rs = steps[si]
        nfr = max(g) + 1
        b = BUF[si & 1]
        loads, mf = [], []
        for k, r in enumerate(rs):
            fb = b + 16 * k if len(rs) > 1 else b
            gb = b + 32 + (16 * k if len(rs) > 1 else 0)
            pairs = [(e1, tau - e1, tau) for tau in g for e1 in range(tau + 1) if e1 < emax]
            pairs.sort(key=lambda p: (max(p[0], p[1]), p[2]))
            for i in range(nfr):
                if any(p[1] == i for p in pairs):
                    loads.append((("G", k, i), f"ds_read_b128 {vr(gb+4*i,4)}, v3 offset:{512*i+64*r}"))
                if i >= emax:
                    continue
                loads.append((("F", k, i), f"ds_read_b128 {vr(fb+4*i,4)}, v2 offset:{512*(7-i)+64*r}"))
            for (e1, c1, tau) in pairs:
                mf.append((tau, ("F", k, e1), ("G", k, c1), fb + 4 * e1, gb + 4 * c1))
        return loads, mf

    plans = [step_plan(si) for si in range(len(steps))]
    seq = [0]
    done = [0]
    when = {}

    def lds(s, key=None):
        a(s)
        if key is not None:
            when[key] = seq[0]
        seq[0] += 1

    def need(idx):
        if idx < done[0]:
            return
        n = min(seq[0] - idx - 1, OPT["wslack"] if seq[0] > 30 else 15)
        a(f"s_waitcnt lgkmcnt({n})")
        if not OPT["nonop"]:
            a("s_nop 0")
        done[0] = seq[0] - n

    a(".p2align 3")
    for key, s in plans[0][0]:
        lds(s, (0,) + key)
    started = set()
    mark = [0]
    pending = []
    for si in range(len(steps)):
        loads, mf = plans[si]
        nl = list(plans[si + 1][0]) if si + 1 < len(steps) else []
        nm = len(mf)
        slots = max(1, nm * OPT["frac"] // 100)
        ntot = len(nl)
        for i, (tau, fk, gk, fr, gr) in enumerate(mf):
            need(max(when[(si,) + fk], when[(si,) + gk]))
            c = vr(ACC + 4 * tau, 4) if tau in started else "0"
            started.add(tau)
            a(f"v_mfma_f32_16x16x32_bf16 {vr(ACC+4*tau,4)}, {vr(fr,4)}, {vr(gr,4)}, {c}")
            if pending and len(a.l) - mark[0] >= 9:
                for _ in range(2):
                    if pending:
                        op = pending.pop(0)
                        if op.startswith("ds_"):
                            lds(op)
                        else:
                            a(op)
            want = min(ntot, -(-ntot * (i + 1) // slots))
            while ntot - len(nl) < want:
                key, s = nl.pop(0)
                lds(s, (si + 1,) + key)
        assert not nl
        for gi in [g_ for g_, l_ in last.items() if l_ == si]:
            assert not pending
            mark[0] = len(a.l)
            for tau in grp[gi]:
                c = ACC + 4 * tau
                pending.append(f"v_cvt_pk_bf16_f32 v{c}, v{c}, v{c+1}")
                pending.append(f"v_cvt_pk_bf16_f32 v{c+1}, v{c+2}, v{c+3}")
                pending.append(f"ds_write_b64 v4, {vr(c,2)} offset:{576*tau}")
            pending.append(f"ds_write_b32 v5, v5 offset:{16*gi}")
    a("s_nop 7")
    for op in pending:
        a(op)


XA = 154


def expansion_addr(a, g):
    a.c("expansion addresses")
    a(f"s_lshr_b32 s{S_KC}, s{S_W4}, 1")
    a(f"s_and_b32 s{S_HM}, s{S_W4}, 1")
    a(f"s_lshl_b32 s{S_T0}, s{S_HM}, 7")
    a(f"s_add_u32 s{S_T0}, s{S_T0}, {64*g}")
    a(f"v_add_u32 v12, s{S_T0}, v1")
    a(f"s_mul_i32 s{S_T1}, s{S_KC}, {KCSZ}")
    a(f"s_add_u32 s{S_T1}, s{S_T1}, {KC}")
    a(f"s_sub_u32 s{S_T3}, s{S_T1}, {IDXBIAS}")
    a(f"s_mul_i32 s{S_T2}, s{S_KC}, {CONV}")
    a(f"s_add_u32 s{S_T2}, s{S_T2}, {KR(0,0)-4}")
    a("v_lshlrev_b32 v11, 3, v12")
    a("v_sub_u32 v11, 2047, v11")
    a("v_cvt_f32_u32 v8, v11")
    if g == 1:
        a("v_cmp_gt_u32 vcc, 0x100, v11")
        a(f"v_lshl_add_u32 v10, v11, 3, s{S_T1}")
    for k in range(9):
        d = XA + k
        if k == 0:
            a(f"v_cvt_pk_bf16_f32 v{d}, 0, v8")
        else:
            lit = {1: "-1.0", 2: "-2.0", 4: "-4.0"}.get(k, hex(f2u(-float(k))))
            a(f"v_add_f32 v9, {lit}, v8")
            a(f"v_cvt_pk_bf16_f32 v{d}, 0, v9")
        a(f"v_lshrrev_b32 v{d}, 13, v{d}")
        a(f"v_add_u32 v{d}, s{S_T3}, v{d}")
        if g == 1:
            a(f"v_subrev_u32 v9, {8*k}, v10")
            a(f"v_cndmask_b32 v{d}, v{d}, v9, vcc")
    a(f"v_lshl_add_u32 v163, v12, 4, s{S_T2}")
    if g == 1:
        a("v_cmp_eq_u32 vcc, 0xff, v12")
        a(f"s_add_u32 s{S_T0}, s{S_T1}, {768*8}")
        a(f"v_mov_b32 v9, s{S_T0}")
        a(f"v_cndmask_b32 v{XA+8}, v{XA+8}, v9, vcc")
    a(f"s_lshl_b32 s{S_T0}, s{S_KC}, 2")
    a(f"s_add_u32 s{S_T0}, s{S_T0}, {C_KG}")
    a(f"v_mov_b32 v164, s{S_T0}")


def expansion(a, tag):
    lds_spin(a, f"L_kspin_{tag}", 164, 8, 2, sleep=(OPT["asleep"] if tag == "a" else 0))
    stamp(a, 8)
    a.c("expansion")
    B = 100
    for k in range(9):
        a(f"ds_read_b64 {vr(B+2*k,2)}, v{XA+k}")
    a("s_waitcnt lgkmcnt(0)")
    for k in range(9):
        a(f"v_add_f32 v{B+2*k}, v{B+2*k}, v{B+2*k+1}")
    P3, P2 = 120, 124
    for j in range(4):
        b = B + 4 * j
        a(f"v_cvt_pk_bf16_f32 v{P3+j}, v{b}, v{b+2}")
        a(f"v_cvt_pk_bf16_f32 v{P2+j}, v{b+2}, v{b+4}")
    k_copies(a, 163, P3, P2)


def kgen_waves(a):
    a.c("==== K generation waves")
    if OPT["kprio"]:
        a(f"s_setprio {OPT['kprio']}")
    a(f"s_lshr_b32 s{S_KC}, s{S_W4}, 1")
    a(f"s_and_b32 s{S_HM}, s{S_W4}, 1")
    a(f"s_add_u32 s{S_T1}, s{S_D0}, s{S_KC}")
    a(f"s_lshl_b32 s{S_T3}, s{S_T1}, 1")
    a(f"v_mov_b32 v8, s{S_T3}")
    a(f"s_lshl_b32 s{S_T1}, s{S_T1}, 8")
    a(f"s_lshl_b32 s{S_T2}, s{S_HM}, 7")
    a(f"s_add_u32 s{S_T1}, s{S_T1}, s{S_T2}")
    a(f"v_lshl_add_u32 v2, v1, 1, s{S_T1}")
    a("s_waitcnt lgkmcnt(0)")
    a(f"global_load_ushort v7, v8, s[{P_LDT}:{P_LDT+1}]")
    a(f"global_load_ushort v3, v2, s[{P_LAR}:{P_LAR+1}]" + (" nt" if OPT["nt"] & 16 else ""))
    a(f"global_load_ushort v4, v2, s[{P_AIM}:{P_AIM+1}]" + (" nt" if OPT["nt"] & 16 else ""))
    a(f"global_load_ushort v5, v2, s[{P_CR}:{P_CR+1}]" + (" nt" if OPT["nt"] & 16 else ""))
    a(f"global_load_ushort v6, v2, s[{P_CI}:{P_CI+1}]" + (" nt" if OPT["nt"] & 16 else ""))
    if OPT["stamp"]:
        srd(a, R_WS, P_WS, WS_SIZE)
    expansion_addr(a, 0)
    TBW, TBR, KA0, KA1, KA2 = 16, 17, 18, 19, 49
    a(f"s_mul_i32 s{S_T0}, s{S_W4}, {TBLSZ}")
    a(f"s_add_u32 s{S_T0}, s{S_T0}, {TBL}")
    a(f"v_lshl_add_u32 v{TBW}, v1, 2, s{S_T0}")
    a("v_and_b32 v13, 15, v1")
    a("v_lshrrev_b32 v8, 4, v1")
    a(f"v_mul_u32_u24 v{TBR}, 288, v13")
    a(f"v_lshl_add_u32 v{TBR}, v8, 4, v{TBR}")
    a(f"v_add_u32 v{TBR}, s{S_T0}, v{TBR}")
    a(f"s_lshl_b32 s{S_T0}, s{S_HM}, 2")
    a(f"s_add_u32 s{S_T1}, s{S_T1}, s{S_T0}")
    a("v_lshrrev_b32 v9, 1, v8")
    a("v_and_b32 v10, 1, v8")
    a(f"v_lshlrev_b32 v{KA0}, 7, v9")
    a(f"v_lshl_add_u32 v{KA0}, v10, 2, v{KA0}")
    a(f"v_lshl_add_u32 v{KA0}, v13, 3, v{KA0}")
    a(f"v_lshl_add_u32 v{KA0}, v{KA0}, 3, s{S_T1}")
    a("v_lshlrev_b32 v11, 1, v10")
    a("v_lshl_add_u32 v11, v13, 2, v11")
    a("v_add_u32 v11, 0x100, v11")
    a("v_lshlrev_b32 v12, 5, v10")
    a("v_lshl_add_u32 v12, v13, 1, v12")
    a("v_cmp_eq_u32 vcc, 0, v9")
    a("v_add_u32 v12, 0x180, v12")
    a(f"v_lshl_add_u32 v{KA2}, v8, 6, v13")
    a(f"v_cndmask_b32 v{KA1}, v12, v11, vcc")
    a(f"v_lshl_add_u32 v{KA1}, v{KA1}, 3, s{S_T1}")
    a(f"v_add_u32 v{KA2}, 0x200, v{KA2}")
    a(f"v_lshl_add_u32 v{KA2}, v{KA2}, 3, s{S_T1}")
    a("s_barrier")
    stamp(a, 2)
    a.c("parameters")
    a("s_waitcnt vmcnt(0)")
    stamp(a, 4)
    a("v_lshlrev_b32 v8, 16, v7")
    a("v_lshlrev_b32 v9, 16, v3")
    a(f"s_mov_b32 s{S_T1}, {hex(L2E)}")
    a(f"s_mov_b32 s{S_T2}, {hex(L2E_LO)}")
    for x, p, e in ((8, 10, 12), (9, 11, 13)):
        a(f"v_mul_f32 v{p}, s{S_T1}, v{x}")
        a(f"v_fma_f32 v{e}, v{x}, s{S_T1}, -v{p}")
        a(f"v_fma_f32 v{e}, v{x}, s{S_T2}, v{e}")
        a(f"v_exp_f32 v{p}, v{p}")
        a(f"v_mul_f32 v{e}, {hex(LN2)}, v{e}")
    a("v_lshlrev_b32 v4, 16, v4")
    for x, p, e in ((8, 10, 12), (9, 11, 13)):
        a(f"v_fma_f32 v{p}, v{p}, v{e}, v{p}")
        rnd(a, p, p)
    a("v_mul_f32 v11, v11, v10")
    a(f"v_mul_f32 v11, {hex(L2E | 0x80000000)}, v11")
    a("v_mul_f32 v4, v4, v10")
    a("v_mul_f32 v12, 0.15915494, v4")
    a("v_add_f32 v10, v10, v10")
    a("v_lshlrev_b32 v5, 16, v5")
    a("v_lshlrev_b32 v6, 16, v6")
    a("v_mul_f32 v14, v5, v10")
    a("v_mul_f32 v15, v6, v10")
    a("v_max_f32 v13, |v14|, |v15|")
    E = lambda j: 20 + 2 * j
    tmp = {0: (50, 51), 3: (52, 53), 7: (54, 55)}
    dpps = [f"v_max_u32_dpp v13, v13, v13 {d} bank_mask:0xf" for d in
            ("quad_perm:[1,0,3,2] row_mask:0xf", "quad_perm:[2,3,0,1] row_mask:0xf", "row_half_mirror row_mask:0xf",
             "row_mirror row_mask:0xf", "row_bcast:15 row_mask:0xa", "row_bcast:31 row_mask:0xc")]
    anc = []
    for j, (m, f) in tmp.items():
        if j == 0:
            anc += [f"v_exp_f32 v{m}, v11", f"v_fract_f32 v{f}, v12"]
        else:
            anc += [f"v_mul_f32 v{m}, {hex(f2u(2.0**j))}, v11", f"v_mul_f32 v{f}, {hex(f2u(2.0**j))}, v12",
                    f"v_exp_f32 v{m}, v{m}", f"v_fract_f32 v{f}, v{f}"]
    for j, (m, f) in tmp.items():
        anc += [f"v_cos_f32 v{E(j)}, v{f}", f"v_sin_f32 v{E(j)+1}, v{f}"]
    a.c("anchors")
    k = 0
    for d in dpps:
        a(anc[k]); a(anc[k + 1]); k += 2
        a(d)
    for o in anc[k:]:
        a(o)
    a(f"v_readlane_b32 s{S_T0}, v13, 63")
    for j, (m, f) in tmp.items():
        a(f"v_mul_f32 v{E(j)}, v{E(j)}, v{m}")
        a(f"v_mul_f32 v{E(j)+1}, v{E(j)+1}, v{m}")
    a(f"s_lshr_b32 s{S_T0}, s{S_T0}, 23")
    a(f"s_max_u32 s{S_T0}, s{S_T0}, 16")
    a(f"s_sub_u32 s{S_SC}, 264, s{S_T0}")
    a(f"s_lshl_b32 s{S_SC}, s{S_SC}, 23")
    a(f"s_sub_u32 s{S_ISC}, s{S_T0}, 10")
    a(f"s_lshl_b32 s{S_ISC}, s{S_ISC}, 23")
    interleave(a, [sum([cmul_ops(E(j), E(j - 1), E(j - 1)) for j in js], []) for js in ((4, 5, 6), (8, 9, 10, 11), (1, 2))])
    a.c("Y tile")
    tcount = [0]

    def put_ops(row, x, neg):
        t = 44 + (tcount[0] % 4)
        tcount[0] += 1
        return [f"v_cvt_pk_f16_f32 v{t}, v{x}, {'-' if neg else ''}v{x+1}",
                f"ds_write_b32 v{TBW}, v{t} offset:{288*row}"]

    def run_items(items):
        for i in range(0, len(items), 2):
            ch = []
            for (d, x, y, row, neg) in items[i:i + 2]:
                ops = [] if x is None else cmul_ops(d, x, y)
                if row is not None:
                    ops += put_ops(row, d, neg)
                ch.append(ops)
            interleave(a, ch)

    CT = 98
    Y = {1: E(3), 2: E(4), 4: E(5), 8: E(6), 3: 56, 5: 58, 6: 60, 7: 62}
    a("v_mov_b32 v48, 0x3c00")
    a(f"ds_write_b32 v{TBW}, v48")
    items = [(Y[3], Y[2], Y[1], 3, True), (Y[1], None, None, 1, True),
             (Y[5], Y[4], Y[1], 5, True), (Y[2], None, None, 2, True),
             (Y[6], Y[4], Y[2], 6, True), (Y[4], None, None, 4, True),
             (Y[7], Y[4], Y[3], 7, True), (Y[8], None, None, 8, True)]
    for b in range(9, 16):
        items.append((CT + 2 * (b % 4), Y[8], Y[b - 8], b, True))
    run_items(items)
    YF = 106
    for s in range(4):
        a(f"ds_read_b128 {vr(YF+4*s,4)}, v{TBR} offset:{64*s}")
    a.c("Z, W")
    Z = {1: E(0), 2: E(1), 4: E(2), 3: 56, 5: 58, 6: 60, 7: 62}
    W = {h: 64 + 2 * h for h in range(17)}
    a(f"v_mul_f32 v{W[0]}, s{S_SC}, v14")
    a(f"v_mul_f32 v{W[0]+1}, s{S_SC}, v15")
    run_items([(Z[3], Z[2], Z[1], None, 0), (W[1], W[0], E(7), None, 0),
               (Z[5], Z[4], Z[1], None, 0), (Z[6], Z[4], Z[2], None, 0),
               (Z[7], Z[4], Z[3], None, 0), (W[2], W[0], E(8), None, 0)])
    stamp(a, 6)
    XFT = [122, 138, 20]
    ACC = 36

    def rd(t):
        for s in range(4):
            a(f"ds_read_b128 {vr(XFT[t]+4*s,4)}, v{TBR} offset:{64*s}")

    def mm(t):
        for s in range(4):
            c = "0" if s == 0 else vr(ACC + 4 * t, 4)
            a(f"v_mfma_f32_16x16x32_f16 {vr(ACC+4*t,4)}, {vr(XFT[t]+4*s,4)}, {vr(YF+4*s,4)}, {c}")

    a.c("X tile 0")
    items = [(W[0], None, None, 0, False), (W[1], None, None, 8, False)]
    k = 0
    for r in range(1, 8):
        for h in (0, 1):
            items.append((CT + 2 * (k % 4), W[h], Z[r], 8 * h + r, False)); k += 1
    run_items(items)
    rd(0)
    run_items([(W[3], W[1], E(8), None, 0)] + [(W[h], W[h - 4], E(9), None, 0) for h in (4, 5, 6)] + [(W[7], W[3], E(9), None, 0)])
    a.c("X tile 1")
    items = []
    for G in range(4):
        for r in range(4):
            if G < 2:
                h = 2 + (r >> 1); zr = 2 * (2 * G + (r & 1))
            else:
                h = 4 + 2 * (r >> 1) + (G - 2); zr = 4 * (r & 1)
            if zr == 0:
                items.append((W[h], None, None, 4 * G + r, False))
            else:
                items.append((CT + 2 * (k % 4), W[h], Z[zr], 4 * G + r, False)); k += 1
    run_items(items)
    rd(1)
    a.c("X tile 2")
    run_items([(W[h], W[h - 8], E(10), h - 8, False) for h in range(8, 16)] + [(W[16], W[0], E(11), 8, False)])
    rd(2)
    a("s_waitcnt lgkmcnt(4)")
    mm(0)
    mm(1)
    a("s_waitcnt lgkmcnt(0)")
    mm(2)
    a("v_mov_b32 v8, 1")
    a("s_nop 2")
    for t in (0, 1):
        for r in range(4):
            a(f"v_mul_f32 v{ACC+4*t+r}, s{S_ISC}, v{ACC+4*t+r}")
    for t, offs, ad in ((0, (0, 8, 16, 24), KA0), (1, (0, 8, 512, 520), KA1)):
        for r in range(4):
            a(f"ds_write_b32 v{ad}, v{ACC+4*t+r} offset:{offs[r]}")
    for r in range(4):
        a(f"v_mul_f32 v{ACC+8+r}, s{S_ISC}, v{ACC+8+r}")
    for r in range(4):
        a(f"ds_write_b32 v{KA2}, v{ACC+8+r} offset:{128*r}")
    a("s_mov_b64 exec, 1")
    a("ds_add_u32 v164, v8")
    a("s_mov_b64 exec, -1")
    stamp(a, 7)
    expansion(a, "k")
    a("s_waitcnt lgkmcnt(0)")
    stamp(a, 9)
    a("s_barrier")
    stamp_out(a)
    a("s_endpgm")


def gate_compute(a, XR, WR, T):
    Wp = T
    X0 = T + 8
    for j in range(4):
        unpack2(a, Wp + 2 * j, WR + j)
    for row in range(2):
        X = X0 + 8 * row
        for j in range(4):
            unpack2(a, X + 2 * j, XR + 4 * row + j)
    for row in range(2):
        X = X0 + 8 * row
        for j in range(4):
            a(f"v_pk_mul_f32 {vr(X+2*j,2)}, {vr(X+2*j,2)}, {vr(Wp+2*j,2)}")
    for row in range(2):
        X = X0 + 8 * row
        for j in range(8):
            rnd(a, X + j, X + j)
    for row in range(2):
        X = X0 + 8 * row
        a(f"v_pk_add_f32 {vr(X,2)}, {vr(X,2)}, {vr(X+2,2)}")
        a(f"v_pk_add_f32 {vr(X+4,2)}, {vr(X+4,2)}, {vr(X+6,2)}")
    for row in range(2):
        X = X0 + 8 * row
        a(f"v_pk_add_f32 {vr(X,2)}, {vr(X,2)}, {vr(X+4,2)}")
    A0, A1 = X0, X0 + 8
    a(f"v_add_f32 v{A0}, v{A0}, v{A0+1}")
    a(f"v_add_f32 v{A1}, v{A1}, v{A1+1}")
    a("s_nop 0")
    for d in ("quad_perm:[1,0,3,2]", "quad_perm:[2,3,0,1]", "row_half_mirror", "row_mirror",
              "row_bcast:15 row_mask:0xa", "row_bcast:31 row_mask:0xc"):
        m = "" if "row_mask" in d else " row_mask:0xf"
        a(f"v_add_f32_dpp v{A0}, v{A0}, v{A0} {d}{m} bank_mask:0xf")
        a(f"v_add_f32_dpp v{A1}, v{A1}, v{A1} {d}{m} bank_mask:0xf")
        a("s_nop 0")
    for x in (A0, A1):
        rnd(a, x, x)
    for x in (A0, A1):
        a(f"v_mul_f32 v{x}, {hex(L2E | 0x80000000)}, v{x}")
    for x in (A0, A1):
        a(f"v_exp_f32 v{x}, v{x}")
    a("s_nop 0")
    for x in (A0, A1):
        a(f"v_add_f32 v{x}, 1.0, v{x}")
    for x in (A0, A1):
        a(f"v_rcp_f32 v{x}, v{x}")
    a("s_nop 0")
    for x in (A0, A1):
        rnd(a, x, x)
    for x in (A0, A1):
        a(f"v_sub_f32 v{x+1}, 1.0, v{x}")
    a(f"v_cvt_pk_bf16_f32 v{T}, v{A0}, v{A0+1}")
    a(f"v_mov_b32 v{T+1}, s{S_NON}")
    a(f"v_cvt_pk_bf16_f32 v{T+2}, v{A1}, v{A1+1}")
    a(f"v_mov_b32 v{T+3}, s{S_NON}")


def aux_waves(a):
    grp = groups()
    a.c("==== aux waves; v0 = thread index 0..255")
    a.c("zero init of LDS pads")
    for i in range(4):
        a(f"v_mov_b32 v{8+i}, 0")
    a("v_lshrrev_b32 v12, 6, v0")
    a(f"v_mul_u32_u24 v12, {CONV}, v12")
    a("v_bfe_u32 v14, v0, 5, 1")
    a(f"v_mul_u32_u24 v14, {XSTR}, v14")
    a("v_and_b32 v13, 31, v0")
    a("v_min_u32 v13, 28, v13")
    a("v_lshl_add_u32 v12, v13, 4, v12")
    a("v_add_u32 v12, v12, v14")
    a(f"ds_write_b128 v12, v[8:11] offset:{XB(0)}")
    a("v_bfe_u32 v13, v0, 4, 2")
    a(f"v_mul_u32_u24 v13, {CONV}, v13")
    a("v_bfe_u32 v14, v0, 2, 2")
    a(f"v_mul_u32_u24 v14, {KSTR}, v14")
    a("v_and_b32 v15, 3, v0")
    a("v_lshl_add_u32 v14, v15, 4, v14")
    a("v_add_u32 v13, v13, v14")
    a(f"v_add_u32 v13, {KR(0,0)+4080}, v13")
    a("v_cmp_gt_u32 vcc, 64, v0")
    a("v_and_b32 v14, 15, v0")
    a("v_lshlrev_b32 v14, 4, v14")
    a(f"v_add_u32 v14, {CNT}, v14")
    a("v_cndmask_b32 v12, v14, v13, vcc")
    a("v_cmp_gt_u32 vcc, 0x80, v0")
    a("v_and_b32 v15, 1, v0")
    a(f"v_mul_u32_u24 v15, {KCSZ}, v15")
    a(f"v_add_u32 v15, {KC+768*8}, v15")
    a("v_cndmask_b32 v12, v15, v12, vcc")
    a("ds_write_b128 v12, v[8:11]")
    a("s_waitcnt lgkmcnt(0)")
    a("s_barrier")
    stamp(a, 1)
    srd(a, R_WS, P_WS, WS_SIZE)
    srd(a, R_DBG, P_DBG, 256)
    srd(a, R_OUT, P_OUT, 0x200000)
    expansion_addr(a, 1)
    a(f"s_lshl_b32 s{S_T0}, s{S_D0}, 12")
    a(f"v_lshl_add_u32 v2, v0, 4, s{S_T0}")
    a("v_add_u32 v3, 0x1000, v2")
    a("v_subrev_u32 v4, 4, v2")
    a(f"v_max_i32 v4, s{S_T0}, v4")
    a(f"s_lshl_b32 s{S_T1}, s{S_GB}, 13")
    a(f"s_lshl_b32 s{S_T2}, s{S_W4}, 11")
    a(f"s_add_u32 s{S_T1}, s{S_T1}, s{S_T2}")
    a("v_lshlrev_b32 v6, 4, v1")
    a(f"v_add_u32 v5, s{S_T1}, v6")
    a(f"s_lshl_b32 s{S_T0}, s{S_W4}, 4")
    a(f"s_lshl_b32 s{S_T1}, s{S_GB}, 6")
    a(f"s_add_u32 s{S_T0}, s{S_T0}, s{S_T1}")
    a(f"s_add_u32 s{S_T0}, s{S_T0}, {hex(WS_G)}")
    a(f"v_mov_b32 v7, s{S_T0}")
    a("v_mov_b32 v56, 0")
    a(f"s_lshl_b32 s{S_T3}, s{S_D0}, 1")
    EA = {}
    for gi, g in enumerate(grp):
        n = len(g); R0 = 256 * g[0]
        sh = {1: 0, 2: 1, 4: 2}[n]
        GO, XA1, XA2, YA_, OO = 128 + gi, 133 + gi, 138 + gi, 143 + gi, 148 + gi
        EA[gi] = (GO, XA1, XA2, YA_, OO)
        a(f"v_lshlrev_b32 v8, {sh}, v0")
        a(f"v_add_u32 v8, {R0}, v8")
        a(f"v_lshlrev_b32 v{GO}, 3, v8")
        a(f"v_lshlrev_b32 v{XA1}, 1, v8")
        a(f"v_add_u32 v{XA2}, {2*CONV}, v{XA1}")
        a("v_lshrrev_b32 v9, 5, v8")
        a(f"v_lshl_add_u32 v9, v9, 3, v{XA1}")
        a(f"v_add_u32 v{YA_}, {YS}, v9")
        a(f"v_lshl_add_u32 v{OO}, v8, 10, s{S_T3}")
    if OPT["tw"]:
        a(f"s_cmp_lg_u32 s{S_W4}, 0")
        a("s_cbranch_scc1 L_notw")
        a("s_mov_b64 exec, 1")
        a(f"s_lshl_b32 s{S_T0}, s{S_PCG}, 18")
        a(f"s_lshl_b32 s{S_T1}, s{S_PTB}, 7")
        a(f"s_add_u32 s{S_T0}, s{S_T0}, s{S_T1}")
        a(f"v_mov_b32 v8, s{S_T0}")
        a(f"s_mov_b32 s{S_T2}, {hex(WS_KV)}")
        a(f"buffer_load_dword v60, v8, s[{R_WS}:{R_WS+3}], 0 offen nt")
        a(f"buffer_load_dword v61, v8, s[{R_WS}:{R_WS+3}], s{S_T2} offen nt")
        a(f"s_lshl_b32 s{S_T0}, s{S_PCG}, 12")
        a(f"s_add_u32 s{S_T0}, s{S_T0}, s{S_T1}")
        a(f"s_add_u32 s{S_T0}, s{S_T0}, {hex(WS_FLAG)}")
        a(f"v_mov_b32 v8, s{S_T0}")
        a(f"buffer_load_dword v62, v8, s[{R_WS}:{R_WS+3}], 0 offen nt")
        a(f"s_lshl_b32 s{S_T0}, s2, 13")
        a(f"v_mov_b32 v8, s{S_T0}")
        a(f"buffer_load_dword v63, v8, s[{R_OUT}:{R_OUT+3}], 0 offen nt")
        a(f"global_load_dword v64, v2, s[{P_SSMK}:{P_SSMK+1}]")
        a(f"global_load_dword v65, v6, s[{P_GW}:{P_GW+1}]")
        a("s_mov_b64 exec, -1")
        a.lab("L_notw")
    a(f"s_load_dword s{S_RAWDS}, s[{P_DSK}:{P_DSK+1}], s{S_T3}")
    a(f"s_load_dword s{S_RAWDM}, s[{P_SSMD}:{P_SSMD+1}], s{S_T3}")
    def ssmk_loads():
        NT = " nt" if OPT["nt"] & 2 else ""
        a(f"global_load_dwordx4 v[68:71], v2, s[{P_SSMK}:{P_SSMK+1}]{NT}")
        a(f"global_load_dwordx4 v[74:77], v3, s[{P_SSMK}:{P_SSMK+1}]{NT}")
        a(f"global_load_dword v67, v4, s[{P_SSMK}:{P_SSMK+1}]{NT}")
        a(f"global_load_dword v73, v3, s[{P_SSMK}:{P_SSMK+1}] offset:-4{NT}")

    def gate_loads():
        NT = " nt" if OPT["nt"] & 8 else ""
        a(f"global_load_dwordx4 v[80:83], v5, s[{P_U}:{P_U+1}]{NT}")
        a(f"global_load_dwordx4 v[84:87], v5, s[{P_U}:{P_U+1}] offset:1024{NT}")
        a(f"global_load_dwordx4 v[88:91], v6, s[{P_GW}:{P_GW+1}]")
        a(f"buffer_load_dwordx2 v[52:53], v56, s[{R_DBG}:{R_DBG+3}], 0 offen{SC}")

    def ssmk_copies():
        a.c("---- ssm_k -> LDS (reversed, 4 copies)")
        a("v_cmp_eq_u32 vcc, 0, v0")
        a("s_nop 1")
        for ch in range(2):
            q = 2 + ch
            L = 68 + 6 * ch
            P3, P2 = 20 + 8 * ch, 24 + 8 * ch
            a(f"v_cndmask_b32 v{L-1}, v{L-1}, 0, vcc")
            for d in range(4):
                a(f"v_alignbit_b32 v{P3+d}, v{L+3-d}, v{L+3-d}, 16")
                a(f"v_bfi_b32 v{P2+d}, s{S_LO}, v{L+3-d}, v{L+2-d}")
            a(f"v_add_u32 v{36+ch}, {KR(q,0)}, v9")
            k_copies(a, 36 + ch, P3, P2)

    def gate_part():
        nonce_check(a, "a", 52, 56)
        a.c("---- gate")
        gate_compute(a, 80, 88, 100)
        a("s_mov_b32 exec_lo, 0")
        a("s_mov_b32 exec_hi, 0x80000000")
        a(f"buffer_store_dwordx4 v[100:103], v7, s[{R_WS}:{R_WS+3}], 0 offen{SC}")
        a("s_mov_b64 exec, -1")

    a("v_lshlrev_b32 v9, 4, v0")
    a("v_sub_u32 v9, 4076, v9")
    M = OPT["auxmode"]
    if M in (1, 2, 3, 4):
        ssmk_loads()
    if M == 1:
        gate_loads()
    if M in (0, 2, 5, 6):
        a(f"v_mov_b32 v12, {C_P1 if M in (0, 2) else C_SIG}")
        lds_spin(a, "L_aspin", 12, 8, 4 if M != 6 else 1, sleep=2)
        stamp(a, 2)
        gate_loads()
        if M != 2:
            ssmk_loads()
    a("s_waitcnt lgkmcnt(0)")
    a(f"s_lshl_b32 s{S_DS}, s{S_RAWDS}, 16")
    a(f"s_and_b32 s{S_DS+1}, s{S_RAWDS}, s{S_HI}")
    a(f"s_lshl_b32 s{S_DM}, s{S_RAWDM}, 16")
    a(f"s_and_b32 s{S_DM+1}, s{S_RAWDM}, s{S_HI}")
    if M in (0, 5, 6):
        gate_part()
        stamp(a, 3)
        ssmk_copies()
    elif M in (1, 2):
        a("s_waitcnt vmcnt(4)")
        stamp(a, 3)
        ssmk_copies()
        gate_part()
    elif M == 3:
        a("s_waitcnt vmcnt(0)")
        stamp(a, 3)
        ssmk_copies()
        a(f"v_mov_b32 v12, {C_SIG}")
        lds_spin(a, "L_aspin", 12, 8, 4, sleep=2)
        gate_loads()
        gate_part()
    else:
        a("s_waitcnt vmcnt(0)")
        stamp(a, 3)
        ssmk_copies()
    stamp(a, 4)
    if OPT["ff"]:
        a.c("write-through flag (for consumers on other XCDs)")
        a(f"s_cmp_lg_u32 s{S_W4}, 0")
        a("s_cbranch_scc1 L_noslowflag")
        a(f"v_mov_b32 v12, {C_SIG}")
        lds_spin(a, "L_sfspin", 12, 8, 4, sleep=1)
        a(f"s_lshl_b32 s{S_T0}, s{S_PCG}, 12")
        a(f"s_lshl_b32 s{S_T1}, s{S_PTB}, 7")
        a(f"s_add_u32 s{S_T0}, s{S_T0}, s{S_T1}")
        a(f"s_add_u32 s{S_T0}, s{S_T0}, {hex(WS_FLAG+0x8000)}")
        a(f"v_lshl_add_u32 v8, v1, 3, s{S_T0}")
        a("s_mov_b64 exec, 0xffff")
        a(f"buffer_store_dwordx2 v[52:53], v8, s[{R_WS}:{R_WS+3}], 0 offen{SC}")
        a("s_mov_b64 exec, -1")
        a.lab("L_noslowflag")
    expansion(a, "a")
    a("s_waitcnt lgkmcnt(0)")
    stamp(a, 9)
    GR = 20
    XR = 36

    def gloads():
        pos = 0
        for gi, g in enumerate(grp):
            n = len(g)
            for h in range(n // 2):
                a(f"buffer_load_dwordx4 {vr(GR+2*pos+4*h,4)}, v{EA[gi][0]}, s[{R_WS}:{R_WS+3}], s{S_T2} offen offset:{16*h}{SC}")
            if n == 1:
                a(f"buffer_load_dwordx2 {vr(GR+2*pos,2)}, v{EA[gi][0]}, s[{R_WS}:{R_WS+3}], s{S_T2} offen{SC}")
            pos += n

    a(f"s_mov_b32 s{S_T2}, {hex(WS_G)}")
    if OPT["gearly"]:
        gloads()
    a("s_barrier")
    stamp(a, 10)
    if OPT["hprio"]:
        a(f"s_setprio {OPT['hprio']}")
    if M == 4:
        gate_loads()
        gate_part()
    if not OPT["gearly"]:
        gloads()
    pos = 0
    for gi, g in enumerate(grp):
        n = len(g)
        lop = {1: "u16_d16_hi" if pos & 1 else "u16_d16", 2: "b32", 4: "b64"}[n]
        for q in range(4):
            a(f"ds_read_{lop} {vr(XR+4*q+pos//2,max(1,n//2))}, v{EA[gi][1 if q < 2 else 2]} offset:{XB(q&1)+XD}")
        pos += n
    assert pos == 8
    PR = 52
    a("s_waitcnt lgkmcnt(0)")
    for r in range(8):
        B = PR + 6 * r
        U, UD, UK = B, B + 2, B + 4
        for ch in range(2):
            ext(a, U + ch, XR + 4 * ch + r // 2, r & 1)
            ext(a, UK + ch, XR + 4 * (2 + ch) + r // 2, r & 1)
        for ch in range(2):
            a(f"v_mul_f32 v{UD+ch}, s{S_DS+ch}, v{U+ch}")
            a(f"v_mul_f32 v{UK+ch}, s{S_DM+ch}, v{UK+ch}")
    a(f"s_mov_b32 s{S_SPIN}, 0")
    a("s_branch L_gchk")
    a.lab("L_gpoll")
    a("s_sleep 4")
    gloads()
    a(f"s_add_u32 s{S_SPIN}, s{S_SPIN}, 1")
    a.lab("L_gchk")
    a("s_waitcnt vmcnt(0)")
    a(f"v_xor_b32 v8, s{S_NON}, v{GR+1}")
    for r in range(1, 8):
        a(f"v_xor_b32 v9, s{S_NON}, v{GR+2*r+1}")
        a("v_or_b32 v8, v8, v9")
    a("v_cmp_ne_u32 vcc, 0, v8")
    a(f"s_cmp_ge_u32 s{S_SPIN}, {hex(SPIN_MAX)}")
    a("s_cbranch_scc1 L_gpoll_done")
    a("s_cmp_eq_u64 vcc, 0")
    a("s_cbranch_scc0 L_gpoll")
    a.lab("L_gpoll_done")
    stamp(a, 11)
    for r in range(8):
        B = PR + 6 * r
        U, UD, UK = B, B + 2, B + 4
        G0, G1 = GR + 2 * r, GR + 2 * r + 1
        a(f"v_and_b32 v{G1}, s{S_HI}, v{G0}")
        a(f"v_lshlrev_b32 v{G0}, 16, v{G0}")
        for ch in range(2):
            a(f"v_mul_f32 v{U+ch}, v{U+ch}, v{G1}")
            a(f"v_mul_f32 v{UD+ch}, v{UD+ch}, v{G0}")
        for ch in range(2):
            a(f"v_fmac_f32 v{UD+ch}, v{UK+ch}, v{U+ch}")
    a(f"v_mov_b32 v5, {C_Y}")
    pos = 0
    for gi, g in enumerate(grp):
        n = len(g)
        a(f"s_mov_b32 s{S_SPIN}, 0")
        a.lab(f"L_yspin{gi}")
        a(f"ds_read_b128 v[104:107], v5 offset:{16*gi}")
        a(f"s_add_u32 s{S_SPIN}, s{S_SPIN}, 1")
        a("s_waitcnt lgkmcnt(0)")
        a("v_min_u32 v104, v104, v105")
        a("v_min3_u32 v104, v104, v106, v107")
        a(f"s_cmp_ge_u32 s{S_SPIN}, {hex(SPIN_MAX*8)}")
        a(f"v_readfirstlane_b32 s{S_T0}, v104")
        a(f"s_cbranch_scc1 L_yspin{gi}_done")
        a(f"s_cmp_lg_u32 s{S_T0}, 0")
        a(f"s_cbranch_scc1 L_yspin{gi}_done")
        a(f"s_sleep {OPT['ysleep']}")
        a(f"s_branch L_yspin{gi}")
        a.lab(f"L_yspin{gi}_done")
        stamp(a, min(12 + gi, 14))
        lop = {1: "u16", 2: "b32", 4: "b64"}[n]
        YR = 108
        for q in range(4):
            a(f"ds_read_{lop} {vr(YR+2*q,max(1,n//2))}, v{EA[gi][3]} offset:{YSZ*q}")
        a("s_waitcnt lgkmcnt(0)")
        for k in range(n):
            r = pos + k
            B = PR + 6 * r
            CB, P = B, B + 2
            G0 = GR + 2 * r
            YA, YB = 116 + 4 * (k & 1), 118 + 4 * (k & 1)
            for ch in range(2):
                ext(a, YA + ch, YR + 2 * ch + k // 2, k & 1)
                ext(a, YB + ch, YR + 2 * (2 + ch) + k // 2, k & 1)
            for ch in range(2):
                a(f"v_fmac_f32 v{P+ch}, v{YA+ch}, v{G0}")
            for ch in range(2):
                a(f"v_fmac_f32 v{P+ch}, v{YB+ch}, v{CB+ch}")
            a(f"v_cvt_pk_bf16_f32 v{P}, v{P}, v{P+1}")
            a(f"buffer_store_dword v{P}, v{EA[gi][4]}, s[{R_OUT}:{R_OUT+3}], 0 offen offset:{1024*k}")
        pos += n
    stamp_out(a)


def kd(name):
    return f""".section .rodata,"a"
.p2align 6
.amdhsa_kernel {name}
  .amdhsa_next_free_vgpr {NV}
  .amdhsa_next_free_sgpr 102
  .amdhsa_accum_offset {NV}
  .amdhsa_group_segment_fixed_size 0
  .amdhsa_kernarg_size 136
  .amdhsa_user_sgpr_count 2
  .amdhsa_user_sgpr_kernarg_segment_ptr 1
  .amdhsa_system_sgpr_workgroup_id_x 1
  .amdhsa_float_denorm_mode_32 3
.end_amdhsa_kernel
"""


def gen():
    out = [f"; @launch grid=(256,1,1) block=(768,1,1) lds={LDS_TOTAL}\n",
           """; One workgroup per channel pair, 12 waves in three roles:
""",
           '.amdgcn_target "amdgcn-amd-amdhsa--gfx950"\n.text\n',
           f".globl {NAME}_kernel\n.p2align 8\n.type {NAME}_kernel,@function\n{NAME}_kernel:\n"]
    a = A()
    prologue(a)
    data_waves(a)
    a.lab("L_kgen")
    AROLE[0] = "k"
    kgen_waves(a)
    a.lab("L_aux")
    aux_waves(a)
    a.lab("L_end")
    a("s_endpgm")
    out.append(a.text())
    out.append(kd(NAME + "_kernel"))
    return "".join(out)


if __name__ == "__main__":
    outp = sys.argv[1] if len(sys.argv) > 1 else f"cdna_kernels/{NAME}.s"
    for x in sys.argv[2:]:
        k, v = x.split("=")
        OPT[k] = v if k in ("groups", "plan", "order") else int(v)
    txt = gen()
    open(outp, "w").write(txt)
    print("wrote", outp, len(txt), "bytes; LDS", LDS_TOTAL)
```

```python
import sys, struct

NAME = "gated_mix__ssm_conv_s4d__ssm_conv_h3__prompt"
OPT = dict(stamp=0, groups="0123,4567", pollsleep=2, hprio=2, map=0, dprio=2, wslack=5, fullflag=1, frac=100, auxmode=0, plan="", exp=0, tw=0, nt=0, fwarm=0, pdelay=0, cprio=0, nonop=0, ysleep=1, sched=0, order="", lead=10, boost=110, pre=9, amp=0, arole="d", gearly=0, ff=0, ffn=8, kprio=0, asleep=1)
NV = 168
VST, VST2 = 167, 166


def f2u(x):
    return struct.unpack("<I", struct.pack("<f", x))[0]


class A:
    def __init__(self):
        self.l = []

    def __call__(self, s):
        self.l.append("    " + s)

    def lab(self, s):
        self.l.append(s + ":")

    def c(self, s):
        self.l.append("    ; " + s)

    def text(self):
        return "\n".join(self.l) + "\n"


def vr(a, n=1):
    assert a + n <= NV, (a, n)
    return f"v{a}" if n == 1 else f"v[{a}:{a+n-1}]"


def sr(a, n=1):
    return f"s{a}" if n == 1 else f"s[{a}:{a+n-1}]"


KSTR = 4160
XSTR = 4640
CONV = 16 + 4 * KSTR + 2 * XSTR
assert CONV % 16 == 0
def KR(q, s): return q * CONV + 16 + s * KSTR
def XB(q): return q * CONV + 16 + 4 * KSTR
XD = XSTR + 448
KC = 4 * CONV
KCSZ = 776 * 8
TBL = KC + 2 * KCSZ
TBLSZ = 16 * 288
CNT = TBL + 4 * TBLSZ
YS = CNT + 256
YSZ = 8 * 576
P1S = YS - 640
P1K, P1V, P1U = P1S + 1024, P1S + 9216, P1S + 17408
LDS_TOTAL = P1S + 25600
assert LDS_TOTAL <= 163840, LDS_TOTAL
IDXBIAS = 8 * 0x4280
C_SIG, C_P1, C_KG, C_Y = CNT, CNT + 4, CNT + 16, CNT + 32

WS_KV = 0x200000
WS_G = 0x400000
WS_FLAG = 0x410000
WS_ST = 0x600000
WS_SIZE = 0x800000

P_U, P_LAR, P_AIM, P_CR, P_CI, P_LDT, P_DSK, P_Q = 16, 18, 20, 22, 24, 26, 28, 30
P_K, P_V, P_SHK, P_SSMK, P_SSMD, P_GW, P_OUT, P_DBG = 32, 34, 36, 38, 40, 42, 44, 46
P_WS = 48
S_WV, S_CG, S_TB, S_D0 = 3, 4, 5, 6
S_PCG, S_PTB, S_GB, S_W4 = 7, 98, 99, 100
S_HI, S_LO = 50, 51
S_T0, S_T1, S_T2, S_T3 = 8, 9, 10, 11
R_U, R_K, R_V, R_WS, R_OUT, R_DBG = 52, 56, 60, 64, 68, 72
S_SELLO, S_SELHI, S_4096, S_KV0, S_KV1 = 76, 77, 78, 79, 80
S_DS, S_DM = 82, 84
S_RAWDS, S_RAWDM = 86, 87
S_SC, S_ISC = 89, 90
S_SPIN = 91
S_KC, S_HM = 92, 93
S_PC = 12
S_NON = 14

L2E = 0x3FB8AA3B
L2E_LO = 0x32A57060
LN2 = 0x3F317218
SPIN_MAX = 0x40000
SC = " sc1"


AROLE = ["d"]


def stamp(a, idx):
    if OPT["amp"] and AROLE[0] == OPT["arole"] and idx == OPT["amp"]:
        a("s_memrealtime s[94:95]")
        a("s_waitcnt lgkmcnt(0)")
        return
    if not OPT["stamp"]:
        return
    a("s_memrealtime s[94:95]")
    a("s_memtime s[96:97]")
    a("s_waitcnt lgkmcnt(0)")
    a(f"v_writelane_b32 v{VST}, s94, {idx}")
    a(f"v_writelane_b32 v{VST}, s96, {32+idx}")


def stamp_out(a):
    if not OPT["stamp"]:
        return
    a("s_waitcnt vmcnt(0)")
    stamp(a, 15)
    a(f"s_lshl_b32 s{S_T0}, s2, 4")
    a(f"s_add_u32 s{S_T0}, s{S_T0}, s{S_WV}")
    a(f"s_lshl_b32 s{S_T0}, s{S_T0}, 8")
    a(f"s_add_u32 s{S_T0}, s{S_T0}, {hex(WS_ST)}")
    a(f"v_lshl_add_u32 v{VST2}, v1, 2, s{S_T0}")
    a(f"buffer_store_dword v{VST}, v{VST2}, s[{R_WS}:{R_WS+3}], 0 offen")


def srd(a, r, p, size):
    a(f"s_mov_b32 s{r}, s{p}")
    a(f"s_and_b32 s{r+1}, s{p+1}, 0xffff")
    a(f"s_mov_b32 s{r+2}, {hex(size)}")
    a(f"s_mov_b32 s{r+3}, 0x20000")


def rnd(a, d, s):
    a(f"v_cvt_pk_bf16_f32 v{d}, 0, v{s}")


def unpack2(a, d, s):
    a(f"v_lshlrev_b32 v{d}, 16, v{s}")
    a(f"v_and_b32 v{d+1}, s{S_HI}, v{s}")


def ext(a, d, reg, hi):
    if hi:
        a(f"v_and_b32 v{d}, s{S_HI}, v{reg}")
    else:
        a(f"v_lshlrev_b32 v{d}, 16, v{reg}")


def cmul_ops(d, x, y):
    assert d not in (x, y) and d % 2 == 0 and x % 2 == 0 and y % 2 == 0
    return [f"v_pk_mul_f32 {vr(d,2)}, {vr(x,2)}, {vr(y,2)} op_sel:[0,0] op_sel_hi:[1,0]",
            f"v_fma_f32 v{d}, -v{x+1}, v{y+1}, v{d}",
            f"v_fmac_f32 v{d+1}, v{x}, v{y+1}"]


def interleave(a, chains):
    chains = [list(c) for c in chains]
    while any(chains):
        for c in chains:
            if c:
                a(c.pop(0))


def groups():
    return [[int(ch) for ch in g] for g in OPT["groups"].split(",")]


def lds_spin(a, lab, vaddr, vtmp, val, sleep=0):
    a(f"s_mov_b32 s{S_SPIN}, 0")
    a.lab(lab)
    a(f"ds_read_b32 v{vtmp}, v{vaddr}")
    a(f"s_add_u32 s{S_SPIN}, s{S_SPIN}, 1")
    a("s_waitcnt lgkmcnt(0)")
    a(f"v_readfirstlane_b32 s{S_T0}, v{vtmp}")
    a(f"s_cmp_ge_u32 s{S_SPIN}, {hex(SPIN_MAX*8)}")
    a(f"s_cbranch_scc1 {lab}_done")
    a(f"s_cmp_ge_u32 s{S_T0}, {val}")
    a(f"s_cbranch_scc1 {lab}_done")
    if sleep:
        a(f"s_sleep {sleep}")
    a(f"s_branch {lab}")
    a.lab(lab + "_done")


def nonce_check(a, tag, vn, vzero):
    a(f"s_mov_b32 s{S_SPIN}, 0")
    a(f"s_branch L_nchk_{tag}")
    a.lab(f"L_npoll_{tag}")
    a(f"buffer_load_dwordx2 {vr(vn,2)}, v{vzero}, s[{R_DBG}:{R_DBG+3}], 0 offen{SC}")
    a(f"s_add_u32 s{S_SPIN}, s{S_SPIN}, 1")
    a.lab(f"L_nchk_{tag}")
    a("s_waitcnt vmcnt(0)")
    a(f"v_readfirstlane_b32 s{S_NON}, v{vn}")
    a(f"v_readfirstlane_b32 s{S_NON+1}, v{vn+1}")
    a(f"s_cmp_ge_u32 s{S_SPIN}, {hex(SPIN_MAX)}")
    a(f"s_cbranch_scc1 L_npoll_done_{tag}")
    a(f"s_cmp_eq_u32 s{S_NON}, 0")
    a(f"s_cbranch_scc1 L_npoll_{tag}")
    a.lab(f"L_npoll_done_{tag}")


def k_copies(a, vaddr, P3, P2):
    a(f"ds_write_b128 v{vaddr}, {vr(P3,4)} offset:{3*KSTR+4}")
    a(f"ds_write_b128 v{vaddr}, {vr(P2,4)} offset:{2*KSTR+4}")
    a(f"ds_write2_b32 v{vaddr}, v{P2}, v{P2+1} offset0:0 offset1:1")
    a(f"ds_write2_b32 v{vaddr}, v{P2+2}, v{P2+3} offset0:2 offset1:3")
    a(f"v_add_u32 v{vaddr}, {KSTR}, v{vaddr}")
    a(f"ds_write2_b32 v{vaddr}, v{P3}, v{P3+1} offset0:0 offset1:1")
    a(f"ds_write2_b32 v{vaddr}, v{P3+2}, v{P3+3} offset0:2 offset1:3")


def prologue(a):
    if OPT["stamp"] or OPT["amp"]:
        a("s_memrealtime s[96:97]")
    a("s_cmp_ge_u32 s2, 256")
    a("s_cbranch_scc1 L_end")
    a("s_load_dwordx16 s[16:31], s[0:1], 0")
    a("s_load_dwordx16 s[32:47], s[0:1], 64")
    a("s_load_dwordx2 s[48:49], s[0:1], 128")
    a(f"s_getpc_b64 s[{S_PC}:{S_PC+1}]")
    a.lab("L_pc0")
    a("v_lshlrev_b32 v2, 5, v0")
    a("v_min_u32 v2, L_end-L_pc0, v2")
    a(f"global_load_dword v165, v2, s[{S_PC}:{S_PC+1}]")
    a("v_lshrrev_b32 v1, 6, v0")
    a(f"s_and_b32 s{S_CG}, s2, 7")
    a(f"v_readfirstlane_b32 s{S_WV}, v1")
    a("v_and_b32 v1, 63, v0")
    a("v_and_b32 v0, 0xff, v0")
    a(f"s_lshr_b32 s{S_TB}, s2, 3")
    a(f"s_lshl_b32 s{S_D0}, s{S_CG}, 6")
    a(f"s_lshl_b32 s{S_T0}, s{S_TB}, 1")
    a(f"s_add_u32 s{S_D0}, s{S_D0}, s{S_T0}")
    a(f"s_mov_b32 s{S_HI}, 0xffff0000")
    a(f"s_mov_b32 s{S_LO}, 0xffff")
    a(f"s_and_b32 s{S_W4}, s{S_WV}, 3")
    if OPT["map"] == 0:
        a(f"s_mov_b32 s{S_PCG}, s{S_CG}")
        a(f"s_mov_b32 s{S_PTB}, s{S_TB}")
    else:
        a(f"s_and_b32 s{S_PCG}, s{S_TB}, 7")
        a(f"s_lshr_b32 s{S_T0}, s2, 6")
        a(f"s_lshl_b32 s{S_T0}, s{S_T0}, 3")
        a(f"s_add_u32 s{S_PTB}, s{S_T0}, s{S_CG}")
    a(f"s_lshl_b32 s{S_GB}, s{S_PTB}, 3")
    a(f"s_add_u32 s{S_GB}, s{S_GB}, s{S_PCG}")
    if OPT["stamp"]:
        a(f"v_mov_b32 v{VST}, 0")
        stamp(a, 5)
        a(f"v_writelane_b32 v{VST}, s88, 0")
    a(f"s_cmp_ge_u32 s{S_WV}, 8")
    a("s_cbranch_scc1 L_aux")
    a(f"s_cmp_ge_u32 s{S_WV}, 4")
    a("s_cbranch_scc1 L_kgen")


def data_waves(a):
    a.c("==== data waves")
    if OPT["dprio"]:
        a(f"s_setprio {OPT['dprio']}")
    a("v_and_b32 v57, 7, v1")
    a("v_lshrrev_b32 v7, 3, v1")
    a(f"v_xor_b32 v9, s{S_WV}, v57")
    a(f"s_lshl_b32 s{S_T0}, s{S_PTB}, 16")
    a(f"s_lshl_b32 s{S_T1}, s{S_PCG}, 7")
    a(f"s_add_u32 s{S_T0}, s{S_T0}, s{S_T1}")
    a(f"s_lshl_b32 s{S_T1}, s{S_WV}, 13")
    a(f"s_add_u32 s{S_T0}, s{S_T0}, s{S_T1}")
    a(f"v_lshl_add_u32 v8, v7, 10, s{S_T0}")
    a("v_lshl_add_u32 v8, v9, 4, v8")
    a("v_xor_b32 v58, 64, v8")
    a("v_subrev_u32 v9, 0x8000, v58")
    a(f"s_lshl_b32 s{S_T0}, s{S_WV}, 3")
    a(f"v_add_u32 v6, s{S_T0}, v7")
    a(f"s_lshl_b32 s{S_T1}, s{S_PCG}, 9")
    a(f"v_lshl_add_u32 v10, v6, 4, s{S_T1}")
    a(f"s_movk_i32 s{S_4096}, 0x1000")
    a(f"s_mov_b32 s{S_KV0}, 0x8000")
    a(f"s_lshl_b32 s{S_T3}, s{S_WV}, 10")
    a(f"s_memrealtime s[{S_NON}:{S_NON+1}]")
    if OPT["ff"] == 1:
        a(f"s_lshl_b32 s{S_T0}, s{S_PCG}, 12")
        a(f"s_lshl_b32 s{S_T1}, s{S_PTB}, 7")
        a(f"s_add_u32 s{S_T0}, s{S_T0}, s{S_T1}")
        a(f"s_add_u32 s{S_T0}, s{S_T0}, {hex(WS_FLAG)}")
        a(f"v_mov_b32 v40, s{S_T0}")
    a("s_waitcnt lgkmcnt(0)")
    if OPT["ff"] == 1:
        a(f"s_cmp_lg_u32 s{S_WV}, 0")
        a("s_cbranch_scc1 L_nopt")
        a(f"global_load_dword v41, v40, s[{P_WS}:{P_WS+1}] nt")
        a.lab("L_nopt")
    srd(a, R_K, P_K, 0x200000)
    a(f"s_cmp_lg_u32 s{S_WV}, 3")
    a("s_cbranch_scc1 L_nohalo")
    a(f"s_mov_b32 m0, {P1K-1024}")
    a("s_mov_b32 exec_lo, 0")
    a("s_mov_b32 exec_hi, 0xffffff00")
    a(f"buffer_load_dwordx4 v9, s[{R_K}:{R_K+3}], 0 offen lds")
    a("s_mov_b64 exec, -1")
    a.lab("L_nohalo")
    for base, R, P in ((P1K, R_K, None), (P1V, R_V, P_V), (P1U, R_U, P_U)):
        if P is not None:
            srd(a, R, P, 0x200000)
        a(f"s_add_u32 m0, s{S_T3}, {base}")
        a("s_nop 0")
        NT = " nt" if (OPT["nt"] & 1) and (R != R_U or OPT["nt"] & 4) else ""
        a(f"buffer_load_dwordx4 v8, s[{R}:{R+3}], 0 offen{NT} lds")
        a(f"s_add_u32 m0, s{S_T3}, {base+4096}")
        a("s_nop 0")
        a(f"buffer_load_dwordx4 v58, s[{R}:{R+3}], s{S_KV0} offen{NT} lds")
    a(f"global_load_dwordx4 v[48:51], v10, s[{P_SHK}:{P_SHK+1}]")
    stamp(a, 10)
    srd(a, R_DBG, P_DBG, 256)
    a("v_mov_b32 v56, 0")
    a(f"s_or_b32 s{S_T0}, s{S_WV}, s2")
    a(f"s_cmp_lg_u32 s{S_T0}, 0")
    a("s_cbranch_scc1 L_nonon")
    a(f"s_or_b32 s{S_NON}, s{S_NON}, 1")
    a(f"v_mov_b32 v52, s{S_NON}")
    a(f"v_mov_b32 v53, s{S_NON+1}")
    a("s_mov_b64 exec, 1")
    a(f"buffer_store_dwordx2 v[52:53], v56, s[{R_DBG}:{R_DBG+3}], 0 offen{SC}")
    a("s_mov_b64 exec, -1")
    a.lab("L_nonon")
    srd(a, R_WS, P_WS, WS_SIZE)
    a(f"s_mov_b32 s{S_SELLO}, 0x05040100")
    a(f"s_mov_b32 s{S_SELHI}, 0x07060302")
    a(f"s_mov_b32 s{S_KV0}, {hex(WS_KV)}")
    a(f"s_mov_b32 s{S_KV1}, {hex(WS_KV+4096)}")
    a(f"s_lshl_b32 s{S_T0}, s{S_PCG}, 18")
    a(f"s_lshl_b32 s{S_T1}, s{S_PTB}, 7")
    a(f"s_add_u32 s{S_T0}, s{S_T0}, s{S_T1}")
    a(f"v_lshl_add_u32 v10, v6, 13, s{S_T0}")
    a("v_lshl_add_u32 v10, v57, 4, v10")
    a("v_lshrrev_b32 v12, 2, v6")
    a("v_and_b32 v13, 3, v6")
    a("v_xor_b32 v16, v57, v12")
    a("v_lshlrev_b32 v8, 10, v57")
    a("v_lshl_add_u32 v8, v13, 2, v8")
    a(f"v_add_u32 v8, {P1S}, v8")
    a("v_add_u32 v15, 7, v57")
    a("v_and_b32 v15, 7, v15")
    a("v_xor_b32 v15, v15, v12")
    a("v_lshl_add_u32 v9, v15, 4, v8")
    a("v_lshl_add_u32 v8, v16, 4, v8")
    a(f"s_lshl_b32 s{S_T0}, s{S_D0}, 12")
    a(f"v_lshl_add_u32 v11, v0, 4, s{S_T0}")
    a("v_lshlrev_b32 v14, 4, v0")
    a(f"v_add_u32 v15, {2*CONV}, v14")
    a("v_and_b32 v19, 7, v1")
    a(f"s_lshl_b32 s{S_T0}, s{S_CG}, 12")
    a(f"s_lshl_b32 s{S_T1}, s{S_WV}, 10")
    a(f"s_add_u32 s{S_T0}, s{S_T0}, s{S_T1}")
    a(f"s_add_u32 s{S_T0}, s{S_T0}, {hex(WS_FLAG)}")
    a(f"v_lshl_add_u32 v19, v19, 7, s{S_T0}")
    a(f"s_lshl_b32 s{S_T0}, s{S_PCG}, 12")
    a(f"s_lshl_b32 s{S_T1}, s{S_PTB}, 7")
    a(f"s_add_u32 s{S_T0}, s{S_T0}, s{S_T1}")
    a(f"s_add_u32 s{S_T0}, s{S_T0}, {hex(WS_FLAG)}")
    if OPT["fullflag"]:
        a(f"v_lshl_add_u32 v18, v1, 3, s{S_T0}")
    else:
        a(f"v_mov_b32 v18, s{S_T0}")
    if OPT["fwarm"]:
        a(f"s_cmp_lg_u32 s{S_WV}, 1")
        a("s_cbranch_scc1 L_nofw")
        a("v_mov_b32 v44, 0")
        a("v_mov_b32 v45, 0")
        a("s_mov_b64 exec, 0xffff")
        a(f"buffer_store_dwordx2 v[44:45], v18, s[{R_WS}:{R_WS+3}], 0 offen{SC}")
        a("s_mov_b64 exec, -1")
        a.lab("L_nofw")
    if OPT["ff"]:
        a("v_bfe_u32 v12, v1, 3, 1")
        a("v_lshl_add_u32 v19, v12, 15, v19")
    conv_setup(a)
    a(f"v_mov_b32 v16, {C_SIG}")
    a("v_mov_b32 v17, 1")
    a("s_barrier")
    stamp(a, 1)
    a("s_waitcnt vmcnt(0)")
    a("s_mov_b64 exec, 1")
    a("ds_add_u32 v16, v17 offset:4")
    a("s_mov_b64 exec, -1")
    a(f"buffer_load_dwordx2 v[52:53], v56, s[{R_DBG}:{R_DBG+3}], 0 offen{SC}")
    SP = 60
    a(f"v_lshlrev_b32 v{SP+0}, 16, v48")
    a(f"v_lshlrev_b32 v{SP+1}, 16, v50")
    a(f"v_and_b32 v{SP+2}, s{S_HI}, v48")
    a(f"v_and_b32 v{SP+3}, s{S_HI}, v50")
    a(f"v_lshlrev_b32 v{SP+4}, 16, v49")
    a(f"v_lshlrev_b32 v{SP+5}, 16, v51")
    a(f"v_and_b32 v{SP+6}, s{S_HI}, v49")
    a(f"v_and_b32 v{SP+7}, s{S_HI}, v51")
    a(f"v_mov_b32 v12, {C_P1}")
    lds_spin(a, "L_p1spin", 12, 13, 4)
    stamp(a, 2)
    for j in range(8):
        a(f"ds_read_b32 v{39+j}, v8 offset:{P1U-P1S+j*128}")
    for j in range(3):
        a(f"ds_read_b32 v{20+j}, v9 offset:{(5+j)*128}")
    for base, off in ((23, P1K), (31, P1V)):
        for j in range(8):
            a(f"ds_read_b32 v{base+j}, v8 offset:{off-P1S+j*128}")
    a("s_waitcnt lgkmcnt(15)")
    O2 = 130
    for ch, sel in ((0, S_SELLO), (1, S_SELHI)):
        for j in range(4):
            a(f"v_perm_b32 v{O2+4*ch+j}, v{39+2*j+1}, v{39+2*j}, s{sel}")
        so = "0" if ch == 0 else f"s{S_4096}"
        a(f"buffer_store_dwordx4 {vr(O2+4*ch,4)}, v10, s[{R_WS}:{R_WS+3}], {so} offen{SC}")
    KP = 68
    a("s_waitcnt lgkmcnt(8)")
    for i in range(11):
        unpack2(a, KP + 2 * i, 20 + i)
    ACC = 90
    T = 106
    for r in range(8):
        a(f"v_pk_mul_f32 {vr(ACC+2*r,2)}, {vr(KP+2*r,2)}, {vr(SP+6,2)}")
    for j in (1, 2, 3):
        for r in range(8):
            a(f"v_pk_fma_f32 {vr(ACC+2*r,2)}, {vr(KP+2*(r+j),2)}, {vr(SP+6-2*j,2)}, {vr(ACC+2*r,2)}")
    a("s_waitcnt lgkmcnt(0)")
    for r in range(8):
        unpack2(a, T + 2 * r, 31 + r)
    for r in range(8):
        a(f"v_pk_mul_f32 {vr(ACC+2*r,2)}, {vr(ACC+2*r,2)}, {vr(T+2*r,2)}")
    O = 122
    for ch in range(2):
        for j in range(4):
            a(f"v_cvt_pk_bf16_f32 v{O+4*ch+j}, v{ACC+2*(2*j)+ch}, v{ACC+2*(2*j+1)+ch}")
        so = S_KV0 if ch == 0 else S_KV1
        a(f"buffer_store_dwordx4 {vr(O+4*ch,4)}, v10, s[{R_WS}:{R_WS+3}], s{so} offen{SC}")
    stamp(a, 3)
    nonce_check(a, "d", 52, 56)
    stamp(a, 4)
    a.c("---- signal")
    a("s_mov_b64 exec, 1")
    a("ds_add_rtn_u32 v13, v16, v17")
    a("s_waitcnt lgkmcnt(0)")
    a(f"v_readfirstlane_b32 s{S_T1}, v13")
    a(f"s_cmp_lg_u32 s{S_T1}, 3")
    a("s_cbranch_scc1 L_nosig")
    if OPT["fullflag"]:
        a("s_mov_b64 exec, 0xffff")
    if OPT["ff"]:
        a(f"buffer_store_dwordx2 v[52:53], v18, s[{R_WS}:{R_WS+3}], 0 offen")
    else:
        a(f"buffer_store_dwordx2 v[52:53], v18, s[{R_WS}:{R_WS+3}], 0 offen{SC}")
    a.lab("L_nosig")
    a("s_mov_b64 exec, -1")
    a.c("---- wait for this wave's 8 producers")
    if OPT["pdelay"]:
        a(f"s_sleep {OPT['pdelay']}")
    a(f"s_mov_b32 s{S_SPIN}, 0")
    if OPT["ff"]:
        a("v_mov_b32 v40, 0")
        a.lab("L_poll")
        a("s_mov_b64 exec, 0xff")
        a(f"buffer_load_dwordx2 v[40:41], v19, s[{R_WS}:{R_WS+3}], 0 offen nt")
        a(f"s_cmp_lt_u32 s{S_SPIN}, {OPT['ffn']}")
        a("s_cbranch_scc1 L_noslow")
        a("s_mov_b64 exec, 0xff00")
        a(f"buffer_load_dwordx2 v[40:41], v19, s[{R_WS}:{R_WS+3}], 0 offen{SC}")
        a.lab("L_noslow")
        a("s_mov_b64 exec, -1")
        a(f"s_add_u32 s{S_SPIN}, s{S_SPIN}, 1")
        a("s_waitcnt vmcnt(0)")
        a(f"v_cmp_eq_u64 vcc, s[{S_NON}:{S_NON+1}], v[40:41]")
        a(f"s_cmp_ge_u32 s{S_SPIN}, {hex(SPIN_MAX)}")
        a("s_cbranch_scc1 L_poll_done")
        a(f"s_lshr_b32 s{S_T0}, vcc_lo, 8")
        a(f"s_or_b32 s{S_T0}, s{S_T0}, vcc_lo")
        a(f"s_and_b32 s{S_T0}, s{S_T0}, 0xff")
        a(f"s_cmp_lg_u32 s{S_T0}, 0xff")
        a("s_cbranch_scc1 L_poll")
    else:
        a.lab("L_poll")
        a(f"buffer_load_dwordx2 v[40:41], v19, s[{R_WS}:{R_WS+3}], 0 offen{SC}")
        a(f"s_add_u32 s{S_SPIN}, s{S_SPIN}, 1")
        a("s_waitcnt vmcnt(0)")
        a(f"v_cmp_ne_u64 vcc, s[{S_NON}:{S_NON+1}], v[40:41]")
        a(f"s_cmp_ge_u32 s{S_SPIN}, {hex(SPIN_MAX)}")
        a("s_cbranch_scc1 L_poll_done")
        a("s_cmp_eq_u64 vcc, 0")
        a("s_cbranch_scc1 L_poll_done")
        if OPT["pollsleep"]:
            a(f"s_sleep {OPT['pollsleep']}")
        a("s_branch L_poll")
    a.lab("L_poll_done")
    stamp(a, 6)
    a.c("---- phase 2 loads")
    sofs = ["0", f"s{S_4096}", f"s{S_KV0}", f"s{S_KV1}"]
    for q in range(4):
        a(f"buffer_load_dwordx4 {vr(20+4*q,4)}, v11, s[{R_WS}:{R_WS+3}], {sofs[q]} offen{SC}")
    for q in range(4):
        a(f"s_waitcnt vmcnt({3-q})")
        ad = "v14" if q < 2 else "v15"
        a(f"ds_write_b128 {ad}, {vr(20+4*q,4)} offset:{XB(q&1)+XD}")
        a(f"ds_write_b64 {ad}, {vr(20+4*q,2)} offset:{XB(q&1)+456}")
        a(f"ds_write_b64 {ad}, {vr(22+4*q,2)} offset:{XB(q&1)+464}")
    a("s_waitcnt lgkmcnt(0)")
    stamp(a, 7)
    if OPT["dprio"]:
        a(f"s_setprio {OPT['cprio']}")
    a("s_barrier")
    stamp(a, 8)
    if OPT["exp"]:
        a(f"s_cmp_lt_u32 s{S_WV}, 2")
        a("s_cbranch_scc1 L_convA")
    conv_main(a)
    if OPT["amp"] and OPT["arole"] == "d":
        stamp(a, 9)
        a(f"s_cmp_lg_u32 s2, 77")
        a("s_cbranch_scc1 L_noamp")
        a("s_sub_u32 s94, s94, s96")
        a("s_mul_i32 s94, s94, 10")
        a("s_memrealtime s[8:9]")
        a("s_waitcnt lgkmcnt(0)")
        a("s_add_u32 s94, s94, s8")
        a.lab("L_ampspin")
        a("s_memrealtime s[8:9]")
        a("s_waitcnt lgkmcnt(0)")
        a("s_sub_u32 s10, s8, s94")
        a("s_cmp_lt_i32 s10, 0")
        a("s_cbranch_scc1 L_ampspin")
        a.lab("L_noamp")
    if OPT["stamp"]:
        stamp(a, 9)
        stamp_out(a)
    a("s_endpgm")
    if OPT["exp"]:
        a.lab("L_convA")
        conv_main(a, OPT["exp"])
        if OPT["stamp"]:
            stamp(a, 9)
            stamp_out(a)
        a("s_endpgm")


def conv_setup(a):
    a.c("conv address setup, q = wave")
    a(f"s_mul_i32 s{S_T0}, s{S_WV}, {CONV}")
    a("v_and_b32 v12, 15, v1")
    a("v_lshrrev_b32 v13, 4, v1")
    a("v_and_b32 v16, 3, v12")
    a("v_lshrrev_b32 v17, 2, v12")
    a(f"v_mul_u32_u24 v2, {KSTR}, v16")
    a("v_lshl_add_u32 v2, v13, 4, v2")
    a("v_lshlrev_b32 v17, 4, v17")
    a("v_sub_u32 v2, v2, v17")
    a(f"s_add_u32 s{S_T1}, s{S_T0}, {KR(0,0)+48}")
    a(f"v_add_u32 v2, s{S_T1}, v2")
    a("v_and_b32 v16, 1, v12")
    a("v_lshrrev_b32 v17, 1, v12")
    a(f"v_mul_u32_u24 v3, {XSTR}, v16")
    a("v_lshl_add_u32 v3, v13, 4, v3")
    a("v_lshl_add_u32 v3, v17, 6, v3")
    a(f"s_add_u32 s{S_T1}, s{S_T0}, {XB(0)}")
    a(f"v_add_u32 v3, s{S_T1}, v3")
    a("v_mul_u32_u24 v4, 72, v17")
    a("v_lshl_add_u32 v4, v13, 4, v4")
    a("v_lshl_add_u32 v4, v16, 3, v4")
    a(f"s_mul_i32 s{S_T1}, s{S_WV}, {YSZ}")
    a(f"s_add_u32 s{S_T1}, s{S_T1}, {YS}")
    a(f"v_add_u32 v4, s{S_T1}, v4")
    a(f"s_lshl_b32 s{S_T1}, s{S_WV}, 2")
    a(f"s_add_u32 s{S_T1}, s{S_T1}, {C_Y}")
    a(f"v_mov_b32 v5, s{S_T1}")


def conv_main2(a):
    ACC = 6
    SLOTS = [38 + 4 * i for i in range(32)]
    grp = groups()
    steps = []
    for part in OPT["order"].split(","):
        tl, rr = part.split(":")
        for r in rr:
            steps.append(([int(c) for c in tl], int(r)))
    cov = {t: set() for t in range(8)}
    mf = []
    gdone = {}
    for si, (tl, r) in enumerate(steps):
        pairs = [(e1, tau - e1, tau) for tau in tl for e1 in range(tau + 1)]
        pairs.sort(key=lambda p: (max(p[0], p[1]), p[2]))
        for (e1, c1, tau) in pairs:
            mf.append((tau, ("F", si, r, e1), ("G", si, r, c1)))
        for t in tl:
            assert r not in cov[t]
            cov[t].add(r)
        for gi, g in enumerate(grp):
            if gi not in gdone.values() and all(len(cov[t]) == 8 for t in g):
                gdone[len(mf) - 1] = gi
    assert len(mf) == 288 and len(gdone) == len(grp)
    first, last = {}, {}
    for i, (tau, fk, gk) in enumerate(mf):
        for k in (fk, gk):
            first.setdefault(k, i)
            last[k] = i
    frs = sorted(first, key=lambda k: (first[k], k[0] == "F"))
    ninstr = len(frs)
    rate = ninstr / 288.0 * OPT["boost"] / 100.0
    free = list(SLOTS)
    reg = {}
    seq = [0]; done = [0]; when = {}

    def lds(sx, key=None):
        a(sx)
        if key is not None:
            when[key] = seq[0]
        seq[0] += 1

    def need(idx):
        if idx < done[0]:
            return
        n = min(seq[0] - idx - 1, OPT["wslack"] if seq[0] > 30 else 15)
        a(f"s_waitcnt lgkmcnt({n})")
        if not OPT["nonop"]:
            a("s_nop 0")
        done[0] = seq[0] - n

    def issue(k):
        rg = free.pop(0)
        reg[k] = rg
        _, si, r, i = k
        if k[0] == "G":
            lds(f"ds_read_b128 {vr(rg,4)}, v3 offset:{512*i+64*r}", k)
            return 1
        lds(f"ds_read_b128 {vr(rg,4)}, v2 offset:{512*(7-i)+64*r}", k)
        return 1

    a(".p2align 3")
    nxt = 0
    for _ in range(OPT["pre"]):
        issue(frs[nxt]); nxt += 1
    started = set(); pending = []; mark = [0]
    credit = 0.0
    for i, (tau, fk, gk) in enumerate(mf):
        while nxt < len(frs) and first[frs[nxt]] <= i:
            issue(frs[nxt]); nxt += 1
        need(max(when[fk], when[gk]))
        c = vr(ACC + 4 * tau, 4) if tau in started else "0"
        started.add(tau)
        a(f"v_mfma_f32_16x16x32_bf16 {vr(ACC+4*tau,4)}, {vr(reg[fk],4)}, {vr(reg[gk],4)}, {c}")
        for k in (fk, gk):
            if last[k] == i:
                free.append(reg[k])
        if pending and len(a.l) - mark[0] >= 9:
            for _ in range(2):
                if pending:
                    op = pending.pop(0)
                    if op.startswith("ds_"):
                        lds(op)
                    else:
                        a(op)
        credit = min(credit + rate, 3.0)
        while nxt < len(frs) and free and (credit >= 1.0 or first[frs[nxt]] - i <= OPT["lead"]):
            credit -= issue(frs[nxt]); nxt += 1
        if i in gdone:
            gi = gdone[i]
            assert not pending
            mark[0] = len(a.l)
            for tau2 in grp[gi]:
                c = ACC + 4 * tau2
                pending.append(f"v_cvt_pk_bf16_f32 v{c}, v{c}, v{c+1}")
                pending.append(f"v_cvt_pk_bf16_f32 v{c+1}, v{c+2}, v{c+3}")
                pending.append(f"ds_write_b64 v4, {vr(c,2)} offset:{576*tau2}")
            pending.append(f"ds_write_b32 v5, v5 offset:{16*gi}")
    a("s_nop 7")
    for op in pending:
        a(op)


def conv_main(a, emax=99):
    if OPT["sched"]:
        return conv_main2(a)
    ACC = 6
    BUF = [38, 102]
    grp = groups()
    steps = []
    if OPT["plan"]:
        for part in OPT["plan"].split(","):
            tl, rr = part.split(":")
            tl = [int(c) for c in tl]
            r0, r1 = [int(x) for x in rr.split("-")]
            per = 2 if max(tl) <= 3 else 1
            for r in range(r0, r1 + 1, per):
                steps.append((tl, list(range(r, r + per))))
    else:
        for g in grp:
            per = 2 if max(g) <= 3 else 1
            for r0 in range(0, 8, per):
                steps.append((g, list(range(r0, r0 + per))))
    last = {}
    cov = {t: set() for t in range(8)}
    for si, (tl, rs) in enumerate(steps):
        for t in tl:
            assert not (cov[t] & set(rs))
            cov[t] |= set(rs)
        for gi, g in enumerate(grp):
            if gi not in last and all(len(cov[t]) == 8 for t in g):
                last[gi] = si
    assert len(last) == len(grp)

    def step_plan(si):
        g, rs = steps[si]
        nfr = max(g) + 1
        b = BUF[si & 1]
        loads, mf = [], []
        for k, r in enumerate(rs):
            fb = b + 16 * k if len(rs) > 1 else b
            gb = b + 32 + (16 * k if len(rs) > 1 else 0)
            pairs = [(e1, tau - e1, tau) for tau in g for e1 in range(tau + 1) if e1 < emax]
            pairs.sort(key=lambda p: (max(p[0], p[1]), p[2]))
            for i in range(nfr):
                if any(p[1] == i for p in pairs):
                    loads.append((("G", k, i), f"ds_read_b128 {vr(gb+4*i,4)}, v3 offset:{512*i+64*r}"))
                if i >= emax:
                    continue
                loads.append((("F", k, i), f"ds_read_b128 {vr(fb+4*i,4)}, v2 offset:{512*(7-i)+64*r}"))
            for (e1, c1, tau) in pairs:
                mf.append((tau, ("F", k, e1), ("G", k, c1), fb + 4 * e1, gb + 4 * c1))
        return loads, mf

    plans = [step_plan(si) for si in range(len(steps))]
    seq = [0]
    done = [0]
    when = {}

    def lds(s, key=None):
        a(s)
        if key is not None:
            when[key] = seq[0]
        seq[0] += 1

    def need(idx):
        if idx < done[0]:
            return
        n = min(seq[0] - idx - 1, OPT["wslack"] if seq[0] > 30 else 15)
        a(f"s_waitcnt lgkmcnt({n})")
        if not OPT["nonop"]:
            a("s_nop 0")
        done[0] = seq[0] - n

    a(".p2align 3")
    for key, s in plans[0][0]:
        lds(s, (0,) + key)
    started = set()
    mark = [0]
    pending = []
    for si in range(len(steps)):
        loads, mf = plans[si]
        nl = list(plans[si + 1][0]) if si + 1 < len(steps) else []
        nm = len(mf)
        slots = max(1, nm * OPT["frac"] // 100)
        ntot = len(nl)
        for i, (tau, fk, gk, fr, gr) in enumerate(mf):
            need(max(when[(si,) + fk], when[(si,) + gk]))
            c = vr(ACC + 4 * tau, 4) if tau in started else "0"
            started.add(tau)
            a(f"v_mfma_f32_16x16x32_bf16 {vr(ACC+4*tau,4)}, {vr(fr,4)}, {vr(gr,4)}, {c}")
            if pending and len(a.l) - mark[0] >= 9:
                for _ in range(2):
                    if pending:
                        op = pending.pop(0)
                        if op.startswith("ds_"):
                            lds(op)
                        else:
                            a(op)
            want = min(ntot, -(-ntot * (i + 1) // slots))
            while ntot - len(nl) < want:
                key, s = nl.pop(0)
                lds(s, (si + 1,) + key)
        assert not nl
        for gi in [g_ for g_, l_ in last.items() if l_ == si]:
            assert not pending
            mark[0] = len(a.l)
            for tau in grp[gi]:
                c = ACC + 4 * tau
                pending.append(f"v_cvt_pk_bf16_f32 v{c}, v{c}, v{c+1}")
                pending.append(f"v_cvt_pk_bf16_f32 v{c+1}, v{c+2}, v{c+3}")
                pending.append(f"ds_write_b64 v4, {vr(c,2)} offset:{576*tau}")
            pending.append(f"ds_write_b32 v5, v5 offset:{16*gi}")
    a("s_nop 7")
    for op in pending:
        a(op)


XA = 154


def expansion_addr(a, g):
    a.c("expansion addresses")
    a(f"s_lshr_b32 s{S_KC}, s{S_W4}, 1")
    a(f"s_and_b32 s{S_HM}, s{S_W4}, 1")
    a(f"s_lshl_b32 s{S_T0}, s{S_HM}, 7")
    a(f"s_add_u32 s{S_T0}, s{S_T0}, {64*g}")
    a(f"v_add_u32 v12, s{S_T0}, v1")
    a(f"s_mul_i32 s{S_T1}, s{S_KC}, {KCSZ}")
    a(f"s_add_u32 s{S_T1}, s{S_T1}, {KC}")
    a(f"s_sub_u32 s{S_T3}, s{S_T1}, {IDXBIAS}")
    a(f"s_mul_i32 s{S_T2}, s{S_KC}, {CONV}")
    a(f"s_add_u32 s{S_T2}, s{S_T2}, {KR(0,0)-4}")
    a("v_lshlrev_b32 v11, 3, v12")
    a("v_sub_u32 v11, 2047, v11")
    a("v_cvt_f32_u32 v8, v11")
    if g == 1:
        a("v_cmp_gt_u32 vcc, 0x100, v11")
        a(f"v_lshl_add_u32 v10, v11, 3, s{S_T1}")
    for k in range(9):
        d = XA + k
        if k == 0:
            a(f"v_cvt_pk_bf16_f32 v{d}, 0, v8")
        else:
            lit = {1: "-1.0", 2: "-2.0", 4: "-4.0"}.get(k, hex(f2u(-float(k))))
            a(f"v_add_f32 v9, {lit}, v8")
            a(f"v_cvt_pk_bf16_f32 v{d}, 0, v9")
        a(f"v_lshrrev_b32 v{d}, 13, v{d}")
        a(f"v_add_u32 v{d}, s{S_T3}, v{d}")
        if g == 1:
            a(f"v_subrev_u32 v9, {8*k}, v10")
            a(f"v_cndmask_b32 v{d}, v{d}, v9, vcc")
    a(f"v_lshl_add_u32 v163, v12, 4, s{S_T2}")
    if g == 1:
        a("v_cmp_eq_u32 vcc, 0xff, v12")
        a(f"s_add_u32 s{S_T0}, s{S_T1}, {768*8}")
        a(f"v_mov_b32 v9, s{S_T0}")
        a(f"v_cndmask_b32 v{XA+8}, v{XA+8}, v9, vcc")
    a(f"s_lshl_b32 s{S_T0}, s{S_KC}, 2")
    a(f"s_add_u32 s{S_T0}, s{S_T0}, {C_KG}")
    a(f"v_mov_b32 v164, s{S_T0}")


def expansion(a, tag):
    lds_spin(a, f"L_kspin_{tag}", 164, 8, 2, sleep=(OPT["asleep"] if tag == "a" else 0))
    stamp(a, 8)
    a.c("expansion")
    B = 100
    for k in range(9):
        a(f"ds_read_b64 {vr(B+2*k,2)}, v{XA+k}")
    a("s_waitcnt lgkmcnt(0)")
    for k in range(9):
        a(f"v_add_f32 v{B+2*k}, v{B+2*k}, v{B+2*k+1}")
    P3, P2 = 120, 124
    for j in range(4):
        b = B + 4 * j
        a(f"v_cvt_pk_bf16_f32 v{P3+j}, v{b}, v{b+2}")
        a(f"v_cvt_pk_bf16_f32 v{P2+j}, v{b+2}, v{b+4}")
    k_copies(a, 163, P3, P2)


def kgen_waves(a):
    a.c("==== K generation waves")
    if OPT["kprio"]:
        a(f"s_setprio {OPT['kprio']}")
    a(f"s_lshr_b32 s{S_KC}, s{S_W4}, 1")
    a(f"s_and_b32 s{S_HM}, s{S_W4}, 1")
    a(f"s_add_u32 s{S_T1}, s{S_D0}, s{S_KC}")
    a(f"s_lshl_b32 s{S_T3}, s{S_T1}, 1")
    a(f"v_mov_b32 v8, s{S_T3}")
    a(f"s_lshl_b32 s{S_T1}, s{S_T1}, 8")
    a(f"s_lshl_b32 s{S_T2}, s{S_HM}, 7")
    a(f"s_add_u32 s{S_T1}, s{S_T1}, s{S_T2}")
    a(f"v_lshl_add_u32 v2, v1, 1, s{S_T1}")
    a("s_waitcnt lgkmcnt(0)")
    a(f"global_load_ushort v7, v8, s[{P_LDT}:{P_LDT+1}]")
    a(f"global_load_ushort v3, v2, s[{P_LAR}:{P_LAR+1}]" + (" nt" if OPT["nt"] & 16 else ""))
    a(f"global_load_ushort v4, v2, s[{P_AIM}:{P_AIM+1}]" + (" nt" if OPT["nt"] & 16 else ""))
    a(f"global_load_ushort v5, v2, s[{P_CR}:{P_CR+1}]" + (" nt" if OPT["nt"] & 16 else ""))
    a(f"global_load_ushort v6, v2, s[{P_CI}:{P_CI+1}]" + (" nt" if OPT["nt"] & 16 else ""))
    if OPT["stamp"]:
        srd(a, R_WS, P_WS, WS_SIZE)
    expansion_addr(a, 0)
    TBW, TBR, KA0, KA1, KA2 = 16, 17, 18, 19, 49
    a(f"s_mul_i32 s{S_T0}, s{S_W4}, {TBLSZ}")
    a(f"s_add_u32 s{S_T0}, s{S_T0}, {TBL}")
    a(f"v_lshl_add_u32 v{TBW}, v1, 2, s{S_T0}")
    a("v_and_b32 v13, 15, v1")
    a("v_lshrrev_b32 v8, 4, v1")
    a(f"v_mul_u32_u24 v{TBR}, 288, v13")
    a(f"v_lshl_add_u32 v{TBR}, v8, 4, v{TBR}")
    a(f"v_add_u32 v{TBR}, s{S_T0}, v{TBR}")
    a(f"s_lshl_b32 s{S_T0}, s{S_HM}, 2")
    a(f"s_add_u32 s{S_T1}, s{S_T1}, s{S_T0}")
    a("v_lshrrev_b32 v9, 1, v8")
    a("v_and_b32 v10, 1, v8")
    a(f"v_lshlrev_b32 v{KA0}, 7, v9")
    a(f"v_lshl_add_u32 v{KA0}, v10, 2, v{KA0}")
    a(f"v_lshl_add_u32 v{KA0}, v13, 3, v{KA0}")
    a(f"v_lshl_add_u32 v{KA0}, v{KA0}, 3, s{S_T1}")
    a("v_lshlrev_b32 v11, 1, v10")
    a("v_lshl_add_u32 v11, v13, 2, v11")
    a("v_add_u32 v11, 0x100, v11")
    a("v_lshlrev_b32 v12, 5, v10")
    a("v_lshl_add_u32 v12, v13, 1, v12")
    a("v_cmp_eq_u32 vcc, 0, v9")
    a("v_add_u32 v12, 0x180, v12")
    a(f"v_lshl_add_u32 v{KA2}, v8, 6, v13")
    a(f"v_cndmask_b32 v{KA1}, v12, v11, vcc")
    a(f"v_lshl_add_u32 v{KA1}, v{KA1}, 3, s{S_T1}")
    a(f"v_add_u32 v{KA2}, 0x200, v{KA2}")
    a(f"v_lshl_add_u32 v{KA2}, v{KA2}, 3, s{S_T1}")
    a("s_barrier")
    stamp(a, 2)
    a.c("parameters")
    a("s_waitcnt vmcnt(0)")
    stamp(a, 4)
    a("v_lshlrev_b32 v8, 16, v7")
    a("v_lshlrev_b32 v9, 16, v3")
    a(f"s_mov_b32 s{S_T1}, {hex(L2E)}")
    a(f"s_mov_b32 s{S_T2}, {hex(L2E_LO)}")
    for x, p, e in ((8, 10, 12), (9, 11, 13)):
        a(f"v_mul_f32 v{p}, s{S_T1}, v{x}")
        a(f"v_fma_f32 v{e}, v{x}, s{S_T1}, -v{p}")
        a(f"v_fma_f32 v{e}, v{x}, s{S_T2}, v{e}")
        a(f"v_exp_f32 v{p}, v{p}")
        a(f"v_mul_f32 v{e}, {hex(LN2)}, v{e}")
    a("v_lshlrev_b32 v4, 16, v4")
    for x, p, e in ((8, 10, 12), (9, 11, 13)):
        a(f"v_fma_f32 v{p}, v{p}, v{e}, v{p}")
        rnd(a, p, p)
    a("v_mul_f32 v11, v11, v10")
    a(f"v_mul_f32 v11, {hex(L2E | 0x80000000)}, v11")
    a("v_mul_f32 v4, v4, v10")
    a("v_mul_f32 v12, 0.15915494, v4")
    a("v_add_f32 v10, v10, v10")
    a("v_lshlrev_b32 v5, 16, v5")
    a("v_lshlrev_b32 v6, 16, v6")
    a("v_mul_f32 v14, v5, v10")
    a("v_mul_f32 v15, v6, v10")
    a("v_max_f32 v13, |v14|, |v15|")
    E = lambda j: 20 + 2 * j
    tmp = {0: (50, 51), 3: (52, 53), 7: (54, 55)}
    dpps = [f"v_max_u32_dpp v13, v13, v13 {d} bank_mask:0xf" for d in
            ("quad_perm:[1,0,3,2] row_mask:0xf", "quad_perm:[2,3,0,1] row_mask:0xf", "row_half_mirror row_mask:0xf",
             "row_mirror row_mask:0xf", "row_bcast:15 row_mask:0xa", "row_bcast:31 row_mask:0xc")]
    anc = []
    for j, (m, f) in tmp.items():
        if j == 0:
            anc += [f"v_exp_f32 v{m}, v11", f"v_fract_f32 v{f}, v12"]
        else:
            anc += [f"v_mul_f32 v{m}, {hex(f2u(2.0**j))}, v11", f"v_mul_f32 v{f}, {hex(f2u(2.0**j))}, v12",
                    f"v_exp_f32 v{m}, v{m}", f"v_fract_f32 v{f}, v{f}"]
    for j, (m, f) in tmp.items():
        anc += [f"v_cos_f32 v{E(j)}, v{f}", f"v_sin_f32 v{E(j)+1}, v{f}"]
    a.c("anchors")
    k = 0
    for d in dpps:
        a(anc[k]); a(anc[k + 1]); k += 2
        a(d)
    for o in anc[k:]:
        a(o)
    a(f"v_readlane_b32 s{S_T0}, v13, 63")
    for j, (m, f) in tmp.items():
        a(f"v_mul_f32 v{E(j)}, v{E(j)}, v{m}")
        a(f"v_mul_f32 v{E(j)+1}, v{E(j)+1}, v{m}")
    a(f"s_lshr_b32 s{S_T0}, s{S_T0}, 23")
    a(f"s_max_u32 s{S_T0}, s{S_T0}, 16")
    a(f"s_sub_u32 s{S_SC}, 264, s{S_T0}")
    a(f"s_lshl_b32 s{S_SC}, s{S_SC}, 23")
    a(f"s_sub_u32 s{S_ISC}, s{S_T0}, 10")
    a(f"s_lshl_b32 s{S_ISC}, s{S_ISC}, 23")
    interleave(a, [sum([cmul_ops(E(j), E(j - 1), E(j - 1)) for j in js], []) for js in ((4, 5, 6), (8, 9, 10, 11), (1, 2))])
    a.c("Y tile")
    tcount = [0]

    def put_ops(row, x, neg):
        t = 44 + (tcount[0] % 4)
        tcount[0] += 1
        return [f"v_cvt_pk_f16_f32 v{t}, v{x}, {'-' if neg else ''}v{x+1}",
                f"ds_write_b32 v{TBW}, v{t} offset:{288*row}"]

    def run_items(items):
        for i in range(0, len(items), 2):
            ch = []
            for (d, x, y, row, neg) in items[i:i + 2]:
                ops = [] if x is None else cmul_ops(d, x, y)
                if row is not None:
                    ops += put_ops(row, d, neg)
                ch.append(ops)
            interleave(a, ch)

    CT = 98
    Y = {1: E(3), 2: E(4), 4: E(5), 8: E(6), 3: 56, 5: 58, 6: 60, 7: 62}
    a("v_mov_b32 v48, 0x3c00")
    a(f"ds_write_b32 v{TBW}, v48")
    items = [(Y[3], Y[2], Y[1], 3, True), (Y[1], None, None, 1, True),
             (Y[5], Y[4], Y[1], 5, True), (Y[2], None, None, 2, True),
             (Y[6], Y[4], Y[2], 6, True), (Y[4], None, None, 4, True),
             (Y[7], Y[4], Y[3], 7, True), (Y[8], None, None, 8, True)]
    for b in range(9, 16):
        items.append((CT + 2 * (b % 4), Y[8], Y[b - 8], b, True))
    run_items(items)
    YF = 106
    for s in range(4):
        a(f"ds_read_b128 {vr(YF+4*s,4)}, v{TBR} offset:{64*s}")
    a.c("Z, W")
    Z = {1: E(0), 2: E(1), 4: E(2), 3: 56, 5: 58, 6: 60, 7: 62}
    W = {h: 64 + 2 * h for h in range(17)}
    a(f"v_mul_f32 v{W[0]}, s{S_SC}, v14")
    a(f"v_mul_f32 v{W[0]+1}, s{S_SC}, v15")
    run_items([(Z[3], Z[2], Z[1], None, 0), (W[1], W[0], E(7), None, 0),
               (Z[5], Z[4], Z[1], None, 0), (Z[6], Z[4], Z[2], None, 0),
               (Z[7], Z[4], Z[3], None, 0), (W[2], W[0], E(8), None, 0)])
    stamp(a, 6)
    XFT = [122, 138, 20]
    ACC = 36

    def rd(t):
        for s in range(4):
            a(f"ds_read_b128 {vr(XFT[t]+4*s,4)}, v{TBR} offset:{64*s}")

    def mm(t):
        for s in range(4):
            c = "0" if s == 0 else vr(ACC + 4 * t, 4)
            a(f"v_mfma_f32_16x16x32_f16 {vr(ACC+4*t,4)}, {vr(XFT[t]+4*s,4)}, {vr(YF+4*s,4)}, {c}")

    a.c("X tile 0")
    items = [(W[0], None, None, 0, False), (W[1], None, None, 8, False)]
    k = 0
    for r in range(1, 8):
        for h in (0, 1):
            items.append((CT + 2 * (k % 4), W[h], Z[r], 8 * h + r, False)); k += 1
    run_items(items)
    rd(0)
    run_items([(W[3], W[1], E(8), None, 0)] + [(W[h], W[h - 4], E(9), None, 0) for h in (4, 5, 6)] + [(W[7], W[3], E(9), None, 0)])
    a.c("X tile 1")
    items = []
    for G in range(4):
        for r in range(4):
            if G < 2:
                h = 2 + (r >> 1); zr = 2 * (2 * G + (r & 1))
            else:
                h = 4 + 2 * (r >> 1) + (G - 2); zr = 4 * (r & 1)
            if zr == 0:
                items.append((W[h], None, None, 4 * G + r, False))
            else:
                items.append((CT + 2 * (k % 4), W[h], Z[zr], 4 * G + r, False)); k += 1
    run_items(items)
    rd(1)
    a.c("X tile 2")
    run_items([(W[h], W[h - 8], E(10), h - 8, False) for h in range(8, 16)] + [(W[16], W[0], E(11), 8, False)])
    rd(2)
    a("s_waitcnt lgkmcnt(4)")
    mm(0)
    mm(1)
    a("s_waitcnt lgkmcnt(0)")
    mm(2)
    a("v_mov_b32 v8, 1")
    a("s_nop 2")
    for t in (0, 1):
        for r in range(4):
            a(f"v_mul_f32 v{ACC+4*t+r}, s{S_ISC}, v{ACC+4*t+r}")
    for t, offs, ad in ((0, (0, 8, 16, 24), KA0), (1, (0, 8, 512, 520), KA1)):
        for r in range(4):
            a(f"ds_write_b32 v{ad}, v{ACC+4*t+r} offset:{offs[r]}")
    for r in range(4):
        a(f"v_mul_f32 v{ACC+8+r}, s{S_ISC}, v{ACC+8+r}")
    for r in range(4):
        a(f"ds_write_b32 v{KA2}, v{ACC+8+r} offset:{128*r}")
    a("s_mov_b64 exec, 1")
    a("ds_add_u32 v164, v8")
    a("s_mov_b64 exec, -1")
    stamp(a, 7)
    expansion(a, "k")
    a("s_waitcnt lgkmcnt(0)")
    stamp(a, 9)
    a("s_barrier")
    if OPT["amp"] and OPT["arole"] == "k":
        a(f"s_cmp_lg_u32 s2, 77")
        a("s_cbranch_scc1 L_noamp")
        a("s_sub_u32 s94, s94, s96")
        a("s_mul_i32 s94, s94, 10")
        a("s_memrealtime s[8:9]")
        a("s_waitcnt lgkmcnt(0)")
        a("s_add_u32 s94, s94, s8")
        a.lab("L_ampspin")
        a("s_memrealtime s[8:9]")
        a("s_waitcnt lgkmcnt(0)")
        a("s_sub_u32 s10, s8, s94")
        a("s_cmp_lt_i32 s10, 0")
        a("s_cbranch_scc1 L_ampspin")
        a.lab("L_noamp")
    stamp_out(a)
    a("s_endpgm")


def gate_compute(a, XR, WR, T):
    Wp = T
    X0 = T + 8
    for j in range(4):
        unpack2(a, Wp + 2 * j, WR + j)
    for row in range(2):
        X = X0 + 8 * row
        for j in range(4):
            unpack2(a, X + 2 * j, XR + 4 * row + j)
    for row in range(2):
        X = X0 + 8 * row
        for j in range(4):
            a(f"v_pk_mul_f32 {vr(X+2*j,2)}, {vr(X+2*j,2)}, {vr(Wp+2*j,2)}")
    for row in range(2):
        X = X0 + 8 * row
        for j in range(8):
            rnd(a, X + j, X + j)
    for row in range(2):
        X = X0 + 8 * row
        a(f"v_pk_add_f32 {vr(X,2)}, {vr(X,2)}, {vr(X+2,2)}")
        a(f"v_pk_add_f32 {vr(X+4,2)}, {vr(X+4,2)}, {vr(X+6,2)}")
    for row in range(2):
        X = X0 + 8 * row
        a(f"v_pk_add_f32 {vr(X,2)}, {vr(X,2)}, {vr(X+4,2)}")
    A0, A1 = X0, X0 + 8
    a(f"v_add_f32 v{A0}, v{A0}, v{A0+1}")
    a(f"v_add_f32 v{A1}, v{A1}, v{A1+1}")
    a("s_nop 0")
    for d in ("quad_perm:[1,0,3,2]", "quad_perm:[2,3,0,1]", "row_half_mirror", "row_mirror",
              "row_bcast:15 row_mask:0xa", "row_bcast:31 row_mask:0xc"):
        m = "" if "row_mask" in d else " row_mask:0xf"
        a(f"v_add_f32_dpp v{A0}, v{A0}, v{A0} {d}{m} bank_mask:0xf")
        a(f"v_add_f32_dpp v{A1}, v{A1}, v{A1} {d}{m} bank_mask:0xf")
        a("s_nop 0")
    for x in (A0, A1):
        rnd(a, x, x)
    for x in (A0, A1):
        a(f"v_mul_f32 v{x}, {hex(L2E | 0x80000000)}, v{x}")
    for x in (A0, A1):
        a(f"v_exp_f32 v{x}, v{x}")
    a("s_nop 0")
    for x in (A0, A1):
        a(f"v_add_f32 v{x}, 1.0, v{x}")
    for x in (A0, A1):
        a(f"v_rcp_f32 v{x}, v{x}")
    a("s_nop 0")
    for x in (A0, A1):
        rnd(a, x, x)
    for x in (A0, A1):
        a(f"v_sub_f32 v{x+1}, 1.0, v{x}")
    a(f"v_cvt_pk_bf16_f32 v{T}, v{A0}, v{A0+1}")
    a(f"v_mov_b32 v{T+1}, s{S_NON}")
    a(f"v_cvt_pk_bf16_f32 v{T+2}, v{A1}, v{A1+1}")
    a(f"v_mov_b32 v{T+3}, s{S_NON}")


def aux_waves(a):
    grp = groups()
    a.c("==== aux waves; v0 = thread index 0..255")
    a.c("zero init of LDS pads")
    for i in range(4):
        a(f"v_mov_b32 v{8+i}, 0")
    a("v_lshrrev_b32 v12, 6, v0")
    a(f"v_mul_u32_u24 v12, {CONV}, v12")
    a("v_bfe_u32 v14, v0, 5, 1")
    a(f"v_mul_u32_u24 v14, {XSTR}, v14")
    a("v_and_b32 v13, 31, v0")
    a("v_min_u32 v13, 28, v13")
    a("v_lshl_add_u32 v12, v13, 4, v12")
    a("v_add_u32 v12, v12, v14")
    a(f"ds_write_b128 v12, v[8:11] offset:{XB(0)}")
    a("v_bfe_u32 v13, v0, 4, 2")
    a(f"v_mul_u32_u24 v13, {CONV}, v13")
    a("v_bfe_u32 v14, v0, 2, 2")
    a(f"v_mul_u32_u24 v14, {KSTR}, v14")
    a("v_and_b32 v15, 3, v0")
    a("v_lshl_add_u32 v14, v15, 4, v14")
    a("v_add_u32 v13, v13, v14")
    a(f"v_add_u32 v13, {KR(0,0)+4080}, v13")
    a("v_cmp_gt_u32 vcc, 64, v0")
    a("v_and_b32 v14, 15, v0")
    a("v_lshlrev_b32 v14, 4, v14")
    a(f"v_add_u32 v14, {CNT}, v14")
    a("v_cndmask_b32 v12, v14, v13, vcc")
    a("v_cmp_gt_u32 vcc, 0x80, v0")
    a("v_and_b32 v15, 1, v0")
    a(f"v_mul_u32_u24 v15, {KCSZ}, v15")
    a(f"v_add_u32 v15, {KC+768*8}, v15")
    a("v_cndmask_b32 v12, v15, v12, vcc")
    a("ds_write_b128 v12, v[8:11]")
    a("s_waitcnt lgkmcnt(0)")
    a("s_barrier")
    stamp(a, 1)
    srd(a, R_WS, P_WS, WS_SIZE)
    srd(a, R_DBG, P_DBG, 256)
    srd(a, R_OUT, P_OUT, 0x200000)
    expansion_addr(a, 1)
    a(f"s_lshl_b32 s{S_T0}, s{S_D0}, 12")
    a(f"v_lshl_add_u32 v2, v0, 4, s{S_T0}")
    a("v_add_u32 v3, 0x1000, v2")
    a("v_subrev_u32 v4, 4, v2")
    a(f"v_max_i32 v4, s{S_T0}, v4")
    a(f"s_lshl_b32 s{S_T1}, s{S_GB}, 13")
    a(f"s_lshl_b32 s{S_T2}, s{S_W4}, 11")
    a(f"s_add_u32 s{S_T1}, s{S_T1}, s{S_T2}")
    a("v_lshlrev_b32 v6, 4, v1")
    a(f"v_add_u32 v5, s{S_T1}, v6")
    a(f"s_lshl_b32 s{S_T0}, s{S_W4}, 4")
    a(f"s_lshl_b32 s{S_T1}, s{S_GB}, 6")
    a(f"s_add_u32 s{S_T0}, s{S_T0}, s{S_T1}")
    a(f"s_add_u32 s{S_T0}, s{S_T0}, {hex(WS_G)}")
    a(f"v_mov_b32 v7, s{S_T0}")
    a("v_mov_b32 v56, 0")
    a(f"s_lshl_b32 s{S_T3}, s{S_D0}, 1")
    EA = {}
    for gi, g in enumerate(grp):
        n = len(g); R0 = 256 * g[0]
        sh = {1: 0, 2: 1, 4: 2}[n]
        GO, XA1, XA2, YA_, OO = 128 + gi, 133 + gi, 138 + gi, 143 + gi, 148 + gi
        EA[gi] = (GO, XA1, XA2, YA_, OO)
        a(f"v_lshlrev_b32 v8, {sh}, v0")
        a(f"v_add_u32 v8, {R0}, v8")
        a(f"v_lshlrev_b32 v{GO}, 3, v8")
        a(f"v_lshlrev_b32 v{XA1}, 1, v8")
        a(f"v_add_u32 v{XA2}, {2*CONV}, v{XA1}")
        a("v_lshrrev_b32 v9, 5, v8")
        a(f"v_lshl_add_u32 v9, v9, 3, v{XA1}")
        a(f"v_add_u32 v{YA_}, {YS}, v9")
        a(f"v_lshl_add_u32 v{OO}, v8, 10, s{S_T3}")
    if OPT["tw"]:
        a(f"s_cmp_lg_u32 s{S_W4}, 0")
        a("s_cbranch_scc1 L_notw")
        a("s_mov_b64 exec, 1")
        a(f"s_lshl_b32 s{S_T0}, s{S_PCG}, 18")
        a(f"s_lshl_b32 s{S_T1}, s{S_PTB}, 7")
        a(f"s_add_u32 s{S_T0}, s{S_T0}, s{S_T1}")
        a(f"v_mov_b32 v8, s{S_T0}")
        a(f"s_mov_b32 s{S_T2}, {hex(WS_KV)}")
        a(f"buffer_load_dword v60, v8, s[{R_WS}:{R_WS+3}], 0 offen nt")
        a(f"buffer_load_dword v61, v8, s[{R_WS}:{R_WS+3}], s{S_T2} offen nt")
        a(f"s_lshl_b32 s{S_T0}, s{S_PCG}, 12")
        a(f"s_add_u32 s{S_T0}, s{S_T0}, s{S_T1}")
        a(f"s_add_u32 s{S_T0}, s{S_T0}, {hex(WS_FLAG)}")
        a(f"v_mov_b32 v8, s{S_T0}")
        a(f"buffer_load_dword v62, v8, s[{R_WS}:{R_WS+3}], 0 offen nt")
        a(f"s_lshl_b32 s{S_T0}, s2, 13")
        a(f"v_mov_b32 v8, s{S_T0}")
        a(f"buffer_load_dword v63, v8, s[{R_OUT}:{R_OUT+3}], 0 offen nt")
        a(f"global_load_dword v64, v2, s[{P_SSMK}:{P_SSMK+1}]")
        a(f"global_load_dword v65, v6, s[{P_GW}:{P_GW+1}]")
        a("s_mov_b64 exec, -1")
        a.lab("L_notw")
    a(f"s_load_dword s{S_RAWDS}, s[{P_DSK}:{P_DSK+1}], s{S_T3}")
    a(f"s_load_dword s{S_RAWDM}, s[{P_SSMD}:{P_SSMD+1}], s{S_T3}")
    def ssmk_loads():
        NT = " nt" if OPT["nt"] & 2 else ""
        a(f"global_load_dwordx4 v[68:71], v2, s[{P_SSMK}:{P_SSMK+1}]{NT}")
        a(f"global_load_dwordx4 v[74:77], v3, s[{P_SSMK}:{P_SSMK+1}]{NT}")
        a(f"global_load_dword v67, v4, s[{P_SSMK}:{P_SSMK+1}]{NT}")
        a(f"global_load_dword v73, v3, s[{P_SSMK}:{P_SSMK+1}] offset:-4{NT}")

    def gate_loads():
        NT = " nt" if OPT["nt"] & 8 else ""
        a(f"global_load_dwordx4 v[80:83], v5, s[{P_U}:{P_U+1}]{NT}")
        a(f"global_load_dwordx4 v[84:87], v5, s[{P_U}:{P_U+1}] offset:1024{NT}")
        a(f"global_load_dwordx4 v[88:91], v6, s[{P_GW}:{P_GW+1}]")
        a(f"buffer_load_dwordx2 v[52:53], v56, s[{R_DBG}:{R_DBG+3}], 0 offen{SC}")

    def ssmk_copies():
        a.c("---- ssm_k -> LDS (reversed, 4 copies)")
        a("v_cmp_eq_u32 vcc, 0, v0")
        a("s_nop 1")
        for ch in range(2):
            q = 2 + ch
            L = 68 + 6 * ch
            P3, P2 = 20 + 8 * ch, 24 + 8 * ch
            a(f"v_cndmask_b32 v{L-1}, v{L-1}, 0, vcc")
            for d in range(4):
                a(f"v_alignbit_b32 v{P3+d}, v{L+3-d}, v{L+3-d}, 16")
                a(f"v_bfi_b32 v{P2+d}, s{S_LO}, v{L+3-d}, v{L+2-d}")
            a(f"v_add_u32 v{36+ch}, {KR(q,0)}, v9")
            k_copies(a, 36 + ch, P3, P2)

    def gate_part():
        nonce_check(a, "a", 52, 56)
        a.c("---- gate")
        gate_compute(a, 80, 88, 100)
        a("s_mov_b32 exec_lo, 0")
        a("s_mov_b32 exec_hi, 0x80000000")
        a(f"buffer_store_dwordx4 v[100:103], v7, s[{R_WS}:{R_WS+3}], 0 offen{SC}")
        a("s_mov_b64 exec, -1")

    a("v_lshlrev_b32 v9, 4, v0")
    a("v_sub_u32 v9, 4076, v9")
    M = OPT["auxmode"]
    if M in (1, 2, 3, 4):
        ssmk_loads()
    if M == 1:
        gate_loads()
    if M in (0, 2, 5, 6):
        a(f"v_mov_b32 v12, {C_P1 if M in (0, 2) else C_SIG}")
        lds_spin(a, "L_aspin", 12, 8, 4 if M != 6 else 1, sleep=2)
        stamp(a, 2)
        gate_loads()
        if M != 2:
            ssmk_loads()
    a("s_waitcnt lgkmcnt(0)")
    a(f"s_lshl_b32 s{S_DS}, s{S_RAWDS}, 16")
    a(f"s_and_b32 s{S_DS+1}, s{S_RAWDS}, s{S_HI}")
    a(f"s_lshl_b32 s{S_DM}, s{S_RAWDM}, 16")
    a(f"s_and_b32 s{S_DM+1}, s{S_RAWDM}, s{S_HI}")
    if M in (0, 5, 6):
        gate_part()
        stamp(a, 3)
        ssmk_copies()
    elif M in (1, 2):
        a("s_waitcnt vmcnt(4)")
        stamp(a, 3)
        ssmk_copies()
        gate_part()
    elif M == 3:
        a("s_waitcnt vmcnt(0)")
        stamp(a, 3)
        ssmk_copies()
        a(f"v_mov_b32 v12, {C_SIG}")
        lds_spin(a, "L_aspin", 12, 8, 4, sleep=2)
        gate_loads()
        gate_part()
    else:
        a("s_waitcnt vmcnt(0)")
        stamp(a, 3)
        ssmk_copies()
    stamp(a, 4)
    if OPT["ff"]:
        a.c("write-through flag (for consumers on other XCDs)")
        a(f"s_cmp_lg_u32 s{S_W4}, 0")
        a("s_cbranch_scc1 L_noslowflag")
        a(f"v_mov_b32 v12, {C_SIG}")
        lds_spin(a, "L_sfspin", 12, 8, 4, sleep=1)
        a(f"s_lshl_b32 s{S_T0}, s{S_PCG}, 12")
        a(f"s_lshl_b32 s{S_T1}, s{S_PTB}, 7")
        a(f"s_add_u32 s{S_T0}, s{S_T0}, s{S_T1}")
        a(f"s_add_u32 s{S_T0}, s{S_T0}, {hex(WS_FLAG+0x8000)}")
        a(f"v_lshl_add_u32 v8, v1, 3, s{S_T0}")
        a("s_mov_b64 exec, 0xffff")
        a(f"buffer_store_dwordx2 v[52:53], v8, s[{R_WS}:{R_WS+3}], 0 offen{SC}")
        a("s_mov_b64 exec, -1")
        a.lab("L_noslowflag")
    expansion(a, "a")
    a("s_waitcnt lgkmcnt(0)")
    stamp(a, 9)
    GR = 20
    XR = 36

    def gloads():
        pos = 0
        for gi, g in enumerate(grp):
            n = len(g)
            for h in range(n // 2):
                a(f"buffer_load_dwordx4 {vr(GR+2*pos+4*h,4)}, v{EA[gi][0]}, s[{R_WS}:{R_WS+3}], s{S_T2} offen offset:{16*h}{SC}")
            if n == 1:
                a(f"buffer_load_dwordx2 {vr(GR+2*pos,2)}, v{EA[gi][0]}, s[{R_WS}:{R_WS+3}], s{S_T2} offen{SC}")
            pos += n

    a(f"s_mov_b32 s{S_T2}, {hex(WS_G)}")
    if OPT["gearly"]:
        gloads()
    a("s_barrier")
    stamp(a, 10)
    if OPT["hprio"]:
        a(f"s_setprio {OPT['hprio']}")
    if M == 4:
        gate_loads()
        gate_part()
    if not OPT["gearly"]:
        gloads()
    pos = 0
    for gi, g in enumerate(grp):
        n = len(g)
        lop = {1: "u16_d16_hi" if pos & 1 else "u16_d16", 2: "b32", 4: "b64"}[n]
        for q in range(4):
            a(f"ds_read_{lop} {vr(XR+4*q+pos//2,max(1,n//2))}, v{EA[gi][1 if q < 2 else 2]} offset:{XB(q&1)+XD}")
        pos += n
    assert pos == 8
    PR = 52
    a("s_waitcnt lgkmcnt(0)")
    for r in range(8):
        B = PR + 6 * r
        U, UD, UK = B, B + 2, B + 4
        for ch in range(2):
            ext(a, U + ch, XR + 4 * ch + r // 2, r & 1)
            ext(a, UK + ch, XR + 4 * (2 + ch) + r // 2, r & 1)
        for ch in range(2):
            a(f"v_mul_f32 v{UD+ch}, s{S_DS+ch}, v{U+ch}")
            a(f"v_mul_f32 v{UK+ch}, s{S_DM+ch}, v{UK+ch}")
    a(f"s_mov_b32 s{S_SPIN}, 0")
    a("s_branch L_gchk")
    a.lab("L_gpoll")
    a("s_sleep 4")
    gloads()
    a(f"s_add_u32 s{S_SPIN}, s{S_SPIN}, 1")
    a.lab("L_gchk")
    a("s_waitcnt vmcnt(0)")
    a(f"v_xor_b32 v8, s{S_NON}, v{GR+1}")
    for r in range(1, 8):
        a(f"v_xor_b32 v9, s{S_NON}, v{GR+2*r+1}")
        a("v_or_b32 v8, v8, v9")
    a("v_cmp_ne_u32 vcc, 0, v8")
    a(f"s_cmp_ge_u32 s{S_SPIN}, {hex(SPIN_MAX)}")
    a("s_cbranch_scc1 L_gpoll_done")
    a("s_cmp_eq_u64 vcc, 0")
    a("s_cbranch_scc0 L_gpoll")
    a.lab("L_gpoll_done")
    stamp(a, 11)
    for r in range(8):
        B = PR + 6 * r
        U, UD, UK = B, B + 2, B + 4
        G0, G1 = GR + 2 * r, GR + 2 * r + 1
        a(f"v_and_b32 v{G1}, s{S_HI}, v{G0}")
        a(f"v_lshlrev_b32 v{G0}, 16, v{G0}")
        for ch in range(2):
            a(f"v_mul_f32 v{U+ch}, v{U+ch}, v{G1}")
            a(f"v_mul_f32 v{UD+ch}, v{UD+ch}, v{G0}")
        for ch in range(2):
            a(f"v_fmac_f32 v{UD+ch}, v{UK+ch}, v{U+ch}")
    a(f"v_mov_b32 v5, {C_Y}")
    pos = 0
    for gi, g in enumerate(grp):
        n = len(g)
        a(f"s_mov_b32 s{S_SPIN}, 0")
        a.lab(f"L_yspin{gi}")
        a(f"ds_read_b128 v[104:107], v5 offset:{16*gi}")
        a(f"s_add_u32 s{S_SPIN}, s{S_SPIN}, 1")
        a("s_waitcnt lgkmcnt(0)")
        a("v_min_u32 v104, v104, v105")
        a("v_min3_u32 v104, v104, v106, v107")
        a(f"s_cmp_ge_u32 s{S_SPIN}, {hex(SPIN_MAX*8)}")
        a(f"v_readfirstlane_b32 s{S_T0}, v104")
        a(f"s_cbranch_scc1 L_yspin{gi}_done")
        a(f"s_cmp_lg_u32 s{S_T0}, 0")
        a(f"s_cbranch_scc1 L_yspin{gi}_done")
        a(f"s_sleep {OPT['ysleep']}")
        a(f"s_branch L_yspin{gi}")
        a.lab(f"L_yspin{gi}_done")
        stamp(a, min(12 + gi, 14))
        lop = {1: "u16", 2: "b32", 4: "b64"}[n]
        YR = 108
        for q in range(4):
            a(f"ds_read_{lop} {vr(YR+2*q,max(1,n//2))}, v{EA[gi][3]} offset:{YSZ*q}")
        a("s_waitcnt lgkmcnt(0)")
        for k in range(n):
            r = pos + k
            B = PR + 6 * r
            CB, P = B, B + 2
            G0 = GR + 2 * r
            YA, YB = 116 + 4 * (k & 1), 118 + 4 * (k & 1)
            for ch in range(2):
                ext(a, YA + ch, YR + 2 * ch + k // 2, k & 1)
                ext(a, YB + ch, YR + 2 * (2 + ch) + k // 2, k & 1)
            for ch in range(2):
                a(f"v_fmac_f32 v{P+ch}, v{YA+ch}, v{G0}")
            for ch in range(2):
                a(f"v_fmac_f32 v{P+ch}, v{YB+ch}, v{CB+ch}")
            a(f"v_cvt_pk_bf16_f32 v{P}, v{P}, v{P+1}")
            a(f"buffer_store_dword v{P}, v{EA[gi][4]}, s[{R_OUT}:{R_OUT+3}], 0 offen offset:{1024*k}")
        pos += n
    if OPT["amp"] and OPT["arole"] == "a":
        a("s_waitcnt vmcnt(0)")
        stamp(a, 15)
        a(f"s_cmp_lg_u32 s2, 77")
        a("s_cbranch_scc1 L_noamp")
        a("s_sub_u32 s94, s94, s96")
        a("s_mul_i32 s94, s94, 10")
        a("s_memrealtime s[8:9]")
        a("s_waitcnt lgkmcnt(0)")
        a("s_add_u32 s94, s94, s8")
        a.lab("L_ampspin")
        a("s_memrealtime s[8:9]")
        a("s_waitcnt lgkmcnt(0)")
        a("s_sub_u32 s10, s8, s94")
        a("s_cmp_lt_i32 s10, 0")
        a("s_cbranch_scc1 L_ampspin")
        a.lab("L_noamp")
    stamp_out(a)


def kd(name):
    return f""".section .rodata,"a"
.p2align 6
.amdhsa_kernel {name}
  .amdhsa_next_free_vgpr {NV}
  .amdhsa_next_free_sgpr 102
  .amdhsa_accum_offset {NV}
  .amdhsa_group_segment_fixed_size 0
  .amdhsa_kernarg_size 136
  .amdhsa_user_sgpr_count 2
  .amdhsa_user_sgpr_kernarg_segment_ptr 1
  .amdhsa_system_sgpr_workgroup_id_x 1
  .amdhsa_float_denorm_mode_32 3
.end_amdhsa_kernel
"""


def gen():
    out = [f"; @launch grid=(256,1,1) block=(768,1,1) lds={LDS_TOTAL}\n",
           """; One workgroup per channel pair, 12 waves in three roles:
""",
           '.amdgcn_target "amdgcn-amd-amdhsa--gfx950"\n.text\n',
           f".globl {NAME}_kernel\n.p2align 8\n.type {NAME}_kernel,@function\n{NAME}_kernel:\n"]
    a = A()
    prologue(a)
    data_waves(a)
    a.lab("L_kgen")
    AROLE[0] = "k"
    kgen_waves(a)
    a.lab("L_aux")
    AROLE[0] = "a"
    aux_waves(a)
    a.lab("L_end")
    a("s_endpgm")
    out.append(a.text())
    out.append(kd(NAME + "_kernel"))
    return "".join(out)


if __name__ == "__main__":
    outp = sys.argv[1] if len(sys.argv) > 1 else f"cdna_kernels/{NAME}.s"
    for x in sys.argv[2:]:
        k, v = x.split("=")
        OPT[k] = v if k in ("groups", "plan", "order", "arole") else int(v)
    txt = gen()
    open(outp, "w").write(txt)
    print("wrote", outp, len(txt), "bytes; LDS", LDS_TOTAL)
```

```python
import sys, struct

NAME = "gated_mix__ssm_conv_s4d__ssm_conv_h3__prompt"
OPT = dict(stamp=0, groups="0123,4567", pollsleep=2, hprio=2, map=0, dprio=2, wslack=5, fullflag=1, frac=100, auxmode=0, plan="", exp=0, tw=0, nt=0, fwarm=0, pdelay=0, cprio=0, nonop=0, ysleep=1, sched=0, order="", lead=10, boost=110, pre=9, gearly=0, ff=0, ffn=8, kprio=0, asleep=1)
NV = 168
VST, VST2 = 167, 166


def f2u(x):
    return struct.unpack("<I", struct.pack("<f", x))[0]


class A:
    def __init__(self):
        self.l = []

    def __call__(self, s):
        self.l.append("    " + s)

    def lab(self, s):
        self.l.append(s + ":")

    def c(self, s):
        self.l.append("    ; " + s)

    def text(self):
        return "\n".join(self.l) + "\n"


def vr(a, n=1):
    assert a + n <= NV, (a, n)
    return f"v{a}" if n == 1 else f"v[{a}:{a+n-1}]"


def sr(a, n=1):
    return f"s{a}" if n == 1 else f"s[{a}:{a+n-1}]"


KSTR = 4160
XSTR = 4640
CONV = 16 + 4 * KSTR + 2 * XSTR
assert CONV % 16 == 0
def KR(q, s): return q * CONV + 16 + s * KSTR
def XB(q): return q * CONV + 16 + 4 * KSTR
XD = XSTR + 448
KC = 4 * CONV
KCSZ = 776 * 8
TBL = KC + 2 * KCSZ
TBLSZ = 16 * 288
CNT = TBL + 4 * TBLSZ
YS = CNT + 256
YSZ = 8 * 576
P1S = YS - 640
P1K, P1V, P1U = P1S + 1024, P1S + 9216, P1S + 17408
LDS_TOTAL = P1S + 25600
assert LDS_TOTAL <= 163840, LDS_TOTAL
IDXBIAS = 8 * 0x4280
C_SIG, C_P1, C_KG, C_Y = CNT, CNT + 4, CNT + 16, CNT + 32

WS_KV = 0x200000
WS_G = 0x400000
WS_FLAG = 0x410000
WS_ST = 0x600000
WS_SIZE = 0x800000

P_U, P_LAR, P_AIM, P_CR, P_CI, P_LDT, P_DSK, P_Q = 16, 18, 20, 22, 24, 26, 28, 30
P_K, P_V, P_SHK, P_SSMK, P_SSMD, P_GW, P_OUT, P_DBG = 32, 34, 36, 38, 40, 42, 44, 46
P_WS = 48
S_WV, S_CG, S_TB, S_D0 = 3, 4, 5, 6
S_PCG, S_PTB, S_GB, S_W4 = 7, 98, 99, 100
S_HI, S_LO = 50, 51
S_T0, S_T1, S_T2, S_T3 = 8, 9, 10, 11
R_U, R_K, R_V, R_WS, R_OUT, R_DBG = 52, 56, 60, 64, 68, 72
S_SELLO, S_SELHI, S_4096, S_KV0, S_KV1 = 76, 77, 78, 79, 80
S_DS, S_DM = 82, 84
S_RAWDS, S_RAWDM = 86, 87
S_SC, S_ISC = 89, 90
S_SPIN = 91
S_KC, S_HM = 92, 93
S_PC = 12
S_NON = 14

L2E = 0x3FB8AA3B
L2E_LO = 0x32A57060
LN2 = 0x3F317218
SPIN_MAX = 0x40000
SC = " sc1"


def stamp(a, idx):
    if not OPT["stamp"]:
        return
    a("s_memrealtime s[94:95]")
    a("s_memtime s[96:97]")
    a("s_waitcnt lgkmcnt(0)")
    a(f"v_writelane_b32 v{VST}, s94, {idx}")
    a(f"v_writelane_b32 v{VST}, s96, {32+idx}")


def stamp_out(a):
    if not OPT["stamp"]:
        return
    a("s_waitcnt vmcnt(0)")
    stamp(a, 15)
    a(f"s_lshl_b32 s{S_T0}, s2, 4")
    a(f"s_add_u32 s{S_T0}, s{S_T0}, s{S_WV}")
    a(f"s_lshl_b32 s{S_T0}, s{S_T0}, 8")
    a(f"s_add_u32 s{S_T0}, s{S_T0}, {hex(WS_ST)}")
    a(f"v_lshl_add_u32 v{VST2}, v1, 2, s{S_T0}")
    a(f"buffer_store_dword v{VST}, v{VST2}, s[{R_WS}:{R_WS+3}], 0 offen")


def srd(a, r, p, size):
    a(f"s_mov_b32 s{r}, s{p}")
    a(f"s_and_b32 s{r+1}, s{p+1}, 0xffff")
    a(f"s_mov_b32 s{r+2}, {hex(size)}")
    a(f"s_mov_b32 s{r+3}, 0x20000")


def rnd(a, d, s):
    a(f"v_cvt_pk_bf16_f32 v{d}, 0, v{s}")


def unpack2(a, d, s):
    a(f"v_lshlrev_b32 v{d}, 16, v{s}")
    a(f"v_and_b32 v{d+1}, s{S_HI}, v{s}")


def ext(a, d, reg, hi):
    if hi:
        a(f"v_and_b32 v{d}, s{S_HI}, v{reg}")
    else:
        a(f"v_lshlrev_b32 v{d}, 16, v{reg}")


def cmul_ops(d, x, y):
    assert d not in (x, y) and d % 2 == 0 and x % 2 == 0 and y % 2 == 0
    return [f"v_pk_mul_f32 {vr(d,2)}, {vr(x,2)}, {vr(y,2)} op_sel:[0,0] op_sel_hi:[1,0]",
            f"v_fma_f32 v{d}, -v{x+1}, v{y+1}, v{d}",
            f"v_fmac_f32 v{d+1}, v{x}, v{y+1}"]


def interleave(a, chains):
    chains = [list(c) for c in chains]
    while any(chains):
        for c in chains:
            if c:
                a(c.pop(0))


def groups():
    return [[int(ch) for ch in g] for g in OPT["groups"].split(",")]


def lds_spin(a, lab, vaddr, vtmp, val, sleep=0):
    a(f"s_mov_b32 s{S_SPIN}, 0")
    a.lab(lab)
    a(f"ds_read_b32 v{vtmp}, v{vaddr}")
    a(f"s_add_u32 s{S_SPIN}, s{S_SPIN}, 1")
    a("s_waitcnt lgkmcnt(0)")
    a(f"v_readfirstlane_b32 s{S_T0}, v{vtmp}")
    a(f"s_cmp_ge_u32 s{S_SPIN}, {hex(SPIN_MAX*8)}")
    a(f"s_cbranch_scc1 {lab}_done")
    a(f"s_cmp_ge_u32 s{S_T0}, {val}")
    a(f"s_cbranch_scc1 {lab}_done")
    if sleep:
        a(f"s_sleep {sleep}")
    a(f"s_branch {lab}")
    a.lab(lab + "_done")


def nonce_check(a, tag, vn, vzero):
    a(f"s_mov_b32 s{S_SPIN}, 0")
    a(f"s_branch L_nchk_{tag}")
    a.lab(f"L_npoll_{tag}")
    a(f"buffer_load_dwordx2 {vr(vn,2)}, v{vzero}, s[{R_DBG}:{R_DBG+3}], 0 offen{SC}")
    a(f"s_add_u32 s{S_SPIN}, s{S_SPIN}, 1")
    a.lab(f"L_nchk_{tag}")
    a("s_waitcnt vmcnt(0)")
    a(f"v_readfirstlane_b32 s{S_NON}, v{vn}")
    a(f"v_readfirstlane_b32 s{S_NON+1}, v{vn+1}")
    a(f"s_cmp_ge_u32 s{S_SPIN}, {hex(SPIN_MAX)}")
    a(f"s_cbranch_scc1 L_npoll_done_{tag}")
    a(f"s_cmp_eq_u32 s{S_NON}, 0")
    a(f"s_cbranch_scc1 L_npoll_{tag}")
    a.lab(f"L_npoll_done_{tag}")


def k_copies(a, vaddr, P3, P2):
    a(f"ds_write_b128 v{vaddr}, {vr(P3,4)} offset:{3*KSTR+4}")
    a(f"ds_write_b128 v{vaddr}, {vr(P2,4)} offset:{2*KSTR+4}")
    a(f"ds_write2_b32 v{vaddr}, v{P2}, v{P2+1} offset0:0 offset1:1")
    a(f"ds_write2_b32 v{vaddr}, v{P2+2}, v{P2+3} offset0:2 offset1:3")
    a(f"v_add_u32 v{vaddr}, {KSTR}, v{vaddr}")
    a(f"ds_write2_b32 v{vaddr}, v{P3}, v{P3+1} offset0:0 offset1:1")
    a(f"ds_write2_b32 v{vaddr}, v{P3+2}, v{P3+3} offset0:2 offset1:3")


def prologue(a):
    if OPT["stamp"]:
        a("s_memrealtime s[88:89]")
    a("s_cmp_ge_u32 s2, 256")
    a("s_cbranch_scc1 L_end")
    a("s_load_dwordx16 s[16:31], s[0:1], 0")
    a("s_load_dwordx16 s[32:47], s[0:1], 64")
    a("s_load_dwordx2 s[48:49], s[0:1], 128")
    a(f"s_getpc_b64 s[{S_PC}:{S_PC+1}]")
    a.lab("L_pc0")
    a("v_lshlrev_b32 v2, 5, v0")
    a("v_min_u32 v2, L_end-L_pc0, v2")
    a(f"global_load_dword v165, v2, s[{S_PC}:{S_PC+1}]")
    a("v_lshrrev_b32 v1, 6, v0")
    a(f"s_and_b32 s{S_CG}, s2, 7")
    a(f"v_readfirstlane_b32 s{S_WV}, v1")
    a("v_and_b32 v1, 63, v0")
    a("v_and_b32 v0, 0xff, v0")
    a(f"s_lshr_b32 s{S_TB}, s2, 3")
    a(f"s_lshl_b32 s{S_D0}, s{S_CG}, 6")
    a(f"s_lshl_b32 s{S_T0}, s{S_TB}, 1")
    a(f"s_add_u32 s{S_D0}, s{S_D0}, s{S_T0}")
    a(f"s_mov_b32 s{S_HI}, 0xffff0000")
    a(f"s_mov_b32 s{S_LO}, 0xffff")
    a(f"s_and_b32 s{S_W4}, s{S_WV}, 3")
    if OPT["map"] == 0:
        a(f"s_mov_b32 s{S_PCG}, s{S_CG}")
        a(f"s_mov_b32 s{S_PTB}, s{S_TB}")
    else:
        a(f"s_and_b32 s{S_PCG}, s{S_TB}, 7")
        a(f"s_lshr_b32 s{S_T0}, s2, 6")
        a(f"s_lshl_b32 s{S_T0}, s{S_T0}, 3")
        a(f"s_add_u32 s{S_PTB}, s{S_T0}, s{S_CG}")
    a(f"s_lshl_b32 s{S_GB}, s{S_PTB}, 3")
    a(f"s_add_u32 s{S_GB}, s{S_GB}, s{S_PCG}")
    if OPT["stamp"]:
        a(f"v_mov_b32 v{VST}, 0")
        stamp(a, 5)
        a(f"v_writelane_b32 v{VST}, s88, 0")
    a(f"s_cmp_ge_u32 s{S_WV}, 8")
    a("s_cbranch_scc1 L_aux")
    a(f"s_cmp_ge_u32 s{S_WV}, 4")
    a("s_cbranch_scc1 L_kgen")


def data_waves(a):
    a.c("==== data waves")
    if OPT["dprio"]:
        a(f"s_setprio {OPT['dprio']}")
    a("v_and_b32 v57, 7, v1")
    a("v_lshrrev_b32 v7, 3, v1")
    a(f"v_xor_b32 v9, s{S_WV}, v57")
    a(f"s_lshl_b32 s{S_T0}, s{S_PTB}, 16")
    a(f"s_lshl_b32 s{S_T1}, s{S_PCG}, 7")
    a(f"s_add_u32 s{S_T0}, s{S_T0}, s{S_T1}")
    a(f"s_lshl_b32 s{S_T1}, s{S_WV}, 13")
    a(f"s_add_u32 s{S_T0}, s{S_T0}, s{S_T1}")
    a(f"v_lshl_add_u32 v8, v7, 10, s{S_T0}")
    a("v_lshl_add_u32 v8, v9, 4, v8")
    a("v_xor_b32 v58, 64, v8")
    a("v_subrev_u32 v9, 0x8000, v58")
    a(f"s_lshl_b32 s{S_T0}, s{S_WV}, 3")
    a(f"v_add_u32 v6, s{S_T0}, v7")
    a(f"s_lshl_b32 s{S_T1}, s{S_PCG}, 9")
    a(f"v_lshl_add_u32 v10, v6, 4, s{S_T1}")
    a(f"s_movk_i32 s{S_4096}, 0x1000")
    a(f"s_mov_b32 s{S_KV0}, 0x8000")
    a(f"s_lshl_b32 s{S_T3}, s{S_WV}, 10")
    a(f"s_memrealtime s[{S_NON}:{S_NON+1}]")
    if OPT["ff"] == 1:
        a(f"s_lshl_b32 s{S_T0}, s{S_PCG}, 12")
        a(f"s_lshl_b32 s{S_T1}, s{S_PTB}, 7")
        a(f"s_add_u32 s{S_T0}, s{S_T0}, s{S_T1}")
        a(f"s_add_u32 s{S_T0}, s{S_T0}, {hex(WS_FLAG)}")
        a(f"v_mov_b32 v40, s{S_T0}")
    a("s_waitcnt lgkmcnt(0)")
    if OPT["ff"] == 1:
        a(f"s_cmp_lg_u32 s{S_WV}, 0")
        a("s_cbranch_scc1 L_nopt")
        a(f"global_load_dword v41, v40, s[{P_WS}:{P_WS+1}] nt")
        a.lab("L_nopt")
    srd(a, R_K, P_K, 0x200000)
    a(f"s_cmp_lg_u32 s{S_WV}, 3")
    a("s_cbranch_scc1 L_nohalo")
    a(f"s_mov_b32 m0, {P1K-1024}")
    a("s_mov_b32 exec_lo, 0")
    a("s_mov_b32 exec_hi, 0xffffff00")
    a(f"buffer_load_dwordx4 v9, s[{R_K}:{R_K+3}], 0 offen lds")
    a("s_mov_b64 exec, -1")
    a.lab("L_nohalo")
    for base, R, P in ((P1K, R_K, None), (P1V, R_V, P_V), (P1U, R_U, P_U)):
        if P is not None:
            srd(a, R, P, 0x200000)
        a(f"s_add_u32 m0, s{S_T3}, {base}")
        a("s_nop 0")
        NT = " nt" if (OPT["nt"] & 1) and (R != R_U or OPT["nt"] & 4) else ""
        a(f"buffer_load_dwordx4 v8, s[{R}:{R+3}], 0 offen{NT} lds")
        a(f"s_add_u32 m0, s{S_T3}, {base+4096}")
        a("s_nop 0")
        a(f"buffer_load_dwordx4 v58, s[{R}:{R+3}], s{S_KV0} offen{NT} lds")
    a(f"global_load_dwordx4 v[48:51], v10, s[{P_SHK}:{P_SHK+1}]")
    stamp(a, 10)
    srd(a, R_DBG, P_DBG, 256)
    a("v_mov_b32 v56, 0")
    a(f"s_or_b32 s{S_T0}, s{S_WV}, s2")
    a(f"s_cmp_lg_u32 s{S_T0}, 0")
    a("s_cbranch_scc1 L_nonon")
    a(f"s_or_b32 s{S_NON}, s{S_NON}, 1")
    a(f"v_mov_b32 v52, s{S_NON}")
    a(f"v_mov_b32 v53, s{S_NON+1}")
    a("s_mov_b64 exec, 1")
    a(f"buffer_store_dwordx2 v[52:53], v56, s[{R_DBG}:{R_DBG+3}], 0 offen{SC}")
    a("s_mov_b64 exec, -1")
    a.lab("L_nonon")
    srd(a, R_WS, P_WS, WS_SIZE)
    a(f"s_mov_b32 s{S_SELLO}, 0x05040100")
    a(f"s_mov_b32 s{S_SELHI}, 0x07060302")
    a(f"s_mov_b32 s{S_KV0}, {hex(WS_KV)}")
    a(f"s_mov_b32 s{S_KV1}, {hex(WS_KV+4096)}")
    a(f"s_lshl_b32 s{S_T0}, s{S_PCG}, 18")
    a(f"s_lshl_b32 s{S_T1}, s{S_PTB}, 7")
    a(f"s_add_u32 s{S_T0}, s{S_T0}, s{S_T1}")
    a(f"v_lshl_add_u32 v10, v6, 13, s{S_T0}")
    a("v_lshl_add_u32 v10, v57, 4, v10")
    a("v_lshrrev_b32 v12, 2, v6")
    a("v_and_b32 v13, 3, v6")
    a("v_xor_b32 v16, v57, v12")
    a("v_lshlrev_b32 v8, 10, v57")
    a("v_lshl_add_u32 v8, v13, 2, v8")
    a(f"v_add_u32 v8, {P1S}, v8")
    a("v_add_u32 v15, 7, v57")
    a("v_and_b32 v15, 7, v15")
    a("v_xor_b32 v15, v15, v12")
    a("v_lshl_add_u32 v9, v15, 4, v8")
    a("v_lshl_add_u32 v8, v16, 4, v8")
    a(f"s_lshl_b32 s{S_T0}, s{S_D0}, 12")
    a(f"v_lshl_add_u32 v11, v0, 4, s{S_T0}")
    a("v_lshlrev_b32 v14, 4, v0")
    a(f"v_add_u32 v15, {2*CONV}, v14")
    a("v_and_b32 v19, 7, v1")
    a(f"s_lshl_b32 s{S_T0}, s{S_CG}, 12")
    a(f"s_lshl_b32 s{S_T1}, s{S_WV}, 10")
    a(f"s_add_u32 s{S_T0}, s{S_T0}, s{S_T1}")
    a(f"s_add_u32 s{S_T0}, s{S_T0}, {hex(WS_FLAG)}")
    a(f"v_lshl_add_u32 v19, v19, 7, s{S_T0}")
    a(f"s_lshl_b32 s{S_T0}, s{S_PCG}, 12")
    a(f"s_lshl_b32 s{S_T1}, s{S_PTB}, 7")
    a(f"s_add_u32 s{S_T0}, s{S_T0}, s{S_T1}")
    a(f"s_add_u32 s{S_T0}, s{S_T0}, {hex(WS_FLAG)}")
    if OPT["fullflag"]:
        a(f"v_lshl_add_u32 v18, v1, 3, s{S_T0}")
    else:
        a(f"v_mov_b32 v18, s{S_T0}")
    if OPT["fwarm"]:
        a(f"s_cmp_lg_u32 s{S_WV}, 1")
        a("s_cbranch_scc1 L_nofw")
        a("v_mov_b32 v44, 0")
        a("v_mov_b32 v45, 0")
        a("s_mov_b64 exec, 0xffff")
        a(f"buffer_store_dwordx2 v[44:45], v18, s[{R_WS}:{R_WS+3}], 0 offen{SC}")
        a("s_mov_b64 exec, -1")
        a.lab("L_nofw")
    if OPT["ff"]:
        a("v_bfe_u32 v12, v1, 3, 1")
        a("v_lshl_add_u32 v19, v12, 15, v19")
    conv_setup(a)
    a(f"v_mov_b32 v16, {C_SIG}")
    a("v_mov_b32 v17, 1")
    a("s_barrier")
    stamp(a, 1)
    a("s_waitcnt vmcnt(0)")
    a("s_mov_b64 exec, 1")
    a("ds_add_u32 v16, v17 offset:4")
    a("s_mov_b64 exec, -1")
    a(f"buffer_load_dwordx2 v[52:53], v56, s[{R_DBG}:{R_DBG+3}], 0 offen{SC}")
    SP = 60
    a(f"v_lshlrev_b32 v{SP+0}, 16, v48")
    a(f"v_lshlrev_b32 v{SP+1}, 16, v50")
    a(f"v_and_b32 v{SP+2}, s{S_HI}, v48")
    a(f"v_and_b32 v{SP+3}, s{S_HI}, v50")
    a(f"v_lshlrev_b32 v{SP+4}, 16, v49")
    a(f"v_lshlrev_b32 v{SP+5}, 16, v51")
    a(f"v_and_b32 v{SP+6}, s{S_HI}, v49")
    a(f"v_and_b32 v{SP+7}, s{S_HI}, v51")
    a(f"v_mov_b32 v12, {C_P1}")
    lds_spin(a, "L_p1spin", 12, 13, 4)
    stamp(a, 2)
    for j in range(8):
        a(f"ds_read_b32 v{39+j}, v8 offset:{P1U-P1S+j*128}")
    for j in range(3):
        a(f"ds_read_b32 v{20+j}, v9 offset:{(5+j)*128}")
    for base, off in ((23, P1K), (31, P1V)):
        for j in range(8):
            a(f"ds_read_b32 v{base+j}, v8 offset:{off-P1S+j*128}")
    a("s_waitcnt lgkmcnt(15)")
    O2 = 130
    for ch, sel in ((0, S_SELLO), (1, S_SELHI)):
        for j in range(4):
            a(f"v_perm_b32 v{O2+4*ch+j}, v{39+2*j+1}, v{39+2*j}, s{sel}")
        so = "0" if ch == 0 else f"s{S_4096}"
        a(f"buffer_store_dwordx4 {vr(O2+4*ch,4)}, v10, s[{R_WS}:{R_WS+3}], {so} offen{SC}")
    KP = 68
    a("s_waitcnt lgkmcnt(8)")
    for i in range(11):
        unpack2(a, KP + 2 * i, 20 + i)
    ACC = 90
    T = 106
    for r in range(8):
        a(f"v_pk_mul_f32 {vr(ACC+2*r,2)}, {vr(KP+2*r,2)}, {vr(SP+6,2)}")
    for j in (1, 2, 3):
        for r in range(8):
            a(f"v_pk_fma_f32 {vr(ACC+2*r,2)}, {vr(KP+2*(r+j),2)}, {vr(SP+6-2*j,2)}, {vr(ACC+2*r,2)}")
    a("s_waitcnt lgkmcnt(0)")
    for r in range(8):
        unpack2(a, T + 2 * r, 31 + r)
    for r in range(8):
        a(f"v_pk_mul_f32 {vr(ACC+2*r,2)}, {vr(ACC+2*r,2)}, {vr(T+2*r,2)}")
    O = 122
    for ch in range(2):
        for j in range(4):
            a(f"v_cvt_pk_bf16_f32 v{O+4*ch+j}, v{ACC+2*(2*j)+ch}, v{ACC+2*(2*j+1)+ch}")
        so = S_KV0 if ch == 0 else S_KV1
        a(f"buffer_store_dwordx4 {vr(O+4*ch,4)}, v10, s[{R_WS}:{R_WS+3}], s{so} offen{SC}")
    stamp(a, 3)
    nonce_check(a, "d", 52, 56)
    stamp(a, 4)
    a.c("---- signal")
    a("s_mov_b64 exec, 1")
    a("ds_add_rtn_u32 v13, v16, v17")
    a("s_waitcnt lgkmcnt(0)")
    a(f"v_readfirstlane_b32 s{S_T1}, v13")
    a(f"s_cmp_lg_u32 s{S_T1}, 3")
    a("s_cbranch_scc1 L_nosig")
    if OPT["fullflag"]:
        a("s_mov_b64 exec, 0xffff")
    if OPT["ff"]:
        a(f"buffer_store_dwordx2 v[52:53], v18, s[{R_WS}:{R_WS+3}], 0 offen")
    else:
        a(f"buffer_store_dwordx2 v[52:53], v18, s[{R_WS}:{R_WS+3}], 0 offen{SC}")
    a.lab("L_nosig")
    a("s_mov_b64 exec, -1")
    a.c("---- wait for this wave's 8 producers")
    if OPT["pdelay"]:
        a(f"s_sleep {OPT['pdelay']}")
    a(f"s_mov_b32 s{S_SPIN}, 0")
    if OPT["ff"]:
        a("v_mov_b32 v40, 0")
        a.lab("L_poll")
        a("s_mov_b64 exec, 0xff")
        a(f"buffer_load_dwordx2 v[40:41], v19, s[{R_WS}:{R_WS+3}], 0 offen nt")
        a(f"s_cmp_lt_u32 s{S_SPIN}, {OPT['ffn']}")
        a("s_cbranch_scc1 L_noslow")
        a("s_mov_b64 exec, 0xff00")
        a(f"buffer_load_dwordx2 v[40:41], v19, s[{R_WS}:{R_WS+3}], 0 offen{SC}")
        a.lab("L_noslow")
        a("s_mov_b64 exec, -1")
        a(f"s_add_u32 s{S_SPIN}, s{S_SPIN}, 1")
        a("s_waitcnt vmcnt(0)")
        a(f"v_cmp_eq_u64 vcc, s[{S_NON}:{S_NON+1}], v[40:41]")
        a(f"s_cmp_ge_u32 s{S_SPIN}, {hex(SPIN_MAX)}")
        a("s_cbranch_scc1 L_poll_done")
        a(f"s_lshr_b32 s{S_T0}, vcc_lo, 8")
        a(f"s_or_b32 s{S_T0}, s{S_T0}, vcc_lo")
        a(f"s_and_b32 s{S_T0}, s{S_T0}, 0xff")
        a(f"s_cmp_lg_u32 s{S_T0}, 0xff")
        a("s_cbranch_scc1 L_poll")
    else:
        a.lab("L_poll")
        a(f"buffer_load_dwordx2 v[40:41], v19, s[{R_WS}:{R_WS+3}], 0 offen{SC}")
        a(f"s_add_u32 s{S_SPIN}, s{S_SPIN}, 1")
        a("s_waitcnt vmcnt(0)")
        a(f"v_cmp_ne_u64 vcc, s[{S_NON}:{S_NON+1}], v[40:41]")
        a(f"s_cmp_ge_u32 s{S_SPIN}, {hex(SPIN_MAX)}")
        a("s_cbranch_scc1 L_poll_done")
        a("s_cmp_eq_u64 vcc, 0")
        a("s_cbranch_scc1 L_poll_done")
        if OPT["pollsleep"]:
            a(f"s_sleep {OPT['pollsleep']}")
        a("s_branch L_poll")
    a.lab("L_poll_done")
    stamp(a, 6)
    a.c("---- phase 2 loads")
    sofs = ["0", f"s{S_4096}", f"s{S_KV0}", f"s{S_KV1}"]
    for q in range(4):
        a(f"buffer_load_dwordx4 {vr(20+4*q,4)}, v11, s[{R_WS}:{R_WS+3}], {sofs[q]} offen{SC}")
    for q in range(4):
        a(f"s_waitcnt vmcnt({3-q})")
        ad = "v14" if q < 2 else "v15"
        a(f"ds_write_b128 {ad}, {vr(20+4*q,4)} offset:{XB(q&1)+XD}")
        a(f"ds_write_b64 {ad}, {vr(20+4*q,2)} offset:{XB(q&1)+456}")
        a(f"ds_write_b64 {ad}, {vr(22+4*q,2)} offset:{XB(q&1)+464}")
    a("s_waitcnt lgkmcnt(0)")
    stamp(a, 7)
    if OPT["dprio"]:
        a(f"s_setprio {OPT['cprio']}")
    a("s_barrier")
    stamp(a, 8)
    if OPT["exp"]:
        a(f"s_cmp_lt_u32 s{S_WV}, 2")
        a("s_cbranch_scc1 L_convA")
    conv_main(a)
    if OPT["stamp"]:
        stamp(a, 9)
        stamp_out(a)
    a("s_endpgm")
    if OPT["exp"]:
        a.lab("L_convA")
        conv_main(a, OPT["exp"])
        if OPT["stamp"]:
            stamp(a, 9)
            stamp_out(a)
        a("s_endpgm")


def conv_setup(a):
    a.c("conv address setup, q = wave")
    a(f"s_mul_i32 s{S_T0}, s{S_WV}, {CONV}")
    a("v_and_b32 v12, 15, v1")
    a("v_lshrrev_b32 v13, 4, v1")
    a("v_and_b32 v16, 3, v12")
    a("v_lshrrev_b32 v17, 2, v12")
    a(f"v_mul_u32_u24 v2, {KSTR}, v16")
    a("v_lshl_add_u32 v2, v13, 4, v2")
    a("v_lshlrev_b32 v17, 4, v17")
    a("v_sub_u32 v2, v2, v17")
    a(f"s_add_u32 s{S_T1}, s{S_T0}, {KR(0,0)+48}")
    a(f"v_add_u32 v2, s{S_T1}, v2")
    a("v_and_b32 v16, 1, v12")
    a("v_lshrrev_b32 v17, 1, v12")
    a(f"v_mul_u32_u24 v3, {XSTR}, v16")
    a("v_lshl_add_u32 v3, v13, 4, v3")
    a("v_lshl_add_u32 v3, v17, 6, v3")
    a(f"s_add_u32 s{S_T1}, s{S_T0}, {XB(0)}")
    a(f"v_add_u32 v3, s{S_T1}, v3")
    a("v_mul_u32_u24 v4, 72, v17")
    a("v_lshl_add_u32 v4, v13, 4, v4")
    a("v_lshl_add_u32 v4, v16, 3, v4")
    a(f"s_mul_i32 s{S_T1}, s{S_WV}, {YSZ}")
    a(f"s_add_u32 s{S_T1}, s{S_T1}, {YS}")
    a(f"v_add_u32 v4, s{S_T1}, v4")
    a(f"s_lshl_b32 s{S_T1}, s{S_WV}, 2")
    a(f"s_add_u32 s{S_T1}, s{S_T1}, {C_Y}")
    a(f"v_mov_b32 v5, s{S_T1}")


def conv_main2(a):
    ACC = 6
    SLOTS = [38 + 4 * i for i in range(32)]
    grp = groups()
    steps = []
    for part in OPT["order"].split(","):
        tl, rr = part.split(":")
        for r in rr:
            steps.append(([int(c) for c in tl], int(r)))
    cov = {t: set() for t in range(8)}
    mf = []
    gdone = {}
    for si, (tl, r) in enumerate(steps):
        pairs = [(e1, tau - e1, tau) for tau in tl for e1 in range(tau + 1)]
        pairs.sort(key=lambda p: (max(p[0], p[1]), p[2]))
        for (e1, c1, tau) in pairs:
            mf.append((tau, ("F", si, r, e1), ("G", si, r, c1)))
        for t in tl:
            assert r not in cov[t]
            cov[t].add(r)
        for gi, g in enumerate(grp):
            if gi not in gdone.values() and all(len(cov[t]) == 8 for t in g):
                gdone[len(mf) - 1] = gi
    assert len(mf) == 288 and len(gdone) == len(grp)
    first, last = {}, {}
    for i, (tau, fk, gk) in enumerate(mf):
        for k in (fk, gk):
            first.setdefault(k, i)
            last[k] = i
    frs = sorted(first, key=lambda k: (first[k], k[0] == "F"))
    ninstr = len(frs)
    rate = ninstr / 288.0 * OPT["boost"] / 100.0
    free = list(SLOTS)
    reg = {}
    seq = [0]; done = [0]; when = {}

    def lds(sx, key=None):
        a(sx)
        if key is not None:
            when[key] = seq[0]
        seq[0] += 1

    def need(idx):
        if idx < done[0]:
            return
        n = min(seq[0] - idx - 1, OPT["wslack"] if seq[0] > 30 else 15)
        a(f"s_waitcnt lgkmcnt({n})")
        if not OPT["nonop"]:
            a("s_nop 0")
        done[0] = seq[0] - n

    def issue(k):
        rg = free.pop(0)
        reg[k] = rg
        _, si, r, i = k
        if k[0] == "G":
            lds(f"ds_read_b128 {vr(rg,4)}, v3 offset:{512*i+64*r}", k)
            return 1
        lds(f"ds_read_b128 {vr(rg,4)}, v2 offset:{512*(7-i)+64*r}", k)
        return 1

    a(".p2align 3")
    nxt = 0
    for _ in range(OPT["pre"]):
        issue(frs[nxt]); nxt += 1
    started = set(); pending = []; mark = [0]
    credit = 0.0
    for i, (tau, fk, gk) in enumerate(mf):
        while nxt < len(frs) and first[frs[nxt]] <= i:
            issue(frs[nxt]); nxt += 1
        need(max(when[fk], when[gk]))
        c = vr(ACC + 4 * tau, 4) if tau in started else "0"
        started.add(tau)
        a(f"v_mfma_f32_16x16x32_bf16 {vr(ACC+4*tau,4)}, {vr(reg[fk],4)}, {vr(reg[gk],4)}, {c}")
        for k in (fk, gk):
            if last[k] == i:
                free.append(reg[k])
        if pending and len(a.l) - mark[0] >= 9:
            for _ in range(2):
                if pending:
                    op = pending.pop(0)
                    if op.startswith("ds_"):
                        lds(op)
                    else:
                        a(op)
        credit = min(credit + rate, 3.0)
        while nxt < len(frs) and free and (credit >= 1.0 or first[frs[nxt]] - i <= OPT["lead"]):
            credit -= issue(frs[nxt]); nxt += 1
        if i in gdone:
            gi = gdone[i]
            assert not pending
            mark[0] = len(a.l)
            for tau2 in grp[gi]:
                c = ACC + 4 * tau2
                pending.append(f"v_cvt_pk_bf16_f32 v{c}, v{c}, v{c+1}")
                pending.append(f"v_cvt_pk_bf16_f32 v{c+1}, v{c+2}, v{c+3}")
                pending.append(f"ds_write_b64 v4, {vr(c,2)} offset:{576*tau2}")
            pending.append(f"ds_write_b32 v5, v5 offset:{16*gi}")
    a("s_nop 7")
    for op in pending:
        a(op)


def conv_main(a, emax=99):
    if OPT["sched"]:
        return conv_main2(a)
    ACC = 6
    BUF = [38, 102]
    grp = groups()
    steps = []
    if OPT["plan"]:
        for part in OPT["plan"].split(","):
            tl, rr = part.split(":")
            tl = [int(c) for c in tl]
            r0, r1 = [int(x) for x in rr.split("-")]
            per = 2 if max(tl) <= 3 else 1
            for r in range(r0, r1 + 1, per):
                steps.append((tl, list(range(r, r + per))))
    else:
        for g in grp:
            per = 2 if max(g) <= 3 else 1
            for r0 in range(0, 8, per):
                steps.append((g, list(range(r0, r0 + per))))
    last = {}
    cov = {t: set() for t in range(8)}
    for si, (tl, rs) in enumerate(steps):
        for t in tl:
            assert not (cov[t] & set(rs))
            cov[t] |= set(rs)
        for gi, g in enumerate(grp):
            if gi not in last and all(len(cov[t]) == 8 for t in g):
                last[gi] = si
    assert len(last) == len(grp)

    def step_plan(si):
        g, rs = steps[si]
        nfr = max(g) + 1
        b = BUF[si & 1]
        loads, mf = [], []
        for k, r in enumerate(rs):
            fb = b + 16 * k if len(rs) > 1 else b
            gb = b + 32 + (16 * k if len(rs) > 1 else 0)
            pairs = [(e1, tau - e1, tau) for tau in g for e1 in range(tau + 1) if e1 < emax]
            pairs.sort(key=lambda p: (max(p[0], p[1]), p[2]))
            for i in range(nfr):
                if any(p[1] == i for p in pairs):
                    loads.append((("G", k, i), f"ds_read_b128 {vr(gb+4*i,4)}, v3 offset:{512*i+64*r}"))
                if i >= emax:
                    continue
                loads.append((("F", k, i), f"ds_read_b128 {vr(fb+4*i,4)}, v2 offset:{512*(7-i)+64*r}"))
            for (e1, c1, tau) in pairs:
                mf.append((tau, ("F", k, e1), ("G", k, c1), fb + 4 * e1, gb + 4 * c1))
        return loads, mf

    plans = [step_plan(si) for si in range(len(steps))]
    seq = [0]
    done = [0]
    when = {}

    def lds(s, key=None):
        a(s)
        if key is not None:
            when[key] = seq[0]
        seq[0] += 1

    def need(idx):
        if idx < done[0]:
            return
        n = min(seq[0] - idx - 1, OPT["wslack"] if seq[0] > 30 else 15)
        a(f"s_waitcnt lgkmcnt({n})")
        if not OPT["nonop"]:
            a("s_nop 0")
        done[0] = seq[0] - n

    a(".p2align 3")
    for key, s in plans[0][0]:
        lds(s, (0,) + key)
    started = set()
    mark = [0]
    pending = []
    for si in range(len(steps)):
        loads, mf = plans[si]
        nl = list(plans[si + 1][0]) if si + 1 < len(steps) else []
        nm = len(mf)
        slots = max(1, nm * OPT["frac"] // 100)
        ntot = len(nl)
        for i, (tau, fk, gk, fr, gr) in enumerate(mf):
            need(max(when[(si,) + fk], when[(si,) + gk]))
            c = vr(ACC + 4 * tau, 4) if tau in started else "0"
            started.add(tau)
            a(f"v_mfma_f32_16x16x32_bf16 {vr(ACC+4*tau,4)}, {vr(fr,4)}, {vr(gr,4)}, {c}")
            if pending and len(a.l) - mark[0] >= 9:
                for _ in range(2):
                    if pending:
                        op = pending.pop(0)
                        if op.startswith("ds_"):
                            lds(op)
                        else:
                            a(op)
            want = min(ntot, -(-ntot * (i + 1) // slots))
            while ntot - len(nl) < want:
                key, s = nl.pop(0)
                lds(s, (si + 1,) + key)
        assert not nl
        for gi in [g_ for g_, l_ in last.items() if l_ == si]:
            assert not pending
            mark[0] = len(a.l)
            for tau in grp[gi]:
                c = ACC + 4 * tau
                pending.append(f"v_cvt_pk_bf16_f32 v{c}, v{c}, v{c+1}")
                pending.append(f"v_cvt_pk_bf16_f32 v{c+1}, v{c+2}, v{c+3}")
                pending.append(f"ds_write_b64 v4, {vr(c,2)} offset:{576*tau}")
            pending.append(f"ds_write_b32 v5, v5 offset:{16*gi}")
    a("s_nop 7")
    for op in pending:
        a(op)


XA = 154


def expansion_addr(a, g):
    a.c("expansion addresses")
    a(f"s_lshr_b32 s{S_KC}, s{S_W4}, 1")
    a(f"s_and_b32 s{S_HM}, s{S_W4}, 1")
    a(f"s_lshl_b32 s{S_T0}, s{S_HM}, 7")
    a(f"s_add_u32 s{S_T0}, s{S_T0}, {64*g}")
    a(f"v_add_u32 v12, s{S_T0}, v1")
    a(f"s_mul_i32 s{S_T1}, s{S_KC}, {KCSZ}")
    a(f"s_add_u32 s{S_T1}, s{S_T1}, {KC}")
    a(f"s_sub_u32 s{S_T3}, s{S_T1}, {IDXBIAS}")
    a(f"s_mul_i32 s{S_T2}, s{S_KC}, {CONV}")
    a(f"s_add_u32 s{S_T2}, s{S_T2}, {KR(0,0)-4}")
    a("v_lshlrev_b32 v11, 3, v12")
    a("v_sub_u32 v11, 2047, v11")
    a("v_cvt_f32_u32 v8, v11")
    if g == 1:
        a("v_cmp_gt_u32 vcc, 0x100, v11")
        a(f"v_lshl_add_u32 v10, v11, 3, s{S_T1}")
    for k in range(9):
        d = XA + k
        if k == 0:
            a(f"v_cvt_pk_bf16_f32 v{d}, 0, v8")
        else:
            lit = {1: "-1.0", 2: "-2.0", 4: "-4.0"}.get(k, hex(f2u(-float(k))))
            a(f"v_add_f32 v9, {lit}, v8")
            a(f"v_cvt_pk_bf16_f32 v{d}, 0, v9")
        a(f"v_lshrrev_b32 v{d}, 13, v{d}")
        a(f"v_add_u32 v{d}, s{S_T3}, v{d}")
        if g == 1:
            a(f"v_subrev_u32 v9, {8*k}, v10")
            a(f"v_cndmask_b32 v{d}, v{d}, v9, vcc")
    a(f"v_lshl_add_u32 v163, v12, 4, s{S_T2}")
    if g == 1:
        a("v_cmp_eq_u32 vcc, 0xff, v12")
        a(f"s_add_u32 s{S_T0}, s{S_T1}, {768*8}")
        a(f"v_mov_b32 v9, s{S_T0}")
        a(f"v_cndmask_b32 v{XA+8}, v{XA+8}, v9, vcc")
    a(f"s_lshl_b32 s{S_T0}, s{S_KC}, 2")
    a(f"s_add_u32 s{S_T0}, s{S_T0}, {C_KG}")
    a(f"v_mov_b32 v164, s{S_T0}")


def expansion(a, tag):
    lds_spin(a, f"L_kspin_{tag}", 164, 8, 2, sleep=(OPT["asleep"] if tag == "a" else 0))
    stamp(a, 8)
    a.c("expansion")
    B = 100
    for k in range(9):
        a(f"ds_read_b64 {vr(B+2*k,2)}, v{XA+k}")
    a("s_waitcnt lgkmcnt(0)")
    for k in range(9):
        a(f"v_add_f32 v{B+2*k}, v{B+2*k}, v{B+2*k+1}")
    P3, P2 = 120, 124
    for j in range(4):
        b = B + 4 * j
        a(f"v_cvt_pk_bf16_f32 v{P3+j}, v{b}, v{b+2}")
        a(f"v_cvt_pk_bf16_f32 v{P2+j}, v{b+2}, v{b+4}")
    k_copies(a, 163, P3, P2)


def kgen_waves(a):
    a.c("==== K generation waves")
    if OPT["kprio"]:
        a(f"s_setprio {OPT['kprio']}")
    a(f"s_lshr_b32 s{S_KC}, s{S_W4}, 1")
    a(f"s_and_b32 s{S_HM}, s{S_W4}, 1")
    a(f"s_add_u32 s{S_T1}, s{S_D0}, s{S_KC}")
    a(f"s_lshl_b32 s{S_T3}, s{S_T1}, 1")
    a(f"v_mov_b32 v8, s{S_T3}")
    a(f"s_lshl_b32 s{S_T1}, s{S_T1}, 8")
    a(f"s_lshl_b32 s{S_T2}, s{S_HM}, 7")
    a(f"s_add_u32 s{S_T1}, s{S_T1}, s{S_T2}")
    a(f"v_lshl_add_u32 v2, v1, 1, s{S_T1}")
    a("s_waitcnt lgkmcnt(0)")
    a(f"global_load_ushort v7, v8, s[{P_LDT}:{P_LDT+1}]")
    a(f"global_load_ushort v3, v2, s[{P_LAR}:{P_LAR+1}]" + (" nt" if OPT["nt"] & 16 else ""))
    a(f"global_load_ushort v4, v2, s[{P_AIM}:{P_AIM+1}]" + (" nt" if OPT["nt"] & 16 else ""))
    a(f"global_load_ushort v5, v2, s[{P_CR}:{P_CR+1}]" + (" nt" if OPT["nt"] & 16 else ""))
    a(f"global_load_ushort v6, v2, s[{P_CI}:{P_CI+1}]" + (" nt" if OPT["nt"] & 16 else ""))
    if OPT["stamp"]:
        srd(a, R_WS, P_WS, WS_SIZE)
    expansion_addr(a, 0)
    TBW, TBR, KA0, KA1, KA2 = 16, 17, 18, 19, 49
    a(f"s_mul_i32 s{S_T0}, s{S_W4}, {TBLSZ}")
    a(f"s_add_u32 s{S_T0}, s{S_T0}, {TBL}")
    a(f"v_lshl_add_u32 v{TBW}, v1, 2, s{S_T0}")
    a("v_and_b32 v13, 15, v1")
    a("v_lshrrev_b32 v8, 4, v1")
    a(f"v_mul_u32_u24 v{TBR}, 288, v13")
    a(f"v_lshl_add_u32 v{TBR}, v8, 4, v{TBR}")
    a(f"v_add_u32 v{TBR}, s{S_T0}, v{TBR}")
    a(f"s_lshl_b32 s{S_T0}, s{S_HM}, 2")
    a(f"s_add_u32 s{S_T1}, s{S_T1}, s{S_T0}")
    a("v_lshrrev_b32 v9, 1, v8")
    a("v_and_b32 v10, 1, v8")
    a(f"v_lshlrev_b32 v{KA0}, 7, v9")
    a(f"v_lshl_add_u32 v{KA0}, v10, 2, v{KA0}")
    a(f"v_lshl_add_u32 v{KA0}, v13, 3, v{KA0}")
    a(f"v_lshl_add_u32 v{KA0}, v{KA0}, 3, s{S_T1}")
    a("v_lshlrev_b32 v11, 1, v10")
    a("v_lshl_add_u32 v11, v13, 2, v11")
    a("v_add_u32 v11, 0x100, v11")
    a("v_lshlrev_b32 v12, 5, v10")
    a("v_lshl_add_u32 v12, v13, 1, v12")
    a("v_cmp_eq_u32 vcc, 0, v9")
    a("v_add_u32 v12, 0x180, v12")
    a(f"v_lshl_add_u32 v{KA2}, v8, 6, v13")
    a(f"v_cndmask_b32 v{KA1}, v12, v11, vcc")
    a(f"v_lshl_add_u32 v{KA1}, v{KA1}, 3, s{S_T1}")
    a(f"v_add_u32 v{KA2}, 0x200, v{KA2}")
    a(f"v_lshl_add_u32 v{KA2}, v{KA2}, 3, s{S_T1}")
    a("s_barrier")
    stamp(a, 2)
    a.c("parameters")
    a("s_waitcnt vmcnt(0)")
    stamp(a, 4)
    a("v_lshlrev_b32 v8, 16, v7")
    a("v_lshlrev_b32 v9, 16, v3")
    a(f"s_mov_b32 s{S_T1}, {hex(L2E)}")
    a(f"s_mov_b32 s{S_T2}, {hex(L2E_LO)}")
    for x, p, e in ((8, 10, 12), (9, 11, 13)):
        a(f"v_mul_f32 v{p}, s{S_T1}, v{x}")
        a(f"v_fma_f32 v{e}, v{x}, s{S_T1}, -v{p}")
        a(f"v_fma_f32 v{e}, v{x}, s{S_T2}, v{e}")
        a(f"v_exp_f32 v{p}, v{p}")
        a(f"v_mul_f32 v{e}, {hex(LN2)}, v{e}")
    a("v_lshlrev_b32 v4, 16, v4")
    for x, p, e in ((8, 10, 12), (9, 11, 13)):
        a(f"v_fma_f32 v{p}, v{p}, v{e}, v{p}")
        rnd(a, p, p)
    a("v_mul_f32 v11, v11, v10")
    a(f"v_mul_f32 v11, {hex(L2E | 0x80000000)}, v11")
    a("v_mul_f32 v4, v4, v10")
    a("v_mul_f32 v12, 0.15915494, v4")
    a("v_add_f32 v10, v10, v10")
    a("v_lshlrev_b32 v5, 16, v5")
    a("v_lshlrev_b32 v6, 16, v6")
    a("v_mul_f32 v14, v5, v10")
    a("v_mul_f32 v15, v6, v10")
    a("v_max_f32 v13, |v14|, |v15|")
    E = lambda j: 20 + 2 * j
    tmp = {0: (50, 51), 3: (52, 53), 7: (54, 55)}
    dpps = [f"v_max_u32_dpp v13, v13, v13 {d} bank_mask:0xf" for d in
            ("quad_perm:[1,0,3,2] row_mask:0xf", "quad_perm:[2,3,0,1] row_mask:0xf", "row_half_mirror row_mask:0xf",
             "row_mirror row_mask:0xf", "row_bcast:15 row_mask:0xa", "row_bcast:31 row_mask:0xc")]
    anc = []
    for j, (m, f) in tmp.items():
        if j == 0:
            anc += [f"v_exp_f32 v{m}, v11", f"v_fract_f32 v{f}, v12"]
        else:
            anc += [f"v_mul_f32 v{m}, {hex(f2u(2.0**j))}, v11", f"v_mul_f32 v{f}, {hex(f2u(2.0**j))}, v12",
                    f"v_exp_f32 v{m}, v{m}", f"v_fract_f32 v{f}, v{f}"]
    for j, (m, f) in tmp.items():
        anc += [f"v_cos_f32 v{E(j)}, v{f}", f"v_sin_f32 v{E(j)+1}, v{f}"]
    a.c("anchors")
    k = 0
    for d in dpps:
        a(anc[k]); a(anc[k + 1]); k += 2
        a(d)
    for o in anc[k:]:
        a(o)
    a(f"v_readlane_b32 s{S_T0}, v13, 63")
    for j, (m, f) in tmp.items():
        a(f"v_mul_f32 v{E(j)}, v{E(j)}, v{m}")
        a(f"v_mul_f32 v{E(j)+1}, v{E(j)+1}, v{m}")
    a(f"s_lshr_b32 s{S_T0}, s{S_T0}, 23")
    a(f"s_max_u32 s{S_T0}, s{S_T0}, 16")
    a(f"s_sub_u32 s{S_SC}, 264, s{S_T0}")
    a(f"s_lshl_b32 s{S_SC}, s{S_SC}, 23")
    a(f"s_sub_u32 s{S_ISC}, s{S_T0}, 10")
    a(f"s_lshl_b32 s{S_ISC}, s{S_ISC}, 23")
    interleave(a, [sum([cmul_ops(E(j), E(j - 1), E(j - 1)) for j in js], []) for js in ((4, 5, 6), (8, 9, 10, 11), (1, 2))])
    a.c("Y tile")
    tcount = [0]

    def put_ops(row, x, neg):
        t = 44 + (tcount[0] % 4)
        tcount[0] += 1
        return [f"v_cvt_pk_f16_f32 v{t}, v{x}, {'-' if neg else ''}v{x+1}",
                f"ds_write_b32 v{TBW}, v{t} offset:{288*row}"]

    def run_items(items):
        for i in range(0, len(items), 2):
            ch = []
            for (d, x, y, row, neg) in items[i:i + 2]:
                ops = [] if x is None else cmul_ops(d, x, y)
                if row is not None:
                    ops += put_ops(row, d, neg)
                ch.append(ops)
            interleave(a, ch)

    CT = 98
    Y = {1: E(3), 2: E(4), 4: E(5), 8: E(6), 3: 56, 5: 58, 6: 60, 7: 62}
    a("v_mov_b32 v48, 0x3c00")
    a(f"ds_write_b32 v{TBW}, v48")
    items = [(Y[3], Y[2], Y[1], 3, True), (Y[1], None, None, 1, True),
             (Y[5], Y[4], Y[1], 5, True), (Y[2], None, None, 2, True),
             (Y[6], Y[4], Y[2], 6, True), (Y[4], None, None, 4, True),
             (Y[7], Y[4], Y[3], 7, True), (Y[8], None, None, 8, True)]
    for b in range(9, 16):
        items.append((CT + 2 * (b % 4), Y[8], Y[b - 8], b, True))
    run_items(items)
    YF = 106
    for s in range(4):
        a(f"ds_read_b128 {vr(YF+4*s,4)}, v{TBR} offset:{64*s}")
    a.c("Z, W")
    Z = {1: E(0), 2: E(1), 4: E(2), 3: 56, 5: 58, 6: 60, 7: 62}
    W = {h: 64 + 2 * h for h in range(17)}
    a(f"v_mul_f32 v{W[0]}, s{S_SC}, v14")
    a(f"v_mul_f32 v{W[0]+1}, s{S_SC}, v15")
    run_items([(Z[3], Z[2], Z[1], None, 0), (W[1], W[0], E(7), None, 0),
               (Z[5], Z[4], Z[1], None, 0), (Z[6], Z[4], Z[2], None, 0),
               (Z[7], Z[4], Z[3], None, 0), (W[2], W[0], E(8), None, 0)])
    stamp(a, 6)
    XFT = [122, 138, 20]
    ACC = 36

    def rd(t):
        for s in range(4):
            a(f"ds_read_b128 {vr(XFT[t]+4*s,4)}, v{TBR} offset:{64*s}")

    def mm(t):
        for s in range(4):
            c = "0" if s == 0 else vr(ACC + 4 * t, 4)
            a(f"v_mfma_f32_16x16x32_f16 {vr(ACC+4*t,4)}, {vr(XFT[t]+4*s,4)}, {vr(YF+4*s,4)}, {c}")

    a.c("X tile 0")
    items = [(W[0], None, None, 0, False), (W[1], None, None, 8, False)]
    k = 0
    for r in range(1, 8):
        for h in (0, 1):
            items.append((CT + 2 * (k % 4), W[h], Z[r], 8 * h + r, False)); k += 1
    run_items(items)
    rd(0)
    run_items([(W[3], W[1], E(8), None, 0)] + [(W[h], W[h - 4], E(9), None, 0) for h in (4, 5, 6)] + [(W[7], W[3], E(9), None, 0)])
    a.c("X tile 1")
    items = []
    for G in range(4):
        for r in range(4):
            if G < 2:
                h = 2 + (r >> 1); zr = 2 * (2 * G + (r & 1))
            else:
                h = 4 + 2 * (r >> 1) + (G - 2); zr = 4 * (r & 1)
            if zr == 0:
                items.append((W[h], None, None, 4 * G + r, False))
            else:
                items.append((CT + 2 * (k % 4), W[h], Z[zr], 4 * G + r, False)); k += 1
    run_items(items)
    rd(1)
    a.c("X tile 2")
    run_items([(W[h], W[h - 8], E(10), h - 8, False) for h in range(8, 16)] + [(W[16], W[0], E(11), 8, False)])
    rd(2)
    a("s_waitcnt lgkmcnt(4)")
    mm(0)
    mm(1)
    a("s_waitcnt lgkmcnt(0)")
    mm(2)
    a("v_mov_b32 v8, 1")
    a("s_nop 2")
    for t in (0, 1):
        for r in range(4):
            a(f"v_mul_f32 v{ACC+4*t+r}, s{S_ISC}, v{ACC+4*t+r}")
    for t, offs, ad in ((0, (0, 8, 16, 24), KA0), (1, (0, 8, 512, 520), KA1)):
        for r in range(4):
            a(f"ds_write_b32 v{ad}, v{ACC+4*t+r} offset:{offs[r]}")
    for r in range(4):
        a(f"v_mul_f32 v{ACC+8+r}, s{S_ISC}, v{ACC+8+r}")
    for r in range(4):
        a(f"ds_write_b32 v{KA2}, v{ACC+8+r} offset:{128*r}")
    a("s_mov_b64 exec, 1")
    a("ds_add_u32 v164, v8")
    a("s_mov_b64 exec, -1")
    stamp(a, 7)
    expansion(a, "k")
    a("s_waitcnt lgkmcnt(0)")
    stamp(a, 9)
    a("s_barrier")
    stamp_out(a)
    a("s_endpgm")


def gate_compute(a, XR, WR, T):
    Wp = T
    X0 = T + 8
    for j in range(4):
        unpack2(a, Wp + 2 * j, WR + j)
    for row in range(2):
        X = X0 + 8 * row
        for j in range(4):
            unpack2(a, X + 2 * j, XR + 4 * row + j)
    for row in range(2):
        X = X0 + 8 * row
        for j in range(4):
            a(f"v_pk_mul_f32 {vr(X+2*j,2)}, {vr(X+2*j,2)}, {vr(Wp+2*j,2)}")
    for row in range(2):
        X = X0 + 8 * row
        for j in range(8):
            rnd(a, X + j, X + j)
    for row in range(2):
        X = X0 + 8 * row
        a(f"v_pk_add_f32 {vr(X,2)}, {vr(X,2)}, {vr(X+2,2)}")
        a(f"v_pk_add_f32 {vr(X+4,2)}, {vr(X+4,2)}, {vr(X+6,2)}")
    for row in range(2):
        X = X0 + 8 * row
        a(f"v_pk_add_f32 {vr(X,2)}, {vr(X,2)}, {vr(X+4,2)}")
    A0, A1 = X0, X0 + 8
    a(f"v_add_f32 v{A0}, v{A0}, v{A0+1}")
    a(f"v_add_f32 v{A1}, v{A1}, v{A1+1}")
    a("s_nop 0")
    for d in ("quad_perm:[1,0,3,2]", "quad_perm:[2,3,0,1]", "row_half_mirror", "row_mirror",
              "row_bcast:15 row_mask:0xa", "row_bcast:31 row_mask:0xc"):
        m = "" if "row_mask" in d else " row_mask:0xf"
        a(f"v_add_f32_dpp v{A0}, v{A0}, v{A0} {d}{m} bank_mask:0xf")
        a(f"v_add_f32_dpp v{A1}, v{A1}, v{A1} {d}{m} bank_mask:0xf")
        a("s_nop 0")
    for x in (A0, A1):
        rnd(a, x, x)
    for x in (A0, A1):
        a(f"v_mul_f32 v{x}, {hex(L2E | 0x80000000)}, v{x}")
    for x in (A0, A1):
        a(f"v_exp_f32 v{x}, v{x}")
    a("s_nop 0")
    for x in (A0, A1):
        a(f"v_add_f32 v{x}, 1.0, v{x}")
    for x in (A0, A1):
        a(f"v_rcp_f32 v{x}, v{x}")
    a("s_nop 0")
    for x in (A0, A1):
        rnd(a, x, x)
    for x in (A0, A1):
        a(f"v_sub_f32 v{x+1}, 1.0, v{x}")
    a(f"v_cvt_pk_bf16_f32 v{T}, v{A0}, v{A0+1}")
    a(f"v_mov_b32 v{T+1}, s{S_NON}")
    a(f"v_cvt_pk_bf16_f32 v{T+2}, v{A1}, v{A1+1}")
    a(f"v_mov_b32 v{T+3}, s{S_NON}")


def aux_waves(a):
    grp = groups()
    a.c("==== aux waves; v0 = thread index 0..255")
    a.c("zero init of LDS pads")
    for i in range(4):
        a(f"v_mov_b32 v{8+i}, 0")
    a("v_lshrrev_b32 v12, 6, v0")
    a(f"v_mul_u32_u24 v12, {CONV}, v12")
    a("v_bfe_u32 v14, v0, 5, 1")
    a(f"v_mul_u32_u24 v14, {XSTR}, v14")
    a("v_and_b32 v13, 31, v0")
    a("v_min_u32 v13, 28, v13")
    a("v_lshl_add_u32 v12, v13, 4, v12")
    a("v_add_u32 v12, v12, v14")
    a(f"ds_write_b128 v12, v[8:11] offset:{XB(0)}")
    a("v_bfe_u32 v13, v0, 4, 2")
    a(f"v_mul_u32_u24 v13, {CONV}, v13")
    a("v_bfe_u32 v14, v0, 2, 2")
    a(f"v_mul_u32_u24 v14, {KSTR}, v14")
    a("v_and_b32 v15, 3, v0")
    a("v_lshl_add_u32 v14, v15, 4, v14")
    a("v_add_u32 v13, v13, v14")
    a(f"v_add_u32 v13, {KR(0,0)+4080}, v13")
    a("v_cmp_gt_u32 vcc, 64, v0")
    a("v_and_b32 v14, 15, v0")
    a("v_lshlrev_b32 v14, 4, v14")
    a(f"v_add_u32 v14, {CNT}, v14")
    a("v_cndmask_b32 v12, v14, v13, vcc")
    a("v_cmp_gt_u32 vcc, 0x80, v0")
    a("v_and_b32 v15, 1, v0")
    a(f"v_mul_u32_u24 v15, {KCSZ}, v15")
    a(f"v_add_u32 v15, {KC+768*8}, v15")
    a("v_cndmask_b32 v12, v15, v12, vcc")
    a("ds_write_b128 v12, v[8:11]")
    a("s_waitcnt lgkmcnt(0)")
    a("s_barrier")
    stamp(a, 1)
    srd(a, R_WS, P_WS, WS_SIZE)
    srd(a, R_DBG, P_DBG, 256)
    srd(a, R_OUT, P_OUT, 0x200000)
    expansion_addr(a, 1)
    a(f"s_lshl_b32 s{S_T0}, s{S_D0}, 12")
    a(f"v_lshl_add_u32 v2, v0, 4, s{S_T0}")
    a("v_add_u32 v3, 0x1000, v2")
    a("v_subrev_u32 v4, 4, v2")
    a(f"v_max_i32 v4, s{S_T0}, v4")
    a(f"s_lshl_b32 s{S_T1}, s{S_GB}, 13")
    a(f"s_lshl_b32 s{S_T2}, s{S_W4}, 11")
    a(f"s_add_u32 s{S_T1}, s{S_T1}, s{S_T2}")
    a("v_lshlrev_b32 v6, 4, v1")
    a(f"v_add_u32 v5, s{S_T1}, v6")
    a(f"s_lshl_b32 s{S_T0}, s{S_W4}, 4")
    a(f"s_lshl_b32 s{S_T1}, s{S_GB}, 6")
    a(f"s_add_u32 s{S_T0}, s{S_T0}, s{S_T1}")
    a(f"s_add_u32 s{S_T0}, s{S_T0}, {hex(WS_G)}")
    a(f"v_mov_b32 v7, s{S_T0}")
    a("v_mov_b32 v56, 0")
    a(f"s_lshl_b32 s{S_T3}, s{S_D0}, 1")
    EA = {}
    for gi, g in enumerate(grp):
        n = len(g); R0 = 256 * g[0]
        sh = {1: 0, 2: 1, 4: 2}[n]
        GO, XA1, XA2, YA_, OO = 128 + gi, 133 + gi, 138 + gi, 143 + gi, 148 + gi
        EA[gi] = (GO, XA1, XA2, YA_, OO)
        a(f"v_lshlrev_b32 v8, {sh}, v0")
        a(f"v_add_u32 v8, {R0}, v8")
        a(f"v_lshlrev_b32 v{GO}, 3, v8")
        a(f"v_lshlrev_b32 v{XA1}, 1, v8")
        a(f"v_add_u32 v{XA2}, {2*CONV}, v{XA1}")
        a("v_lshrrev_b32 v9, 5, v8")
        a(f"v_lshl_add_u32 v9, v9, 3, v{XA1}")
        a(f"v_add_u32 v{YA_}, {YS}, v9")
        a(f"v_lshl_add_u32 v{OO}, v8, 10, s{S_T3}")
    if OPT["tw"]:
        a(f"s_cmp_lg_u32 s{S_W4}, 0")
        a("s_cbranch_scc1 L_notw")
        a("s_mov_b64 exec, 1")
        a(f"s_lshl_b32 s{S_T0}, s{S_PCG}, 18")
        a(f"s_lshl_b32 s{S_T1}, s{S_PTB}, 7")
        a(f"s_add_u32 s{S_T0}, s{S_T0}, s{S_T1}")
        a(f"v_mov_b32 v8, s{S_T0}")
        a(f"s_mov_b32 s{S_T2}, {hex(WS_KV)}")
        a(f"buffer_load_dword v60, v8, s[{R_WS}:{R_WS+3}], 0 offen nt")
        a(f"buffer_load_dword v61, v8, s[{R_WS}:{R_WS+3}], s{S_T2} offen nt")
        a(f"s_lshl_b32 s{S_T0}, s{S_PCG}, 12")
        a(f"s_add_u32 s{S_T0}, s{S_T0}, s{S_T1}")
        a(f"s_add_u32 s{S_T0}, s{S_T0}, {hex(WS_FLAG)}")
        a(f"v_mov_b32 v8, s{S_T0}")
        a(f"buffer_load_dword v62, v8, s[{R_WS}:{R_WS+3}], 0 offen nt")
        a(f"s_lshl_b32 s{S_T0}, s2, 13")
        a(f"v_mov_b32 v8, s{S_T0}")
        a(f"buffer_load_dword v63, v8, s[{R_OUT}:{R_OUT+3}], 0 offen nt")
        a(f"global_load_dword v64, v2, s[{P_SSMK}:{P_SSMK+1}]")
        a(f"global_load_dword v65, v6, s[{P_GW}:{P_GW+1}]")
        a("s_mov_b64 exec, -1")
        a.lab("L_notw")
    a(f"s_load_dword s{S_RAWDS}, s[{P_DSK}:{P_DSK+1}], s{S_T3}")
    a(f"s_load_dword s{S_RAWDM}, s[{P_SSMD}:{P_SSMD+1}], s{S_T3}")
    def ssmk_loads():
        NT = " nt" if OPT["nt"] & 2 else ""
        a(f"global_load_dwordx4 v[68:71], v2, s[{P_SSMK}:{P_SSMK+1}]{NT}")
        a(f"global_load_dwordx4 v[74:77], v3, s[{P_SSMK}:{P_SSMK+1}]{NT}")
        a(f"global_load_dword v67, v4, s[{P_SSMK}:{P_SSMK+1}]{NT}")
        a(f"global_load_dword v73, v3, s[{P_SSMK}:{P_SSMK+1}] offset:-4{NT}")

    def gate_loads():
        NT = " nt" if OPT["nt"] & 8 else ""
        a(f"global_load_dwordx4 v[80:83], v5, s[{P_U}:{P_U+1}]{NT}")
        a(f"global_load_dwordx4 v[84:87], v5, s[{P_U}:{P_U+1}] offset:1024{NT}")
        a(f"global_load_dwordx4 v[88:91], v6, s[{P_GW}:{P_GW+1}]")
        a(f"buffer_load_dwordx2 v[52:53], v56, s[{R_DBG}:{R_DBG+3}], 0 offen{SC}")

    def ssmk_copies():
        a.c("---- ssm_k -> LDS (reversed, 4 copies)")
        a("v_cmp_eq_u32 vcc, 0, v0")
        a("s_nop 1")
        for ch in range(2):
            q = 2 + ch
            L = 68 + 6 * ch
            P3, P2 = 20 + 8 * ch, 24 + 8 * ch
            a(f"v_cndmask_b32 v{L-1}, v{L-1}, 0, vcc")
            for d in range(4):
                a(f"v_alignbit_b32 v{P3+d}, v{L+3-d}, v{L+3-d}, 16")
                a(f"v_bfi_b32 v{P2+d}, s{S_LO}, v{L+3-d}, v{L+2-d}")
            a(f"v_add_u32 v{36+ch}, {KR(q,0)}, v9")
            k_copies(a, 36 + ch, P3, P2)

    def gate_part():
        nonce_check(a, "a", 52, 56)
        a.c("---- gate")
        gate_compute(a, 80, 88, 100)
        a("s_mov_b32 exec_lo, 0")
        a("s_mov_b32 exec_hi, 0x80000000")
        a(f"buffer_store_dwordx4 v[100:103], v7, s[{R_WS}:{R_WS+3}], 0 offen{SC}")
        a("s_mov_b64 exec, -1")

    a("v_lshlrev_b32 v9, 4, v0")
    a("v_sub_u32 v9, 4076, v9")
    M = OPT["auxmode"]
    if M in (1, 2, 3, 4):
        ssmk_loads()
    if M == 1:
        gate_loads()
    if M in (0, 2, 5, 6):
        a(f"v_mov_b32 v12, {C_P1 if M in (0, 2) else C_SIG}")
        lds_spin(a, "L_aspin", 12, 8, 4 if M != 6 else 1, sleep=2)
        stamp(a, 2)
        gate_loads()
        if M != 2:
            ssmk_loads()
    a("s_waitcnt lgkmcnt(0)")
    a(f"s_lshl_b32 s{S_DS}, s{S_RAWDS}, 16")
    a(f"s_and_b32 s{S_DS+1}, s{S_RAWDS}, s{S_HI}")
    a(f"s_lshl_b32 s{S_DM}, s{S_RAWDM}, 16")
    a(f"s_and_b32 s{S_DM+1}, s{S_RAWDM}, s{S_HI}")
    if M in (0, 5, 6):
        gate_part()
        stamp(a, 3)
        ssmk_copies()
    elif M in (1, 2):
        a("s_waitcnt vmcnt(4)")
        stamp(a, 3)
        ssmk_copies()
        gate_part()
    elif M == 3:
        a("s_waitcnt vmcnt(0)")
        stamp(a, 3)
        ssmk_copies()
        a(f"v_mov_b32 v12, {C_SIG}")
        lds_spin(a, "L_aspin", 12, 8, 4, sleep=2)
        gate_loads()
        gate_part()
    else:
        a("s_waitcnt vmcnt(0)")
        stamp(a, 3)
        ssmk_copies()
    stamp(a, 4)
    if OPT["ff"]:
        a.c("write-through flag (for consumers on other XCDs)")
        a(f"s_cmp_lg_u32 s{S_W4}, 0")
        a("s_cbranch_scc1 L_noslowflag")
        a(f"v_mov_b32 v12, {C_SIG}")
        lds_spin(a, "L_sfspin", 12, 8, 4, sleep=1)
        a(f"s_lshl_b32 s{S_T0}, s{S_PCG}, 12")
        a(f"s_lshl_b32 s{S_T1}, s{S_PTB}, 7")
        a(f"s_add_u32 s{S_T0}, s{S_T0}, s{S_T1}")
        a(f"s_add_u32 s{S_T0}, s{S_T0}, {hex(WS_FLAG+0x8000)}")
        a(f"v_lshl_add_u32 v8, v1, 3, s{S_T0}")
        a("s_mov_b64 exec, 0xffff")
        a(f"buffer_store_dwordx2 v[52:53], v8, s[{R_WS}:{R_WS+3}], 0 offen{SC}")
        a("s_mov_b64 exec, -1")
        a.lab("L_noslowflag")
    expansion(a, "a")
    a("s_waitcnt lgkmcnt(0)")
    stamp(a, 9)
    GR = 20
    XR = 36

    def gloads():
        pos = 0
        for gi, g in enumerate(grp):
            n = len(g)
            for h in range(n // 2):
                a(f"buffer_load_dwordx4 {vr(GR+2*pos+4*h,4)}, v{EA[gi][0]}, s[{R_WS}:{R_WS+3}], s{S_T2} offen offset:{16*h}{SC}")
            if n == 1:
                a(f"buffer_load_dwordx2 {vr(GR+2*pos,2)}, v{EA[gi][0]}, s[{R_WS}:{R_WS+3}], s{S_T2} offen{SC}")
            pos += n

    a(f"s_mov_b32 s{S_T2}, {hex(WS_G)}")
    if OPT["gearly"]:
        gloads()
    a("s_barrier")
    stamp(a, 10)
    if OPT["hprio"]:
        a(f"s_setprio {OPT['hprio']}")
    if M == 4:
        gate_loads()
        gate_part()
    if not OPT["gearly"]:
        gloads()
    pos = 0
    for gi, g in enumerate(grp):
        n = len(g)
        lop = {1: "u16_d16_hi" if pos & 1 else "u16_d16", 2: "b32", 4: "b64"}[n]
        for q in range(4):
            a(f"ds_read_{lop} {vr(XR+4*q+pos//2,max(1,n//2))}, v{EA[gi][1 if q < 2 else 2]} offset:{XB(q&1)+XD}")
        pos += n
    assert pos == 8
    PR = 52
    a("s_waitcnt lgkmcnt(0)")
    for r in range(8):
        B = PR + 6 * r
        U, UD, UK = B, B + 2, B + 4
        for ch in range(2):
            ext(a, U + ch, XR + 4 * ch + r // 2, r & 1)
            ext(a, UK + ch, XR + 4 * (2 + ch) + r // 2, r & 1)
        for ch in range(2):
            a(f"v_mul_f32 v{UD+ch}, s{S_DS+ch}, v{U+ch}")
            a(f"v_mul_f32 v{UK+ch}, s{S_DM+ch}, v{UK+ch}")
    a(f"s_mov_b32 s{S_SPIN}, 0")
    a("s_branch L_gchk")
    a.lab("L_gpoll")
    a("s_sleep 4")
    gloads()
    a(f"s_add_u32 s{S_SPIN}, s{S_SPIN}, 1")
    a.lab("L_gchk")
    a("s_waitcnt vmcnt(0)")
    a(f"v_xor_b32 v8, s{S_NON}, v{GR+1}")
    for r in range(1, 8):
        a(f"v_xor_b32 v9, s{S_NON}, v{GR+2*r+1}")
        a("v_or_b32 v8, v8, v9")
    a("v_cmp_ne_u32 vcc, 0, v8")
    a(f"s_cmp_ge_u32 s{S_SPIN}, {hex(SPIN_MAX)}")
    a("s_cbranch_scc1 L_gpoll_done")
    a("s_cmp_eq_u64 vcc, 0")
    a("s_cbranch_scc0 L_gpoll")
    a.lab("L_gpoll_done")
    stamp(a, 11)
    for r in range(8):
        B = PR + 6 * r
        U, UD, UK = B, B + 2, B + 4
        G0, G1 = GR + 2 * r, GR + 2 * r + 1
        a(f"v_and_b32 v{G1}, s{S_HI}, v{G0}")
        a(f"v_lshlrev_b32 v{G0}, 16, v{G0}")
        for ch in range(2):
            a(f"v_mul_f32 v{U+ch}, v{U+ch}, v{G1}")
            a(f"v_mul_f32 v{UD+ch}, v{UD+ch}, v{G0}")
        for ch in range(2):
            a(f"v_fmac_f32 v{UD+ch}, v{UK+ch}, v{U+ch}")
    a(f"v_mov_b32 v5, {C_Y}")
    pos = 0
    for gi, g in enumerate(grp):
        n = len(g)
        a(f"s_mov_b32 s{S_SPIN}, 0")
        a.lab(f"L_yspin{gi}")
        a(f"ds_read_b128 v[104:107], v5 offset:{16*gi}")
        a(f"s_add_u32 s{S_SPIN}, s{S_SPIN}, 1")
        a("s_waitcnt lgkmcnt(0)")
        a("v_min_u32 v104, v104, v105")
        a("v_min3_u32 v104, v104, v106, v107")
        a(f"s_cmp_ge_u32 s{S_SPIN}, {hex(SPIN_MAX*8)}")
        a(f"v_readfirstlane_b32 s{S_T0}, v104")
        a(f"s_cbranch_scc1 L_yspin{gi}_done")
        a(f"s_cmp_lg_u32 s{S_T0}, 0")
        a(f"s_cbranch_scc1 L_yspin{gi}_done")
        a(f"s_sleep {OPT['ysleep']}")
        a(f"s_branch L_yspin{gi}")
        a.lab(f"L_yspin{gi}_done")
        stamp(a, min(12 + gi, 14))
        lop = {1: "u16", 2: "b32", 4: "b64"}[n]
        YR = 108
        for q in range(4):
            a(f"ds_read_{lop} {vr(YR+2*q,max(1,n//2))}, v{EA[gi][3]} offset:{YSZ*q}")
        a("s_waitcnt lgkmcnt(0)")
        for k in range(n):
            r = pos + k
            B = PR + 6 * r
            CB, P = B, B + 2
            G0 = GR + 2 * r
            YA, YB = 116 + 4 * (k & 1), 118 + 4 * (k & 1)
            for ch in range(2):
                ext(a, YA + ch, YR + 2 * ch + k // 2, k & 1)
                ext(a, YB + ch, YR + 2 * (2 + ch) + k // 2, k & 1)
            for ch in range(2):
                a(f"v_fmac_f32 v{P+ch}, v{YA+ch}, v{G0}")
            for ch in range(2):
                a(f"v_fmac_f32 v{P+ch}, v{YB+ch}, v{CB+ch}")
            a(f"v_cvt_pk_bf16_f32 v{P}, v{P}, v{P+1}")
            a(f"buffer_store_dword v{P}, v{EA[gi][4]}, s[{R_OUT}:{R_OUT+3}], 0 offen offset:{1024*k}")
        pos += n
    stamp_out(a)


def kd(name):
    return f""".section .rodata,"a"
.p2align 6
.amdhsa_kernel {name}
  .amdhsa_next_free_vgpr {NV}
  .amdhsa_next_free_sgpr 102
  .amdhsa_accum_offset {NV}
  .amdhsa_group_segment_fixed_size 0
  .amdhsa_kernarg_size 136
  .amdhsa_user_sgpr_count 2
  .amdhsa_user_sgpr_kernarg_segment_ptr 1
  .amdhsa_system_sgpr_workgroup_id_x 1
  .amdhsa_float_denorm_mode_32 3
.end_amdhsa_kernel
"""


def gen():
    out = [f"; @launch grid=(256,1,1) block=(768,1,1) lds={LDS_TOTAL}\n",
           """; One workgroup per channel pair, 12 waves in three roles:
""",
           '.amdgcn_target "amdgcn-amd-amdhsa--gfx950"\n.text\n',
           f".globl {NAME}_kernel\n.p2align 8\n.type {NAME}_kernel,@function\n{NAME}_kernel:\n"]
    a = A()
    prologue(a)
    data_waves(a)
    a.lab("L_kgen")
    kgen_waves(a)
    a.lab("L_aux")
    aux_waves(a)
    a.lab("L_end")
    a("s_endpgm")
    out.append(a.text())
    out.append(kd(NAME + "_kernel"))
    return "".join(out)


if __name__ == "__main__":
    outp = sys.argv[1] if len(sys.argv) > 1 else f"cdna_kernels/{NAME}.s"
    for x in sys.argv[2:]:
        k, v = x.split("=")
        OPT[k] = v if k in ("groups", "plan", "order") else int(v)
    txt = gen()
    open(outp, "w").write(txt)
    print("wrote", outp, len(txt), "bytes; LDS", LDS_TOTAL)
```
